```python
import torch

def _softmax(x, axis=-1):
    return torch.softmax(x, dim=axis)
def _gelu(x):
    return torch.nn.functional.gelu(x, approximate="tanh")
def _silu(x):
    return torch.nn.functional.silu(x)
def _sigmoid(x):
    return torch.sigmoid(x)
def _layernorm(x, axis=-1, eps=1e-5):
    m = x.mean(dim=axis, keepdim=True)
    v = x.var(dim=axis, keepdim=True, unbiased=False)
    return (x - m) / torch.sqrt(v + eps)
def _scatter_add(tgt, idx, src, axis=0):
    return tgt.clone().index_add_(axis, idx, src)
def _segment_sum(src, seg, n):
    out = torch.zeros((n,) + src.shape[1:], dtype=src.dtype)
    return out.index_add_(0, seg, src)
def _pad(x, pw):
    flat = tuple(v for pair in reversed(pw) for v in pair)
    return torch.nn.functional.pad(x, flat)

kernel_name = 'gated_mix__softmax_full_mha__swiglu_ffn__prompt'

def setup_inputs():

    _w = (lambda a: (lambda t: t.to(torch.bfloat16) if t.is_floating_point() else t)(torch.as_tensor(a)))
    def _A_setup():
        B, S, D = 1, 2048, 448
        return {
            "x": _w((lambda *s: torch.randn(*s, dtype=torch.bfloat16) * 0.05)(B, S, D)),
            "wqkv": _w((lambda *s: torch.randn(*s, dtype=torch.bfloat16) * 0.8)(D, 3 * D)),
            "wo": _w((lambda *s: torch.randn(*s, dtype=torch.bfloat16) * 0.05)(D, D)),
        }
    _A_in = _A_setup()

    def _B_setup():
        B, S, D, F = 1, 2048, 448, 1792
        return {
            "x": _w((lambda *s: torch.randn(*s, dtype=torch.bfloat16) * 0.05)(B, S, D)),
            "w_gate": _w((lambda *s: torch.randn(*s, dtype=torch.bfloat16) * 0.1)(D, F)),
            "w_up": _w((lambda *s: torch.randn(*s, dtype=torch.bfloat16) * 0.1)(D, F)),
            "w_down": _w((lambda *s: torch.randn(*s, dtype=torch.bfloat16) * 0.1)(F, D)),
        }
    _B_in = _B_setup()

    return {
        "A_x": _A_in["x"],
        "A_wqkv": _A_in["wqkv"],
        "A_wo": _A_in["wo"],
        "B_x": _B_in["x"],
        "B_w_gate": _B_in["w_gate"],
        "B_w_up": _B_in["w_up"],
        "B_w_down": _B_in["w_down"],
        "gate_w": _w((lambda *s: torch.randn(*s, dtype=torch.bfloat16) * 0.05)(448) * 16.0),
    }

def reference(A_x, A_wqkv, A_wo, B_x, B_w_gate, B_w_up, B_w_down, gate_w):
    def _A_ref(x, wqkv, wo):
        B, S, D = x.shape
        H = 16; Dh = D // H
        qkv = (lambda x, *d: x.permute(*d))((x @ wqkv).reshape(B, S, 3, H, Dh), 2, 0, 3, 1, 4)
        q, k, v = qkv[0], qkv[1], qkv[2]
        scale = Dh ** -0.5
        scores = torch.einsum("bhqd,bhkd->bhqk", q, k) * scale
        p = _softmax(scores, axis=-1)
        o = torch.einsum("bhqk,bhkd->bhqd", p, v)
        return (lambda x, *d: x.permute(*d))(o, 0, 2, 1, 3).reshape(B, S, D) @ wo

    def _B_ref(x, w_gate, w_up, w_down):
        g = _silu(x @ w_gate)
        u = x @ w_up
        return (g * u) @ w_down

    x = A_x
    g = _sigmoid((x * gate_w).sum(-1, keepdims=True))
    a = _A_ref(x, A_wqkv, A_wo)
    b = _B_ref(x, B_w_gate, B_w_up, B_w_down)
    return g * a + (1 - g) * b
```

```python
import re


def R(kind, lo, n=1):
    return [f"{kind}{i}" for i in range(lo, lo + n)]


def rng(kind, lo, n):
    return f"{kind}{lo}" if n == 1 else f"{kind}[{lo}:{lo + n - 1}]"


class Reg:
    def __init__(self, kind, lo, n=1):
        self.kind, self.lo, self.n = kind, lo, n

    def __str__(self):
        return rng(self.kind, self.lo, self.n)

    def regs(self):
        return R(self.kind, self.lo, self.n)

    def __getitem__(self, i):
        if isinstance(i, slice):
            start = i.start or 0
            stop = self.n if i.stop is None else i.stop
            assert 0 <= start < stop <= self.n, (i, self.n)
            return Reg(self.kind, self.lo + start, stop - start)
        assert 0 <= i < self.n
        return Reg(self.kind, self.lo + i, 1)


def V(lo, n=1): return Reg("v", lo, n)
def A(lo, n=1): return Reg("a", lo, n)
def S(lo, n=1): return Reg("s", lo, n)


def regs_of(x):
    if isinstance(x, Reg):
        return x.regs()
    if isinstance(x, str) and x in ("vcc", "exec", "m0", "scc"):
        return [x]
    return []


TRANS = ("v_exp_f32", "v_rcp_f32", "v_log_f32", "v_rsq_f32", "v_sqrt_f32")


class Emitter:
    def __init__(self):
        self.lines = []
        self.pos = 0
        self.lg = []
        self.vm = []
        self.last = {}
        self.nid = 0
        self.smem_pending = False

    def raw(self, text, states=1):
        self.lines.append("    " + text)
        self.pos += states

    def comment(self, text):
        self.lines.append("    ; " + text)

    def label(self, name):
        self.lines.append(name + ":")

    def nop(self, n):
        while n > 0:
            k = min(n, 16)
            self.raw(f"s_nop {k - 1}", k)
            n -= k

    def _wait_lg_upto(self, idx):
        n_after = len(self.lg) - 1 - idx
        if self.smem_pending:
            n_after = 0
        n_after = min(n_after, 15)
        self.raw(f"s_waitcnt lgkmcnt({n_after})")
        self.lg = self.lg[len(self.lg) - n_after:] if n_after else []
        if n_after == 0:
            self.smem_pending = False

    def _wait_vm_upto(self, idx):
        n_after = len(self.vm) - 1 - idx
        n_after = min(n_after, 63)
        self.raw(f"s_waitcnt vmcnt({n_after})")
        self.vm = self.vm[len(self.vm) - n_after:] if n_after else []

    def wait_vm_tag(self, tag):
        idx = -1
        for i, (_, _, t) in enumerate(self.vm):
            if t == tag:
                idx = i
        if idx >= 0:
            self._wait_vm_upto(idx)

    def wait_lg_tag(self, tag):
        idx = -1
        for i, (_, _, t) in enumerate(self.lg):
            if t == tag:
                idx = i
        if idx >= 0:
            self._wait_lg_upto(idx)

    def wait_lg_all(self):
        if self.lg or self.smem_pending:
            self.raw("s_waitcnt lgkmcnt(0)")
            self.lg = []
            self.smem_pending = False

    def wait_vm_all(self):
        if self.vm:
            self.raw("s_waitcnt vmcnt(0)")
            self.vm = []

    def _resolve_pending(self, touched):
        t = set(touched)
        idx = -1
        for i, (_, d, _) in enumerate(self.lg):
            if d & t:
                idx = i
        if idx >= 0:
            self._wait_lg_upto(idx)
        idx = -1
        for i, (_, d, _) in enumerate(self.vm):
            if d & t:
                idx = i
        if idx >= 0:
            self._wait_vm_upto(idx)

    def _need(self, reg, kind, states):
        p = self.last.get((reg, kind))
        if p is None:
            return 0
        return p + states + 1 - self.pos - 0 if False else max(0, states - (self.pos - p - 1))

    def _mark(self, regs, kind):
        for r in regs:
            self.last[(r, kind)] = self.pos

    def _issue(self, text, cls, reads, writes, srcc=None, mfma_passes=8):
        self._resolve_pending(reads + writes)
        need = 0
        mw = {8: 12, 4: 8}
        for r in reads:
            if cls == "mfma":
                need = max(need, self._need(r, "valu_w", 2))
                if srcc is not None and r in srcc[0]:
                    if self.last.get((r, "mfma_d_id")) != srcc[1]:
                        need = max(need, self._need(r, "mfma_w8", 10), self._need(r, "mfma_w4", 6))
                else:
                    need = max(need, self._need(r, "mfma_w8", 12), self._need(r, "mfma_w4", 8))
            elif cls in ("valu", "trans", "ds", "vmem", "perm", "rfl", "dpp"):
                need = max(need, self._need(r, "mfma_w8", 12), self._need(r, "mfma_w4", 8))
            if cls in ("valu", "perm", "rfl", "dpp", "mfma"):
                need = max(need, self._need(r, "trans_w", 1))
            if cls in ("perm", "dpp"):
                need = max(need, self._need(r, "valu_w", 2))
            if cls == "rfl":
                need = max(need, self._need(r, "valu_w", 1))
            if cls == "vmem":
                need = max(need, self._need(r, "valu_sw", 5))
            if cls in ("valu", "trans", "perm", "dpp", "mfma"):
                need = max(need, self._need(r, "valu_sw", 2))
            if r == "m0" and cls in ("vmem",):
                need = max(need, self._need(r, "salu_w", 1))
        for w in writes:
            if cls in ("valu", "trans", "perm", "dpp", "ds", "vmem"):
                need = max(need, self._need(w, "mfma_w8", 12), self._need(w, "mfma_w4", 8))
            if cls in ("valu", "trans", "perm", "dpp"):
                need = max(need, self._need(w, "mfma_c8", 7), self._need(w, "mfma_c4", 3))
                need = max(need, self._need(w, "store_r", 2))
                need = max(need, self._need(w, "trans_w", 1))
            if cls in ("ds", "vmem"):
                need = max(need, self._need(w, "store_r", 1))
            if cls == "mfma":
                if srcc is None or self.last.get((w, "mfma_d_id")) != srcc[1]:
                    need = max(need, self._need(w, "mfma_w8", 10), self._need(w, "mfma_w4", 6))
        if need > 0:
            self.nop(need)
        if cls in ("valu", "trans", "perm", "dpp", "rfl"):
            self._mark([w for w in writes if w[0] in "va" and w not in ("vcc",)], "valu_w")
            self._mark([w for w in writes if w[0] == "s" or w == "vcc"], "valu_sw")
            if cls == "trans":
                self._mark(writes, "trans_w")
        if cls == "salu":
            self._mark(writes, "salu_w")
        if cls == "mfma":
            k = "8" if mfma_passes == 8 else "4"
            self._mark(writes, "mfma_w" + k)
            for w in writes:
                self.last[(w, "mfma_d_id")] = (writes[0], len(writes))
            if srcc is not None:
                self._mark(srcc[0], "mfma_c" + k)
        else:
            for w in writes:
                self.last.pop((w, "mfma_d_id"), None)
        self.raw(text)

    def valu(self, op, dst, *srcs, extra="", dst_is_read=False):
        reads = []
        for s in srcs:
            reads += regs_of(s)
        writes = regs_of(dst)
        if dst_is_read:
            reads += writes
        if op.startswith("v_cndmask") and len(srcs) == 2:
            reads.append("vcc")
        cls = "trans" if op in TRANS else "valu"
        if "permlane" in op:
            cls = "perm"
            writes = writes + regs_of(srcs[0])
            reads = reads + regs_of(dst)
        if "readfirstlane" in op or "readlane" in op:
            cls = "rfl"
        if "row_" in extra or "quad_perm" in extra:
            cls = "dpp"
        ops = ", ".join(str(x) for x in (dst,) + srcs)
        if op.startswith("v_cndmask") and len(srcs) == 2:
            ops += ", vcc"
        self._issue(f"{op} {ops}{(' ' + extra) if extra else ''}", cls, reads, writes)

    def salu(self, op, dst, *srcs):
        reads = []
        for s in srcs:
            reads += regs_of(s)
        writes = regs_of(dst)
        ops = ", ".join(str(x) for x in (dst,) + srcs)
        self._issue(f"{op} {ops}", "salu", reads, writes)

    def mfma(self, d, a, b, c=None, op="v_mfma_f32_32x32x16_bf16"):
        passes = 8 if "32x32" in op else 4
        if c is None:
            c = d
        reads = a.regs() + b.regs()
        srcc = None
        if isinstance(c, Reg):
            reads += c.regs()
            srcc = (c.regs(), (c.regs()[0], c.n))
        self._issue(f"{op} {d}, {a}, {b}, {c}", "mfma", reads, d.regs(), srcc=srcc, mfma_passes=passes)

    def ds_read(self, op, dst, addr, offset=0, tag=None):
        assert 0 <= offset < 65536, offset
        self._issue(f"{op} {dst}, {addr} offset:{offset}", "ds", addr.regs(), dst.regs())
        self.lg.append((self.nid, set(dst.regs()), tag)); self.nid += 1

    def ds_write(self, op, addr, src, offset=0, tag=None):
        assert 0 <= offset < 65536, offset
        self._issue(f"{op} {addr}, {src} offset:{offset}", "ds", addr.regs() + src.regs(), [])
        self.lg.append((self.nid, set(), tag)); self.nid += 1
        if src.n >= 3:
            self.pos -= 1; self._mark(src.regs(), "store_r"); self.pos += 1

    def buf_load(self, dst, voff, srd, soff, offset=0, tag=None, flags=""):
        assert 0 <= offset < 4096, offset
        op = {1: "buffer_load_dword", 2: "buffer_load_dwordx2", 3: "buffer_load_dwordx3", 4: "buffer_load_dwordx4"}[dst.n]
        self._issue(f"{op} {dst}, {voff}, {srd}, {soff} offen offset:{offset}{flags}", "vmem",
                    voff.regs() + srd.regs() + regs_of(soff), dst.regs())
        self.vm.append((self.nid, set(dst.regs()), tag)); self.nid += 1

    def buf_load_lds(self, voff, srd, soff, offset=0, tag=None, flags=""):
        assert 0 <= offset < 4096, offset
        self._issue(f"buffer_load_dwordx4 {voff}, {srd}, {soff} offen offset:{offset} lds{flags}", "vmem",
                    voff.regs() + srd.regs() + regs_of(soff) + ["m0"], [])
        self.vm.append((self.nid, set(), tag)); self.nid += 1

    def buf_store(self, src, voff, srd, soff, offset=0, tag=None, flags=""):
        assert 0 <= offset < 4096, offset
        op = {1: "buffer_store_dword", 2: "buffer_store_dwordx2", 3: "buffer_store_dwordx3", 4: "buffer_store_dwordx4"}[src.n]
        self._issue(f"{op} {src}, {voff}, {srd}, {soff} offen offset:{offset}{flags}", "vmem",
                    voff.regs() + srd.regs() + regs_of(soff) + src.regs(), [])
        self.vm.append((self.nid, set(), tag)); self.nid += 1
        if src.n >= 3:
            self.pos -= 1; self._mark(src.regs(), "store_r"); self.pos += 1

    def s_load(self, dst, base, off):
        op = {1: "s_load_dword", 2: "s_load_dwordx2", 4: "s_load_dwordx4", 8: "s_load_dwordx8", 16: "s_load_dwordx16"}[dst.n]
        self._issue(f"{op} {dst}, {base}, {off}", "other", base.regs(), [])
        self.lg.append((self.nid, set(dst.regs()), "smem")); self.nid += 1
        self.smem_pending = True

    def barrier(self):
        self.raw("s_barrier")

    def flush_hazards(self):
        worst = 0
        table = {"valu_w": 2, "valu_sw": 5, "trans_w": 1, "mfma_w8": 12, "mfma_w4": 8, "mfma_c8": 7, "mfma_c4": 3,
                 "store_r": 2, "salu_w": 1}
        for (r, k), p in self.last.items():
            if k in table:
                worst = max(worst, table[k] - (self.pos - p - 1))
        if worst > 0:
            self.nop(worst)
        self.last = {}

    def text(self):
        return "\n".join(self.lines) + "\n"
```

```python
from emit import *
from layout import *

LOG2E = 1.4426950408889634
QSCALE = (28 ** -0.5) * LOG2E


def f2u(x):
    import struct
    return struct.unpack("<I", struct.pack("<f", x))[0]


sX, sWg, sWu, sWq, sWS = S(4, 4), S(8, 4), S(12, 4), S(16, 4), S(20, 4)
sWave, sMblk, sCg = S(24), S(25), S(26)
sAoff = S(27)
sLdsA = S(28)
sBoff = S(29)
sBoff1 = S(30)
sLdsB = S(31)
sT0, sT1 = S(32), S(33)
sQKoff = S(34)
sOut0 = S(35)
sOutQK = S(36)
sQKstr = S(37)
sQKmul = S(38)
sNL2E = S(39)
sMask = S(40, 2)

def ACC(u, t): return V(32 * u + 16 * t, 16)
vBF = 160
vTMP = 184
vA = [V(216 + i) for i in range(4)]
vB = [V(220 + i) for i in range(2)]
vQ = V(222)
vAr = [V(223 + i) for i in range(4)]
vTr = [[V(227), V(228)], [V(229), V(230)]]
vTrQ = V(231)
vLane16 = V(232)
vMulHi = V(233)
vVconst = V(234)
vX0, vX1, vX2 = V(235), V(236), V(237)

P0 = 0
P1 = 57344
AR = 114688


def AF(ks, t):
    return A((ks * 2 + t) * 4, 4)


def gen_k1(e):
    e.label("k1_kernel")
    e.salu("s_cmp_ge_u32", S(2), 256)
    e.raw("s_cbranch_scc1 L_k1_end")
    e.s_load(S(44, 4), S(0, 2), 0)
    e.s_load(S(48, 4), S(0, 2), 32)
    e.s_load(S(52, 2), S(0, 2), 80)
    e.salu("s_and_b32", sT0, S(2), 7)
    e.salu("s_lshr_b32", sT1, S(2), 3)
    e.salu("s_and_b32", sMblk, sT0, 1)
    e.salu("s_lshl_b32", sMblk, sMblk, 2)
    e.salu("s_and_b32", sCg, sT1, 3)
    e.salu("s_add_u32", sMblk, sMblk, sCg)
    e.salu("s_lshr_b32", sCg, sT0, 1)
    e.salu("s_lshl_b32", sCg, sCg, 3)
    e.salu("s_lshr_b32", sT1, sT1, 2)
    e.salu("s_add_u32", sCg, sCg, sT1)
    e.valu("v_lshrrev_b32", vX0, 6, V(0))
    e.valu("v_and_b32", V(0), 63, V(0))
    e.valu("v_readfirstlane_b32", sWave, vX0)
    lane = V(0)
    e.valu("v_lshlrev_b32", vLane16, 4, lane)
    e.valu("v_lshrrev_b32", vX0, 3, lane)
    e.valu("v_and_b32", vX1, 7, lane)
    e.valu("v_lshrrev_b32", vX2, 1, vX0)
    e.valu("v_xor_b32", vX2, vX2, vX1)
    e.valu("v_mul_u32_u24", vA[0], 896, vX0)
    e.valu("v_lshl_add_u32", vA[0], vX2, 4, vA[0])
    e.valu("v_xor_b32", vX2, 4, vX2)
    e.valu("v_mul_u32_u24", vA[1], 896, vX0)
    e.valu("v_lshl_add_u32", vA[1], vX2, 4, vA[1])
    e.valu("v_add_u32", vA[2], 2 * 6144, vA[0])
    e.valu("v_add_u32", vA[3], 3 * 6144, vA[1])
    e.valu("v_add_u32", vA[1], 6144, vA[1])
    e.valu("v_and_b32", vX0, 31, lane)
    e.valu("v_lshrrev_b32", vX1, 5, lane)
    e.valu("v_bfe_u32", vX2, lane, 1, 3)
    e.valu("v_xor_b32", vX2, vX2, vX1)
    e.valu("v_lshlrev_b32", vX0, 7, vX0)
    for k in range(4):
        e.valu("v_xor_b32", vAr[k], 2 * k, vX2)
        e.valu("v_lshl_add_u32", vAr[k], vAr[k], 4, vX0)
    e.valu("v_bfe_u32", vX0, lane, 2, 2)
    e.valu("v_lshl_add_u32", vX0, vX1, 3, vX0)
    e.valu("v_bfe_u32", vX2, lane, 4, 1)
    e.valu("v_lshlrev_b32", vX2, 5, vX2)
    e.valu("v_and_b32", vX1, 3, lane)
    e.valu("v_lshl_add_u32", vX2, vX1, 3, vX2)
    e.valu("v_lshl_add_u32", vTrQ, vX0, 6, vX2)
    e.valu("v_add_u32", vTrQ, AR, vTrQ)
    e.valu("v_lshl_add_u32", vX2, vX0, 7, vX2)
    e.valu("v_bfe_u32", vX1, lane, 3, 1)
    e.valu("v_lshl_add_u32", vTr[0][0], vX1, 6, vX2)
    e.valu("v_xor_b32", vTr[0][1], 64, vTr[0][0])
    e.valu("v_add_u32", vTr[1][0], P1, vTr[0][0])
    e.valu("v_add_u32", vTr[1][1], P1, vTr[0][1])
    e.valu("v_lshrrev_b32", vX0, 2, lane)
    e.valu("v_and_b32", vX1, 3, lane)
    e.valu("v_mul_u32_u24", vQ, 2688, vX0)
    e.valu("v_lshl_add_u32", vQ, vX1, 4, vQ)
    e.salu("s_lshl_b32", sT0, sMblk, 2)
    e.salu("s_add_u32", sT0, sT0, sWave)
    e.salu("s_mul_i32", sAoff, sT0, 64 * 896)
    e.salu("s_lshl_b32", S(42), sT0, 1)
    sMt = S(42)
    e.salu("s_mul_i32", sLdsA, sWave, 12288)
    e.salu("s_add_u32", sLdsA, sLdsA, AR)
    e.salu("s_lshl_b32", sLdsB, sWave, 11)
    for k in range(4):
        e.valu("v_add_u32", vAr[k], sLdsA, vAr[k])
    e.salu("s_mov_b32", sNL2E, hex(f2u(-LOG2E)))
    e.wait_lg_all()
    def srd(s, lo, size):
        e.salu("s_mov_b32", s[0], S(lo))
        e.salu("s_mov_b32", s[1], S(lo + 1))
        e.salu("s_mov_b32", s[2], size)
        e.salu("s_mov_b32", s[3], "0x20000")
    srd(sX, 44, 2048 * 896)
    srd(sWq, 46, 448 * 2688)
    srd(sWg, 48, 448 * 3584)
    srd(sWu, 50, 448 * 3584)
    srd(sWS, 52, WS_USED)
    e.salu("s_cmp_ge_u32", sCg, 28)
    e.raw("s_cbranch_scc1 L_k1_typeB")
    e.flush_hazards()
    saved = (list(e.lg), list(e.vm))
    gen_body(e, False, sMt, lane)
    e.raw("s_endpgm")
    e.label("L_k1_typeB")
    e.lg, e.vm = list(saved[0]), list(saved[1])
    e.last = {}
    gen_body(e, True, sMt, lane)
    e.label("L_k1_end")
    e.raw("s_endpgm")


def gen_body(e, typeB, sMt, lane):
    ldw = 2688 if typeB else 3584
    srdP = [sWq, sWq] if typeB else [sWg, sWu]
    e.valu("v_lshrrev_b32", vX0, 3, lane)
    e.valu("v_bfe_u32", vX1, lane, 2, 1)
    e.valu("v_bfe_u32", vX2, lane, 4, 1)
    e.valu("v_xor_b32", vX1, vX1, vX2)
    e.valu("v_mul_u32_u24", vB[0], ldw, vX0)
    e.valu("v_mul_u32_u24", vX1, 56 if typeB else 64, vX1)
    e.valu("v_add_u32", vB[0], vB[0], vX1)
    e.valu("v_and_b32", vX1, 3, lane)
    e.valu("v_lshl_add_u32", vB[0], vX1, 4, vB[0])
    e.valu("v_add_u32", vB[1], 8 * ldw - 1024, vB[0])
    e.salu("s_mul_i32", sBoff, sWave, 16 * ldw)
    if not typeB:
        e.salu("s_lshl_b32", sT0, sCg, 7)
        e.salu("s_add_u32", sBoff, sBoff, sT0)
        e.salu("s_mov_b32", sBoff1, sBoff)
        e.salu("s_mul_i32", sT0, sCg, 56)
        e.salu("s_mul_i32", sOut0, sMt, H_MT_STRIDE)
        e.salu("s_lshl_b32", sT1, sCg, 12)
        e.salu("s_add_u32", sOut0, sOut0, sT1)
        e.salu("s_add_u32", sOut0, sOut0, HF)
        e.salu("s_and_b32", sT1, sCg, 15)
        e.salu("s_lshl_b32", sT1, sT1, 6)
        e.salu("s_add_u32", sT1, sT1, sMt)
        e.salu("s_cmp_lt_u32", sCg, 16)
        e.salu("s_cselect_b32", sQKstr, 11, 12)
        e.salu("s_cselect_b32", sOutQK, QF, KVF)
        e.salu("s_cselect_b32", sQKmul, hex(f2u(QSCALE)), 1.0)
        e.salu("s_lshl_b32", sQKstr, 1, sQKstr)
        e.salu("s_mul_i32", sT1, sT1, sQKstr)
        e.salu("s_add_u32", sOutQK, sOutQK, sT1)
    else:
        e.salu("s_sub_u32", sT1, sCg, 28)
        e.salu("s_mul_i32", sT0, sT1, 224)
        e.salu("s_add_u32", sBoff, sBoff, sT0)
        e.salu("s_add_u32", sBoff, sBoff, 896 * 2)
        e.salu("s_add_u32", sBoff1, sBoff, 112)
        e.salu("s_lshl_b32", sT0, sT1, 8)
        e.salu("s_add_u32", sT0, sT0, sMt)
        e.salu("s_lshl_b32", sOut0, sT0, 12)
        e.salu("s_add_u32", sOut0, sOut0, KVF + 2048)
        e.salu("s_add_u32", sT0, sT1, 12)
        e.salu("s_lshl_b32", sT0, sT0, 6)
        e.salu("s_add_u32", sT0, sT0, sMt)
        e.salu("s_lshl_b32", sOutQK, sT0, 12)
        e.salu("s_add_u32", sOutQK, sOutQK, KVF)
        e.salu("s_mov_b32", sQKstr, 4096)
        e.salu("s_mov_b32", sQKmul, hex(f2u(1.0)))
        e.salu("s_mul_i32", sT0, sCg, 56)
    e.salu("s_mul_i32", sQKoff, sWave, 112 * 2688)
    e.salu("s_add_u32", sQKoff, sQKoff, sT0)

    def dma_A(n):
        c, t = n // 2, n % 2
        e.salu("s_add_u32", "m0", sLdsA, (n % 3) * 4096)
        e.salu("s_add_u32", sT0, sAoff, t * 32 * 896 + c * 128)
        for i in range(4):
            e.buf_load_lds(vA[i], sX, sT0, offset=i * 1024, tag=("A", n))

    def dma_B(c):
        for p in range(2):
            e.salu("s_add_u32", "m0", sLdsB, (P0, P1)[p] + c * 64 * 128)
            e.salu("s_add_u32", sT1, (sBoff, sBoff1)[p], c * 64 * ldw)
            for i in range(2):
                e.buf_load_lds(vB[i], srdP[p], sT1, offset=i * 1024, tag=("B", c))

    def read_A(n):
        c, t = n // 2, n % 2
        e.wait_vm_tag(("A", n))
        for k in range(4):
            e.ds_read("ds_read_b128", AF(4 * c + k, t), vAr[k], offset=(n % 3) * 4096, tag=("Ar", n))

    dma_A(0); dma_A(1); dma_B(0); dma_A(2); dma_B(1); dma_B(2)
    e.valu("v_cmp_gt_u32", "vcc", 32, lane)
    e.valu("v_mov_b32", vX0, sQKmul)
    e.valu("v_mov_b32", vX1, 0)
    e.valu("v_cndmask_b32", vMulHi, vX1, vX0)
    if typeB:
        e.valu("v_and_b32", vX0, 31, lane)
        e.valu("v_cmp_eq_u32", "vcc", 28, vX0)
        e.valu("v_mov_b32", vX2, "0x3f803f80")
        e.valu("v_cndmask_b32", vVconst, vX1, vX2)
        e.valu("v_cmp_le_u32", sMask, 28, vX0)
    read_A(0); e.wait_lg_tag(("Ar", 0)); dma_A(3)
    read_A(1); e.wait_lg_tag(("Ar", 1)); dma_A(4)

    units1 = [(0, 0), (1, 0), (0, 1)]

    def BF1(ks, i): return V(vBF + (ks % 2) * 12 + i * 4, 4)

    def tr_reads1(ks):
        out = []
        for i, (p, u) in enumerate(units1):
            for j in range(2):
                out.append(lambda i=i, p=p, u=u, j=j: e.ds_read(
                    "ds_read_b64_tr_b16", BF1(ks, i)[2 * j:2 * j + 2], vTr[p][u], offset=ks * 2048 + j * 512,
                    tag=("Bf", ks)))
        return out

    def mm(acc, xf, wf, first, swap):
        a, b = (xf, wf) if swap else (wf, xf)
        e.mfma(acc, a, b, 0 if first else None)

    e.wait_vm_tag(("B", 0))
    e.barrier()
    for f in tr_reads1(0):
        f()
    for ks in range(28):
        c, kk = ks // 4, ks % 4
        side = []
        if ks + 1 < 28:
            if kk == 3:
                side.append(lambda c=c: (e.wait_vm_tag(("B", c + 1)), e.barrier()))
            side += tr_reads1(ks + 1)
        post = []
        if kk in (0, 2):
            n = 2 * c + 2 + kk // 2
            if n < 14:
                post.append(lambda n=n: read_A(n))
        if kk in (1, 3):
            n = 2 * c + 2 + kk // 2
            if n + 3 < 14:
                post.append(lambda n=n: (e.wait_lg_tag(("Ar", n)), dma_A(n + 3)))
        if kk == 2 and c + 3 < 7:
            post.append(lambda c=c: dma_B(c + 3))
        e.wait_lg_tag(("Bf", ks))
        gi = 0
        for i in range(3):
            for t in range(2):
                mm(ACC(i, t), AF(ks, t), BF1(ks, i), ks == 0, typeB)
                for _ in range(2):
                    if side:
                        side.pop(0)()
                if gi >= 3 and post:
                    post.pop(0)()
                gi += 1
        while side: side.pop(0)()
        while post: post.pop(0)()

    e.wait_lg_tag(("Ar", 13))
    e.salu("s_mov_b32", "m0", sLdsA)
    for i in range(7):
        if i == 4:
            e.salu("s_add_u32", "m0", sLdsA, 4096)
        e.salu("s_add_u32", sT0, sQKoff, i * 16 * 2688 - (i % 4) * 1024)
        e.buf_load_lds(vQ, sWq, sT0, offset=(i % 4) * 1024, tag="QKB")

    def BF2(ks): return V(vBF + (ks % 4) * 4, 4)

    def epi_h(ug, uu, funit_off):
        ops = []
        for t in range(2):
            G, U = ACC(ug, t), ACC(uu, t)
            T = V(vTMP + 16 * t, 16)
            def stage(st, r, G=G, U=U, T=T):
                if st == 0: return (1, lambda: e.valu("v_mul_f32", T[r], sNL2E, G[r]))
                if st == 1: return (2, lambda: e.valu("v_exp_f32", T[r], T[r]))
                if st == 2: return (1, lambda: e.valu("v_mul_f32", G[r], G[r], U[r]))
                if st == 3: return (1, lambda: e.valu("v_add_f32", T[r], 1.0, T[r]))
                if st == 4: return (2, lambda: e.valu("v_rcp_f32", T[r], T[r]))
                if st == 5: return (1, lambda: e.valu("v_mul_f32", G[r], G[r], T[r]))
            for g in range(4):
                for st in range(6):
                    for r in range(4 * g, 4 * g + 4):
                        ops.append(stage(st, r))
                for i in range(2 * g, 2 * g + 2):
                    ops.append((1, lambda i=i, G=G, U=U: e.valu("v_cvt_pk_bf16_f32", U[i], G[2 * i], G[2 * i + 1])))
                if g % 2 == 1:
                    s = g // 2
                    def st(s=s, t=t, U=U):
                        e.salu("s_add_u32", sT1, sOut0, t * H_MT_STRIDE)
                        e.buf_store(U[4 * s:4 * s + 4], vLane16, sWS, sT1, offset=funit_off + s * 1024)
                    ops.append((2, st))
        return ops

    def epi_v(u, head_off):
        ops = []
        for t in range(2):
            X = ACC(u, t)
            T = V(vTMP + 16 * t, 8)
            for i in range(8):
                ops.append((1, lambda i=i, X=X, T=T: e.valu("v_cvt_pk_bf16_f32", T[i], X[2 * i], X[2 * i + 1])))
                ops.append((1, lambda i=i, T=T: e.valu("v_cndmask_b32", T[i], T[i], vVconst, sMask)))
                if i % 4 == 3:
                    s = i // 4
                    def st(s=s, t=t, T=T):
                        e.salu("s_add_u32", sT1, sOut0, head_off * 64 * 4096 + t * 4096)
                        e.buf_store(T[4 * s:4 * s + 4], vLane16, sWS, sT1, offset=s * 1024)
                    ops.append((2, st))
        return ops

    def phase2(accu, rd, swap, ops, budget):
        PF = 3
        for ks in range(PF):
            for f in rd(ks): f()
        for ks in range(28):
            side = rd(ks + PF) if ks + PF < 28 else []
            e.wait_lg_tag(("B2", accu, ks))
            for t in range(2):
                mm(ACC(accu, t), AF(ks, t), BF2(ks), ks == 0, swap)
                if side: side.pop(0)()
                b = budget
                while ops and b > 0:
                    cost, f = ops.pop(0)
                    f(); b -= cost
        while ops:
            ops.pop(0)[1]()

    def rd_p11(ks):
        return [lambda j=j: e.ds_read("ds_read_b64_tr_b16", BF2(ks)[2 * j:2 * j + 2], vTr[1][1],
                                      offset=ks * 2048 + j * 512, tag=("B2", 3, ks)) for j in range(2)]

    def rd_qk(ks):
        return [lambda j=j: e.ds_read("ds_read_b64_tr_b16", BF2(ks)[2 * j:2 * j + 2], vTrQ,
                                      offset=(ks // 7) * 12288 + (ks % 7) * 1024 + j * 256, tag=("B2", 4, ks))
                for j in range(2)]

    if not typeB:
        ops1 = epi_h(0, 1, 0)
        ops2 = epi_h(2, 3, 2048)
    else:
        ops1 = epi_v(0, 0) + epi_v(1, 2) + epi_v(2, 1)
        ops2 = epi_v(3, 3)
    phase2(3, rd_p11, typeB, ops1, 4)
    e.wait_vm_tag("QKB")
    e.barrier()
    phase2(4, rd_qk, False, ops2, 4)
    for t in range(2):
        X = ACC(4, t)
        T = V(vTMP + 16 * t, 8)
        for r in range(16):
            e.valu("v_mul_f32", X[r], sQKmul if r < 12 else vMulHi, X[r])
        for i in range(8):
            e.valu("v_cvt_pk_bf16_f32", T[i], X[2 * i], X[2 * i + 1])
        if t == 1:
            e.salu("s_add_u32", sOutQK, sOutQK, sQKstr)
        for s in range(2):
            e.buf_store(T[4 * s:4 * s + 4], vLane16, sWS, sOutQK, offset=s * 1024)


K1_DESC = dict(name="k1_kernel", vgpr=256 + 224, acc=256, sgpr=64, grid=256, block=256, lds=163840)
```

```python
from emit import *
from layout import *
from k1 import f2u, LOG2E

sWS, sWd, sX, sGw = S(4, 4), S(8, 4), S(12, 4), S(16, 4)
sWave, sXcd, sIdx, sHead, sQblk = S(20), S(21), S(22), S(23), S(24)
sKV = S(25)
sT0, sT1, sT2 = S(26), S(27), S(28)
sGwv = S(29)
sLdsKV = S(30)
sLdsW = S(31)
sWoff = S(32)
sHoff = S(33)
sHoff1 = S(34)
sMt64, sNt = S(35), S(36)
sCnt = S(37)
sSave = S(38, 2)

KVR = 0
WR = 65536
RED = 65536
ARED = 131072
K2_LDS = 147456

L_LO = 2.0 ** -50
L_HI = 2.0 ** 60


def gen_k2(e):
    e.label("k2_kernel")
    e.salu("s_cmp_ge_u32", S(2), 256)
    e.raw("s_cbranch_scc1 L_k2_end")
    e.s_load(S(44, 2), S(0, 2), 0)
    e.s_load(S(48, 4), S(0, 2), 48)
    e.s_load(S(52, 2), S(0, 2), 80)
    e.salu("s_and_b32", sXcd, S(2), 7)
    e.salu("s_lshr_b32", sIdx, S(2), 3)
    e.salu("s_lshr_b32", sT0, sIdx, 4)
    e.salu("s_lshl_b32", sHead, sXcd, 1)
    e.salu("s_add_u32", sHead, sHead, sT0)
    e.salu("s_and_b32", sQblk, sIdx, 15)
    e.valu("v_lshrrev_b32", V(1), 6, V(0))
    e.valu("v_and_b32", V(0), 63, V(0))
    e.valu("v_readfirstlane_b32", sWave, V(1))
    e.salu("s_lshl_b32", sKV, sHead, 18)
    e.salu("s_add_u32", sKV, sKV, KVF)
    e.wait_lg_all()

    def srd(s, lo, size):
        e.salu("s_mov_b32", s[0], S(lo))
        e.salu("s_mov_b32", s[1], S(lo + 1))
        e.salu("s_mov_b32", s[2], size)
        e.salu("s_mov_b32", s[3], "0x20000")
    srd(sWS, 52, WS_USED)
    srd(sWd, 48, 1792 * 896)
    srd(sX, 44, 2048 * 896)
    srd(sGw, 50, 896)
    e.salu("s_cmp_ge_u32", sWave, 8)
    e.raw("s_cbranch_scc1 L_k2_loader")
    e.flush_hazards()
    gen_attn(e)
    e.raw("s_endpgm")
    e.label("L_k2_loader")
    e.lg, e.vm, e.last = [], [], {}
    e.raw("s_setprio 2")
    e.salu("s_sub_u32", sGwv, sWave, 8)
    e.salu("s_lshl_b32", sLdsKV, sGwv, 12)
    e.salu("s_add_u32", sKV, sKV, sLdsKV)
    e.salu("s_cmp_ge_u32", sIdx, 28)
    e.raw("s_cbranch_scc1 L_k2_gjob")
    gen_loader(e, True)
    e.raw("s_endpgm")
    e.label("L_k2_gjob")
    e.lg, e.vm, e.last = [], [], {}
    gen_loader(e, False)
    e.label("L_k2_end")
    e.raw("s_endpgm")


def gen_attn(e):
    lane = V(0)
    Q = [V(8, 4), V(12, 4)]
    K = [V(16, 4), V(20, 4)]
    Vf = [[V(24, 4), V(28, 4)], [V(32, 4), V(36, 4)]]
    Sb = [V(40, 16), V(56, 16)]
    P = V(72, 8)
    O = V(80, 16)
    vKV, vL16, vRed = V(1), V(2), V(3)
    vT0, vT1, vT2, vT3 = V(4), V(5), V(6), V(7)
    X = V(96, 16)
    sQt, sKg = S(40), S(41)
    e.salu("s_and_b32", sQt, sWave, 3)
    e.salu("s_lshr_b32", sKg, sWave, 2)
    e.valu("v_lshlrev_b32", vL16, 4, lane)
    e.salu("s_lshl_b32", sT0, sHead, 6)
    e.salu("s_lshl_b32", sT1, sQblk, 2)
    e.salu("s_add_u32", sT1, sT1, sQt)
    e.salu("s_add_u32", sT0, sT0, sT1)
    e.salu("s_lshl_b32", sT0, sT0, 11)
    if QF:
        e.salu("s_add_u32", sT0, sT0, QF)
    e.buf_load(Q[0], vL16, sWS, sT0, offset=0)
    e.buf_load(Q[1], vL16, sWS, sT0, offset=1024)
    sOo = S(42)
    e.salu("s_lshl_b32", sOo, sT1, 4)
    e.salu("s_add_u32", sOo, sOo, sHead)
    e.salu("s_lshl_b32", sOo, sOo, 11)
    e.salu("s_add_u32", sOo, sOo, OF)
    e.salu("s_lshl_b32", sT2, sKg, 13)
    e.valu("v_add_u32", vKV, sT2, vL16)
    e.salu("s_lshl_b32", sT2, sQt, 12)
    e.salu("s_add_u32", sT2, sT2, ARED)
    e.valu("v_add_u32", vRed, sT2, vL16)

    def toff(i): return ((i >> 1) % 4) * 16384 + (i & 1) * 4096

    def rdK(i):
        e.ds_read("ds_read_b128", K[0], vKV, offset=toff(i))
        e.ds_read("ds_read_b128", K[1], vKV, offset=toff(i) + 1024)

    def rdV(i):
        e.ds_read("ds_read_b128", Vf[i % 2][1], vKV, offset=toff(i) + 3072)
        e.ds_read("ds_read_b128", Vf[i % 2][0], vKV, offset=toff(i) + 2048)

    e.barrier()
    rdK(0); rdV(0)
    e.mfma(Sb[0], K[0], Q[0], 0)
    e.mfma(Sb[0], K[1], Q[1])
    rdK(1)
    e.barrier()
    NT = 32
    for i in range(NT):
        Sc, Sn = Sb[i % 2], Sb[(i + 1) % 2]
        def ex(a, b):
            for r in range(a, b):
                e.valu("v_exp_f32", Sc[r], Sc[r])
        def cv(a, b):
            for j in range(a, b):
                e.valu("v_cvt_pk_bf16_f32", P[j], Sc[2 * j], Sc[2 * j + 1])
        if i + 1 < NT:
            e.mfma(Sn, K[0], Q[0], 0)
        ex(0, 3)
        if i > 0:
            e.mfma(O, Vf[(i - 1) % 2][1], P[4:8])
        if i + 1 < NT:
            rdV(i + 1)
        ex(3, 6)
        if i + 1 < NT:
            e.mfma(Sn, K[1], Q[1])
        if i + 2 < NT:
            rdK(i + 2)
        ex(6, 8)
        cv(0, 4)
        ex(8, 10)
        e.mfma(O, Vf[i % 2][0], P[0:4], 0 if i == 0 else None)
        ex(10, 16)
        cv(4, 8)
        if i % 2 == 1 and i < NT - 1:
            e.barrier()
    e.mfma(O, Vf[(NT - 1) % 2][1], P[4:8])
    e.salu("s_cmp_eq_u32", sKg, 0)
    e.raw("s_cbranch_scc1 L_k2_fin")
    for j in range(4):
        e.ds_write("ds_write_b128", vRed, O[4 * j:4 * j + 4], offset=j * 1024)
    e.wait_lg_all()
    e.barrier()
    e.raw("s_endpgm")
    e.label("L_k2_fin")
    e.lg = []
    e.last = {}
    e.barrier()
    for j in range(4):
        e.ds_read("ds_read_b128", X[4 * j:4 * j + 4], vRed, offset=j * 1024)
    e.nop(8)
    for r in range(16):
        e.valu("v_add_f32", O[r], O[r], X[r])
    e.valu("v_mov_b32", vT0, O[12])
    e.valu("v_mov_b32", vT1, O[12])
    e.valu("v_mov_b32", vT2, 0)
    e.valu("v_permlane32_swap_b32", vT0, vT1)
    for r in range(16):
        e.valu("v_fmac_f32", vT2, 0, O[r], dst_is_read=True)
    e.salu("s_mov_b32", sT0, hex(f2u(L_LO)))
    e.salu("s_mov_b32", sT1, hex(f2u(L_HI)))
    e.valu("v_add_f32", vT2, vT2, vT1)
    e.valu("v_cmp_le_f32", "vcc", sT0, vT2)
    e.valu("v_cmp_ge_f32", sSave, sT1, vT2)
    e.nop(1)
    e.salu("s_and_b64", "vcc", "vcc", sSave)
    e.raw("s_cmp_eq_u64 vcc, -1")
    e.raw("s_cbranch_scc0 L_k2_slow")
    e.label("L_k2_store")
    e.last = {}
    e.nop(2)
    e.valu("v_rcp_f32", vT0, vT1)
    e.valu("v_cmp_gt_u32", "vcc", 32, lane)
    e.valu("v_mov_b32", vT2, 0)
    e.valu("v_cndmask_b32", vT3, vT2, vT0)
    for r in range(16):
        e.valu("v_mul_f32", O[r], O[r], vT0 if r < 12 else vT3)
    for j in range(8):
        e.valu("v_cvt_pk_bf16_f32", P[j], O[2 * j], O[2 * j + 1])
    e.buf_store(P[0:4], vL16, sWS, sOo, offset=0)
    e.buf_store(P[4:8], vL16, sWS, sOo, offset=1024)
    e.raw("s_endpgm")
    e.label("L_k2_slow")
    e.lg, e.vm, e.last = [], [], {}
    vM = vT3
    Sc = Sb[0]
    e.valu("v_mov_b32", vM, "0xff800000")
    for r in range(16):
        e.valu("v_mov_b32", O[r], 0)
    e.salu("s_mov_b32", sCnt, 0)
    e.salu("s_mov_b32", sT2, sKV)
    e.label("L_k2_slow_loop")
    e.buf_load(K[0], vL16, sWS, sT2, offset=0)
    e.buf_load(K[1], vL16, sWS, sT2, offset=1024)
    e.buf_load(Vf[0][0], vL16, sWS, sT2, offset=2048)
    e.buf_load(Vf[0][1], vL16, sWS, sT2, offset=3072)
    e.mfma(Sc, K[0], Q[0], 0)
    e.mfma(Sc, K[1], Q[1])
    e.valu("v_max_f32", vT0, Sc[0], Sc[1])
    for r in range(2, 16, 2):
        e.valu("v_max3_f32", vT0, vT0, Sc[r], Sc[r + 1])
    e.valu("v_mov_b32", vT1, vT0)
    e.valu("v_permlane32_swap_b32", vT0, vT1)
    e.valu("v_max3_f32", vT0, vT0, vT1, vM)
    e.valu("v_sub_f32", vT1, vM, vT0)
    e.valu("v_exp_f32", vT1, vT1)
    e.valu("v_mov_b32", vM, vT0)
    for r in range(16):
        e.valu("v_sub_f32", Sc[r], Sc[r], vM)
    for r in range(16):
        e.valu("v_exp_f32", Sc[r], Sc[r])
    for r in range(16):
        e.valu("v_mul_f32", O[r], O[r], vT1)
    for j in range(8):
        e.valu("v_cvt_pk_bf16_f32", P[j], Sc[2 * j], Sc[2 * j + 1])
    e.mfma(O, Vf[0][0], P[0:4])
    e.mfma(O, Vf[0][1], P[4:8])
    e.salu("s_add_u32", sT2, sT2, 4096)
    e.salu("s_add_u32", sCnt, sCnt, 1)
    e.flush_hazards()
    e.salu("s_cmp_lt_u32", sCnt, 64)
    e.raw("s_cbranch_scc1 L_k2_slow_loop")
    e.valu("v_mov_b32", vT0, O[12])
    e.valu("v_mov_b32", vT1, O[12])
    e.valu("v_permlane32_swap_b32", vT0, vT1)
    e.raw("s_branch L_k2_store")


def gen_loader(e, gemm):
    lane = V(0)
    ACC = [[V(128 - 64 + 0, 16), V(128 - 64 + 16, 16)], [V(128 - 64 + 32, 16), V(128 - 64 + 48, 16)]]
    def HF_(s, st, t): return V(16 + ((s % 3) * 4 + st * 2 + t) * 4, 4)
    def WF(st, u): return V(128 + (st * 2 + u) * 4, 4)
    vL16 = V(1)
    vW = [V(2), V(3), V(4), V(5)]
    vTr = [V(6), V(7)]
    vX0, vX1, vX2 = V(8), V(9), V(10)
    vRw, vRr = V(11), V(12)
    e.valu("v_lshlrev_b32", vL16, 4, lane)

    def dma_KV(s):
        e.salu("s_add_u32", "m0", sLdsKV, (s % 4) * 16384)
        e.salu("s_add_u32", sT0, sKV, s * 16384)
        for i in range(4):
            e.buf_load_lds(vL16, sWS, sT0, offset=i * 1024, tag=("KV", s))

    dma_KV(0); dma_KV(1)
    if gemm:
        e.salu("s_mul_i32", sT0, sIdx, 37)
        e.salu("s_lshr_b32", sT0, sT0, 8)
        e.salu("s_mul_i32", sT1, sT0, 7)
        e.salu("s_sub_u32", sNt, sIdx, sT1)
        e.salu("s_lshl_b32", sMt64, sXcd, 2)
        e.salu("s_add_u32", sMt64, sMt64, sT0)
        e.valu("v_lshrrev_b32", vX0, 3, lane)
        e.valu("v_bfe_u32", vX1, lane, 2, 1)
        e.valu("v_bfe_u32", vX2, lane, 4, 1)
        e.valu("v_xor_b32", vX1, vX1, vX2)
        e.valu("v_mul_u32_u24", vW[0], 896, vX0)
        e.valu("v_lshl_add_u32", vW[0], vX1, 6, vW[0])
        e.valu("v_and_b32", vX1, 3, lane)
        e.valu("v_lshl_add_u32", vW[0], vX1, 4, vW[0])
        for i in range(1, 4):
            e.valu("v_add_u32", vW[i], i * (8 * 896 - 1024), vW[0])
        e.salu("s_mul_i32", sLdsW, sGwv, 12288)
        e.salu("s_add_u32", sLdsW, sLdsW, WR)
        e.salu("s_mul_i32", sWoff, sGwv, 448 * 896)
        e.salu("s_lshl_b32", sT0, sNt, 7)
        e.salu("s_add_u32", sWoff, sWoff, sT0)
        e.salu("s_mul_i32", sHoff, sMt64, 2 * H_MT_STRIDE)
        e.salu("s_mul_i32", sT0, sGwv, 28 * 1024)
        e.salu("s_add_u32", sHoff, sHoff, sT0)
        e.salu("s_add_u32", sHoff, sHoff, HF)
        e.salu("s_add_u32", sHoff1, sHoff, H_MT_STRIDE)
        e.valu("v_lshrrev_b32", vX1, 5, lane)
        e.valu("v_bfe_u32", vX0, lane, 2, 2)
        e.valu("v_lshl_add_u32", vX0, vX1, 2, vX0)
        e.valu("v_bfe_u32", vX2, lane, 4, 1)
        e.valu("v_lshlrev_b32", vX2, 5, vX2)
        e.valu("v_and_b32", vX1, 3, lane)
        e.valu("v_lshl_add_u32", vX2, vX1, 3, vX2)
        e.valu("v_lshl_add_u32", vX2, vX0, 7, vX2)
        e.valu("v_bfe_u32", vX1, lane, 3, 1)
        e.valu("v_lshl_add_u32", vTr[0], vX1, 6, vX2)
        e.valu("v_xor_b32", vTr[1], 64, vTr[0])
        e.valu("v_add_u32", vTr[0], sLdsW, vTr[0])
        e.valu("v_add_u32", vTr[1], sLdsW, vTr[1])
        e.salu("s_lshl_b32", sT0, sGwv, 14)
        e.salu("s_add_u32", sT0, sT0, RED)
        e.valu("v_add_u32", vRw, sT0, vL16)
        e.salu("s_lshl_b32", sT0, sGwv, 12)
        e.salu("s_add_u32", sT0, sT0, RED)
        e.valu("v_add_u32", vRr, sT0, vL16)

    def dma_WH(s):
        e.salu("s_add_u32", "m0", sLdsW, (s % 3) * 4096)
        e.salu("s_add_u32", sT0, sWoff, s * 32 * 896)
        for i in range(4):
            e.buf_load_lds(vW[i], sWd, sT0, offset=i * 1024, tag=("W", s))
        e.salu("s_add_u32", sT0, sHoff, s * 2048)
        e.salu("s_add_u32", sT1, sHoff1, s * 2048)
        for st in range(2):
            e.buf_load(HF_(s, st, 0), vL16, sWS, sT0, offset=st * 1024)
            e.buf_load(HF_(s, st, 1), vL16, sWS, sT1, offset=st * 1024)

    def compute(s):
        e.wait_vm_tag(("W", s))
        for st in range(2):
            for u in range(2):
                for j in range(2):
                    e.ds_read("ds_read_b64_tr_b16", WF(st, u)[2 * j:2 * j + 2], vTr[u],
                              offset=(s % 3) * 4096 + st * 2048 + j * 1024)
        for st in range(2):
            for u in range(2):
                for t in range(2):
                    e.mfma(ACC[u][t], WF(st, u), HF_(s, st, t), 0 if (s == 0 and st == 0) else None)

    def gjob():
        G = V(16, 8)
        Xr = V(32, 64)
        Acc = V(96, 16)
        vTmp = V(112, 8)
        e.salu("s_sub_u32", sT0, sIdx, 28)
        e.salu("s_lshl_b32", sT1, sXcd, 2)
        e.salu("s_add_u32", sT0, sT0, sT1)
        e.salu("s_lshl_b32", sT0, sT0, 2)
        e.salu("s_add_u32", sT0, sT0, sGwv)
        e.salu("s_mul_i32", sT1, sT0, 16 * 896)
        e.salu("s_lshl_b32", sT2, sT0, 7)
        e.salu("s_add_u32", sT2, sT2, GF)
        e.buf_load(vTmp[0:4], vL16, sGw, 0, offset=0)
        for r in range(16):
            if r % 4 == 0 and r:
                e.salu("s_add_u32", sT1, sT1, 4 * 896)
            e.buf_load(Xr[4 * r:4 * r + 4], vL16, sX, sT1, offset=(r % 4) * 896)
        for j in range(4):
            e.valu("v_lshlrev_b32", G[2 * j], 16, vTmp[j])
            e.valu("v_and_b32", G[2 * j + 1], "0xffff0000", vTmp[j])
        for r in range(16):
            for j in range(4):
                e.valu("v_lshlrev_b32", vTmp[4], 16, Xr[4 * r + j])
                e.valu("v_and_b32", vTmp[5], "0xffff0000", Xr[4 * r + j])
                if j == 0:
                    e.valu("v_mul_f32", Acc[r], vTmp[4], G[0])
                else:
                    e.valu("v_fmac_f32", Acc[r], vTmp[4], G[2 * j], dst_is_read=True)
                e.valu("v_fmac_f32", Acc[r], vTmp[5], G[2 * j + 1], dst_is_read=True)
        e.valu("v_cmp_gt_u32", "vcc", 56, lane)
        e.valu("v_mov_b32", vTmp[4], 0)
        for r in range(16):
            e.valu("v_cndmask_b32", Acc[r], vTmp[4], Acc[r])
        for sh in (8, 4, 2, 1):
            for r in range(16):
                e.valu("v_add_f32", Acc[r], Acc[r], Acc[r], extra=f"row_shr:{sh} bound_ctrl:0")
        for r in range(16):
            e.valu("v_add_f32", Acc[r], Acc[r], Acc[r], extra="row_bcast:15 row_mask:0xa")
        for r in range(16):
            e.valu("v_add_f32", Acc[r], Acc[r], Acc[r], extra="row_bcast:31 row_mask:0xc")
        e.valu("v_mov_b32", vTmp[0], 0)
        for r in range(16):
            e.valu("v_readlane_b32", S(60 + (r % 4)), Acc[r], 63)
            e.nop(3)
            e.valu("v_writelane_b32", vTmp[0], S(60 + (r % 4)), r, dst_is_read=True)
        e.valu("v_cvt_pk_bf16_f32", vTmp[0], vTmp[0], vTmp[0])
        e.valu("v_and_b32", vTmp[0], "0xffff0000", vTmp[0])
        e.valu("v_mul_f32", vTmp[0], hex(f2u(-LOG2E)), vTmp[0])
        e.valu("v_exp_f32", vTmp[0], vTmp[0])
        e.valu("v_add_f32", vTmp[0], 1.0, vTmp[0])
        e.valu("v_rcp_f32", vTmp[0], vTmp[0])
        e.valu("v_cvt_pk_bf16_f32", vTmp[0], vTmp[0], vTmp[0])
        e.valu("v_and_b32", vTmp[2], "0xffff0000", vTmp[0])
        e.valu("v_sub_f32", vTmp[3], 1.0, vTmp[2])
        e.valu("v_cvt_pk_bf16_f32", vTmp[3], vTmp[3], vTmp[3])
        e.valu("v_and_b32", vTmp[3], "0xffff0000", vTmp[3])
        e.valu("v_lshlrev_b32", vTmp[4], 3, lane)
        e.valu("v_cmp_gt_u32", "vcc", 16, lane)
        e.nop(1)
        e.salu("s_and_saveexec_b64", sSave, "vcc")
        e.buf_store(vTmp[2:4], vTmp[4], sWS, sT2, offset=0)
        e.salu("s_mov_b64", "exec", sSave)

    if gemm:
        dma_WH(0)
    dma_KV(2)
    if gemm:
        dma_WH(1)
    e.wait_vm_tag(("KV", 0))
    e.barrier()
    e.wait_vm_tag(("KV", 1))
    e.barrier()
    for i in range(16):
        if i + 3 <= 15:
            dma_KV(i + 3)
        if gemm:
            if i + 2 <= 13:
                dma_WH(i + 2)
            if i <= 13:
                compute(i)
            if i == 14:
                for u in range(2):
                    for t in range(2):
                        for j in range(4):
                            e.ds_write("ds_write_b128", vRw, ACC[u][t][4 * j:4 * j + 4],
                                       offset=(t * 2 + u) * 4096 + j * 1024)
                e.wait_lg_all()
            if i == 15:
                X = [V(16 + 16 * w, 16) for w in range(4)]
                for w in range(4):
                    for j in range(4):
                        e.ds_read("ds_read_b128", X[w][4 * j:4 * j + 4], vRr, offset=w * 16384 + j * 1024)
                for r in range(16):
                    e.valu("v_add_f32", X[0][r], X[0][r], X[1][r])
                    e.valu("v_add_f32", X[2][r], X[2][r], X[3][r])
                for r in range(16):
                    e.valu("v_add_f32", X[0][r], X[0][r], X[2][r])
                for j in range(8):
                    e.valu("v_cvt_pk_bf16_f32", X[1][j], X[0][2 * j], X[0][2 * j + 1])
                e.salu("s_lshr_b32", sT0, sGwv, 1)
                e.salu("s_lshl_b32", sT1, sMt64, 1)
                e.salu("s_add_u32", sT0, sT0, sT1)
                e.salu("s_mul_i32", sT0, sT0, 14)
                e.salu("s_and_b32", sT1, sGwv, 1)
                e.salu("s_add_u32", sT0, sT0, sT1)
                e.salu("s_lshl_b32", sT1, sNt, 1)
                e.salu("s_add_u32", sT0, sT0, sT1)
                e.salu("s_lshl_b32", sT0, sT0, 11)
                e.salu("s_add_u32", sT0, sT0, BF)
                e.buf_store(X[1][0:4], vL16, sWS, sT0, offset=0)
                e.buf_store(X[1][4:8], vL16, sWS, sT0, offset=1024)
        elif i == 0:
            gjob()
        if i + 2 <= 15:
            e.wait_vm_tag(("KV", i + 2))
        if i < 15:
            e.barrier()


K2_DESC = dict(name="k2_kernel", vgpr=160, acc=160, sgpr=72, grid=256, block=768, lds=K2_LDS)
```

```python
from emit import *
from layout import *

sWS, sWo, sOut = S(4, 4), S(8, 4), S(12, 4)
sWave, sXcd, sIdx, sMt64, sNt = S(16), S(17), S(18), S(19), S(20)
sT0, sT1, sT2 = S(21), S(22), S(23)
sOoff, sWoff, sLdsW = S(24), S(25), S(26)
sU, sTt = S(27), S(28)

OL = 0
WL = 65536
K3_LDS = 65536 + 57 * 1024


def gen_k3(e):
    e.label("k3_kernel")
    e.salu("s_cmp_ge_u32", S(2), 224)
    e.raw("s_cbranch_scc1 L_k3_end")
    e.s_load(S(44, 2), S(0, 2), 16)
    e.s_load(S(46, 2), S(0, 2), 64)
    e.s_load(S(48, 2), S(0, 2), 80)
    lane = V(0)
    vL16 = V(1)
    vW = [V(2), V(3), V(4), V(5)]
    vTr, vOr = V(6), V(7)
    vX0, vX1, vX2 = V(8), V(9), V(10)
    vSt = V(11)
    vG = V(12, 2)
    Bv = V(16, 8)
    ACC = V(32, 16)
    T = V(48, 16)
    NB = 4
    def OFr(k): return V(64 + (k % NB) * 4, 4)
    def WFr(k): return V(80 + (k % NB) * 4, 4)
    e.salu("s_and_b32", sXcd, S(2), 7)
    e.salu("s_lshr_b32", sIdx, S(2), 3)
    e.salu("s_mul_i32", sT0, sIdx, 37)
    e.salu("s_lshr_b32", sT0, sT0, 8)
    e.salu("s_mul_i32", sT1, sT0, 7)
    e.salu("s_sub_u32", sNt, sIdx, sT1)
    e.salu("s_lshl_b32", sMt64, sXcd, 2)
    e.salu("s_add_u32", sMt64, sMt64, sT0)
    e.valu("v_lshrrev_b32", V(1), 6, V(0))
    e.valu("v_and_b32", V(0), 63, V(0))
    e.valu("v_readfirstlane_b32", sWave, V(1))
    e.valu("v_lshlrev_b32", vL16, 4, lane)
    e.valu("v_lshrrev_b32", vX0, 3, lane)
    e.valu("v_bfe_u32", vX1, lane, 2, 1)
    e.valu("v_bfe_u32", vX2, lane, 4, 1)
    e.valu("v_xor_b32", vX1, vX1, vX2)
    e.valu("v_mul_u32_u24", vW[0], 896, vX0)
    e.valu("v_lshl_add_u32", vW[0], vX1, 6, vW[0])
    e.valu("v_and_b32", vX1, 3, lane)
    e.valu("v_lshl_add_u32", vW[0], vX1, 4, vW[0])
    for i in range(1, 4):
        e.valu("v_add_u32", vW[i], i * (8 * 896 - 1024), vW[0])
    e.salu("s_and_b32", sU, sWave, 1)
    e.salu("s_lshr_b32", sTt, sWave, 1)
    e.salu("s_lshl_b32", sOoff, sMt64, 16)
    e.salu("s_lshl_b32", sT0, sTt, 15)
    e.salu("s_lshl_b32", sT1, sU, 12)
    e.salu("s_add_u32", sT0, sT0, sT1)
    sLdsO = S(29)
    e.salu("s_mov_b32", sLdsO, sT0)
    e.salu("s_add_u32", sOoff, sOoff, sT0)
    e.salu("s_add_u32", sOoff, sOoff, OF)
    e.salu("s_mul_i32", sWoff, sWave, 32 * 896)
    e.salu("s_lshl_b32", sT0, sNt, 7)
    e.salu("s_add_u32", sWoff, sWoff, sT0)
    e.salu("s_lshl_b32", sLdsW, sWave, 12)
    e.salu("s_add_u32", sLdsW, sLdsW, WL)
    e.wait_lg_all()

    def srd(s, lo, size):
        e.salu("s_mov_b32", s[0], S(lo))
        e.salu("s_mov_b32", s[1], S(lo + 1))
        e.salu("s_mov_b32", s[2], size)
        e.salu("s_mov_b32", s[3], "0x20000")
    srd(sWS, 48, WS_USED)
    srd(sWo, 44, 448 * 896)
    srd(sOut, 46, 2048 * 896)

    def dma_O(c):
        e.salu("s_add_u32", "m0", sLdsO, c * 8192)
        e.salu("s_add_u32", sT0, sOoff, c * 8192)
        for i in range(4):
            e.buf_load_lds(vL16, sWS, sT0, offset=i * 1024, tag=("C", c))

    def dma_W(q):
        e.salu("s_add_u32", "m0", sLdsW, q * 16384)
        e.salu("s_add_u32", sT0, sWoff, q * 128 * 896)
        for i in range(4):
            e.buf_load_lds(vW[i], sWo, sT0, offset=i * 1024, tag=("C", q))

    for c in range(4):
        dma_W(c); dma_O(c)
    e.salu("s_lshl_b32", sT0, sMt64, 1)
    e.salu("s_add_u32", sT0, sT0, sTt)
    e.salu("s_mul_i32", sT1, sT0, 14)
    e.salu("s_add_u32", sT1, sT1, sU)
    e.salu("s_lshl_b32", sT2, sNt, 1)
    e.salu("s_add_u32", sT1, sT1, sT2)
    e.salu("s_lshl_b32", sT1, sT1, 11)
    e.salu("s_add_u32", sT1, sT1, BF)
    e.buf_load(Bv[0:4], vL16, sWS, sT1, offset=0)
    e.buf_load(Bv[4:8], vL16, sWS, sT1, offset=1024)
    e.valu("v_and_b32", vX0, 31, lane)
    e.valu("v_lshlrev_b32", vX1, 3, vX0)
    e.salu("s_lshl_b32", sT1, sT0, 8)
    e.salu("s_add_u32", sT1, sT1, GF)
    e.buf_load(vG, vX1, sWS, sT1, offset=0)
    e.valu("v_mul_u32_u24", vSt, 896, vX0)
    e.valu("v_lshrrev_b32", vX1, 5, lane)
    e.valu("v_lshl_add_u32", vSt, vX1, 4, vSt)
    sSt = S(30)
    e.salu("s_mul_i32", sSt, sT0, 32 * 896)
    e.salu("s_add_u32", sT2, sT2, sU)
    e.salu("s_lshl_b32", sT2, sT2, 6)
    e.salu("s_add_u32", sSt, sSt, sT2)
    e.valu("v_bfe_u32", vX0, lane, 2, 2)
    e.valu("v_lshl_add_u32", vX0, vX1, 2, vX0)
    e.valu("v_bfe_u32", vX2, lane, 4, 1)
    e.valu("v_lshlrev_b32", vX2, 5, vX2)
    e.valu("v_and_b32", vX1, 3, lane)
    e.valu("v_lshl_add_u32", vX2, vX1, 3, vX2)
    e.valu("v_lshl_add_u32", vX2, vX0, 7, vX2)
    e.valu("v_bfe_u32", vX1, lane, 3, 1)
    e.valu("v_xor_b32", vX1, sU, vX1)
    e.valu("v_lshl_add_u32", vTr, vX1, 6, vX2)
    e.valu("v_add_u32", vTr, WL, vTr)
    e.salu("s_lshl_b32", sT0, sTt, 15)
    e.valu("v_add_u32", vOr, sT0, vL16)

    def rd(k):
        hd, s = k // 2, k % 2
        e.ds_read("ds_read_b128", OFr(k), vOr, offset=k * 1024, tag=("k", k))
        for j in range(2):
            e.ds_read("ds_read_b64_tr_b16", WFr(k)[2 * j:2 * j + 2], vTr, offset=(28 * hd + 16 * s + 8 * j) * 128, tag=("k", k))

    for c in range(4):
        e.wait_vm_tag(("C", c))
        e.barrier()
        ks = list(range(8 * c, 8 * c + 8))
        for k in ks[:NB - 1]:
            rd(k)
        for n, k in enumerate(ks):
            if n + NB - 1 < 8:
                rd(ks[n + NB - 1])
            e.wait_lg_tag(("k", k))
            e.mfma(ACC, WFr(k), OFr(k), 0 if k == 0 else None)
    for j in range(8):
        e.valu("v_lshlrev_b32", T[2 * j], 16, Bv[j])
        e.valu("v_and_b32", T[2 * j + 1], "0xffff0000", Bv[j])
    for r in range(16):
        e.valu("v_mul_f32", T[r], T[r], vG[1])
    for r in range(16):
        e.valu("v_fmac_f32", T[r], ACC[r], vG[0], dst_is_read=True)
    for j in range(8):
        e.valu("v_cvt_pk_bf16_f32", Bv[j], T[2 * j], T[2 * j + 1])
    for kk in range(2):
        e.valu("v_permlane32_swap_b32", Bv[4 * kk], Bv[4 * kk + 2])
        e.valu("v_permlane32_swap_b32", Bv[4 * kk + 1], Bv[4 * kk + 3])
        e.buf_store(Bv[4 * kk:4 * kk + 4], vSt, sOut, sSt, offset=kk * 32)
    e.label("L_k3_end")
    e.raw("s_endpgm")


K3_DESC = dict(name="k3_kernel", vgpr=96, acc=96, sgpr=56, grid=224, block=256, lds=65536 + 65536)
```

```python
import sys
from emit import Emitter
import k1
NAME = "gated_mix__softmax_full_mha__swiglu_ffn__prompt"

def header():
    ref = open(f"cdna_kernels/{NAME}.s.ref").read().splitlines()
    out = []
    for l in ref:
        if l.startswith(";") and "@launch" not in l and "Override launch" not in l and "grid=ceil" not in l:
            out.append(l)
        elif not l.startswith(";"):
            break
    return out

def build(kernels, path):
    lines = header()
    for _, d in kernels:
        lines.append(f"; @launch kernel={d['name']} grid=({d['grid']},1,1) block=({d['block']},1,1) lds={d['lds']}")
    lines.append('.amdgcn_target "amdgcn-amd-amdhsa--gfx950"')
    lines.append(".text")
    body = "\n".join(lines) + "\n"
    seen = set()
    for g, d in kernels:
        if d["name"] in seen: continue
        seen.add(d["name"])
        e = Emitter()
        g(e)
        body += f".globl {d['name']}\n.p2align 8\n.type {d['name']},@function\n" + e.text()
    body += '.section .rodata,"a"\n'
    seen = set()
    for g, d in kernels:
        if d["name"] in seen: continue
        seen.add(d["name"])
        body += f""".p2align 6
.amdhsa_kernel {d['name']}
  .amdhsa_next_free_vgpr {d['vgpr']}
  .amdhsa_next_free_sgpr {d['sgpr']}
  .amdhsa_accum_offset {d['acc']}
  .amdhsa_group_segment_fixed_size 0
  .amdhsa_kernarg_size 88
  .amdhsa_user_sgpr_count 2
  .amdhsa_user_sgpr_kernarg_segment_ptr 1
  .amdhsa_system_sgpr_workgroup_id_x 1
.end_amdhsa_kernel
"""
    open(path, "w").write(body)

if __name__ == "__main__":
    ks = [(k1.gen_k1, k1.K1_DESC)]
    try:
        import k2; ks.append((k2.gen_k2, k2.K2_DESC))
        import k3; ks.append((k3.gen_k3, k3.K3_DESC))
    except ImportError as ex:
        print("partial:", ex)
    out = sys.argv[1] if len(sys.argv) > 1 else "cur.s"
    build(ks, out)
    print("wrote", out)
```

```python
import re


def R(kind, lo, n=1):
    return [f"{kind}{i}" for i in range(lo, lo + n)]


def rng(kind, lo, n):
    return f"{kind}{lo}" if n == 1 else f"{kind}[{lo}:{lo + n - 1}]"


class Reg:
    def __init__(self, kind, lo, n=1):
        self.kind, self.lo, self.n = kind, lo, n

    def __str__(self):
        return rng(self.kind, self.lo, self.n)

    def regs(self):
        return R(self.kind, self.lo, self.n)

    def __getitem__(self, i):
        if isinstance(i, slice):
            start = i.start or 0
            stop = self.n if i.stop is None else i.stop
            assert 0 <= start < stop <= self.n, (i, self.n)
            return Reg(self.kind, self.lo + start, stop - start)
        assert 0 <= i < self.n
        return Reg(self.kind, self.lo + i, 1)


def V(lo, n=1): return Reg("v", lo, n)
def A(lo, n=1): return Reg("a", lo, n)
def S(lo, n=1): return Reg("s", lo, n)


def regs_of(x):
    if isinstance(x, Reg):
        return x.regs()
    if isinstance(x, str) and x in ("vcc", "exec", "m0", "scc"):
        return [x]
    return []


TRANS = ("v_exp_f32", "v_rcp_f32", "v_log_f32", "v_rsq_f32", "v_sqrt_f32")


class Emitter:
    def __init__(self):
        self.lines = []
        self.pos = 0
        self.lg = []
        self.vm = []
        self.last = {}
        self.nid = 0
        self.smem_pending = False

    def raw(self, text, states=1):
        self.lines.append("    " + text)
        self.pos += states

    def comment(self, text):
        self.lines.append("    ; " + text)

    def label(self, name):
        self.lines.append(name + ":")

    def nop(self, n):
        while n > 0:
            k = min(n, 16)
            self.raw(f"s_nop {k - 1}", k)
            n -= k

    def _wait_lg_upto(self, idx):
        n_after = len(self.lg) - 1 - idx
        if self.smem_pending:
            n_after = 0
        n_after = min(n_after, 15)
        self.raw(f"s_waitcnt lgkmcnt({n_after})")
        self.lg = self.lg[len(self.lg) - n_after:] if n_after else []
        if n_after == 0:
            self.smem_pending = False

    def _wait_vm_upto(self, idx):
        n_after = len(self.vm) - 1 - idx
        n_after = min(n_after, 63)
        self.raw(f"s_waitcnt vmcnt({n_after})")
        self.vm = self.vm[len(self.vm) - n_after:] if n_after else []

    def wait_vm_tag(self, tag):
        idx = -1
        for i, (_, _, t) in enumerate(self.vm):
            if t == tag:
                idx = i
        if idx >= 0:
            self._wait_vm_upto(idx)

    def wait_lg_tag(self, tag):
        idx = -1
        for i, (_, _, t) in enumerate(self.lg):
            if t == tag:
                idx = i
        if idx >= 0:
            self._wait_lg_upto(idx)

    def wait_lg_all(self):
        if self.lg or self.smem_pending:
            self.raw("s_waitcnt lgkmcnt(0)")
            self.lg = []
            self.smem_pending = False

    def wait_vm_all(self):
        if self.vm:
            self.raw("s_waitcnt vmcnt(0)")
            self.vm = []

    def _resolve_pending(self, touched):
        t = set(touched)
        idx = -1
        for i, (_, d, _) in enumerate(self.lg):
            if d & t:
                idx = i
        if idx >= 0:
            self._wait_lg_upto(idx)
        idx = -1
        for i, (_, d, _) in enumerate(self.vm):
            if d & t:
                idx = i
        if idx >= 0:
            self._wait_vm_upto(idx)

    def _need(self, reg, kind, states):
        p = self.last.get((reg, kind))
        if p is None:
            return 0
        return p + states + 1 - self.pos - 0 if False else max(0, states - (self.pos - p - 1))

    def _mark(self, regs, kind):
        for r in regs:
            self.last[(r, kind)] = self.pos

    def _issue(self, text, cls, reads, writes, srcc=None, mfma_passes=8):
        self._resolve_pending(reads + writes)
        need = 0
        mw = {8: 12, 4: 8}
        for r in reads:
            if cls == "mfma":
                need = max(need, self._need(r, "valu_w", 2))
                if srcc is not None and r in srcc[0]:
                    if self.last.get((r, "mfma_d_id")) != srcc[1]:
                        need = max(need, self._need(r, "mfma_w8", 10), self._need(r, "mfma_w4", 6))
                else:
                    need = max(need, self._need(r, "mfma_w8", 12), self._need(r, "mfma_w4", 8))
            elif cls in ("valu", "trans", "ds", "vmem", "perm", "rfl", "dpp"):
                need = max(need, self._need(r, "mfma_w8", 12), self._need(r, "mfma_w4", 8))
            if cls in ("valu", "perm", "rfl", "dpp", "mfma"):
                need = max(need, self._need(r, "trans_w", 1))
            if cls in ("perm", "dpp"):
                need = max(need, self._need(r, "valu_w", 2))
            if cls == "rfl":
                need = max(need, self._need(r, "valu_w", 1))
            if cls == "vmem":
                need = max(need, self._need(r, "valu_sw", 5))
            if cls in ("valu", "trans", "perm", "dpp", "mfma"):
                need = max(need, self._need(r, "valu_sw", 2))
            if r == "m0" and cls in ("vmem",):
                need = max(need, self._need(r, "salu_w", 1))
        for w in writes:
            if cls in ("valu", "trans", "perm", "dpp", "ds", "vmem"):
                need = max(need, self._need(w, "mfma_w8", 12), self._need(w, "mfma_w4", 8))
            if cls in ("valu", "trans", "perm", "dpp"):
                need = max(need, self._need(w, "mfma_c8", 7), self._need(w, "mfma_c4", 3))
                need = max(need, self._need(w, "store_r", 2))
                need = max(need, self._need(w, "trans_w", 1))
            if cls in ("ds", "vmem"):
                need = max(need, self._need(w, "store_r", 1))
            if cls == "mfma":
                if srcc is None or self.last.get((w, "mfma_d_id")) != srcc[1]:
                    need = max(need, self._need(w, "mfma_w8", 10), self._need(w, "mfma_w4", 6))
        if need > 0:
            self.nop(need)
        if cls in ("valu", "trans", "perm", "dpp", "rfl"):
            self._mark([w for w in writes if w[0] in "va" and w not in ("vcc",)], "valu_w")
            self._mark([w for w in writes if w[0] == "s" or w == "vcc"], "valu_sw")
            if cls == "trans":
                self._mark(writes, "trans_w")
        if cls == "salu":
            self._mark(writes, "salu_w")
        if cls == "mfma":
            k = "8" if mfma_passes == 8 else "4"
            self._mark(writes, "mfma_w" + k)
            for w in writes:
                self.last[(w, "mfma_d_id")] = (writes[0], len(writes))
            if srcc is not None:
                self._mark(srcc[0], "mfma_c" + k)
        else:
            for w in writes:
                self.last.pop((w, "mfma_d_id"), None)
        self.raw(text)

    def valu(self, op, dst, *srcs, extra="", dst_is_read=False):
        reads = []
        for s in srcs:
            reads += regs_of(s)
        writes = regs_of(dst)
        if dst_is_read:
            reads += writes
        if op.startswith("v_cndmask") and len(srcs) == 2:
            reads.append("vcc")
        cls = "trans" if op in TRANS else "valu"
        if "permlane" in op:
            cls = "perm"
            writes = writes + regs_of(srcs[0])
            reads = reads + regs_of(dst)
        if "readfirstlane" in op or "readlane" in op:
            cls = "rfl"
        if "row_" in extra or "quad_perm" in extra:
            cls = "dpp"
        ops = ", ".join(str(x) for x in (dst,) + srcs)
        if op.startswith("v_cndmask") and len(srcs) == 2:
            ops += ", vcc"
        self._issue(f"{op} {ops}{(' ' + extra) if extra else ''}", cls, reads, writes)

    def salu(self, op, dst, *srcs):
        reads = []
        for s in srcs:
            reads += regs_of(s)
        writes = regs_of(dst)
        ops = ", ".join(str(x) for x in (dst,) + srcs)
        self._issue(f"{op} {ops}", "salu", reads, writes)

    def mfma(self, d, a, b, c=None, op="v_mfma_f32_32x32x16_bf16"):
        passes = 8 if "32x32" in op else 4
        if c is None:
            c = d
        reads = a.regs() + b.regs()
        srcc = None
        if isinstance(c, Reg):
            reads += c.regs()
            srcc = (c.regs(), (c.regs()[0], c.n))
        self._issue(f"{op} {d}, {a}, {b}, {c}", "mfma", reads, d.regs(), srcc=srcc, mfma_passes=passes)

    def ds_read(self, op, dst, addr, offset=0, tag=None):
        assert 0 <= offset < 65536, offset
        self._issue(f"{op} {dst}, {addr} offset:{offset}", "ds", addr.regs(), dst.regs())
        self.lg.append((self.nid, set(dst.regs()), tag)); self.nid += 1

    def ds_write(self, op, addr, src, offset=0, tag=None):
        assert 0 <= offset < 65536, offset
        self._issue(f"{op} {addr}, {src} offset:{offset}", "ds", addr.regs() + src.regs(), [])
        self.lg.append((self.nid, set(), tag)); self.nid += 1
        if src.n >= 3:
            self.pos -= 1; self._mark(src.regs(), "store_r"); self.pos += 1

    def buf_load(self, dst, voff, srd, soff, offset=0, tag=None, flags=""):
        assert 0 <= offset < 4096, offset
        op = {1: "buffer_load_dword", 2: "buffer_load_dwordx2", 3: "buffer_load_dwordx3", 4: "buffer_load_dwordx4"}[dst.n]
        self._issue(f"{op} {dst}, {voff}, {srd}, {soff} offen offset:{offset}{flags}", "vmem",
                    voff.regs() + srd.regs() + regs_of(soff), dst.regs())
        self.vm.append((self.nid, set(dst.regs()), tag)); self.nid += 1

    def buf_load_lds(self, voff, srd, soff, offset=0, tag=None, flags=""):
        assert 0 <= offset < 4096, offset
        self._issue(f"buffer_load_dwordx4 {voff}, {srd}, {soff} offen offset:{offset} lds{flags}", "vmem",
                    voff.regs() + srd.regs() + regs_of(soff) + ["m0"], [])
        self.vm.append((self.nid, set(), tag)); self.nid += 1

    def buf_store(self, src, voff, srd, soff, offset=0, tag=None, flags=""):
        assert 0 <= offset < 4096, offset
        op = {1: "buffer_store_dword", 2: "buffer_store_dwordx2", 3: "buffer_store_dwordx3", 4: "buffer_store_dwordx4"}[src.n]
        self._issue(f"{op} {src}, {voff}, {srd}, {soff} offen offset:{offset}{flags}", "vmem",
                    voff.regs() + srd.regs() + regs_of(soff) + src.regs(), [])
        self.vm.append((self.nid, set(), tag)); self.nid += 1
        if src.n >= 3:
            self.pos -= 1; self._mark(src.regs(), "store_r"); self.pos += 1

    def s_load(self, dst, base, off):
        op = {1: "s_load_dword", 2: "s_load_dwordx2", 4: "s_load_dwordx4", 8: "s_load_dwordx8", 16: "s_load_dwordx16"}[dst.n]
        self._issue(f"{op} {dst}, {base}, {off}", "other", base.regs(), [])
        self.lg.append((self.nid, set(dst.regs()), "smem")); self.nid += 1
        self.smem_pending = True

    STAMPS = False
    def stamp(self, idx, real=False):
        if not Emitter.STAMPS:
            return
        self.wait_lg_all()
        self.raw(f"{'s_memrealtime' if real else 's_memtime'} s[{70 + 2 * idx}:{71 + 2 * idx}]")
        self.raw("s_waitcnt lgkmcnt(0)")
        self.nstamp = max(getattr(self, "nstamp", 0), idx + 1)

    def dump_stamps(self, srd, kern, waveS, n=14):
        if not Emitter.STAMPS:
            return
        self.raw("s_lshl_b32 s100, s2, 4")
        self.raw(f"s_add_u32 s100, s100, {waveS}")
        self.raw("s_lshl_b32 s100, s100, 6")
        self.raw(f"s_add_u32 s100, s100, {(20 + kern) << 20}")
        self.raw("v_mov_b32 v1, 0")
        for i in range(n):
            self.raw(f"v_mov_b32 v0, s{70 + 2 * i}")
            self.raw(f"buffer_store_dword v0, v1, {srd}, s100 offen offset:{4 * i}")
            self.raw("s_nop 1")
        self.raw("s_waitcnt vmcnt(0)")

    def barrier(self):
        self.raw("s_barrier")

    def flush_hazards(self):
        worst = 0
        table = {"valu_w": 2, "valu_sw": 5, "trans_w": 1, "mfma_w8": 12, "mfma_w4": 8, "mfma_c8": 7, "mfma_c4": 3,
                 "store_r": 2, "salu_w": 1}
        for (r, k), p in self.last.items():
            if k in table:
                worst = max(worst, table[k] - (self.pos - p - 1))
        if worst > 0:
            self.nop(worst)
        self.last = {}

    def text(self):
        return "\n".join(self.lines) + "\n"
```

```python
from emit import *
from layout import *
import os
ROT1 = int(os.environ.get('ROT1', '0'))
TOUCH1 = int(os.environ.get('TOUCH1', '3'))
sWd = S(64, 4)
STF = os.environ.get('STF', '')

LOG2E = 1.4426950408889634
QSCALE = (28 ** -0.5) * LOG2E


def f2u(x):
    import struct
    return struct.unpack("<I", struct.pack("<f", x))[0]


sX, sWg, sWu, sWq, sWS = S(4, 4), S(8, 4), S(12, 4), S(16, 4), S(20, 4)
sWave, sMblk, sCg = S(24), S(25), S(26)
sAoff = S(27)
sLdsA = S(28)
sBoff = S(29)
sBoff1 = S(30)
sLdsB = S(31)
sT0, sT1 = S(32), S(33)
sQKoff = S(34)
sOut0 = S(35)
sOutQK = S(36)
sQKstr = S(37)
sQKmul = S(38)
sNL2E = S(39)
sMask = S(40, 2)
sRot = S(43)
sCh = [S(54 + i) for i in range(7)]
sT2 = S(61)
sAoff1 = S(62)

def ACC(u, t): return V(32 * u + 16 * t, 16)
vBF = 160
vTMP = 184
vA = [V(216 + i) for i in range(4)]
vB = [V(220 + i) for i in range(2)]
vQ = V(222)
vAr = [V(223 + i) for i in range(4)]
vTr = [[V(227), V(228)], [V(229), V(230)]]
vTrQ = V(231)
vLane16 = V(232)
vMulHi = V(233)
vVconst = V(234)
vX0, vX1, vX2 = V(235), V(236), V(237)

P0 = 0
P1 = 57344
AR = 114688


def AF(ks, t):
    return A((ks * 2 + t) * 4, 4)


def gen_k1(e):
    e.label("k1_kernel")
    e.salu("s_cmp_ge_u32", S(2), 256)
    e.raw("s_cbranch_scc1 L_k1_end")
    e.stamp(0); e.stamp(12, True)
    e.s_load(S(44, 4), S(0, 2), 0)
    e.s_load(S(48, 4), S(0, 2), 32)
    e.s_load(S(52, 2), S(0, 2), 80)
    e.s_load(S(68, 2), S(0, 2), 48)
    e.salu("s_and_b32", sT0, S(2), 7)
    e.salu("s_lshr_b32", sT1, S(2), 3)
    e.salu("s_and_b32", sMblk, sT0, 1)
    e.salu("s_lshl_b32", sMblk, sMblk, 2)
    e.salu("s_and_b32", sCg, sT1, 3)
    e.salu("s_add_u32", sMblk, sMblk, sCg)
    e.salu("s_lshr_b32", sCg, sT0, 1)
    e.salu("s_lshl_b32", sCg, sCg, 3)
    e.salu("s_lshr_b32", sT1, sT1, 2)
    e.salu("s_add_u32", sCg, sCg, sT1)
    e.salu("s_and_b32", sT0, sMblk, 3)
    e.salu("s_lshl_b32", sT0, sT0, 1)
    e.salu("s_add_u32", sRot, sT0, sT1)
    e.salu("s_sub_u32", sT0, sRot, 7)
    e.salu("s_cmp_ge_u32", sRot, 7)
    e.salu("s_cselect_b32", sRot, sT0, sRot)
    if not ROT1:
        e.salu("s_mov_b32", sRot, 0)
    e.salu("s_lshl_b32", sCh[0], sRot, 7)
    for c in range(1, 7):
        e.salu("s_add_u32", sCh[c], sCh[c - 1], 128)
        e.salu("s_cmp_eq_u32", sCh[c], 7 * 128)
        e.salu("s_cselect_b32", sCh[c], 0, sCh[c])
    e.valu("v_lshrrev_b32", vX0, 6, V(0))
    e.valu("v_and_b32", V(0), 63, V(0))
    e.valu("v_readfirstlane_b32", sWave, vX0)
    lane = V(0)
    e.valu("v_lshlrev_b32", vLane16, 4, lane)
    e.valu("v_lshrrev_b32", vX0, 3, lane)
    e.valu("v_and_b32", vX1, 7, lane)
    e.valu("v_lshrrev_b32", vX2, 1, vX0)
    e.valu("v_xor_b32", vX2, vX2, vX1)
    e.valu("v_mul_u32_u24", vA[0], 896, vX0)
    e.valu("v_lshl_add_u32", vA[0], vX2, 4, vA[0])
    e.valu("v_xor_b32", vX2, 4, vX2)
    e.valu("v_mul_u32_u24", vA[1], 896, vX0)
    e.valu("v_lshl_add_u32", vA[1], vX2, 4, vA[1])
    e.valu("v_add_u32", vA[2], 2 * 6144, vA[0])
    e.valu("v_add_u32", vA[3], 3 * 6144, vA[1])
    e.valu("v_add_u32", vA[1], 6144, vA[1])
    e.valu("v_and_b32", vX0, 31, lane)
    e.valu("v_lshrrev_b32", vX1, 5, lane)
    e.valu("v_bfe_u32", vX2, lane, 1, 3)
    e.valu("v_xor_b32", vX2, vX2, vX1)
    e.valu("v_lshlrev_b32", vX0, 7, vX0)
    for k in range(4):
        e.valu("v_xor_b32", vAr[k], 2 * k, vX2)
        e.valu("v_lshl_add_u32", vAr[k], vAr[k], 4, vX0)
    e.valu("v_bfe_u32", vX0, lane, 2, 2)
    e.valu("v_lshl_add_u32", vX0, vX1, 3, vX0)
    e.valu("v_bfe_u32", vX2, lane, 4, 1)
    e.valu("v_lshlrev_b32", vX2, 5, vX2)
    e.valu("v_and_b32", vX1, 3, lane)
    e.valu("v_lshl_add_u32", vX2, vX1, 3, vX2)
    e.valu("v_lshl_add_u32", vTrQ, vX0, 6, vX2)
    e.valu("v_add_u32", vTrQ, AR, vTrQ)
    e.valu("v_lshl_add_u32", vX2, vX0, 7, vX2)
    e.valu("v_bfe_u32", vX1, lane, 3, 1)
    e.valu("v_lshl_add_u32", vTr[0][0], vX1, 6, vX2)
    e.valu("v_xor_b32", vTr[0][1], 64, vTr[0][0])
    e.valu("v_add_u32", vTr[1][0], P1, vTr[0][0])
    e.valu("v_add_u32", vTr[1][1], P1, vTr[0][1])
    e.valu("v_lshrrev_b32", vX0, 2, lane)
    e.valu("v_and_b32", vX1, 3, lane)
    e.valu("v_mul_u32_u24", vQ, 2688, vX0)
    e.valu("v_lshl_add_u32", vQ, vX1, 4, vQ)
    e.salu("s_lshl_b32", sT0, sMblk, 2)
    e.salu("s_add_u32", sT0, sT0, sWave)
    e.salu("s_mul_i32", sAoff, sT0, 64 * 896)
    e.salu("s_add_u32", sAoff1, sAoff, 32 * 896)
    e.salu("s_lshl_b32", S(42), sT0, 1)
    sMt = S(42)
    e.salu("s_mul_i32", sLdsA, sWave, 12288)
    e.salu("s_add_u32", sLdsA, sLdsA, AR)
    e.salu("s_lshl_b32", sLdsB, sWave, 11)
    for k in range(4):
        e.valu("v_add_u32", vAr[k], sLdsA, vAr[k])
    e.salu("s_mov_b32", sNL2E, hex(f2u(-LOG2E)))
    e.wait_lg_all()
    def srd(s, lo, size):
        e.salu("s_mov_b32", s[0], S(lo))
        e.salu("s_mov_b32", s[1], S(lo + 1))
        e.salu("s_mov_b32", s[2], size)
        e.salu("s_mov_b32", s[3], "0x20000")
    srd(sX, 44, 2048 * 896)
    srd(sWq, 46, 448 * 2688)
    srd(sWg, 48, 448 * 3584)
    srd(sWu, 50, 448 * 3584)
    srd(sWS, 52, WS_USED)
    srd(sWd, 68, 1792 * 896)
    e.salu("s_cmp_ge_u32", sCg, 28)
    e.raw("s_cbranch_scc1 L_k1_typeB")
    e.flush_hazards()
    saved = (list(e.lg), list(e.vm))
    gen_body(e, False, sMt, lane)
    e.raw("s_endpgm")
    e.label("L_k1_typeB")
    e.lg, e.vm = list(saved[0]), list(saved[1])
    e.last = {}
    gen_body(e, True, sMt, lane)
    e.label("L_k1_end")
    e.raw("s_endpgm")


def gen_body(e, typeB, sMt, lane):
    ldw = 2688 if typeB else 3584
    srdP = [sWq, sWq] if typeB else [sWg, sWu]
    e.valu("v_lshrrev_b32", vX0, 3, lane)
    e.valu("v_bfe_u32", vX1, lane, 2, 1)
    e.valu("v_bfe_u32", vX2, lane, 4, 1)
    e.valu("v_xor_b32", vX1, vX1, vX2)
    e.valu("v_mul_u32_u24", vB[0], ldw, vX0)
    e.valu("v_mul_u32_u24", vX1, 56 if typeB else 64, vX1)
    e.valu("v_add_u32", vB[0], vB[0], vX1)
    e.valu("v_and_b32", vX1, 3, lane)
    e.valu("v_lshl_add_u32", vB[0], vX1, 4, vB[0])
    e.valu("v_add_u32", vB[1], 8 * ldw - 1024, vB[0])
    e.salu("s_mul_i32", sBoff, sWave, 16 * ldw)
    if not typeB:
        e.salu("s_lshl_b32", sT0, sCg, 7)
        e.salu("s_add_u32", sBoff, sBoff, sT0)
        e.salu("s_mov_b32", sBoff1, sBoff)
        e.salu("s_mul_i32", sT0, sCg, 56)
        e.salu("s_mul_i32", sOut0, sMt, H_MT_STRIDE)
        e.salu("s_lshl_b32", sT1, sCg, 12)
        e.salu("s_add_u32", sOut0, sOut0, sT1)
        e.salu("s_add_u32", sOut0, sOut0, HF)
        e.salu("s_and_b32", sT1, sCg, 15)
        e.salu("s_lshl_b32", sT1, sT1, 6)
        e.salu("s_add_u32", sT1, sT1, sMt)
        e.salu("s_cmp_lt_u32", sCg, 16)
        e.salu("s_cselect_b32", sQKstr, 11, 12)
        e.salu("s_cselect_b32", sOutQK, QF, KVF)
        e.salu("s_cselect_b32", sQKmul, hex(f2u(QSCALE)), 1.0)
        e.salu("s_lshl_b32", sQKstr, 1, sQKstr)
        e.salu("s_mul_i32", sT1, sT1, sQKstr)
        e.salu("s_add_u32", sOutQK, sOutQK, sT1)
    else:
        e.salu("s_sub_u32", sT1, sCg, 28)
        e.salu("s_mul_i32", sT0, sT1, 224)
        e.salu("s_add_u32", sBoff, sBoff, sT0)
        e.salu("s_add_u32", sBoff, sBoff, 896 * 2)
        e.salu("s_add_u32", sBoff1, sBoff, 112)
        e.salu("s_lshl_b32", sT0, sT1, 8)
        e.salu("s_add_u32", sT0, sT0, sMt)
        e.salu("s_lshl_b32", sOut0, sT0, 12)
        e.salu("s_add_u32", sOut0, sOut0, KVF + 2048)
        e.salu("s_add_u32", sT0, sT1, 12)
        e.salu("s_lshl_b32", sT0, sT0, 6)
        e.salu("s_add_u32", sT0, sT0, sMt)
        e.salu("s_lshl_b32", sOutQK, sT0, 12)
        e.salu("s_add_u32", sOutQK, sOutQK, KVF)
        e.salu("s_mov_b32", sQKstr, 4096)
        e.salu("s_mov_b32", sQKmul, hex(f2u(1.0)))
        e.salu("s_mul_i32", sT0, sCg, 56)
    e.salu("s_mov_b32", sQKoff, sT0)

    def dma_A(n):
        c, t = n // 2, n % 2
        e.salu("s_add_u32", "m0", sLdsA, (n % 3) * 4096)
        e.salu("s_add_u32", sT0, sAoff1 if t else sAoff, sCh[c])
        for i in range(4):
            e.buf_load_lds(vA[i], sX, sT0, offset=i * 1024, tag=("A", n))

    def dma_B(c):
        e.salu("s_mul_i32", sT2, sCh[c], ldw // 2)
        for p in range(2):
            e.salu("s_add_u32", "m0", sLdsB, (P0, P1)[p] + c * 64 * 128)
            e.salu("s_add_u32", sT1, (sBoff, sBoff1)[p], sT2)
            for i in range(2):
                e.buf_load_lds(vB[i], srdP[p], sT1, offset=i * 1024, tag=("B", c))

    def read_A(n):
        c, t = n // 2, n % 2
        e.wait_vm_tag(("A", n))
        for k in range(4):
            e.ds_read("ds_read_b128", AF(4 * c + k, t), vAr[k], offset=(n % 3) * 4096, tag=("Ar", n))

    dma_A(0); dma_A(1); dma_B(0)
    vTd = V(238)
    if TOUCH1 & 1:
        e.salu("s_lshr_b32", sT0, S(2), 5)
        e.salu("s_lshl_b32", sT1, sMblk, 3)
        e.salu("s_add_u32", sT0, sT0, sT1)
        e.salu("s_mul_i32", sT0, sT0, 32 * 896)
        e.salu("s_add_u32", sT0, sT0, 128)
        e.salu("s_mul_i32", sT1, sWave, 48)
        e.valu("v_min_u32", vX1, 47, lane)
        e.valu("v_add_u32", vX1, sT1, vX1)
        e.valu("v_and_b32", vX0, 31, vX1)
        e.valu("v_mul_u32_u24", vX0, 896, vX0)
        e.valu("v_lshrrev_b32", vX1, 5, vX1)
        e.valu("v_lshl_add_u32", vX0, vX1, 7, vX0)
        e.buf_load(V(239), vX0, sX, sT0, offset=0)
    if TOUCH1 & 2:
        e.salu("s_lshr_b32", sT0, S(2), 3)
        e.salu("s_and_b32", sT0, sT0, 3)
        e.salu("s_and_b32", sT1, sWave, 1)
        e.salu("s_lshl_b32", sT1, sT1, 4)
        e.salu("s_add_u32", sT0, sT0, sT1)
        e.salu("s_add_u32", sT0, sT0, 4)
        e.salu("s_sub_u32", sT0, sT0, sWave)
        e.salu("s_mul_i32", sT0, sT0, 16 * ldw)
        e.valu("v_and_b32", vX0, 15, lane)
        e.valu("v_lshrrev_b32", vX1, 4, lane)
        e.valu("v_lshl_add_u32", vX0, vX1, 6, vX0)
        e.valu("v_mul_u32_u24", vX0, ldw, vX0)
        e.salu("s_add_u32", sT1, sT0, sBoff1)
        e.salu("s_add_u32", sT0, sT0, sBoff)
        e.salu("s_cmp_ge_u32", sWave, 2)
        e.raw(f"s_cbranch_scc1 L_k1_t2{int(typeB)}")
        e.raw(f"buffer_load_dword {vTd}, {vX0}, {srdP[0]}, {sT0} offen")
        e.raw(f"s_branch L_k1_t3{int(typeB)}")
        e.label(f"L_k1_t2{int(typeB)}")
        e.raw(f"buffer_load_dword {vTd}, {vX0}, {srdP[1]}, {sT1} offen")
        e.label(f"L_k1_t3{int(typeB)}")
        e.vm.append((-1, set(), "touch"))
    dma_A(2); dma_B(1); dma_B(2)
    e.valu("v_cmp_gt_u32", "vcc", 32, lane)
    e.valu("v_mov_b32", vX0, sQKmul)
    e.valu("v_mov_b32", vX1, 0)
    e.valu("v_cndmask_b32", vMulHi, vX1, vX0)
    if typeB:
        e.valu("v_and_b32", vX0, 31, lane)
        e.valu("v_cmp_eq_u32", "vcc", 28, vX0)
        e.valu("v_mov_b32", vX2, "0x3f803f80")
        e.valu("v_cndmask_b32", vVconst, vX1, vX2)
        e.valu("v_cmp_le_u32", sMask, 28, vX0)
    e.stamp(1)
    read_A(0); e.wait_lg_tag(("Ar", 0)); e.stamp(2); dma_A(3)
    read_A(1); e.wait_lg_tag(("Ar", 1)); dma_A(4)

    units1 = [(0, 0), (1, 0), (0, 1)]

    def BF1(ks, i): return V(vBF + (ks % 2) * 12 + i * 4, 4)

    def tr_reads1(ks):
        out = []
        for i, (p, u) in enumerate(units1):
            for j in range(2):
                out.append(lambda i=i, p=p, u=u, j=j: e.ds_read(
                    "ds_read_b64_tr_b16", BF1(ks, i)[2 * j:2 * j + 2], vTr[p][u], offset=ks * 2048 + j * 512,
                    tag=("Bf", ks)))
        return out

    def mm(acc, xf, wf, first, swap):
        a, b = (xf, wf) if swap else (wf, xf)
        e.mfma(acc, a, b, 0 if first else None)

    e.wait_vm_tag(("B", 0))
    e.barrier()
    e.stamp(3)
    for f in tr_reads1(0):
        f()
    for ks in range(28):
        c, kk = ks // 4, ks % 4
        if ks in (8, 16): e.stamp(4 + ks // 16)
        side = []
        if ks + 1 < 28:
            if kk == 3:
                side.append(lambda c=c: (e.wait_vm_tag(("B", c + 1)), e.barrier()))
            side += tr_reads1(ks + 1)
        post = []
        if kk in (0, 2):
            n = 2 * c + 2 + kk // 2
            if n < 14:
                post.append(lambda n=n: read_A(n))
        if kk in (1, 3):
            n = 2 * c + 2 + kk // 2
            if n + 3 < 14:
                post.append(lambda n=n: (e.wait_lg_tag(("Ar", n)), dma_A(n + 3)))
        if kk == 2 and c + 3 < 7:
            post.append(lambda c=c: dma_B(c + 3))
        e.wait_lg_tag(("Bf", ks))
        gi = 0
        for i in range(3):
            for t in range(2):
                mm(ACC(i, t), AF(ks, t), BF1(ks, i), ks == 0, typeB)
                for _ in range(2):
                    if side:
                        side.pop(0)()
                if gi >= 3 and post:
                    post.pop(0)()
                gi += 1
        while side: side.pop(0)()
        while post: post.pop(0)()

    e.stamp(6)
    e.wait_lg_tag(("Ar", 13))
    for i in range(7):
        if i == 0:
            e.salu("s_mul_i32", sT1, sWave, 7)
            e.salu("s_lshl_b32", sT2, sRot, 2)
            e.salu("s_add_u32", sT1, sT1, sT2)
        else:
            e.salu("s_add_u32", sT1, sT1, 1)
        e.salu("s_sub_u32", sT2, sT1, 28)
        e.salu("s_cmp_ge_u32", sT1, 28)
        e.salu("s_cselect_b32", sT1, sT2, sT1)
        e.salu("s_mul_i32", sT0, sT1, 16 * 2688)
        e.salu("s_add_u32", sT0, sT0, sQKoff)
        e.salu("s_add_u32", "m0", sLdsA, i * 1024)
        e.nop(1)
        e.buf_load_lds(vQ, sWq, sT0, offset=0, tag="QKB")

    if TOUCH1 & 4:
        e.salu("s_lshr_b32", sT0, S(2), 3)
        e.salu("s_mul_i32", sT0, sT0, 392 * 128)
        e.salu("s_mul_i32", sT1, sWave, 98 * 128)
        e.salu("s_add_u32", sT0, sT0, sT1)
        e.valu("v_lshlrev_b32", vX0, 3, vLane16)
        e.valu("v_min_u32", vX1, 33 * 128, vX0)
        e.buf_load(vTd, vX0, sWd, sT0, offset=0)
        e.salu("s_add_u32", sT0, sT0, 64 * 128)
        e.buf_load(V(239), vX1, sWd, sT0, offset=0)

    def BF2(ks): return V(vBF + (ks % 4) * 4, 4)

    def epi_h(ug, uu, funit_off):
        ops = []
        for t in range(2):
            G, U = ACC(ug, t), ACC(uu, t)
            T = V(vTMP + 16 * t, 16)
            def stage(st, r, G=G, U=U, T=T):
                if st == 0: return (1, lambda: e.valu("v_mul_f32", T[r], sNL2E, G[r]))
                if st == 1: return (2, lambda: e.valu("v_exp_f32", T[r], T[r]))
                if st == 2: return (1, lambda: e.valu("v_mul_f32", G[r], G[r], U[r]))
                if st == 3: return (1, lambda: e.valu("v_add_f32", T[r], 1.0, T[r]))
                if st == 4: return (2, lambda: e.valu("v_rcp_f32", T[r], T[r]))
                if st == 5: return (1, lambda: e.valu("v_mul_f32", G[r], G[r], T[r]))
            for g in range(4):
                for st in range(6):
                    for r in range(4 * g, 4 * g + 4):
                        ops.append(stage(st, r))
                for i in range(2 * g, 2 * g + 2):
                    ops.append((1, lambda i=i, G=G, U=U: e.valu("v_cvt_pk_bf16_f32", U[i], G[2 * i], G[2 * i + 1])))
                if g % 2 == 1:
                    s = g // 2
                    def st(s=s, t=t, U=U):
                        e.salu("s_add_u32", sT1, sOut0, t * H_MT_STRIDE)
                        e.buf_store(U[4 * s:4 * s + 4], vLane16, sWS, sT1, offset=funit_off + s * 1024, flags=STF)
                    ops.append((2, st))
        return ops

    def epi_v(u, head_off):
        ops = []
        for t in range(2):
            X = ACC(u, t)
            T = V(vTMP + 16 * t, 8)
            for i in range(8):
                ops.append((1, lambda i=i, X=X, T=T: e.valu("v_cvt_pk_bf16_f32", T[i], X[2 * i], X[2 * i + 1])))
                ops.append((1, lambda i=i, T=T: e.valu("v_cndmask_b32", T[i], T[i], vVconst, sMask)))
                if i % 4 == 3:
                    s = i // 4
                    def st(s=s, t=t, T=T):
                        e.salu("s_add_u32", sT1, sOut0, head_off * 64 * 4096 + t * 4096)
                        e.buf_store(T[4 * s:4 * s + 4], vLane16, sWS, sT1, offset=s * 1024, flags=STF)
                    ops.append((2, st))
        return ops

    def phase2(accu, rd, swap, ops, budget):
        PF = 3
        for ks in range(PF):
            for f in rd(ks): f()
        for ks in range(28):
            side = rd(ks + PF) if ks + PF < 28 else []
            e.wait_lg_tag(("B2", accu, ks))
            for t in range(2):
                mm(ACC(accu, t), AF(ks, t), BF2(ks), ks == 0, swap)
                if side: side.pop(0)()
                b = budget
                while ops and b > 0:
                    cost, f = ops.pop(0)
                    f(); b -= cost
        while ops:
            ops.pop(0)[1]()

    def rd_p11(ks):
        return [lambda j=j: e.ds_read("ds_read_b64_tr_b16", BF2(ks)[2 * j:2 * j + 2], vTr[1][1],
                                      offset=ks * 2048 + j * 512, tag=("B2", 3, ks)) for j in range(2)]

    def rd_qk(ks):
        return [lambda j=j: e.ds_read("ds_read_b64_tr_b16", BF2(ks)[2 * j:2 * j + 2], vTrQ,
                                      offset=(ks // 7) * 12288 + (ks % 7) * 1024 + j * 256, tag=("B2", 4, ks))
                for j in range(2)]

    if not typeB:
        ops1 = epi_h(0, 1, 0)
        ops2 = epi_h(2, 3, 2048)
    else:
        ops1 = epi_v(0, 0) + epi_v(1, 2) + epi_v(2, 1)
        ops2 = epi_v(3, 3)
    phase2(3, rd_p11, typeB, ops1, 4)
    e.stamp(7)
    e.wait_vm_tag("QKB")
    e.barrier()
    e.stamp(8)
    phase2(4, rd_qk, False, ops2, 4)
    e.stamp(9)
    for t in range(2):
        X = ACC(4, t)
        T = V(vTMP + 16 * t, 8)
        for r in range(16):
            e.valu("v_mul_f32", X[r], sQKmul if r < 12 else vMulHi, X[r])
        for i in range(8):
            e.valu("v_cvt_pk_bf16_f32", T[i], X[2 * i], X[2 * i + 1])
        if t == 1:
            e.salu("s_add_u32", sOutQK, sOutQK, sQKstr)
        for s in range(2):
            e.buf_store(T[4 * s:4 * s + 4], vLane16, sWS, sOutQK, offset=s * 1024, flags=STF)
    e.stamp(10)
    if Emitter.STAMPS:
        e.wait_vm_all()
    e.stamp(11); e.stamp(13, True)
    e.dump_stamps(sWS, 0, sWave)


K1_DESC = dict(name="k1_kernel", vgpr=256 + 224, acc=256, sgpr=72, grid=256, block=256, lds=163840)
```

```python
from emit import *
from layout import *
from k1 import f2u, LOG2E
import os
ROT_KV = int(os.environ.get('ROT_KV', '0'))
ROT_G = int(os.environ.get('ROT_G', '0'))
STF = os.environ.get('STF', '')

sWS, sWd, sX, sGw = S(4, 4), S(8, 4), S(12, 4), S(16, 4)
sWo = S(64, 4)
TOUCH2 = int(os.environ.get("TOUCH2", "1"))
PRIO = int(os.environ.get("PRIO", "2"))
NOMFMA = int(os.environ.get("NOMFMA", "0"))
NOWH = int(os.environ.get("NOWH", "0"))
sWave, sXcd, sIdx, sHead, sQblk = S(20), S(21), S(22), S(23), S(24)
sKV = S(25)
sT0, sT1, sT2 = S(26), S(27), S(28)
sGwv = S(29)
sLdsKV = S(30)
sLdsW = S(31)
sWoff = S(32)
sHoff = S(33)
sHoff1 = S(34)
sMt64, sNt = S(35), S(36)
sCnt = S(37)
sSave = S(38, 2)
sRot = S(43)

KVR = 0
WR = 65536
RED = 65536
ARED = 131072
K2_LDS = 147456

L_LO = 2.0 ** -50
L_HI = 2.0 ** 60


def gen_k2(e):
    e.label("k2_kernel")
    e.salu("s_cmp_ge_u32", S(2), 256)
    e.raw("s_cbranch_scc1 L_k2_end")
    e.stamp(0); e.stamp(12, True)
    e.s_load(S(44, 2), S(0, 2), 0)
    e.s_load(S(48, 4), S(0, 2), 48)
    e.s_load(S(52, 2), S(0, 2), 80)
    e.s_load(S(46, 2), S(0, 2), 16)
    e.salu("s_and_b32", sXcd, S(2), 7)
    e.salu("s_lshr_b32", sIdx, S(2), 3)
    e.salu("s_lshr_b32", sT0, sIdx, 4)
    e.salu("s_lshl_b32", sHead, sXcd, 1)
    e.salu("s_add_u32", sHead, sHead, sT0)
    e.salu("s_and_b32", sQblk, sIdx, 15)
    e.valu("v_lshrrev_b32", V(1), 6, V(0))
    e.valu("v_and_b32", V(0), 63, V(0))
    e.valu("v_readfirstlane_b32", sWave, V(1))
    e.salu("s_lshl_b32", sKV, sHead, 18)
    e.salu("s_add_u32", sKV, sKV, KVF)
    e.wait_lg_all()

    def srd(s, lo, size):
        e.salu("s_mov_b32", s[0], S(lo))
        e.salu("s_mov_b32", s[1], S(lo + 1))
        e.salu("s_mov_b32", s[2], size)
        e.salu("s_mov_b32", s[3], "0x20000")
    srd(sWS, 52, WS_USED)
    srd(sWd, 48, 1792 * 896)
    srd(sX, 44, 2048 * 896)
    srd(sGw, 50, 896)
    srd(sWo, 46, 448 * 896)
    e.salu("s_cmp_ge_u32", sWave, 8)
    e.raw("s_cbranch_scc1 L_k2_loader")
    e.flush_hazards()
    gen_attn(e)
    e.raw("s_endpgm")
    e.label("L_k2_loader")
    e.lg, e.vm, e.last = [], [], {}
    if PRIO == 2:
        e.raw("s_setprio 2")
    e.salu("s_sub_u32", sGwv, sWave, 8)
    e.salu("s_lshl_b32", sLdsKV, sGwv, 12)
    e.salu("s_add_u32", sKV, sKV, sLdsKV)
    e.salu("s_cmp_ge_u32", sIdx, 28)
    e.raw("s_cbranch_scc1 L_k2_gjob")
    gen_loader(e, True)
    e.raw("s_endpgm")
    e.label("L_k2_gjob")
    e.lg, e.vm, e.last = [], [], {}
    gen_loader(e, False)
    e.label("L_k2_end")
    e.raw("s_endpgm")


def gen_attn(e):
    lane = V(0)
    Q = [V(8, 4), V(12, 4)]
    K = [V(16, 4), V(20, 4)]
    Vf = [[V(24, 4), V(28, 4)], [V(32, 4), V(36, 4)]]
    Sb = [V(40, 16), V(56, 16)]
    P = V(72, 8)
    O = V(80, 16)
    vKV, vL16, vRed = V(1), V(2), V(3)
    vT0, vT1, vT2, vT3 = V(4), V(5), V(6), V(7)
    X = V(96, 16)
    sQt, sKg = S(40), S(41)
    e.salu("s_and_b32", sQt, sWave, 3)
    e.salu("s_lshr_b32", sKg, sWave, 2)
    e.valu("v_lshlrev_b32", vL16, 4, lane)
    e.salu("s_lshl_b32", sT0, sHead, 6)
    e.salu("s_lshl_b32", sT1, sQblk, 2)
    e.salu("s_add_u32", sT1, sT1, sQt)
    e.salu("s_add_u32", sT0, sT0, sT1)
    e.salu("s_lshl_b32", sT0, sT0, 11)
    if QF:
        e.salu("s_add_u32", sT0, sT0, QF)
    e.buf_load(Q[0], vL16, sWS, sT0, offset=0)
    e.buf_load(Q[1], vL16, sWS, sT0, offset=1024)
    sOo = S(42)
    e.salu("s_lshl_b32", sOo, sT1, 4)
    e.salu("s_add_u32", sOo, sOo, sHead)
    e.salu("s_lshl_b32", sOo, sOo, 11)
    e.salu("s_add_u32", sOo, sOo, OF)
    e.salu("s_lshl_b32", sT2, sKg, 13)
    e.valu("v_add_u32", vKV, sT2, vL16)
    e.salu("s_lshl_b32", sT2, sQt, 12)
    e.salu("s_add_u32", sT2, sT2, ARED)
    e.valu("v_add_u32", vRed, sT2, vL16)

    vTo, vTd = V(112), V(113)
    sTo, sSite = S(44), S(45)
    if TOUCH2:
        e.valu("v_lshrrev_b32", vT0, 3, lane)
        e.valu("v_and_b32", vT1, 7, lane)
        e.valu("v_lshlrev_b32", vT1, 7, vT1)
        e.salu("s_lshl_b32", sT0, sWave, 3)
        e.salu("s_add_u32", sT0, sT0, 3)
        e.valu("v_add_u32", vT0, sT0, vT0)
        e.valu("v_min_u32", vT0, 15, vT0)
        e.valu("v_lshl_add_u32", vTo, vT0, 14, vT1)
        e.salu("s_lshl_b32", sTo, sQblk, 10)
        e.salu("s_add_u32", sTo, sTo, sKV)
        e.salu("s_add_u32", sSite, sWave, 1)
        e.salu("s_cmp_lt_u32", sWave, 2)
        e.raw("s_cbranch_scc1 L_k2_tdone")
        e.valu("v_lshlrev_b32", vTo, 7, lane)
        e.salu("s_lshl_b32", sTo, sIdx, 1)
        e.salu("s_add_u32", sTo, sTo, sWave)
        e.salu("s_sub_u32", sTo, sTo, 5)
        e.salu("s_lshl_b32", sTo, sTo, 13)
        e.salu("s_cmp_eq_u32", sWave, 7)
        e.salu("s_cselect_b32", sSite, 0, 4)
        e.salu("s_cmp_ge_u32", sWave, 5)
        e.raw("s_cbranch_scc1 L_k2_tdone")
        e.salu("s_mul_i32", sT0, sIdx, 37)
        e.salu("s_lshr_b32", sT0, sT0, 8)
        e.salu("s_mul_i32", sT1, sT0, 7)
        e.salu("s_sub_u32", sT1, sIdx, sT1)
        e.salu("s_lshl_b32", sT2, sXcd, 2)
        e.salu("s_add_u32", sT0, sT0, sT2)
        e.salu("s_mul_i32", sTo, sT0, 2 * H_MT_STRIDE)
        e.salu("s_add_u32", sTo, sTo, HF)
        e.salu("s_mul_i32", sT2, sWave, 7)
        e.salu("s_add_u32", sT1, sT1, sT2)
        e.salu("s_sub_u32", sT1, sT1, 8)
        e.salu("s_and_b32", sT2, sT1, 1)
        e.salu("s_mul_i32", sT2, sT2, 56 * 1024)
        e.salu("s_add_u32", sTo, sTo, sT2)
        e.salu("s_lshr_b32", sT1, sT1, 1)
        e.salu("s_lshl_b32", sT1, sT1, 11)
        e.salu("s_add_u32", sTo, sTo, sT1)
        e.valu("v_lshrrev_b32", vT0, 5, lane)
        e.valu("v_mul_u32_u24", vTo, 28 * 1024, vT0)
        e.valu("v_bfe_u32", vT0, lane, 4, 1)
        e.valu("v_mul_u32_u24", vT0, H_MT_STRIDE, vT0)
        e.valu("v_add_u32", vTo, vTo, vT0)
        e.valu("v_and_b32", vT0, 15, lane)
        e.valu("v_lshl_add_u32", vTo, vT0, 7, vTo)
        e.salu("s_sub_u32", sSite, sWave, 1)
        e.salu("s_cmp_ge_u32", sIdx, 28)
        e.salu("s_cselect_b32", sSite, 0, sSite)
        e.label("L_k2_tdone")
        e.flush_hazards()

    def site(n):
        if not TOUCH2:
            return
        e.salu("s_cmp_lg_u32", sSite, n)
        e.raw(f"s_cbranch_scc1 L_k2_site{n}")
        e.raw(f"buffer_load_dword {vTd}, {vTo}, {sWo if n == 4 else sWS}, {sTo} offen")
        e.label(f"L_k2_site{n}")

    def toff(i): return ((i >> 1) % 4) * 16384 + (i & 1) * 4096

    def rdK(i):
        e.ds_read("ds_read_b128", K[0], vKV, offset=toff(i))
        e.ds_read("ds_read_b128", K[1], vKV, offset=toff(i) + 1024)

    def rdV(i):
        e.ds_read("ds_read_b128", Vf[i % 2][1], vKV, offset=toff(i) + 3072)
        e.ds_read("ds_read_b128", Vf[i % 2][0], vKV, offset=toff(i) + 2048)

    e.stamp(1)
    e.barrier()
    e.stamp(2)
    rdK(0); rdV(0)
    e.mfma(Sb[0], K[0], Q[0], 0)
    e.mfma(Sb[0], K[1], Q[1])
    rdK(1)
    site(1)
    e.barrier()
    e.stamp(3)
    NT = 32
    for i in range(NT):
        Sc, Sn = Sb[i % 2], Sb[(i + 1) % 2]
        if i in (8, 16, 24): e.stamp(3 + i // 8)
        if i == 6: site(2)
        if i == 12: site(3)
        if i == 20: site(4)
        def ex(a, b):
            for r in range(a, b):
                e.valu("v_exp_f32", Sc[r], Sc[r])
        def cv(a, b):
            for j in range(a, b):
                e.valu("v_cvt_pk_bf16_f32", P[j], Sc[2 * j], Sc[2 * j + 1])
        if i + 1 < NT:
            e.mfma(Sn, K[0], Q[0], 0)
        ex(0, 3)
        if i > 0:
            e.mfma(O, Vf[(i - 1) % 2][1], P[4:8])
        if i + 1 < NT:
            rdV(i + 1)
        ex(3, 6)
        if i + 1 < NT:
            e.mfma(Sn, K[1], Q[1])
        if i + 2 < NT:
            rdK(i + 2)
        ex(6, 8)
        cv(0, 4)
        ex(8, 10)
        e.mfma(O, Vf[i % 2][0], P[0:4], 0 if i == 0 else None)
        ex(10, 16)
        cv(4, 8)
        if i % 2 == 1 and i < NT - 1:
            e.barrier()
    e.mfma(O, Vf[(NT - 1) % 2][1], P[4:8])
    e.stamp(7)
    e.salu("s_cmp_eq_u32", sKg, 0)
    e.raw("s_cbranch_scc1 L_k2_fin")
    for j in range(4):
        e.ds_write("ds_write_b128", vRed, O[4 * j:4 * j + 4], offset=j * 1024)
    e.wait_lg_all()
    e.barrier()
    e.raw("s_endpgm")
    e.label("L_k2_fin")
    e.lg = []
    e.last = {}
    e.barrier()
    for j in range(4):
        e.ds_read("ds_read_b128", X[4 * j:4 * j + 4], vRed, offset=j * 1024)
    e.nop(8)
    for r in range(16):
        e.valu("v_add_f32", O[r], O[r], X[r])
    e.valu("v_mov_b32", vT0, O[12])
    e.valu("v_mov_b32", vT1, O[12])
    e.valu("v_mov_b32", vT2, 0)
    e.valu("v_permlane32_swap_b32", vT0, vT1)
    for r in range(16):
        e.valu("v_fmac_f32", vT2, 0, O[r], dst_is_read=True)
    e.salu("s_mov_b32", sT0, hex(f2u(L_LO)))
    e.salu("s_mov_b32", sT1, hex(f2u(L_HI)))
    e.valu("v_add_f32", vT2, vT2, vT1)
    e.valu("v_cmp_le_f32", "vcc", sT0, vT2)
    e.valu("v_cmp_ge_f32", sSave, sT1, vT2)
    e.nop(1)
    e.salu("s_and_b64", "vcc", "vcc", sSave)
    e.raw("s_cmp_eq_u64 vcc, -1")
    e.raw("s_cbranch_scc0 L_k2_slow")
    e.label("L_k2_store")
    e.last = {}
    e.nop(2)
    e.valu("v_rcp_f32", vT0, vT1)
    e.valu("v_cmp_gt_u32", "vcc", 32, lane)
    e.valu("v_mov_b32", vT2, 0)
    e.valu("v_cndmask_b32", vT3, vT2, vT0)
    for r in range(16):
        e.valu("v_mul_f32", O[r], O[r], vT0 if r < 12 else vT3)
    for j in range(8):
        e.valu("v_cvt_pk_bf16_f32", P[j], O[2 * j], O[2 * j + 1])
    e.buf_store(P[0:4], vL16, sWS, sOo, offset=0, flags=STF)
    e.buf_store(P[4:8], vL16, sWS, sOo, offset=1024, flags=STF)
    e.stamp(8)
    if Emitter.STAMPS:
        e.wait_vm_all()
    e.stamp(9); e.stamp(13, True)
    e.dump_stamps(sWS, 1, sWave)
    e.raw("s_endpgm")
    e.label("L_k2_slow")
    e.lg, e.vm, e.last = [], [], {}
    vM = vT3
    Sc = Sb[0]
    e.valu("v_mov_b32", vM, "0xff800000")
    for r in range(16):
        e.valu("v_mov_b32", O[r], 0)
    e.salu("s_mov_b32", sCnt, 0)
    e.salu("s_mov_b32", sT2, sKV)
    e.label("L_k2_slow_loop")
    e.buf_load(K[0], vL16, sWS, sT2, offset=0)
    e.buf_load(K[1], vL16, sWS, sT2, offset=1024)
    e.buf_load(Vf[0][0], vL16, sWS, sT2, offset=2048)
    e.buf_load(Vf[0][1], vL16, sWS, sT2, offset=3072)
    e.mfma(Sc, K[0], Q[0], 0)
    e.mfma(Sc, K[1], Q[1])
    e.valu("v_max_f32", vT0, Sc[0], Sc[1])
    for r in range(2, 16, 2):
        e.valu("v_max3_f32", vT0, vT0, Sc[r], Sc[r + 1])
    e.valu("v_mov_b32", vT1, vT0)
    e.valu("v_permlane32_swap_b32", vT0, vT1)
    e.valu("v_max3_f32", vT0, vT0, vT1, vM)
    e.valu("v_sub_f32", vT1, vM, vT0)
    e.valu("v_exp_f32", vT1, vT1)
    e.valu("v_mov_b32", vM, vT0)
    for r in range(16):
        e.valu("v_sub_f32", Sc[r], Sc[r], vM)
    for r in range(16):
        e.valu("v_exp_f32", Sc[r], Sc[r])
    for r in range(16):
        e.valu("v_mul_f32", O[r], O[r], vT1)
    for j in range(8):
        e.valu("v_cvt_pk_bf16_f32", P[j], Sc[2 * j], Sc[2 * j + 1])
    e.mfma(O, Vf[0][0], P[0:4])
    e.mfma(O, Vf[0][1], P[4:8])
    e.salu("s_add_u32", sT2, sT2, 4096)
    e.salu("s_add_u32", sCnt, sCnt, 1)
    e.flush_hazards()
    e.salu("s_cmp_lt_u32", sCnt, 64)
    e.raw("s_cbranch_scc1 L_k2_slow_loop")
    e.valu("v_mov_b32", vT0, O[12])
    e.valu("v_mov_b32", vT1, O[12])
    e.valu("v_permlane32_swap_b32", vT0, vT1)
    e.raw("s_branch L_k2_store")


def gen_loader(e, gemm):
    lane = V(0)
    ND = 4
    ACC = [[V(80, 16), V(96, 16)], [V(112, 16), V(128, 16)]]
    def HF_(s, st, t): return V(16 + ((s % ND) * 4 + st * 2 + t) * 4, 4)
    def WF(st, u): return V(144 + (st * 2 + u) * 4, 4)
    vL16 = V(1)
    vW = [V(2), V(3), V(4), V(5)]
    vTr = [V(6), V(7)]
    vX0, vX1, vX2 = V(8), V(9), V(10)
    vRw, vRr = V(11), V(12)
    e.valu("v_lshlrev_b32", vL16, 4, lane)

    def dma_KV(s):
        e.salu("s_add_u32", "m0", sLdsKV, (s % 4) * 16384)
        e.salu("s_add_u32", sT0, sKV, s * 16384)
        for i in range(4):
            e.buf_load_lds(vL16, sWS, sT0, offset=i * 1024, tag=("KV", s))

    dma_KV(0); dma_KV(1)
    if gemm:
        e.salu("s_mul_i32", sT0, sIdx, 37)
        e.salu("s_lshr_b32", sT0, sT0, 8)
        e.salu("s_mul_i32", sT1, sT0, 7)
        e.salu("s_sub_u32", sNt, sIdx, sT1)
        e.salu("s_lshl_b32", sMt64, sXcd, 2)
        e.salu("s_add_u32", sMt64, sMt64, sT0)
        e.valu("v_lshrrev_b32", vX0, 3, lane)
        e.valu("v_bfe_u32", vX1, lane, 2, 1)
        e.valu("v_bfe_u32", vX2, lane, 4, 1)
        e.valu("v_xor_b32", vX1, vX1, vX2)
        e.valu("v_mul_u32_u24", vW[0], 896, vX0)
        e.valu("v_lshl_add_u32", vW[0], vX1, 6, vW[0])
        e.valu("v_and_b32", vX1, 3, lane)
        e.valu("v_lshl_add_u32", vW[0], vX1, 4, vW[0])
        for i in range(1, 4):
            e.valu("v_add_u32", vW[i], i * (8 * 896 - 1024), vW[0])
        e.salu("s_lshl_b32", sLdsW, sGwv, 14)
        e.salu("s_add_u32", sLdsW, sLdsW, WR)
        e.salu("s_mul_i32", sWoff, sGwv, 448 * 896)
        e.salu("s_lshl_b32", sT0, sNt, 7)
        e.salu("s_add_u32", sWoff, sWoff, sT0)
        e.salu("s_mul_i32", sHoff, sMt64, 2 * H_MT_STRIDE)
        e.salu("s_mul_i32", sT0, sGwv, 28 * 1024)
        e.salu("s_add_u32", sHoff, sHoff, sT0)
        e.salu("s_add_u32", sHoff, sHoff, HF)
        e.salu("s_add_u32", sHoff1, sHoff, H_MT_STRIDE)
        e.valu("v_lshrrev_b32", vX1, 5, lane)
        e.valu("v_bfe_u32", vX0, lane, 2, 2)
        e.valu("v_lshl_add_u32", vX0, vX1, 2, vX0)
        e.valu("v_bfe_u32", vX2, lane, 4, 1)
        e.valu("v_lshlrev_b32", vX2, 5, vX2)
        e.valu("v_and_b32", vX1, 3, lane)
        e.valu("v_lshl_add_u32", vX2, vX1, 3, vX2)
        e.valu("v_lshl_add_u32", vX2, vX0, 7, vX2)
        e.valu("v_bfe_u32", vX1, lane, 3, 1)
        e.valu("v_lshl_add_u32", vTr[0], vX1, 6, vX2)
        e.valu("v_xor_b32", vTr[1], 64, vTr[0])
        e.valu("v_add_u32", vTr[0], sLdsW, vTr[0])
        e.valu("v_add_u32", vTr[1], sLdsW, vTr[1])
        e.valu("v_add_u32", vRw, sLdsW, vL16)
        e.salu("s_lshl_b32", sT0, sGwv, 12)
        e.salu("s_add_u32", sT0, sT0, RED)
        e.valu("v_add_u32", vRr, sT0, vL16)

    def dma_WH_ops(s):
        ops = []
        if NOWH: return ops
        def w(i):
            if i == 0:
                e.salu("s_add_u32", sT1, sWoff, s * 32 * 896)
            e.salu("s_add_u32", "m0", sLdsW, (s % ND) * 4096)
            e.nop(1) if False else None
            e.buf_load_lds(vW[i], sWd, sT1, offset=i * 1024, tag=("W", s))
        for i in range(4):
            ops.append(lambda i=i: w(i))
        def h(st, t):
            e.salu("s_add_u32", sT2, sHoff1 if t else sHoff, s * 2048)
            e.buf_load(HF_(s, st, t), vL16, sWS, sT2, offset=st * 1024)
        for st in range(2):
            for t in range(2):
                ops.append(lambda st=st, t=t: h(st, t))
        return ops

    def compute(s, side):
        e.wait_vm_tag(("W", s))
        for st in range(2):
            for u in range(2):
                for j in range(2):
                    e.ds_read("ds_read_b64_tr_b16", WF(st, u)[2 * j:2 * j + 2], vTr[u],
                              offset=(s % ND) * 4096 + st * 2048 + j * 1024)
        if side: side.pop(0)()
        for st in range(2):
            for u in range(2):
                for t in range(2):
                    if not NOMFMA:
                        e.mfma(ACC[u][t], WF(st, u), HF_(s, st, t), 0 if (s == 0 and st == 0) else None)
                    if side: side.pop(0)()

    def gjob_parts():
        parts = []
        G = V(16, 8)
        Xr = V(32, 64)
        Acc = V(96, 16)
        vTmp = V(112, 8)
        sG = S(44)
        def p_load():
            e.salu("s_sub_u32", sT0, sIdx, 28)
            e.salu("s_lshl_b32", sT1, sXcd, 2)
            e.salu("s_add_u32", sT0, sT0, sT1)
            e.salu("s_lshl_b32", sT0, sT0, 2)
            e.salu("s_add_u32", sT0, sT0, sGwv)
            e.salu("s_mul_i32", sT1, sT0, 16 * 896)
            e.salu("s_lshl_b32", sG, sT0, 7)
            e.salu("s_add_u32", sG, sG, GF)
            e.buf_load(vTmp[0:4], vL16, sGw, 0, offset=0)
            for r in range(16):
                if r % 4 == 0 and r:
                    e.salu("s_add_u32", sT1, sT1, 4 * 896)
                e.buf_load(Xr[4 * r:4 * r + 4], vL16, sX, sT1, offset=(r % 4) * 896)
        parts.append(p_load)
        parts.append(lambda: None)
        parts.append(lambda: None)
        def p_rows(r0, r1):
            if r0 == 0:
                for j in range(4):
                    e.valu("v_lshlrev_b32", G[2 * j], 16, vTmp[j])
                    e.valu("v_and_b32", G[2 * j + 1], "0xffff0000", vTmp[j])
            for r in range(r0, r1):
                for j in range(4):
                    e.valu("v_lshlrev_b32", vTmp[4], 16, Xr[4 * r + j])
                    e.valu("v_and_b32", vTmp[5], "0xffff0000", Xr[4 * r + j])
                    if j == 0:
                        e.valu("v_mul_f32", Acc[r], vTmp[4], G[0])
                    else:
                        e.valu("v_fmac_f32", Acc[r], vTmp[4], G[2 * j], dst_is_read=True)
                    e.valu("v_fmac_f32", Acc[r], vTmp[5], G[2 * j + 1], dst_is_read=True)
        for r0 in range(0, 16, 2):
            parts.append(lambda r0=r0: p_rows(r0, r0 + 2))
        def p_red1():
            e.valu("v_cmp_gt_u32", "vcc", 56, lane)
            e.valu("v_mov_b32", vTmp[4], 0)
            for r in range(16):
                e.valu("v_cndmask_b32", Acc[r], vTmp[4], Acc[r])
            for sh in (8, 4):
                for r in range(16):
                    e.valu("v_add_f32", Acc[r], Acc[r], Acc[r], extra=f"row_shr:{sh} bound_ctrl:0")
        def p_red2():
            for sh in (2, 1):
                for r in range(16):
                    e.valu("v_add_f32", Acc[r], Acc[r], Acc[r], extra=f"row_shr:{sh} bound_ctrl:0")
            for r in range(16):
                e.valu("v_add_f32", Acc[r], Acc[r], Acc[r], extra="row_bcast:15 row_mask:0xa")
        def p_fin():
            for r in range(16):
                e.valu("v_add_f32", Acc[r], Acc[r], Acc[r], extra="row_bcast:31 row_mask:0xc")
            e.valu("v_mov_b32", vTmp[0], 0)
            for r in range(16):
                e.valu("v_readlane_b32", S(48 + r), Acc[r], 63)
            e.nop(3)
            for r in range(16):
                e.valu("v_writelane_b32", vTmp[0], S(48 + r), r, dst_is_read=True)
            e.valu("v_cvt_pk_bf16_f32", vTmp[0], vTmp[0], vTmp[0])
            e.valu("v_and_b32", vTmp[0], "0xffff0000", vTmp[0])
            e.valu("v_mul_f32", vTmp[0], hex(f2u(-LOG2E)), vTmp[0])
            e.valu("v_exp_f32", vTmp[0], vTmp[0])
            e.valu("v_add_f32", vTmp[0], 1.0, vTmp[0])
            e.valu("v_rcp_f32", vTmp[0], vTmp[0])
            e.valu("v_cvt_pk_bf16_f32", vTmp[0], vTmp[0], vTmp[0])
            e.valu("v_and_b32", vTmp[2], "0xffff0000", vTmp[0])
            e.valu("v_sub_f32", vTmp[3], 1.0, vTmp[2])
            e.valu("v_cvt_pk_bf16_f32", vTmp[3], vTmp[3], vTmp[3])
            e.valu("v_and_b32", vTmp[3], "0xffff0000", vTmp[3])
            e.valu("v_lshlrev_b32", vTmp[4], 3, lane)
            e.valu("v_cmp_gt_u32", "vcc", 16, lane)
            e.nop(1)
            e.salu("s_and_saveexec_b64", sSave, "vcc")
            e.buf_store(vTmp[2:4], vTmp[4], sWS, sG, offset=0, flags=STF)
            e.salu("s_mov_b64", "exec", sSave)
        parts += [p_red1, p_red2, p_fin]
        return parts

    gparts = None if gemm else gjob_parts()
    e.wait_vm_tag(("KV", 0))
    e.barrier()
    dma_KV(2)
    if gemm:
        for f in dma_WH_ops(0): f()
    e.wait_vm_tag(("KV", 1))
    e.barrier()
    NS = 14
    LAG = 1
    for i in range(16):
        if i in (0, 4, 8, 12, 15): e.stamp(3 + (i + 1) // 4)
        if i + 3 <= 15:
            if PRIO == 1: e.raw("s_setprio 2")
            dma_KV(i + 3)
            if PRIO == 1: e.raw("s_setprio 0")
        if gemm:
            s = i - LAG
            side = []
            if i == 0:
                side += dma_WH_ops(1) + dma_WH_ops(2)
            elif s + 3 < NS:
                side += dma_WH_ops(s + 3)
            if 0 <= s < NS:
                compute(s, side)
            while side: side.pop(0)()
            if i == 14:
                for u in range(2):
                    for t in range(2):
                        for j in range(4):
                            e.ds_write("ds_write_b128", vRw, ACC[u][t][4 * j:4 * j + 4],
                                       offset=(t * 2 + u) * 4096 + j * 1024)
                e.wait_lg_all()
            if i == 15:
                X = [V(16 + 16 * w, 16) for w in range(4)]
                for w in range(4):
                    for j in range(4):
                        e.ds_read("ds_read_b128", X[w][4 * j:4 * j + 4], vRr, offset=w * 16384 + j * 1024)
                for r in range(16):
                    e.valu("v_add_f32", X[0][r], X[0][r], X[1][r])
                    e.valu("v_add_f32", X[2][r], X[2][r], X[3][r])
                for r in range(16):
                    e.valu("v_add_f32", X[0][r], X[0][r], X[2][r])
                for j in range(8):
                    e.valu("v_cvt_pk_bf16_f32", X[1][j], X[0][2 * j], X[0][2 * j + 1])
                e.salu("s_lshr_b32", sT0, sGwv, 1)
                e.salu("s_lshl_b32", sT1, sMt64, 1)
                e.salu("s_add_u32", sT0, sT0, sT1)
                e.salu("s_mul_i32", sT0, sT0, 14)
                e.salu("s_and_b32", sT1, sGwv, 1)
                e.salu("s_add_u32", sT0, sT0, sT1)
                e.salu("s_lshl_b32", sT1, sNt, 1)
                e.salu("s_add_u32", sT0, sT0, sT1)
                e.salu("s_lshl_b32", sT0, sT0, 11)
                e.salu("s_add_u32", sT0, sT0, BF)
                e.buf_store(X[1][0:4], vL16, sWS, sT0, offset=0, flags=STF)
                e.buf_store(X[1][4:8], vL16, sWS, sT0, offset=1024, flags=STF)
        elif gparts:
            gparts.pop(0)()
        if i + 2 <= 15:
            e.wait_vm_tag(("KV", i + 2))
        if i < 15:
            e.barrier()
    e.stamp(9); e.stamp(13, True)
    e.dump_stamps(sWS, 1, sWave)


K2_DESC = dict(name="k2_kernel", vgpr=160, acc=160, sgpr=72, grid=256, block=768, lds=K2_LDS)
```

```python
from emit import *
from layout import *

sWS, sWo, sOut = S(4, 4), S(8, 4), S(12, 4)
sWave, sXcd, sIdx, sMt64, sNt = S(16), S(17), S(18), S(19), S(20)
sT0, sT1, sT2 = S(21), S(22), S(23)
sOoff, sWoff, sLdsW = S(24), S(25), S(26)
sU, sTt = S(27), S(28)

OL = 0
WL = 65536
K3_LDS = 65536 + 57 * 1024


def gen_k3(e):
    e.label("k3_kernel")
    e.salu("s_cmp_ge_u32", S(2), 224)
    e.raw("s_cbranch_scc1 L_k3_end")
    e.stamp(0); e.stamp(12, True)
    e.s_load(S(44, 2), S(0, 2), 16)
    e.s_load(S(46, 2), S(0, 2), 64)
    e.s_load(S(48, 2), S(0, 2), 80)
    lane = V(0)
    vL16 = V(1)
    vW = [V(2), V(3), V(4), V(5)]
    vTr, vOr = V(6), V(7)
    vX0, vX1, vX2 = V(8), V(9), V(10)
    vSt = V(11)
    vG = V(12, 2)
    Bv = V(16, 8)
    ACC = V(32, 16)
    T = V(48, 16)
    NB = 4
    def OFr(k): return V(64 + (k % NB) * 4, 4)
    def WFr(k): return V(80 + (k % NB) * 4, 4)
    e.salu("s_and_b32", sXcd, S(2), 7)
    e.salu("s_lshr_b32", sIdx, S(2), 3)
    e.salu("s_mul_i32", sT0, sIdx, 37)
    e.salu("s_lshr_b32", sT0, sT0, 8)
    e.salu("s_mul_i32", sT1, sT0, 7)
    e.salu("s_sub_u32", sNt, sIdx, sT1)
    e.salu("s_lshl_b32", sMt64, sXcd, 2)
    e.salu("s_add_u32", sMt64, sMt64, sT0)
    e.valu("v_lshrrev_b32", V(1), 6, V(0))
    e.valu("v_and_b32", V(0), 63, V(0))
    e.valu("v_readfirstlane_b32", sWave, V(1))
    e.valu("v_lshlrev_b32", vL16, 4, lane)
    e.valu("v_lshrrev_b32", vX0, 3, lane)
    e.valu("v_bfe_u32", vX1, lane, 2, 1)
    e.valu("v_bfe_u32", vX2, lane, 4, 1)
    e.valu("v_xor_b32", vX1, vX1, vX2)
    e.valu("v_mul_u32_u24", vW[0], 896, vX0)
    e.valu("v_lshl_add_u32", vW[0], vX1, 6, vW[0])
    e.valu("v_and_b32", vX1, 3, lane)
    e.valu("v_lshl_add_u32", vW[0], vX1, 4, vW[0])
    for i in range(1, 4):
        e.valu("v_add_u32", vW[i], i * (8 * 896 - 1024), vW[0])
    e.salu("s_and_b32", sU, sWave, 1)
    e.salu("s_lshr_b32", sTt, sWave, 1)
    e.salu("s_lshl_b32", sOoff, sMt64, 16)
    e.salu("s_lshl_b32", sT0, sTt, 15)
    e.salu("s_lshl_b32", sT1, sU, 12)
    e.salu("s_add_u32", sT0, sT0, sT1)
    sLdsO = S(29)
    e.salu("s_mov_b32", sLdsO, sT0)
    e.salu("s_add_u32", sOoff, sOoff, sT0)
    e.salu("s_add_u32", sOoff, sOoff, OF)
    e.salu("s_mul_i32", sWoff, sWave, 32 * 896)
    e.salu("s_lshl_b32", sT0, sNt, 7)
    e.salu("s_add_u32", sWoff, sWoff, sT0)
    e.salu("s_lshl_b32", sLdsW, sWave, 12)
    e.salu("s_add_u32", sLdsW, sLdsW, WL)
    e.wait_lg_all()

    def srd(s, lo, size):
        e.salu("s_mov_b32", s[0], S(lo))
        e.salu("s_mov_b32", s[1], S(lo + 1))
        e.salu("s_mov_b32", s[2], size)
        e.salu("s_mov_b32", s[3], "0x20000")
    srd(sWS, 48, WS_USED)
    srd(sWo, 44, 448 * 896)
    srd(sOut, 46, 2048 * 896)

    def dma_O(c):
        e.salu("s_add_u32", "m0", sLdsO, c * 8192)
        e.salu("s_add_u32", sT0, sOoff, c * 8192)
        for i in range(4):
            e.buf_load_lds(vL16, sWS, sT0, offset=i * 1024, tag=("C", c))

    def dma_W(q):
        e.salu("s_add_u32", "m0", sLdsW, q * 16384)
        e.salu("s_add_u32", sT0, sWoff, q * 128 * 896)
        for i in range(4):
            e.buf_load_lds(vW[i], sWo, sT0, offset=i * 1024, tag=("C", q))

    for c in range(4):
        dma_W(c); dma_O(c)
    e.salu("s_lshl_b32", sT0, sMt64, 1)
    e.salu("s_add_u32", sT0, sT0, sTt)
    e.salu("s_mul_i32", sT1, sT0, 14)
    e.salu("s_add_u32", sT1, sT1, sU)
    e.salu("s_lshl_b32", sT2, sNt, 1)
    e.salu("s_add_u32", sT1, sT1, sT2)
    e.salu("s_lshl_b32", sT1, sT1, 11)
    e.salu("s_add_u32", sT1, sT1, BF)
    e.buf_load(Bv[0:4], vL16, sWS, sT1, offset=0)
    e.buf_load(Bv[4:8], vL16, sWS, sT1, offset=1024)
    e.valu("v_and_b32", vX0, 31, lane)
    e.valu("v_lshlrev_b32", vX1, 3, vX0)
    e.salu("s_lshl_b32", sT1, sT0, 8)
    e.salu("s_add_u32", sT1, sT1, GF)
    e.buf_load(vG, vX1, sWS, sT1, offset=0)
    e.valu("v_mul_u32_u24", vSt, 896, vX0)
    e.valu("v_lshrrev_b32", vX1, 5, lane)
    e.valu("v_lshl_add_u32", vSt, vX1, 4, vSt)
    sSt = S(30)
    e.salu("s_mul_i32", sSt, sT0, 32 * 896)
    e.salu("s_add_u32", sT2, sT2, sU)
    e.salu("s_lshl_b32", sT2, sT2, 6)
    e.salu("s_add_u32", sSt, sSt, sT2)
    e.valu("v_bfe_u32", vX0, lane, 2, 2)
    e.valu("v_lshl_add_u32", vX0, vX1, 2, vX0)
    e.valu("v_bfe_u32", vX2, lane, 4, 1)
    e.valu("v_lshlrev_b32", vX2, 5, vX2)
    e.valu("v_and_b32", vX1, 3, lane)
    e.valu("v_lshl_add_u32", vX2, vX1, 3, vX2)
    e.valu("v_lshl_add_u32", vX2, vX0, 7, vX2)
    e.valu("v_bfe_u32", vX1, lane, 3, 1)
    e.valu("v_xor_b32", vX1, sU, vX1)
    e.valu("v_lshl_add_u32", vTr, vX1, 6, vX2)
    e.valu("v_add_u32", vTr, WL, vTr)
    e.salu("s_lshl_b32", sT0, sTt, 15)
    e.valu("v_add_u32", vOr, sT0, vL16)

    def rd(k):
        hd, s = k // 2, k % 2
        e.ds_read("ds_read_b128", OFr(k), vOr, offset=k * 1024, tag=("k", k))
        for j in range(2):
            e.ds_read("ds_read_b64_tr_b16", WFr(k)[2 * j:2 * j + 2], vTr, offset=(28 * hd + 16 * s + 8 * j) * 128, tag=("k", k))

    for c in range(4):
        e.stamp(1 + 2 * c)
        e.wait_vm_tag(("C", c))
        e.barrier()
        e.stamp(2 + 2 * c)
        ks = list(range(8 * c, 8 * c + 8))
        for k in ks[:NB - 1]:
            rd(k)
        for n, k in enumerate(ks):
            if n + NB - 1 < 8:
                rd(ks[n + NB - 1])
            e.wait_lg_tag(("k", k))
            e.mfma(ACC, WFr(k), OFr(k), 0 if k == 0 else None)
    e.stamp(9)
    for j in range(8):
        e.valu("v_lshlrev_b32", T[2 * j], 16, Bv[j])
        e.valu("v_and_b32", T[2 * j + 1], "0xffff0000", Bv[j])
    for r in range(16):
        e.valu("v_mul_f32", T[r], T[r], vG[1])
    for r in range(16):
        e.valu("v_fmac_f32", T[r], ACC[r], vG[0], dst_is_read=True)
    for j in range(8):
        e.valu("v_cvt_pk_bf16_f32", Bv[j], T[2 * j], T[2 * j + 1])
    for kk in range(2):
        e.valu("v_permlane32_swap_b32", Bv[4 * kk], Bv[4 * kk + 2])
        e.valu("v_permlane32_swap_b32", Bv[4 * kk + 1], Bv[4 * kk + 3])
        e.buf_store(Bv[4 * kk:4 * kk + 4], vSt, sOut, sSt, offset=kk * 32)
    e.stamp(10)
    if Emitter.STAMPS:
        e.wait_vm_all()
    e.stamp(11); e.stamp(13, True)
    e.dump_stamps(sWS, 2, sWave)
    e.label("L_k3_end")
    e.raw("s_endpgm")


K3_DESC = dict(name="k3_kernel", vgpr=96, acc=96, sgpr=56, grid=224, block=256, lds=65536 + 65536)
```

```python
import sys
from emit import Emitter
import k1
NAME = "gated_mix__softmax_full_mha__swiglu_ffn__prompt"

def header():
    ref = open(f"cdna_kernels/{NAME}.s.ref").read().splitlines()
    out = []
    for l in ref:
        if l.startswith(";") and "@launch" not in l and "Override launch" not in l and "grid=ceil" not in l:
            out.append(l)
        elif not l.startswith(";"):
            break
    return out

def build(kernels, path):
    lines = header()
    for _, d in kernels:
        lines.append(f"; @launch kernel={d['name']} grid=({d['grid']},1,1) block=({d['block']},1,1) lds={d['lds']}")
    lines.append('.amdgcn_target "amdgcn-amd-amdhsa--gfx950"')
    lines.append(".text")
    body = "\n".join(lines) + "\n"
    seen = set()
    for g, d in kernels:
        if d["name"] in seen: continue
        seen.add(d["name"])
        e = Emitter()
        g(e)
        body += f".globl {d['name']}\n.p2align 8\n.type {d['name']},@function\n" + e.text()
    body += 'L_code_end:\n.section .rodata,"a"\n'
    seen = set()
    for g, d in kernels:
        if d["name"] in seen: continue
        seen.add(d["name"])
        body += f""".p2align 6
.amdhsa_kernel {d['name']}
  .amdhsa_next_free_vgpr {d['vgpr']}
  .amdhsa_next_free_sgpr {102 if Emitter.STAMPS else d['sgpr']}
  .amdhsa_accum_offset {d['acc']}
  .amdhsa_group_segment_fixed_size 0
  .amdhsa_kernarg_size 88
  .amdhsa_user_sgpr_count 2
  .amdhsa_user_sgpr_kernarg_segment_ptr 1
  .amdhsa_system_sgpr_workgroup_id_x 1
.end_amdhsa_kernel
"""
    open(path, "w").write(body)

if __name__ == "__main__":
    import os
    if os.environ.get("STAMPS"):
        Emitter.STAMPS = True
    ks = [(k1.gen_k1, k1.K1_DESC)]
    try:
        import k2; ks.append((k2.gen_k2, k2.K2_DESC))
        import k3; ks.append((k3.gen_k3, k3.K3_DESC))
    except ImportError as ex:
        print("partial:", ex)
    out = sys.argv[1] if len(sys.argv) > 1 else "cur.s"
    build(ks, out)
    print("wrote", out)
```

```python
from emit import *
from layout import *
import os
import struct

ROT1 = int(os.environ.get('ROT1', '0'))
TOUCH1 = int(os.environ.get('TOUCH1', '13'))
CODE_CHUNKS = 4
STF = os.environ.get('STF', ' sc0 sc1')

LOG2E = 1.4426950408889634
QSCALE = (28 ** -0.5) * LOG2E


def f2u(x):
    return struct.unpack("<I", struct.pack("<f", x))[0]


sX, sWg, sWu, sWq, sWS = S(4, 4), S(8, 4), S(12, 4), S(16, 4), S(20, 4)
sWd, sGw = S(64, 4), S(60, 4)
sWave, sMblk, sCg = S(24), S(25), S(26)
sAoff, sBoff, sBoff1, sQKoff = S(27), S(29), S(30), S(34)
sW4 = S(28)
sT0, sT1, sT2 = S(32), S(33), S(31)
sOut0, sOutQK, sQKstr, sQKmul, sNL2E = S(35), S(36), S(37), S(38), S(39)
sMask = S(40, 2)
sMt = S(42)
sCnt = S(43)
sDelta = S(44)
sSlot = S(45)
sRot = S(46)

SLOT = 53248
OA, OG, OU, OQ = 0, 32768, 40960, 49152
K1_LDS = 3 * SLOT


def ACC(u, t): return V(32 * u + 16 * t, 16)
def BFr(ks, u): return V(160 + (ks % 2) * 20 + u * 4, 4)
def AFr(ks, t): return V(200 + (ks % 2) * 8 + t * 4, 4)


vAr = [V(216 + i) for i in range(4)]
vTr = [V(220), V(221)]
vTrQ = V(222)
vLane16, vMulHi, vVconst = V(223), V(224), V(225)
vX0, vX1, vX2, vLane = V(226), V(227), V(228), V(229)


def gen_k1(e):
    e.label("k1_kernel")
    e.salu("s_cmp_ge_u32", S(2), 256)
    e.raw("s_cbranch_scc1 L_k1_end")
    e.stamp(0); e.stamp(12, True)
    e.s_load(S(48, 4), S(0, 2), 0)
    e.s_load(S(52, 8), S(0, 2), 32)
    e.s_load(S(68, 2), S(0, 2), 80)
    e.salu("s_and_b32", sT0, S(2), 7)
    e.salu("s_lshr_b32", sT1, S(2), 3)
    e.salu("s_and_b32", sMblk, sT0, 1)
    e.salu("s_lshl_b32", sMblk, sMblk, 2)
    e.salu("s_and_b32", sCg, sT1, 3)
    e.salu("s_add_u32", sMblk, sMblk, sCg)
    e.salu("s_lshl_b32", sRot, sCg, 1)
    e.salu("s_lshr_b32", sT0, sT0, 1)
    e.salu("s_lshr_b32", sT1, sT1, 2)
    e.salu("s_mul_i32", sCg, sT0, 7)
    e.salu("s_add_u32", sCg, sCg, sT1)
    e.salu("s_add_u32", sT0, sT0, 28)
    e.salu("s_cmp_eq_u32", sT1, 7)
    e.salu("s_cselect_b32", sCg, sT0, sCg)
    if ROT1:
        e.salu("s_add_u32", sRot, sRot, sT1)
        e.salu("s_sub_u32", sT0, sRot, 7)
        e.salu("s_cmp_ge_u32", sRot, 7)
        e.salu("s_cselect_b32", sRot, sT0, sRot)
    else:
        e.salu("s_mov_b32", sRot, 0)
    e.valu("v_lshrrev_b32", vX0, 6, V(0))
    e.valu("v_and_b32", vLane, 63, V(0))
    e.valu("v_readfirstlane_b32", sWave, vX0)
    e.valu("v_lshlrev_b32", vLane16, 4, vLane)
    e.salu("s_and_b32", sW4, sWave, 3)
    e.salu("s_lshl_b32", sT0, sMblk, 2)
    e.salu("s_add_u32", sT0, sT0, sW4)
    e.salu("s_mul_i32", sAoff, sT0, 64 * 896)
    e.salu("s_lshl_b32", sMt, sT0, 1)
    e.wait_lg_all()

    def srd(s, lo, size):
        e.salu("s_mov_b32", s[0], S(lo))
        e.salu("s_mov_b32", s[1], S(lo + 1))
        e.salu("s_mov_b32", s[2], size)
        e.salu("s_mov_b32", s[3], "0x20000")
    e.salu("s_cmp_lt_u32", sWave, 4)
    e.raw("s_cbranch_scc1 L_k1_compute")
    e.raw("s_setprio 3")
    srd(sX, 48, 2048 * 896)
    srd(sWq, 50, 448 * 2688)
    srd(sWg, 52, 448 * 3584)
    srd(sWu, 54, 448 * 3584)
    srd(sWd, 56, 1792 * 896)
    e.salu("s_mov_b32", S(62), 896)
    e.salu("s_mov_b32", S(60), S(58))
    e.salu("s_mov_b32", S(61), S(59))
    e.salu("s_mov_b32", S(63), "0x20000")
    if Emitter.STAMPS:
        srd(sWS, 68, WS_USED)
    e.salu("s_cmp_ge_u32", sCg, 28)
    e.raw("s_cbranch_scc1 L_k1_loadB")
    e.flush_hazards()
    gen_loader(e, False)
    e.raw("s_endpgm")
    e.label("L_k1_loadB")
    e.lg, e.vm, e.last = [], [], {}
    gen_loader(e, True)
    e.raw("s_endpgm")
    e.label("L_k1_compute")
    e.lg, e.vm, e.last = [], [], {}
    srd(sWS, 68, WS_USED)
    lane = vLane
    e.valu("v_and_b32", vX0, 31, lane)
    e.valu("v_lshrrev_b32", vX1, 5, lane)
    e.valu("v_bfe_u32", vX2, lane, 1, 3)
    e.valu("v_xor_b32", vX2, vX2, vX1)
    e.valu("v_lshlrev_b32", vX0, 7, vX0)
    e.salu("s_lshl_b32", sT0, sW4, 13)
    e.valu("v_add_u32", vX0, sT0, vX0)
    for k in range(4):
        e.valu("v_xor_b32", vAr[k], 2 * k, vX2)
        e.valu("v_lshl_add_u32", vAr[k], vAr[k], 4, vX0)
    e.valu("v_bfe_u32", vX0, lane, 2, 2)
    e.valu("v_lshl_add_u32", vX0, vX1, 3, vX0)
    e.valu("v_bfe_u32", vX2, lane, 4, 1)
    e.valu("v_lshlrev_b32", vX2, 5, vX2)
    e.valu("v_and_b32", vX1, 3, lane)
    e.valu("v_lshl_add_u32", vX2, vX1, 3, vX2)
    e.valu("v_lshl_add_u32", vTrQ, vX0, 6, vX2)
    e.valu("v_lshl_add_u32", vX2, vX0, 7, vX2)
    e.valu("v_bfe_u32", vX1, lane, 3, 1)
    e.valu("v_lshl_add_u32", vTr[0], vX1, 6, vX2)
    e.valu("v_xor_b32", vTr[1], 64, vTr[0])
    e.salu("s_mov_b32", sNL2E, hex(f2u(-LOG2E)))
    for r in range(160):
        e.valu("v_mov_b32", V(r), 0)
    e.salu("s_cmp_ge_u32", sCg, 28)
    e.raw("s_cbranch_scc1 L_k1_compB")
    e.flush_hazards()
    gen_compute(e, False)
    e.raw("s_endpgm")
    e.label("L_k1_compB")
    e.lg, e.vm, e.last = [], [], {}
    gen_compute(e, True)
    e.label("L_k1_end")
    e.raw("s_endpgm")


def gen_loader(e, typeB):
    tb = int(typeB)
    lane = vLane
    ldw = 2688 if typeB else 3584
    srdP = [sWq, sWq] if typeB else [sWg, sWu]
    vA = [V(1), V(2), V(3), V(4)]
    vB = [V(5), V(6)]
    vQ = V(7)
    vT = V(8)
    vTd = [V(9), V(10), V(11), V(12)]
    vGa = V(13)
    vG = V(16, 7)
    if not typeB:
        e.salu("s_lshl_b32", sBoff, sCg, 7)
        e.salu("s_mov_b32", sBoff1, sBoff)
    else:
        e.salu("s_sub_u32", sT1, sCg, 28)
        e.salu("s_mul_i32", sBoff, sT1, 224)
        e.salu("s_add_u32", sBoff, sBoff, 896 * 2)
        e.salu("s_add_u32", sBoff1, sBoff, 112)
    e.salu("s_mul_i32", sQKoff, sCg, 56)
    e.valu("v_lshrrev_b32", vX0, 3, lane)
    e.valu("v_and_b32", vX1, 7, lane)
    e.valu("v_lshrrev_b32", vX2, 1, vX0)
    e.valu("v_xor_b32", vX2, vX2, vX1)
    e.valu("v_mul_u32_u24", vA[0], 896, vX0)
    e.valu("v_lshl_add_u32", vA[0], vX2, 4, vA[0])
    e.valu("v_xor_b32", vA[1], 64, vA[0])
    e.valu("v_add_u32", vA[2], 2 * 6144, vA[0])
    e.valu("v_add_u32", vA[3], 3 * 6144, vA[1])
    e.valu("v_add_u32", vA[1], 6144, vA[1])
    e.valu("v_bfe_u32", vX1, lane, 2, 1)
    e.valu("v_bfe_u32", vX2, lane, 4, 1)
    e.valu("v_xor_b32", vX1, vX1, vX2)
    e.valu("v_mul_u32_u24", vB[0], ldw, vX0)
    e.valu("v_mul_u32_u24", vX1, 56 if typeB else 64, vX1)
    e.valu("v_add_u32", vB[0], vB[0], vX1)
    e.valu("v_and_b32", vX1, 3, lane)
    e.valu("v_lshl_add_u32", vB[0], vX1, 4, vB[0])
    e.valu("v_add_u32", vB[1], 8 * ldw - 1024, vB[0])
    e.valu("v_lshrrev_b32", vX0, 2, lane)
    e.valu("v_mul_u32_u24", vQ, 2688, vX0)
    e.valu("v_lshl_add_u32", vQ, vX1, 4, vQ)
    e.salu("s_mul_i32", sT0, sW4, 16 * ldw)
    e.salu("s_add_u32", sBoff, sBoff, sT0)
    e.salu("s_add_u32", sBoff1, sBoff1, sT0)
    e.salu("s_mul_i32", sT0, sW4, 16 * 2688)
    e.salu("s_add_u32", sQKoff, sQKoff, sT0)
    sLA, sLB, sLQ = S(35), S(36), S(37)
    e.salu("s_lshl_b32", sLA, sW4, 13)
    e.salu("s_lshl_b32", sLB, sW4, 11)
    e.salu("s_lshl_b32", sLQ, sW4, 10)
    sCh = S(38)
    e.salu("s_mov_b32", sCh, sRot)
    if typeB:
        e.valu("v_and_b32", vX0, 15, lane)
        e.valu("v_lshlrev_b32", vX1, 1, vX0)
        e.salu("s_lshl_b32", sT0, sW4, 5)
        e.salu("s_mov_b32", sT1, sRot)
        for c in range(7):
            e.salu("s_lshl_b32", sT2, sT1, 7)
            e.salu("s_add_u32", sT2, sT2, sT0)
            e._issue(f"buffer_load_ushort {vG[c]}, {vX1}, {sGw}, {sT2} offen", "vmem", vX1.regs() + sGw.regs() + sT2.regs(), vG[c].regs())
            e.vm.append((-1, set(vG[c].regs()), "gw"))
            e.salu("s_add_u32", sT1, sT1, 1)
            e.salu("s_cmp_eq_u32", sT1, 7)
            e.salu("s_cselect_b32", sT1, 0, sT1)
        e.valu("v_lshlrev_b32", vGa, 6, vX0)
        e.valu("v_add_u32", vGa, sLQ, vGa)

    def dma(c):
        sl = (c % 3) * SLOT
        e.salu("s_lshl_b32", sT2, sCh, 7)
        e.salu("s_add_u32", sT0, sAoff, sT2)
        for t in range(2):
            e.salu("s_add_u32", "m0", sLA, sl + OA + t * 4096)
            if t: e.salu("s_add_u32", sT0, sT0, 32 * 896)
            else: e.salu("s_mul_i32", sT1, sCh, 64 * ldw)
            for i in range(4):
                e.buf_load_lds(vA[i], sX, sT0, offset=i * 1024, tag=("C", c))
        for p in range(2):
            e.salu("s_add_u32", "m0", sLB, sl + (OG, OU)[p])
            e.salu("s_add_u32", sT0, (sBoff, sBoff1)[p], sT1)
            for i in range(2):
                e.buf_load_lds(vB[i], srdP[p], sT0, offset=i * 1024, tag=("C", c))
        e.salu("s_mul_i32", sT1, sCh, 64 * 2688)
        e.salu("s_add_u32", "m0", sLQ, sl + OQ)
        e.salu("s_add_u32", sT0, sQKoff, sT1)
        e.buf_load_lds(vQ, sWq, sT0, offset=0, tag=("C", c))
        e.salu("s_add_u32", sCh, sCh, 1)
        e.salu("s_cmp_eq_u32", sCh, 7)
        e.salu("s_cselect_b32", sCh, 0, sCh)

    def land(c):
        e.wait_vm_tag(("C", c))
        if typeB:
            e.raw("s_mov_b64 exec, 0xffff")
            off = (c % 3) * SLOT + OQ + 56
            if off >= 65536:
                e.valu("v_add_u32", vX0, off - 56, vGa)
                e.ds_write("ds_write_b16", vX0, vG[c], offset=56)
            else:
                e.ds_write("ds_write_b16", vGa, vG[c], offset=off)
            e.raw("s_mov_b64 exec, -1")
            e.wait_lg_all()

    e.stamp(1)
    dma(0)
    e.stamp(2)
    sTS, sTo, sTd = S(40, 4), S(44), S(45)
    if TOUCH1 & 1:
        def cp(src):
            for i in range(3):
                e.salu("s_mov_b32", sTS[i], src[i])
        e.salu("s_mov_b32", sTS[3], "0x20000")
        e.valu("v_min_u32", vX0, 13, lane)
        e.valu("v_lshlrev_b32", vT, 15, vX0)
        e.salu("s_lshl_b32", sTo, S(2), 7)
        e.salu("s_add_u32", sTo, sTo, 64 * 3584)
        e.salu("s_mov_b32", sTd, 128 * 3584)
        cp(sWg)
        e.salu("s_cmp_eq_u32", sW4, 1)
        e.raw(f"s_cbranch_scc1 L_k1_tE{tb}")
        cp(sWu)
        e.salu("s_cmp_eq_u32", sW4, 2)
        e.raw(f"s_cbranch_scc1 L_k1_tE{tb}")
        cp(sWq)
        e.valu("v_min_u32", vX0, 10, lane)
        e.valu("v_lshlrev_b32", vT, 15, vX0)
        e.salu("s_sub_u32", sTo, sTo, 64 * 3584 - 64 * 2688)
        e.salu("s_mov_b32", sTd, 128 * 2688)
        e.salu("s_cmp_eq_u32", sW4, 3)
        e.raw(f"s_cbranch_scc1 L_k1_tE{tb}")
        cp(sX)
        e.valu("v_and_b32", vX1, 7, lane)
        e.valu("v_mul_u32_u24", vT, 896, vX1)
        e.valu("v_bfe_u32", vX0, lane, 3, 1)
        e.valu("v_lshl_add_u32", vT, vX0, 7, vT)
        e.salu("s_mul_i32", sTo, S(2), 8 * 896)
        e.salu("s_add_u32", sTo, sTo, 128)
        e.salu("s_mov_b32", sTd, 256)
        e.label(f"L_k1_tE{tb}")
        e.last = {}

    def touch(r):
        if TOUCH1 & 1:
            e.buf_load(V(24 + r), vT, sTS, sTo, offset=0, tag=("touch", r))
            e.salu("s_add_u32", sTo, sTo, sTd)
    touch(0)
    if TOUCH1 & 2:
        touch(1)
    if TOUCH1 & 8:
        e.raw("s_getpc_b64 s[46:47]")
        e.label(f"L_k1_pc{tb}")
        e.salu("s_lshr_b32", sT0, S(2), 3)
        e.salu("s_lshl_b32", sT0, sT0, 2)
        e.salu("s_add_u32", sT0, sT0, sW4)
        e.salu("s_cmp_ge_u32", sT0, CODE_CHUNKS)
        e.raw(f"s_cbranch_scc1 L_k1_pcE{tb}")
        e.salu("s_lshl_b32", sT0, sT0, 13)
        e.raw(f"s_sub_u32 s46, s46, L_k1_pc{tb}-k1_kernel")
        e.raw("s_subb_u32 s47, s47, 0")
        e.valu("v_lshlrev_b32", vX0, 7, lane)
        e.valu("v_add_u32", vX0, sT0, vX0)
        e.raw(f"v_min_u32 {vX0}, L_code_end-k1_kernel-4, {vX0}")
        e.raw(f"v_mov_b32 {vX2}, s47")
        e.raw(f"v_add_co_u32 {vX0}, vcc, s46, {vX0}")
        e.raw("s_nop 1")
        e.raw(f"v_addc_co_u32 {vX1}, vcc, 0, {vX2}, vcc")
        e.raw(f"global_load_dword {vTd[1]}, v[{vX0.lo}:{vX1.lo}], off")
        e.raw("s_waitcnt vmcnt(0)")
        e.label(f"L_k1_pcE{tb}")
        e.last = {}
    dma(1)
    e.stamp(3)
    land(0)
    e.stamp(4)
    e.barrier()
    for c in range(7):
        if TOUCH1 & 2:
            if c == 0: touch(2)
        else:
            if c == 0: touch(1)
            if c == 1: touch(2)
        if c + 2 < 7:
            dma(c + 2)
        if c == 5 and (TOUCH1 & 4):
            e.salu("s_lshr_b32", sT0, S(2), 3)
            e.salu("s_mul_i32", sT0, sT0, 392 * 128)
            e.salu("s_mul_i32", sT1, sW4, 98 * 128)
            e.salu("s_add_u32", sT0, sT0, sT1)
            e.valu("v_lshlrev_b32", vX0, 7, lane)
            e.valu("v_min_u32", vX1, 33 * 128, vX0)
        if c + 1 < 7:
            land(c + 1)
        if c == 5 and (TOUCH1 & 4):
            e.buf_load(vTd[2], vX0, sWd, sT0, offset=0)
            e.salu("s_add_u32", sT0, sT0, 64 * 128)
            e.buf_load(vTd[3], vX1, sWd, sT0, offset=0)
        if c in (1, 3, 5): e.stamp(5 + c // 2)
        e.barrier()
    e.stamp(11); e.stamp(13, True)
    e.dump_stamps(sWS, 0, sWave)


def gen_compute(e, typeB):
    tb = int(typeB)
    lane = vLane
    if not typeB:
        e.salu("s_mul_i32", sOut0, sMt, H_MT_STRIDE)
        e.salu("s_lshl_b32", sT1, sCg, 12)
        e.salu("s_add_u32", sOut0, sOut0, sT1)
        e.salu("s_add_u32", sOut0, sOut0, HF)
        e.salu("s_and_b32", sT1, sCg, 15)
        e.salu("s_lshl_b32", sT1, sT1, 6)
        e.salu("s_add_u32", sT1, sT1, sMt)
        e.salu("s_cmp_lt_u32", sCg, 16)
        e.salu("s_cselect_b32", sQKstr, 11, 12)
        e.salu("s_cselect_b32", sOutQK, QF, KVF)
        e.salu("s_cselect_b32", sQKmul, hex(f2u(QSCALE)), 1.0)
        e.salu("s_lshl_b32", sQKstr, 1, sQKstr)
        e.salu("s_mul_i32", sT1, sT1, sQKstr)
        e.salu("s_add_u32", sOutQK, sOutQK, sT1)
    else:
        e.salu("s_sub_u32", sT1, sCg, 28)
        e.salu("s_lshl_b32", sT0, sT1, 8)
        e.salu("s_add_u32", sT0, sT0, sMt)
        e.salu("s_lshl_b32", sOut0, sT0, 12)
        e.salu("s_add_u32", sOut0, sOut0, KVF + 2048)
        e.salu("s_add_u32", sT0, sT1, 12)
        e.salu("s_lshl_b32", sT0, sT0, 6)
        e.salu("s_add_u32", sT0, sT0, sMt)
        e.salu("s_lshl_b32", sOutQK, sT0, 12)
        e.salu("s_add_u32", sOutQK, sOutQK, KVF)
        e.salu("s_mov_b32", sQKstr, 4096)
        e.salu("s_mov_b32", sQKmul, 1.0)
    e.valu("v_cmp_gt_u32", "vcc", 32, lane)
    e.valu("v_mov_b32", vX0, sQKmul)
    e.valu("v_mov_b32", vX1, 0)
    e.valu("v_cndmask_b32", vMulHi, vX1, vX0)
    if typeB:
        e.valu("v_and_b32", vX0, 31, lane)
        e.valu("v_cmp_eq_u32", "vcc", 28, vX0)
        e.valu("v_mov_b32", vX2, "0x3f803f80")
        e.valu("v_cndmask_b32", vVconst, vX1, vX2)
        e.valu("v_cmp_le_u32", sMask, 28, vX0)
    e.salu("s_mov_b32", sCnt, 0)
    e.salu("s_mov_b32", sSlot, 0)

    def reads(kk):
        ops = []
        for t in range(2):
            ops.append(lambda t=t: e.ds_read("ds_read_b128", AFr(kk, t), vAr[kk], offset=OA + t * 4096, tag=("f", kk)))
        for u in range(5):
            for j in range(2):
                if u < 4:
                    ops.append(lambda u=u, j=j: e.ds_read("ds_read_b64_tr_b16", BFr(kk, u)[2 * j:2 * j + 2], vTr[u >> 1],
                                                          offset=(OG, OU)[u & 1] + kk * 2048 + j * 512, tag=("f", kk)))
                else:
                    ops.append(lambda u=u, j=j: e.ds_read("ds_read_b64_tr_b16", BFr(kk, u)[2 * j:2 * j + 2], vTrQ,
                                                          offset=OQ + kk * 1024 + j * 256, tag=("f", kk)))
        return ops

    e.stamp(1)
    e.barrier()
    e.stamp(2)
    for f in reads(0): f()
    e.flush_hazards()
    e.label(f"L_k1_loop{tb}")
    for kk in range(4):
        side = []
        if kk == 0:
            def upd():
                e.salu("s_add_u32", sSlot, sSlot, 1)
                e.salu("s_cmp_eq_u32", sSlot, 3)
                e.salu("s_cselect_b32", sDelta, -2 * SLOT, sT0)
                e.salu("s_cselect_b32", sSlot, 0, sSlot)
            side.append(lambda: e.salu("s_mov_b32", sT0, SLOT))
            side.append(upd)
        if kk == 3:
            side.append(lambda: e.barrier())
            for v in (vAr[0], vTr[0], vTr[1], vTrQ):
                side.append(lambda v=v: e.valu("v_add_u32", v, sDelta, v))
        side += reads((kk + 1) % 4)
        if kk == 3:
            for v in vAr[1:]:
                side.append(lambda v=v: e.valu("v_add_u32", v, sDelta, v))
        e.wait_lg_tag(("f", kk))
        per = [3, 3, 2, 2, 2, 2, 2, 2, 2, 2] if kk == 3 else [2] * 10
        gi = 0
        for u in range(5):
            for t in range(2):
                swap = typeB and u < 4
                a, b = (AFr(kk, t), BFr(kk, u)) if swap else (BFr(kk, u), AFr(kk, t))
                e.mfma(ACC(u, t), a, b)
                for _ in range(per[gi]):
                    if side: side.pop(0)()
                gi += 1
        while side: side.pop(0)()
    e.salu("s_add_u32", sCnt, sCnt, 1)
    e.salu("s_cmp_lt_u32", sCnt, 7)
    e.raw(f"s_cbranch_scc1 L_k1_loop{tb}")
    e.stamp(8)
    T0 = 160

    def store_pair(src8, soff, off):
        for s in range(2):
            e.buf_store(src8[4 * s:4 * s + 4], vLane16, sWS, soff, offset=off + s * 1024, flags=STF)

    for t in range(2):
        X = ACC(4, t)
        T = V(T0 + 8 * t, 8)
        if typeB:
            e.valu("v_cvt_pk_bf16_f32", V(T0 + 16 + t), X[12], X[12])
        for r in range(16):
            if typeB and r < 12:
                continue
            e.valu("v_mul_f32", X[r], sQKmul if r < 12 else vMulHi, X[r])
        for i in range(8):
            e.valu("v_cvt_pk_bf16_f32", T[i], X[2 * i], X[2 * i + 1])
        if t == 1:
            e.salu("s_add_u32", sOutQK, sOutQK, sQKstr)
        store_pair(T, sOutQK, 0)
    e.stamp(9)
    if not typeB:
        for (ug, uu, foff) in ((0, 1, 0), (2, 3, 2048)):
            for t in range(2):
                G, U = ACC(ug, t), ACC(uu, t)
                T = V(T0 + 16 + 16 * t, 16)
                for r in range(16): e.valu("v_mul_f32", T[r], sNL2E, G[r])
                for r in range(16):
                    e.valu("v_exp_f32", T[r], T[r])
                    e.valu("v_mul_f32", G[r], G[r], U[r])
                for r in range(16): e.valu("v_add_f32", T[r], 1.0, T[r])
                for r in range(16): e.valu("v_rcp_f32", T[r], T[r])
                for r in range(16): e.valu("v_mul_f32", G[r], G[r], T[r])
                for i in range(8): e.valu("v_cvt_pk_bf16_f32", U[i], G[2 * i], G[2 * i + 1])
                e.salu("s_add_u32", sT1, sOut0, t * H_MT_STRIDE)
                store_pair(U[0:8], sT1, foff)
    else:
        for u, hoff in ((0, 0), (2, 1), (1, 2), (3, 3)):
            for t in range(2):
                X = ACC(u, t)
                for i in range(8):
                    e.valu("v_cvt_pk_bf16_f32", X[i], X[2 * i], X[2 * i + 1])
                for i in range(8):
                    e.valu("v_cndmask_b32", X[i], X[i], vVconst, sMask)
                e.salu("s_add_u32", sT1, sOut0, hoff * 64 * 4096 + t * 4096)
                store_pair(X[0:8], sT1, 0)
        for t in range(2):
            D = V(T0 + 16 + t)
            Gv = V(T0 + 20 + 2 * t, 2)
            e.valu("v_and_b32", D, "0xffff0000", D)
            e.valu("v_mul_f32", D, sNL2E, D)
            e.valu("v_exp_f32", D, D)
            e.valu("v_add_f32", D, 1.0, D)
            e.valu("v_rcp_f32", D, D)
            e.valu("v_cvt_pk_bf16_f32", D, D, D)
            e.valu("v_and_b32", Gv[0], "0xffff0000", D)
            e.valu("v_sub_f32", Gv[1], 1.0, Gv[0])
            e.valu("v_cvt_pk_bf16_f32", Gv[1], Gv[1], Gv[1])
            e.valu("v_and_b32", Gv[1], "0xffff0000", Gv[1])
        e.valu("v_lshlrev_b32", vX0, 3, lane)
        e.salu("s_lshl_b32", sT1, sMt, 8)
        e.salu("s_add_u32", sT1, sT1, GF - 256)
        e.raw("s_mov_b32 exec_lo, 0")
        e.buf_store(V(T0 + 20, 2), vX0, sWS, sT1, offset=0, flags=STF)
        e.buf_store(V(T0 + 22, 2), vX0, sWS, sT1, offset=256, flags=STF)
        e.raw("s_mov_b32 exec_lo, -1")
    e.stamp(10)
    if Emitter.STAMPS:
        e.wait_vm_all()
    e.stamp(11); e.stamp(13, True)
    e.dump_stamps(sWS, 0, sWave)


K1_DESC = dict(name="k1_kernel", vgpr=232, acc=232, sgpr=72, grid=256, block=512, lds=K1_LDS)
```

```python
from emit import *
from layout import *
from k1 import f2u, LOG2E
import os
ROT_KV = int(os.environ.get('ROT_KV', '0'))
ROT_G = int(os.environ.get('ROT_G', '0'))
STF = os.environ.get('STF', ' sc0 sc1')

sWS, sWd, sX, sGw = S(4, 4), S(8, 4), S(12, 4), S(16, 4)
sWo = S(64, 4)
TOUCH2 = int(os.environ.get("TOUCH2", "2"))
PRIO = int(os.environ.get("PRIO", "0"))
NOMFMA = int(os.environ.get("NOMFMA", "0"))
NOWH = int(os.environ.get("NOWH", "0"))
sWave, sXcd, sIdx, sHead, sQblk = S(20), S(21), S(22), S(23), S(24)
sKV = S(25)
sT0, sT1, sT2 = S(26), S(27), S(28)
sGwv = S(29)
sLdsKV = S(30)
sLdsW = S(31)
sWoff = S(32)
sHoff = S(33)
sHoff1 = S(34)
sMt64, sNt = S(35), S(36)
sCnt = S(37)
sSave = S(38, 2)
sRot = S(43)

KVR = 0
WR = 65536
RED = 65536
ARED = 131072
K2_LDS = 147456

L_LO = 2.0 ** -50
L_HI = 2.0 ** 60


def gen_k2(e):
    e.label("k2_kernel")
    e.salu("s_cmp_ge_u32", S(2), 256)
    e.raw("s_cbranch_scc1 L_k2_end")
    e.stamp(0); e.stamp(12, True)
    e.s_load(S(44, 2), S(0, 2), 0)
    e.s_load(S(48, 4), S(0, 2), 48)
    e.s_load(S(52, 2), S(0, 2), 80)
    e.s_load(S(46, 2), S(0, 2), 16)
    e.salu("s_and_b32", sXcd, S(2), 7)
    e.salu("s_lshr_b32", sIdx, S(2), 3)
    e.salu("s_lshr_b32", sT0, sIdx, 4)
    e.salu("s_lshl_b32", sHead, sXcd, 1)
    e.salu("s_add_u32", sHead, sHead, sT0)
    e.salu("s_and_b32", sQblk, sIdx, 15)
    e.valu("v_lshrrev_b32", V(1), 6, V(0))
    e.valu("v_and_b32", V(0), 63, V(0))
    e.valu("v_readfirstlane_b32", sWave, V(1))
    e.salu("s_lshl_b32", sKV, sHead, 18)
    e.salu("s_add_u32", sKV, sKV, KVF)
    e.wait_lg_all()

    def srd(s, lo, size):
        e.salu("s_mov_b32", s[0], S(lo))
        e.salu("s_mov_b32", s[1], S(lo + 1))
        e.salu("s_mov_b32", s[2], size)
        e.salu("s_mov_b32", s[3], "0x20000")
    srd(sWS, 52, WS_USED)
    srd(sWd, 48, 1792 * 896)
    srd(sX, 44, 2048 * 896)
    srd(sGw, 50, 896)
    srd(sWo, 46, 448 * 896)
    e.salu("s_cmp_ge_u32", sWave, 8)
    e.raw("s_cbranch_scc1 L_k2_loader")
    e.flush_hazards()
    gen_attn(e)
    e.raw("s_endpgm")
    e.label("L_k2_loader")
    e.lg, e.vm, e.last = [], [], {}
    if PRIO == 2:
        e.raw("s_setprio 2")
    e.salu("s_sub_u32", sGwv, sWave, 8)
    e.salu("s_lshl_b32", sLdsKV, sGwv, 12)
    e.salu("s_add_u32", sKV, sKV, sLdsKV)
    e.salu("s_cmp_ge_u32", sIdx, 28)
    e.raw("s_cbranch_scc1 L_k2_gjob")
    gen_loader(e, True)
    e.raw("s_endpgm")
    e.label("L_k2_gjob")
    e.lg, e.vm, e.last = [], [], {}
    gen_loader(e, False)
    e.label("L_k2_end")
    e.raw("s_endpgm")


def gen_attn(e):
    lane = V(0)
    Q = [V(8, 4), V(12, 4)]
    K = [V(16, 4), V(20, 4)]
    Vf = [[V(24, 4), V(28, 4)], [V(32, 4), V(36, 4)]]
    Sb = [V(40, 16), V(56, 16)]
    P = V(72, 8)
    O = V(80, 16)
    vKV, vL16, vRed = V(1), V(2), V(3)
    vT0, vT1, vT2, vT3 = V(4), V(5), V(6), V(7)
    X = V(96, 16)
    sQt, sKg = S(40), S(41)
    e.salu("s_and_b32", sQt, sWave, 3)
    e.salu("s_lshr_b32", sKg, sWave, 2)
    e.valu("v_lshlrev_b32", vL16, 4, lane)
    e.salu("s_lshl_b32", sT2, sWave, 12)
    e.salu("s_mov_b32", "m0", sT2)
    e.salu("s_add_u32", sT2, sT2, sKV)
    for i in range(4):
        e.buf_load_lds(vL16, sWS, sT2, offset=i * 1024, tag="KV01")
    e.salu("s_lshl_b32", sT0, sHead, 6)
    e.salu("s_lshl_b32", sT1, sQblk, 2)
    e.salu("s_add_u32", sT1, sT1, sQt)
    e.salu("s_add_u32", sT0, sT0, sT1)
    e.salu("s_lshl_b32", sT0, sT0, 11)
    if QF:
        e.salu("s_add_u32", sT0, sT0, QF)
    e.buf_load(Q[0], vL16, sWS, sT0, offset=0)
    e.buf_load(Q[1], vL16, sWS, sT0, offset=1024)
    sOo = S(42)
    e.salu("s_lshl_b32", sOo, sT1, 4)
    e.salu("s_add_u32", sOo, sOo, sHead)
    e.salu("s_lshl_b32", sOo, sOo, 11)
    e.salu("s_add_u32", sOo, sOo, OF)
    e.salu("s_lshl_b32", sT2, sKg, 13)
    e.valu("v_add_u32", vKV, sT2, vL16)
    e.salu("s_lshl_b32", sT2, sQt, 12)
    e.salu("s_add_u32", sT2, sT2, ARED)
    e.valu("v_add_u32", vRed, sT2, vL16)

    vTo, vTd = V(112), V(113)
    sTo, sSite = S(44), S(45)
    if TOUCH2 == 1:
        e.valu("v_lshrrev_b32", vT0, 3, lane)
        e.valu("v_and_b32", vT1, 7, lane)
        e.valu("v_lshlrev_b32", vT1, 7, vT1)
        e.salu("s_lshl_b32", sT0, sWave, 3)
        e.salu("s_add_u32", sT0, sT0, 3)
        e.valu("v_add_u32", vT0, sT0, vT0)
        e.valu("v_min_u32", vT0, 15, vT0)
        e.valu("v_lshl_add_u32", vTo, vT0, 14, vT1)
        e.salu("s_lshl_b32", sTo, sQblk, 10)
        e.salu("s_add_u32", sTo, sTo, sKV)
        e.salu("s_add_u32", sSite, sWave, 1)
        e.salu("s_cmp_lt_u32", sWave, 2)
        e.raw("s_cbranch_scc1 L_k2_tdone")
        e.valu("v_lshlrev_b32", vTo, 7, lane)
        e.salu("s_lshl_b32", sTo, sIdx, 1)
        e.salu("s_add_u32", sTo, sTo, sWave)
        e.salu("s_sub_u32", sTo, sTo, 5)
        e.salu("s_lshl_b32", sTo, sTo, 13)
        e.salu("s_cmp_eq_u32", sWave, 7)
        e.salu("s_cselect_b32", sSite, 0, 4)
        e.salu("s_cmp_ge_u32", sWave, 5)
        e.raw("s_cbranch_scc1 L_k2_tdone")
        e.salu("s_mul_i32", sT0, sIdx, 37)
        e.salu("s_lshr_b32", sT0, sT0, 8)
        e.salu("s_mul_i32", sT1, sT0, 7)
        e.salu("s_sub_u32", sT1, sIdx, sT1)
        e.salu("s_lshl_b32", sT2, sXcd, 2)
        e.salu("s_add_u32", sT0, sT0, sT2)
        e.salu("s_mul_i32", sTo, sT0, 2 * H_MT_STRIDE)
        e.salu("s_add_u32", sTo, sTo, HF)
        e.salu("s_mul_i32", sT2, sWave, 7)
        e.salu("s_add_u32", sT1, sT1, sT2)
        e.salu("s_sub_u32", sT1, sT1, 8)
        e.salu("s_and_b32", sT2, sT1, 1)
        e.salu("s_mul_i32", sT2, sT2, 56 * 1024)
        e.salu("s_add_u32", sTo, sTo, sT2)
        e.salu("s_lshr_b32", sT1, sT1, 1)
        e.salu("s_lshl_b32", sT1, sT1, 11)
        e.salu("s_add_u32", sTo, sTo, sT1)
        e.valu("v_lshrrev_b32", vT0, 5, lane)
        e.valu("v_mul_u32_u24", vTo, 28 * 1024, vT0)
        e.valu("v_bfe_u32", vT0, lane, 4, 1)
        e.valu("v_mul_u32_u24", vT0, H_MT_STRIDE, vT0)
        e.valu("v_add_u32", vTo, vTo, vT0)
        e.valu("v_and_b32", vT0, 15, lane)
        e.valu("v_lshl_add_u32", vTo, vT0, 7, vTo)
        e.salu("s_sub_u32", sSite, sWave, 1)
        e.salu("s_cmp_ge_u32", sIdx, 28)
        e.salu("s_cselect_b32", sSite, 0, sSite)
        e.label("L_k2_tdone")
        e.flush_hazards()

    if TOUCH2 == 2:
        e.valu("v_lshlrev_b32", vTo, 7, lane)
        e.salu("s_lshl_b32", sTo, sIdx, 1)
        e.salu("s_add_u32", sTo, sTo, sWave)
        e.salu("s_lshl_b32", sTo, sTo, 13)
        e.salu("s_cmp_lt_u32", sWave, 2)
        e.salu("s_cselect_b32", sSite, 4, 0)

    def site(n):
        if not TOUCH2 or (TOUCH2 == 2 and n != 4):
            return
        e.salu("s_cmp_lg_u32", sSite, n)
        e.raw(f"s_cbranch_scc1 L_k2_site{n}")
        e.raw(f"buffer_load_dword {vTd}, {vTo}, {sWo if n == 4 else sWS}, {sTo} offen")
        e.label(f"L_k2_site{n}")

    def toff(i): return ((i >> 1) % 4) * 16384 + (i & 1) * 4096

    def rdK(i):
        e.ds_read("ds_read_b128", K[0], vKV, offset=toff(i))
        e.ds_read("ds_read_b128", K[1], vKV, offset=toff(i) + 1024)

    def rdV(i):
        e.ds_read("ds_read_b128", Vf[i % 2][1], vKV, offset=toff(i) + 3072)
        e.ds_read("ds_read_b128", Vf[i % 2][0], vKV, offset=toff(i) + 2048)

    e.stamp(1)
    e.wait_vm_tag("KV01")
    e.barrier()
    e.stamp(2)
    rdK(0); rdV(0)
    e.mfma(Sb[0], K[0], Q[0], 0)
    e.mfma(Sb[0], K[1], Q[1])
    rdK(1)
    site(1)
    e.stamp(3)
    NT = 32
    for i in range(NT):
        Sc, Sn = Sb[i % 2], Sb[(i + 1) % 2]
        if i in (8, 16, 24): e.stamp(3 + i // 8)
        if i == 6: site(2)
        if i == 12: site(3)
        if i == 20: site(4)
        def ex(a, b):
            for r in range(a, b):
                e.valu("v_exp_f32", Sc[r], Sc[r])
        def cv(a, b):
            for j in range(a, b):
                e.valu("v_cvt_pk_bf16_f32", P[j], Sc[2 * j], Sc[2 * j + 1])
        if i + 1 < NT:
            e.mfma(Sn, K[0], Q[0], 0)
        ex(0, 3)
        if i > 0:
            e.mfma(O, Vf[(i - 1) % 2][1], P[4:8])
        if i + 1 < NT:
            rdV(i + 1)
        ex(3, 6)
        if i + 1 < NT:
            e.mfma(Sn, K[1], Q[1])
        if i + 2 < NT:
            rdK(i + 2)
        ex(6, 8)
        cv(0, 4)
        ex(8, 10)
        e.mfma(O, Vf[i % 2][0], P[0:4], 0 if i == 0 else None)
        ex(10, 16)
        cv(4, 8)
        if i % 2 == 1 and i < NT - 1:
            e.barrier()
    e.mfma(O, Vf[(NT - 1) % 2][1], P[4:8])
    e.stamp(7)
    e.salu("s_cmp_eq_u32", sKg, 0)
    e.raw("s_cbranch_scc1 L_k2_fin")
    for j in range(4):
        e.ds_write("ds_write_b128", vRed, O[4 * j:4 * j + 4], offset=j * 1024)
    e.wait_lg_all()
    e.barrier()
    e.raw("s_endpgm")
    e.label("L_k2_fin")
    e.lg = []
    e.last = {}
    e.barrier()
    for j in range(4):
        e.ds_read("ds_read_b128", X[4 * j:4 * j + 4], vRed, offset=j * 1024)
    e.nop(8)
    for r in range(16):
        e.valu("v_add_f32", O[r], O[r], X[r])
    e.valu("v_mov_b32", vT0, O[12])
    e.valu("v_mov_b32", vT1, O[12])
    e.valu("v_mov_b32", vT2, 0)
    e.valu("v_permlane32_swap_b32", vT0, vT1)
    for r in range(16):
        e.valu("v_fmac_f32", vT2, 0, O[r], dst_is_read=True)
    e.salu("s_mov_b32", sT0, hex(f2u(L_LO)))
    e.salu("s_mov_b32", sT1, hex(f2u(L_HI)))
    e.valu("v_add_f32", vT2, vT2, vT1)
    e.valu("v_cmp_le_f32", "vcc", sT0, vT2)
    e.valu("v_cmp_ge_f32", sSave, sT1, vT2)
    e.nop(1)
    e.salu("s_and_b64", "vcc", "vcc", sSave)
    e.raw("s_cmp_eq_u64 vcc, -1")
    e.raw("s_cbranch_scc0 L_k2_slow")
    e.label("L_k2_store")
    e.last = {}
    e.nop(2)
    e.valu("v_rcp_f32", vT0, vT1)
    e.valu("v_cmp_gt_u32", "vcc", 32, lane)
    e.valu("v_mov_b32", vT2, 0)
    e.valu("v_cndmask_b32", vT3, vT2, vT0)
    for r in range(16):
        e.valu("v_mul_f32", O[r], O[r], vT0 if r < 12 else vT3)
    for j in range(8):
        e.valu("v_cvt_pk_bf16_f32", P[j], O[2 * j], O[2 * j + 1])
    e.buf_store(P[0:4], vL16, sWS, sOo, offset=0, flags=STF)
    e.buf_store(P[4:8], vL16, sWS, sOo, offset=1024, flags=STF)
    e.stamp(8)
    if Emitter.STAMPS:
        e.wait_vm_all()
    e.stamp(9); e.stamp(13, True)
    e.dump_stamps(sWS, 1, sWave)
    e.raw("s_endpgm")
    e.label("L_k2_slow")
    e.lg, e.vm, e.last = [], [], {}
    vM = vT3
    Sc = Sb[0]
    e.valu("v_mov_b32", vM, "0xff800000")
    for r in range(16):
        e.valu("v_mov_b32", O[r], 0)
    e.salu("s_mov_b32", sCnt, 0)
    e.salu("s_mov_b32", sT2, sKV)
    e.label("L_k2_slow_loop")
    e.buf_load(K[0], vL16, sWS, sT2, offset=0)
    e.buf_load(K[1], vL16, sWS, sT2, offset=1024)
    e.buf_load(Vf[0][0], vL16, sWS, sT2, offset=2048)
    e.buf_load(Vf[0][1], vL16, sWS, sT2, offset=3072)
    e.mfma(Sc, K[0], Q[0], 0)
    e.mfma(Sc, K[1], Q[1])
    e.valu("v_max_f32", vT0, Sc[0], Sc[1])
    for r in range(2, 16, 2):
        e.valu("v_max3_f32", vT0, vT0, Sc[r], Sc[r + 1])
    e.valu("v_mov_b32", vT1, vT0)
    e.valu("v_permlane32_swap_b32", vT0, vT1)
    e.valu("v_max3_f32", vT0, vT0, vT1, vM)
    e.valu("v_sub_f32", vT1, vM, vT0)
    e.valu("v_exp_f32", vT1, vT1)
    e.valu("v_mov_b32", vM, vT0)
    for r in range(16):
        e.valu("v_sub_f32", Sc[r], Sc[r], vM)
    for r in range(16):
        e.valu("v_exp_f32", Sc[r], Sc[r])
    for r in range(16):
        e.valu("v_mul_f32", O[r], O[r], vT1)
    for j in range(8):
        e.valu("v_cvt_pk_bf16_f32", P[j], Sc[2 * j], Sc[2 * j + 1])
    e.mfma(O, Vf[0][0], P[0:4])
    e.mfma(O, Vf[0][1], P[4:8])
    e.salu("s_add_u32", sT2, sT2, 4096)
    e.salu("s_add_u32", sCnt, sCnt, 1)
    e.flush_hazards()
    e.salu("s_cmp_lt_u32", sCnt, 64)
    e.raw("s_cbranch_scc1 L_k2_slow_loop")
    e.valu("v_mov_b32", vT0, O[12])
    e.valu("v_mov_b32", vT1, O[12])
    e.valu("v_permlane32_swap_b32", vT0, vT1)
    e.raw("s_branch L_k2_store")


def gen_loader(e, gemm):
    lane = V(0)
    ND = 4
    ACC = [[V(80, 16), V(96, 16)], [V(112, 16), V(128, 16)]]
    def HF_(s, st, t): return V(16 + ((s % ND) * 4 + st * 2 + t) * 4, 4)
    def WF(st, u): return V(144 + (st * 2 + u) * 4, 4)
    vL16 = V(1)
    vW = [V(2), V(3), V(4), V(5)]
    vTr = [V(6), V(7)]
    vX0, vX1, vX2 = V(8), V(9), V(10)
    vRw, vRr = V(11), V(12)
    e.valu("v_lshlrev_b32", vL16, 4, lane)

    def dma_KV(s):
        e.salu("s_add_u32", "m0", sLdsKV, (s % 4) * 16384)
        e.salu("s_add_u32", sT0, sKV, s * 16384)
        for i in range(4):
            e.buf_load_lds(vL16, sWS, sT0, offset=i * 1024, tag=("KV", s))

    if gemm:
        e.salu("s_mul_i32", sT0, sIdx, 37)
        e.salu("s_lshr_b32", sT0, sT0, 8)
        e.salu("s_mul_i32", sT1, sT0, 7)
        e.salu("s_sub_u32", sNt, sIdx, sT1)
        e.salu("s_lshl_b32", sMt64, sXcd, 2)
        e.salu("s_add_u32", sMt64, sMt64, sT0)
        e.valu("v_lshrrev_b32", vX0, 3, lane)
        e.valu("v_bfe_u32", vX1, lane, 2, 1)
        e.valu("v_bfe_u32", vX2, lane, 4, 1)
        e.valu("v_xor_b32", vX1, vX1, vX2)
        e.valu("v_mul_u32_u24", vW[0], 896, vX0)
        e.valu("v_lshl_add_u32", vW[0], vX1, 6, vW[0])
        e.valu("v_and_b32", vX1, 3, lane)
        e.valu("v_lshl_add_u32", vW[0], vX1, 4, vW[0])
        for i in range(1, 4):
            e.valu("v_add_u32", vW[i], i * (8 * 896 - 1024), vW[0])
        e.salu("s_lshl_b32", sLdsW, sGwv, 14)
        e.salu("s_add_u32", sLdsW, sLdsW, WR)
        e.salu("s_mul_i32", sWoff, sGwv, 448 * 896)
        e.salu("s_lshl_b32", sT0, sNt, 7)
        e.salu("s_add_u32", sWoff, sWoff, sT0)
        e.salu("s_mul_i32", sHoff, sMt64, 2 * H_MT_STRIDE)
        e.salu("s_mul_i32", sT0, sGwv, 28 * 1024)
        e.salu("s_add_u32", sHoff, sHoff, sT0)
        e.salu("s_add_u32", sHoff, sHoff, HF)
        e.salu("s_add_u32", sHoff1, sHoff, H_MT_STRIDE)
        e.valu("v_lshrrev_b32", vX1, 5, lane)
        e.valu("v_bfe_u32", vX0, lane, 2, 2)
        e.valu("v_lshl_add_u32", vX0, vX1, 2, vX0)
        e.valu("v_bfe_u32", vX2, lane, 4, 1)
        e.valu("v_lshlrev_b32", vX2, 5, vX2)
        e.valu("v_and_b32", vX1, 3, lane)
        e.valu("v_lshl_add_u32", vX2, vX1, 3, vX2)
        e.valu("v_lshl_add_u32", vX2, vX0, 7, vX2)
        e.valu("v_bfe_u32", vX1, lane, 3, 1)
        e.valu("v_lshl_add_u32", vTr[0], vX1, 6, vX2)
        e.valu("v_xor_b32", vTr[1], 64, vTr[0])
        e.valu("v_add_u32", vTr[0], sLdsW, vTr[0])
        e.valu("v_add_u32", vTr[1], sLdsW, vTr[1])
        e.valu("v_add_u32", vRw, sLdsW, vL16)
        e.salu("s_lshl_b32", sT0, sGwv, 12)
        e.salu("s_add_u32", sT0, sT0, RED)
        e.valu("v_add_u32", vRr, sT0, vL16)

    def dma_WH_ops(s):
        ops = []
        if NOWH: return ops
        def w(i):
            if i == 0:
                e.salu("s_add_u32", sT1, sWoff, s * 32 * 896)
            e.salu("s_add_u32", "m0", sLdsW, (s % ND) * 4096)
            e.nop(1) if False else None
            e.buf_load_lds(vW[i], sWd, sT1, offset=i * 1024, tag=("W", s))
        for i in range(4):
            ops.append(lambda i=i: w(i))
        def h(st, t):
            e.salu("s_add_u32", sT2, sHoff1 if t else sHoff, s * 2048)
            e.buf_load(HF_(s, st, t), vL16, sWS, sT2, offset=st * 1024)
        for st in range(2):
            for t in range(2):
                ops.append(lambda st=st, t=t: h(st, t))
        return ops

    def compute(s, side):
        e.wait_vm_tag(("W", s))
        for st in range(2):
            for u in range(2):
                for j in range(2):
                    e.ds_read("ds_read_b64_tr_b16", WF(st, u)[2 * j:2 * j + 2], vTr[u],
                              offset=(s % ND) * 4096 + st * 2048 + j * 1024)
        if side: side.pop(0)()
        for st in range(2):
            for u in range(2):
                for t in range(2):
                    if not NOMFMA:
                        e.mfma(ACC[u][t], WF(st, u), HF_(s, st, t), 0 if (s == 0 and st == 0) else None)
                    if side: side.pop(0)()

    def gjob_parts():
        parts = []
        G = V(16, 8)
        Xr = V(32, 64)
        Acc = V(96, 16)
        vTmp = V(112, 8)
        sG = S(44)
        def p_load():
            e.salu("s_sub_u32", sT0, sIdx, 28)
            e.salu("s_lshl_b32", sT1, sXcd, 2)
            e.salu("s_add_u32", sT0, sT0, sT1)
            e.salu("s_lshl_b32", sT0, sT0, 2)
            e.salu("s_add_u32", sT0, sT0, sGwv)
            e.salu("s_mul_i32", sT1, sT0, 16 * 896)
            e.salu("s_lshl_b32", sG, sT0, 7)
            e.salu("s_add_u32", sG, sG, GF)
            e.buf_load(vTmp[0:4], vL16, sGw, 0, offset=0)
            for r in range(16):
                if r % 4 == 0 and r:
                    e.salu("s_add_u32", sT1, sT1, 4 * 896)
                e.buf_load(Xr[4 * r:4 * r + 4], vL16, sX, sT1, offset=(r % 4) * 896)
        parts.append(p_load)
        parts.append(lambda: None)
        parts.append(lambda: None)
        def p_rows(r0, r1):
            if r0 == 0:
                for j in range(4):
                    e.valu("v_lshlrev_b32", G[2 * j], 16, vTmp[j])
                    e.valu("v_and_b32", G[2 * j + 1], "0xffff0000", vTmp[j])
            for r in range(r0, r1):
                for j in range(4):
                    e.valu("v_lshlrev_b32", vTmp[4], 16, Xr[4 * r + j])
                    e.valu("v_and_b32", vTmp[5], "0xffff0000", Xr[4 * r + j])
                    if j == 0:
                        e.valu("v_mul_f32", Acc[r], vTmp[4], G[0])
                    else:
                        e.valu("v_fmac_f32", Acc[r], vTmp[4], G[2 * j], dst_is_read=True)
                    e.valu("v_fmac_f32", Acc[r], vTmp[5], G[2 * j + 1], dst_is_read=True)
        for r0 in range(0, 16, 2):
            parts.append(lambda r0=r0: p_rows(r0, r0 + 2))
        def p_red1():
            e.valu("v_cmp_gt_u32", "vcc", 56, lane)
            e.valu("v_mov_b32", vTmp[4], 0)
            for r in range(16):
                e.valu("v_cndmask_b32", Acc[r], vTmp[4], Acc[r])
            for sh in (8, 4):
                for r in range(16):
                    e.valu("v_add_f32", Acc[r], Acc[r], Acc[r], extra=f"row_shr:{sh} bound_ctrl:0")
        def p_red2():
            for sh in (2, 1):
                for r in range(16):
                    e.valu("v_add_f32", Acc[r], Acc[r], Acc[r], extra=f"row_shr:{sh} bound_ctrl:0")
            for r in range(16):
                e.valu("v_add_f32", Acc[r], Acc[r], Acc[r], extra="row_bcast:15 row_mask:0xa")
        def p_fin():
            for r in range(16):
                e.valu("v_add_f32", Acc[r], Acc[r], Acc[r], extra="row_bcast:31 row_mask:0xc")
            e.valu("v_mov_b32", vTmp[0], 0)
            for r in range(16):
                e.valu("v_readlane_b32", S(48 + r), Acc[r], 63)
            e.nop(3)
            for r in range(16):
                e.valu("v_writelane_b32", vTmp[0], S(48 + r), r, dst_is_read=True)
            e.valu("v_cvt_pk_bf16_f32", vTmp[0], vTmp[0], vTmp[0])
            e.valu("v_and_b32", vTmp[0], "0xffff0000", vTmp[0])
            e.valu("v_mul_f32", vTmp[0], hex(f2u(-LOG2E)), vTmp[0])
            e.valu("v_exp_f32", vTmp[0], vTmp[0])
            e.valu("v_add_f32", vTmp[0], 1.0, vTmp[0])
            e.valu("v_rcp_f32", vTmp[0], vTmp[0])
            e.valu("v_cvt_pk_bf16_f32", vTmp[0], vTmp[0], vTmp[0])
            e.valu("v_and_b32", vTmp[2], "0xffff0000", vTmp[0])
            e.valu("v_sub_f32", vTmp[3], 1.0, vTmp[2])
            e.valu("v_cvt_pk_bf16_f32", vTmp[3], vTmp[3], vTmp[3])
            e.valu("v_and_b32", vTmp[3], "0xffff0000", vTmp[3])
            e.valu("v_lshlrev_b32", vTmp[4], 3, lane)
            e.valu("v_cmp_gt_u32", "vcc", 16, lane)
            e.nop(1)
            e.salu("s_and_saveexec_b64", sSave, "vcc")
            e.buf_store(vTmp[2:4], vTmp[4], sWS, sG, offset=0, flags=STF)
            e.salu("s_mov_b64", "exec", sSave)
        parts += [p_red1, p_red2, p_fin]
        return parts

    gparts = None
    dma_KV(2)
    if gemm:
        for f in dma_WH_ops(0): f()
    e.barrier()
    NS = 14
    LAG = 1
    for i in range(16):
        if i in (0, 4, 8, 12, 15): e.stamp(3 + (i + 1) // 4)
        if i + 3 <= 15:
            if PRIO == 1: e.raw("s_setprio 2")
            dma_KV(i + 3)
            if PRIO == 1: e.raw("s_setprio 0")
        if gemm:
            s = i - LAG
            side = []
            if i == 0:
                side += dma_WH_ops(1) + dma_WH_ops(2)
            elif s + 3 < NS:
                side += dma_WH_ops(s + 3)
            if 0 <= s < NS:
                compute(s, side)
            while side: side.pop(0)()
            if i == 14:
                e.raw("s_setprio 2")
                for u in range(2):
                    for t in range(2):
                        for j in range(4):
                            e.ds_write("ds_write_b128", vRw, ACC[u][t][4 * j:4 * j + 4],
                                       offset=(t * 2 + u) * 4096 + j * 1024)
                e.wait_lg_all()
            if i == 15:
                X = [V(16 + 16 * w, 16) for w in range(4)]
                for w in range(4):
                    for j in range(4):
                        e.ds_read("ds_read_b128", X[w][4 * j:4 * j + 4], vRr, offset=w * 16384 + j * 1024)
                for r in range(16):
                    e.valu("v_add_f32", X[0][r], X[0][r], X[1][r])
                    e.valu("v_add_f32", X[2][r], X[2][r], X[3][r])
                for r in range(16):
                    e.valu("v_add_f32", X[0][r], X[0][r], X[2][r])
                for j in range(8):
                    e.valu("v_cvt_pk_bf16_f32", X[1][j], X[0][2 * j], X[0][2 * j + 1])
                e.salu("s_lshr_b32", sT0, sGwv, 1)
                e.salu("s_lshl_b32", sT1, sMt64, 1)
                e.salu("s_add_u32", sT0, sT0, sT1)
                e.salu("s_mul_i32", sT0, sT0, 14)
                e.salu("s_and_b32", sT1, sGwv, 1)
                e.salu("s_add_u32", sT0, sT0, sT1)
                e.salu("s_lshl_b32", sT1, sNt, 1)
                e.salu("s_add_u32", sT0, sT0, sT1)
                e.salu("s_lshl_b32", sT0, sT0, 11)
                e.salu("s_add_u32", sT0, sT0, BF)
                e.buf_store(X[1][0:4], vL16, sWS, sT0, offset=0, flags=STF)
                e.buf_store(X[1][4:8], vL16, sWS, sT0, offset=1024, flags=STF)
        elif gparts:
            gparts.pop(0)()
        if i + 2 <= 15:
            e.wait_vm_tag(("KV", i + 2))
        if i < 15:
            e.barrier()
    e.stamp(9); e.stamp(13, True)
    e.dump_stamps(sWS, 1, sWave)


K2_DESC = dict(name="k2_kernel", vgpr=160, acc=160, sgpr=72, grid=256, block=768, lds=K2_LDS)
```

```python
from emit import *
from layout import *

sWS, sWo, sOut = S(4, 4), S(8, 4), S(12, 4)
sWave, sXcd, sIdx, sMt64, sNt = S(16), S(17), S(18), S(19), S(20)
sT0, sT1, sT2 = S(21), S(22), S(23)
sOoff, sWoff, sLdsW = S(24), S(25), S(26)
sU, sTt = S(27), S(28)

OL = 0
WL = 65536
K3_LDS = 65536 + 57 * 1024


def gen_k3(e):
    e.label("k3_kernel")
    e.salu("s_cmp_ge_u32", S(2), 224)
    e.raw("s_cbranch_scc1 L_k3_end")
    e.stamp(0); e.stamp(12, True)
    e.s_load(S(44, 2), S(0, 2), 16)
    e.s_load(S(46, 2), S(0, 2), 64)
    e.s_load(S(48, 2), S(0, 2), 80)
    lane = V(0)
    vL16 = V(1)
    vW = [V(2), V(3), V(4), V(5)]
    vTr, vOr = V(6), V(7)
    vX0, vX1, vX2 = V(8), V(9), V(10)
    vSt = V(11)
    vG = V(12, 2)
    Bv = V(16, 8)
    ACC = V(32, 16)
    T = V(48, 16)
    NB = 4
    def OFr(k): return V(64 + (k % NB) * 4, 4)
    def WFr(k): return V(80 + (k % NB) * 4, 4)
    e.salu("s_and_b32", sXcd, S(2), 7)
    e.salu("s_lshr_b32", sIdx, S(2), 3)
    e.salu("s_mul_i32", sT0, sIdx, 37)
    e.salu("s_lshr_b32", sT0, sT0, 8)
    e.salu("s_mul_i32", sT1, sT0, 7)
    e.salu("s_sub_u32", sNt, sIdx, sT1)
    e.salu("s_lshl_b32", sMt64, sXcd, 2)
    e.salu("s_add_u32", sMt64, sMt64, sT0)
    e.valu("v_lshrrev_b32", V(1), 6, V(0))
    e.valu("v_and_b32", V(0), 63, V(0))
    e.valu("v_readfirstlane_b32", sWave, V(1))
    e.valu("v_lshlrev_b32", vL16, 4, lane)
    e.valu("v_lshrrev_b32", vX0, 3, lane)
    e.valu("v_bfe_u32", vX1, lane, 2, 1)
    e.valu("v_bfe_u32", vX2, lane, 4, 1)
    e.valu("v_xor_b32", vX1, vX1, vX2)
    e.valu("v_mul_u32_u24", vW[0], 896, vX0)
    e.valu("v_lshl_add_u32", vW[0], vX1, 6, vW[0])
    e.valu("v_and_b32", vX1, 3, lane)
    e.valu("v_lshl_add_u32", vW[0], vX1, 4, vW[0])
    for i in range(1, 4):
        e.valu("v_add_u32", vW[i], i * (8 * 896 - 1024), vW[0])
    sRole = S(31)
    e.salu("s_lshr_b32", sRole, sWave, 2)
    e.salu("s_and_b32", sWave, sWave, 3)
    e.salu("s_and_b32", sU, sWave, 1)
    e.salu("s_lshr_b32", sTt, sWave, 1)
    e.salu("s_lshl_b32", sOoff, sMt64, 16)
    e.salu("s_lshl_b32", sT0, sTt, 15)
    e.salu("s_lshl_b32", sT1, sU, 12)
    e.salu("s_add_u32", sT0, sT0, sT1)
    sLdsO = S(29)
    e.salu("s_mov_b32", sLdsO, sT0)
    e.salu("s_add_u32", sOoff, sOoff, sT0)
    e.salu("s_add_u32", sOoff, sOoff, OF)
    e.salu("s_mul_i32", sWoff, sWave, 32 * 896)
    e.salu("s_lshl_b32", sT0, sNt, 7)
    e.salu("s_add_u32", sWoff, sWoff, sT0)
    e.salu("s_lshl_b32", sLdsW, sWave, 12)
    e.salu("s_add_u32", sLdsW, sLdsW, WL)
    e.wait_lg_all()

    def srd(s, lo, size):
        e.salu("s_mov_b32", s[0], S(lo))
        e.salu("s_mov_b32", s[1], S(lo + 1))
        e.salu("s_mov_b32", s[2], size)
        e.salu("s_mov_b32", s[3], "0x20000")
    srd(sWS, 48, WS_USED)
    srd(sWo, 44, 448 * 896)
    srd(sOut, 46, 2048 * 896)

    def dma_O(c):
        e.salu("s_add_u32", "m0", sLdsO, c * 8192)
        e.salu("s_add_u32", sT0, sOoff, c * 8192)
        for i in range(4):
            e.buf_load_lds(vL16, sWS, sT0, offset=i * 1024, tag=("C", c))

    def dma_W(q):
        e.salu("s_add_u32", "m0", sLdsW, q * 16384)
        e.salu("s_add_u32", sT0, sWoff, q * 128 * 896)
        for i in range(4):
            e.buf_load_lds(vW[i], sWo, sT0, offset=i * 1024, tag=("C", q))

    e.salu("s_cmp_eq_u32", sRole, 0)
    e.raw("s_cbranch_scc1 L_k3_comp")
    dma_W(0); dma_O(0); dma_W(1); dma_O(1)
    for c in range(4):
        e.wait_vm_tag(("C", c))
        e.barrier()
        if c + 2 < 4:
            dma_W(c + 2); dma_O(c + 2)
    e.raw("s_endpgm")
    e.label("L_k3_comp")
    e.vm = []
    e.salu("s_lshl_b32", sT0, sMt64, 1)
    e.salu("s_add_u32", sT0, sT0, sTt)
    e.salu("s_mul_i32", sT1, sT0, 14)
    e.salu("s_add_u32", sT1, sT1, sU)
    e.salu("s_lshl_b32", sT2, sNt, 1)
    e.salu("s_add_u32", sT1, sT1, sT2)
    e.salu("s_lshl_b32", sT1, sT1, 11)
    e.salu("s_add_u32", sT1, sT1, BF)
    e.buf_load(Bv[0:4], vL16, sWS, sT1, offset=0)
    e.buf_load(Bv[4:8], vL16, sWS, sT1, offset=1024)
    e.valu("v_and_b32", vX0, 31, lane)
    e.valu("v_lshlrev_b32", vX1, 3, vX0)
    e.salu("s_lshl_b32", sT1, sT0, 8)
    e.salu("s_add_u32", sT1, sT1, GF)
    e.buf_load(vG, vX1, sWS, sT1, offset=0)
    e.valu("v_mul_u32_u24", vSt, 896, vX0)
    e.valu("v_lshrrev_b32", vX1, 5, lane)
    e.valu("v_lshl_add_u32", vSt, vX1, 4, vSt)
    sSt = S(30)
    e.salu("s_mul_i32", sSt, sT0, 32 * 896)
    e.salu("s_add_u32", sT2, sT2, sU)
    e.salu("s_lshl_b32", sT2, sT2, 6)
    e.salu("s_add_u32", sSt, sSt, sT2)
    e.valu("v_bfe_u32", vX0, lane, 2, 2)
    e.valu("v_lshl_add_u32", vX0, vX1, 2, vX0)
    e.valu("v_bfe_u32", vX2, lane, 4, 1)
    e.valu("v_lshlrev_b32", vX2, 5, vX2)
    e.valu("v_and_b32", vX1, 3, lane)
    e.valu("v_lshl_add_u32", vX2, vX1, 3, vX2)
    e.valu("v_lshl_add_u32", vX2, vX0, 7, vX2)
    e.valu("v_bfe_u32", vX1, lane, 3, 1)
    e.valu("v_xor_b32", vX1, sU, vX1)
    e.valu("v_lshl_add_u32", vTr, vX1, 6, vX2)
    e.valu("v_add_u32", vTr, WL, vTr)
    e.salu("s_lshl_b32", sT0, sTt, 15)
    e.valu("v_add_u32", vOr, sT0, vL16)

    def rd(k):
        hd, s = k // 2, k % 2
        e.ds_read("ds_read_b128", OFr(k), vOr, offset=k * 1024, tag=("k", k))
        for j in range(2):
            e.ds_read("ds_read_b64_tr_b16", WFr(k)[2 * j:2 * j + 2], vTr, offset=(28 * hd + 16 * s + 8 * j) * 128, tag=("k", k))

    for c in range(4):
        e.stamp(1 + 2 * c)
        e.barrier()
        e.stamp(2 + 2 * c)
        ks = list(range(8 * c, 8 * c + 8))
        for k in ks[:NB - 1]:
            rd(k)
        for n, k in enumerate(ks):
            if n + NB - 1 < 8:
                rd(ks[n + NB - 1])
            e.wait_lg_tag(("k", k))
            e.mfma(ACC, WFr(k), OFr(k), 0 if k == 0 else None)
    e.stamp(9)
    for j in range(8):
        e.valu("v_lshlrev_b32", T[2 * j], 16, Bv[j])
        e.valu("v_and_b32", T[2 * j + 1], "0xffff0000", Bv[j])
    for r in range(16):
        e.valu("v_mul_f32", T[r], T[r], vG[1])
    for r in range(16):
        e.valu("v_fmac_f32", T[r], ACC[r], vG[0], dst_is_read=True)
    for j in range(8):
        e.valu("v_cvt_pk_bf16_f32", Bv[j], T[2 * j], T[2 * j + 1])
    for kk in range(2):
        e.valu("v_permlane32_swap_b32", Bv[4 * kk], Bv[4 * kk + 2])
        e.valu("v_permlane32_swap_b32", Bv[4 * kk + 1], Bv[4 * kk + 3])
        e.buf_store(Bv[4 * kk:4 * kk + 4], vSt, sOut, sSt, offset=kk * 32)
    e.stamp(10)
    if Emitter.STAMPS:
        e.wait_vm_all()
    e.stamp(11); e.stamp(13, True)
    e.dump_stamps(sWS, 2, sWave)
    e.label("L_k3_end")
    e.raw("s_endpgm")


K3_DESC = dict(name="k3_kernel", vgpr=96, acc=96, sgpr=56, grid=224, block=512, lds=65536 + 65536)
```

```python
from emit import *
from layout import *
import os
import struct

ROT1 = int(os.environ.get('ROT1', '0'))
TOUCH1 = int(os.environ.get('TOUCH1', '13'))
CODE_CHUNKS = 4
STF = os.environ.get('STF', ' sc0 sc1')

LOG2E = 1.4426950408889634
QSCALE = (28 ** -0.5) * LOG2E


def f2u(x):
    return struct.unpack("<I", struct.pack("<f", x))[0]


sX, sWg, sWu, sWq, sWS = S(4, 4), S(8, 4), S(12, 4), S(16, 4), S(20, 4)
sWd, sGw = S(64, 4), S(60, 4)
sWave, sMblk, sCg = S(24), S(25), S(26)
sAoff, sBoff, sBoff1, sQKoff = S(27), S(29), S(30), S(34)
sW4 = S(28)
sT0, sT1, sT2 = S(32), S(33), S(31)
sOut0, sOutQK, sQKstr, sQKmul, sNL2E = S(35), S(36), S(37), S(38), S(39)
sMask = S(40, 2)
sMt = S(42)
sCnt = S(43)
sDelta = S(44)
sSlot = S(45)
sRot = S(46)

SLOT = 53248
OA, OG, OU, OQ = 0, 32768, 40960, 49152
K1_LDS = 3 * SLOT


def ACC(u, t): return V(32 * u + 16 * t, 16)
def BFr(ks, u): return V(160 + (ks % 2) * 20 + u * 4, 4)
def AFr(ks, t): return V(200 + (ks % 2) * 8 + t * 4, 4)


vAr = [V(216 + i) for i in range(4)]
vTr = [V(220), V(221)]
vTrQ = V(222)
vLane16, vMulHi, vVconst = V(223), V(224), V(225)
vX0, vX1, vX2, vLane = V(226), V(227), V(228), V(229)


def gen_k1(e):
    e.label("k1_kernel")
    e.salu("s_cmp_ge_u32", S(2), 256)
    e.raw("s_cbranch_scc1 L_k1_end")
    e.stamp(0); e.stamp(12, True)
    e.s_load(S(48, 4), S(0, 2), 0)
    e.s_load(S(52, 8), S(0, 2), 32)
    e.s_load(S(68, 2), S(0, 2), 80)
    e.salu("s_and_b32", sT0, S(2), 7)
    e.salu("s_lshr_b32", sT1, S(2), 3)
    e.salu("s_and_b32", sMblk, sT0, 1)
    e.salu("s_lshl_b32", sMblk, sMblk, 2)
    e.salu("s_and_b32", sCg, sT1, 3)
    e.salu("s_add_u32", sMblk, sMblk, sCg)
    e.salu("s_lshl_b32", sRot, sCg, 1)
    e.salu("s_lshr_b32", sT0, sT0, 1)
    e.salu("s_lshr_b32", sT1, sT1, 2)
    e.salu("s_mul_i32", sCg, sT0, 7)
    e.salu("s_add_u32", sCg, sCg, sT1)
    e.salu("s_add_u32", sT0, sT0, 28)
    e.salu("s_cmp_eq_u32", sT1, 7)
    e.salu("s_cselect_b32", sCg, sT0, sCg)
    if ROT1:
        e.salu("s_add_u32", sRot, sRot, sT1)
        e.salu("s_sub_u32", sT0, sRot, 7)
        e.salu("s_cmp_ge_u32", sRot, 7)
        e.salu("s_cselect_b32", sRot, sT0, sRot)
    else:
        e.salu("s_mov_b32", sRot, 0)
    e.valu("v_lshrrev_b32", vX0, 6, V(0))
    e.valu("v_and_b32", vLane, 63, V(0))
    e.valu("v_readfirstlane_b32", sWave, vX0)
    e.valu("v_lshlrev_b32", vLane16, 4, vLane)
    e.salu("s_and_b32", sW4, sWave, 3)
    e.salu("s_lshl_b32", sT0, sMblk, 2)
    e.salu("s_add_u32", sT0, sT0, sW4)
    e.salu("s_mul_i32", sAoff, sT0, 64 * 896)
    e.salu("s_lshl_b32", sMt, sT0, 1)
    e.wait_lg_all()

    def srd(s, lo, size):
        if s is sWS and WS_BASE:
            e.salu("s_add_u32", s[0], S(lo), WS_BASE)
            e.salu("s_addc_u32", s[1], S(lo + 1), 0)
        else:
            e.salu("s_mov_b32", s[0], S(lo))
            e.salu("s_mov_b32", s[1], S(lo + 1))
        e.salu("s_mov_b32", s[2], size)
        e.salu("s_mov_b32", s[3], "0x20000")
    e.salu("s_cmp_lt_u32", sWave, 4)
    e.raw("s_cbranch_scc1 L_k1_compute")
    e.raw("s_setprio 3")
    srd(sX, 48, 2048 * 896)
    srd(sWq, 50, 448 * 2688)
    srd(sWg, 52, 448 * 3584)
    srd(sWu, 54, 448 * 3584)
    srd(sWd, 56, 1792 * 896)
    e.salu("s_mov_b32", S(62), 896)
    e.salu("s_mov_b32", S(60), S(58))
    e.salu("s_mov_b32", S(61), S(59))
    e.salu("s_mov_b32", S(63), "0x20000")
    if Emitter.STAMPS:
        srd(sWS, 68, WS_USED)
    e.salu("s_cmp_ge_u32", sCg, 28)
    e.raw("s_cbranch_scc1 L_k1_loadB")
    e.flush_hazards()
    gen_loader(e, False)
    e.raw("s_endpgm")
    e.label("L_k1_loadB")
    e.lg, e.vm, e.last = [], [], {}
    gen_loader(e, True)
    e.raw("s_endpgm")
    e.label("L_k1_compute")
    e.lg, e.vm, e.last = [], [], {}
    srd(sWS, 68, WS_USED)
    lane = vLane
    e.valu("v_and_b32", vX0, 31, lane)
    e.valu("v_lshrrev_b32", vX1, 5, lane)
    e.valu("v_bfe_u32", vX2, lane, 1, 3)
    e.valu("v_xor_b32", vX2, vX2, vX1)
    e.valu("v_lshlrev_b32", vX0, 7, vX0)
    e.salu("s_lshl_b32", sT0, sW4, 13)
    e.valu("v_add_u32", vX0, sT0, vX0)
    for k in range(4):
        e.valu("v_xor_b32", vAr[k], 2 * k, vX2)
        e.valu("v_lshl_add_u32", vAr[k], vAr[k], 4, vX0)
    e.valu("v_bfe_u32", vX0, lane, 2, 2)
    e.valu("v_lshl_add_u32", vX0, vX1, 3, vX0)
    e.valu("v_bfe_u32", vX2, lane, 4, 1)
    e.valu("v_lshlrev_b32", vX2, 5, vX2)
    e.valu("v_and_b32", vX1, 3, lane)
    e.valu("v_lshl_add_u32", vX2, vX1, 3, vX2)
    e.valu("v_lshl_add_u32", vTrQ, vX0, 6, vX2)
    e.valu("v_lshl_add_u32", vX2, vX0, 7, vX2)
    e.valu("v_bfe_u32", vX1, lane, 3, 1)
    e.valu("v_lshl_add_u32", vTr[0], vX1, 6, vX2)
    e.valu("v_xor_b32", vTr[1], 64, vTr[0])
    e.salu("s_mov_b32", sNL2E, hex(f2u(-LOG2E)))
    for r in range(160):
        e.valu("v_mov_b32", V(r), 0)
    e.salu("s_cmp_ge_u32", sCg, 28)
    e.raw("s_cbranch_scc1 L_k1_compB")
    e.flush_hazards()
    gen_compute(e, False)
    e.raw("s_endpgm")
    e.label("L_k1_compB")
    e.lg, e.vm, e.last = [], [], {}
    gen_compute(e, True)
    e.label("L_k1_end")
    e.raw("s_endpgm")


def gen_loader(e, typeB):
    tb = int(typeB)
    lane = vLane
    ldw = 2688 if typeB else 3584
    srdP = [sWq, sWq] if typeB else [sWg, sWu]
    vA = [V(1), V(2), V(3), V(4)]
    vB = [V(5), V(6)]
    vQ = V(7)
    vT = V(8)
    vTd = [V(9), V(10), V(11), V(12)]
    vGa = V(13)
    vG = V(16, 7)
    if not typeB:
        e.salu("s_lshl_b32", sBoff, sCg, 7)
        e.salu("s_mov_b32", sBoff1, sBoff)
    else:
        e.salu("s_sub_u32", sT1, sCg, 28)
        e.salu("s_mul_i32", sBoff, sT1, 224)
        e.salu("s_add_u32", sBoff, sBoff, 896 * 2)
        e.salu("s_add_u32", sBoff1, sBoff, 112)
    e.salu("s_mul_i32", sQKoff, sCg, 56)
    e.valu("v_lshrrev_b32", vX0, 3, lane)
    e.valu("v_and_b32", vX1, 7, lane)
    e.valu("v_lshrrev_b32", vX2, 1, vX0)
    e.valu("v_xor_b32", vX2, vX2, vX1)
    e.valu("v_mul_u32_u24", vA[0], 896, vX0)
    e.valu("v_lshl_add_u32", vA[0], vX2, 4, vA[0])
    e.valu("v_xor_b32", vA[1], 64, vA[0])
    e.valu("v_add_u32", vA[2], 2 * 6144, vA[0])
    e.valu("v_add_u32", vA[3], 3 * 6144, vA[1])
    e.valu("v_add_u32", vA[1], 6144, vA[1])
    e.valu("v_bfe_u32", vX1, lane, 2, 1)
    e.valu("v_bfe_u32", vX2, lane, 4, 1)
    e.valu("v_xor_b32", vX1, vX1, vX2)
    e.valu("v_mul_u32_u24", vB[0], ldw, vX0)
    e.valu("v_mul_u32_u24", vX1, 56 if typeB else 64, vX1)
    e.valu("v_add_u32", vB[0], vB[0], vX1)
    e.valu("v_and_b32", vX1, 3, lane)
    e.valu("v_lshl_add_u32", vB[0], vX1, 4, vB[0])
    e.valu("v_add_u32", vB[1], 8 * ldw - 1024, vB[0])
    e.valu("v_lshrrev_b32", vX0, 2, lane)
    e.valu("v_mul_u32_u24", vQ, 2688, vX0)
    e.valu("v_lshl_add_u32", vQ, vX1, 4, vQ)
    e.salu("s_mul_i32", sT0, sW4, 16 * ldw)
    e.salu("s_add_u32", sBoff, sBoff, sT0)
    e.salu("s_add_u32", sBoff1, sBoff1, sT0)
    e.salu("s_mul_i32", sT0, sW4, 16 * 2688)
    e.salu("s_add_u32", sQKoff, sQKoff, sT0)
    sLA, sLB, sLQ = S(35), S(36), S(37)
    e.salu("s_lshl_b32", sLA, sW4, 13)
    e.salu("s_lshl_b32", sLB, sW4, 11)
    e.salu("s_lshl_b32", sLQ, sW4, 10)
    sCh = S(38)
    e.salu("s_mov_b32", sCh, sRot)
    if typeB:
        e.valu("v_and_b32", vX0, 15, lane)
        e.valu("v_lshlrev_b32", vX1, 1, vX0)
        e.salu("s_lshl_b32", sT0, sW4, 5)
        e.salu("s_mov_b32", sT1, sRot)
        for c in range(7):
            e.salu("s_lshl_b32", sT2, sT1, 7)
            e.salu("s_add_u32", sT2, sT2, sT0)
            e._issue(f"buffer_load_ushort {vG[c]}, {vX1}, {sGw}, {sT2} offen", "vmem", vX1.regs() + sGw.regs() + sT2.regs(), vG[c].regs())
            e.vm.append((-1, set(vG[c].regs()), "gw"))
            e.salu("s_add_u32", sT1, sT1, 1)
            e.salu("s_cmp_eq_u32", sT1, 7)
            e.salu("s_cselect_b32", sT1, 0, sT1)
        e.valu("v_lshlrev_b32", vGa, 6, vX0)
        e.valu("v_add_u32", vGa, sLQ, vGa)

    def dma(c):
        sl = (c % 3) * SLOT
        e.salu("s_lshl_b32", sT2, sCh, 7)
        e.salu("s_add_u32", sT0, sAoff, sT2)
        for t in range(2):
            e.salu("s_add_u32", "m0", sLA, sl + OA + t * 4096)
            if t: e.salu("s_add_u32", sT0, sT0, 32 * 896)
            else: e.salu("s_mul_i32", sT1, sCh, 64 * ldw)
            for i in range(4):
                e.buf_load_lds(vA[i], sX, sT0, offset=i * 1024, tag=("C", c))
        for p in range(2):
            e.salu("s_add_u32", "m0", sLB, sl + (OG, OU)[p])
            e.salu("s_add_u32", sT0, (sBoff, sBoff1)[p], sT1)
            for i in range(2):
                e.buf_load_lds(vB[i], srdP[p], sT0, offset=i * 1024, tag=("C", c))
        e.salu("s_mul_i32", sT1, sCh, 64 * 2688)
        e.salu("s_add_u32", "m0", sLQ, sl + OQ)
        e.salu("s_add_u32", sT0, sQKoff, sT1)
        e.buf_load_lds(vQ, sWq, sT0, offset=0, tag=("C", c))
        e.salu("s_add_u32", sCh, sCh, 1)
        e.salu("s_cmp_eq_u32", sCh, 7)
        e.salu("s_cselect_b32", sCh, 0, sCh)

    def land(c):
        e.wait_vm_tag(("C", c))
        if typeB:
            e.raw("s_mov_b64 exec, 0xffff")
            off = (c % 3) * SLOT + OQ + 56
            if off >= 65536:
                e.valu("v_add_u32", vX0, off - 56, vGa)
                e.ds_write("ds_write_b16", vX0, vG[c], offset=56)
            else:
                e.ds_write("ds_write_b16", vGa, vG[c], offset=off)
            e.raw("s_mov_b64 exec, -1")
            e.wait_lg_all()

    e.stamp(1)
    dma(0)
    e.stamp(2)
    sTS, sTo, sTd = S(40, 4), S(44), S(45)
    if TOUCH1 & 1:
        def cp(src):
            for i in range(3):
                e.salu("s_mov_b32", sTS[i], src[i])
        e.salu("s_mov_b32", sTS[3], "0x20000")
        e.valu("v_min_u32", vX0, 13, lane)
        e.valu("v_lshlrev_b32", vT, 15, vX0)
        e.salu("s_lshl_b32", sTo, S(2), 7)
        e.salu("s_add_u32", sTo, sTo, 64 * 3584)
        e.salu("s_mov_b32", sTd, 128 * 3584)
        cp(sWg)
        e.salu("s_cmp_eq_u32", sW4, 1)
        e.raw(f"s_cbranch_scc1 L_k1_tE{tb}")
        cp(sWu)
        e.salu("s_cmp_eq_u32", sW4, 2)
        e.raw(f"s_cbranch_scc1 L_k1_tE{tb}")
        cp(sWq)
        e.valu("v_min_u32", vX0, 10, lane)
        e.valu("v_lshlrev_b32", vT, 15, vX0)
        e.salu("s_sub_u32", sTo, sTo, 64 * 3584 - 64 * 2688)
        e.salu("s_mov_b32", sTd, 128 * 2688)
        e.salu("s_cmp_eq_u32", sW4, 3)
        e.raw(f"s_cbranch_scc1 L_k1_tE{tb}")
        cp(sX)
        e.valu("v_and_b32", vX1, 7, lane)
        e.valu("v_mul_u32_u24", vT, 896, vX1)
        e.valu("v_bfe_u32", vX0, lane, 3, 1)
        e.valu("v_lshl_add_u32", vT, vX0, 7, vT)
        e.salu("s_mul_i32", sTo, S(2), 8 * 896)
        e.salu("s_add_u32", sTo, sTo, 128)
        e.salu("s_mov_b32", sTd, 256)
        e.label(f"L_k1_tE{tb}")
        e.last = {}

    def touch(r):
        if TOUCH1 & 1:
            e.buf_load(V(24 + r), vT, sTS, sTo, offset=0, tag=("touch", r))
            e.salu("s_add_u32", sTo, sTo, sTd)
    touch(0)
    if TOUCH1 & 2:
        touch(1)
    if TOUCH1 & 8:
        e.raw("s_getpc_b64 s[46:47]")
        e.label(f"L_k1_pc{tb}")
        e.salu("s_lshr_b32", sT0, S(2), 3)
        e.salu("s_lshl_b32", sT0, sT0, 2)
        e.salu("s_add_u32", sT0, sT0, sW4)
        e.salu("s_cmp_ge_u32", sT0, CODE_CHUNKS)
        e.raw(f"s_cbranch_scc1 L_k1_pcE{tb}")
        e.salu("s_lshl_b32", sT0, sT0, 13)
        e.raw(f"s_sub_u32 s46, s46, L_k1_pc{tb}-k1_kernel")
        e.raw("s_subb_u32 s47, s47, 0")
        e.valu("v_lshlrev_b32", vX0, 7, lane)
        e.valu("v_add_u32", vX0, sT0, vX0)
        e.raw(f"v_min_u32 {vX0}, L_code_end-k1_kernel-4, {vX0}")
        e.raw(f"v_mov_b32 {vX2}, s47")
        e.raw(f"v_add_co_u32 {vX0}, vcc, s46, {vX0}")
        e.raw("s_nop 1")
        e.raw(f"v_addc_co_u32 {vX1}, vcc, 0, {vX2}, vcc")
        e.raw(f"global_load_dword {vTd[1]}, v[{vX0.lo}:{vX1.lo}], off")
        e.raw("s_waitcnt vmcnt(0)")
        e.label(f"L_k1_pcE{tb}")
        e.last = {}
    dma(1)
    e.stamp(3)
    land(0)
    e.stamp(4)
    e.barrier()
    for c in range(7):
        if TOUCH1 & 2:
            if c == 0: touch(2)
        else:
            if c == 0: touch(1)
            if c == 1: touch(2)
        if c + 2 < 7:
            dma(c + 2)
        if c == 5 and (TOUCH1 & 4):
            e.salu("s_lshr_b32", sT0, S(2), 3)
            e.salu("s_mul_i32", sT0, sT0, 392 * 128)
            e.salu("s_mul_i32", sT1, sW4, 98 * 128)
            e.salu("s_add_u32", sT0, sT0, sT1)
            e.valu("v_lshlrev_b32", vX0, 7, lane)
            e.valu("v_min_u32", vX1, 33 * 128, vX0)
        if c + 1 < 7:
            land(c + 1)
        if c == 5 and (TOUCH1 & 4):
            e.buf_load(vTd[2], vX0, sWd, sT0, offset=0)
            e.salu("s_add_u32", sT0, sT0, 64 * 128)
            e.buf_load(vTd[3], vX1, sWd, sT0, offset=0)
        if c in (1, 3, 5): e.stamp(5 + c // 2)
        e.barrier()
    e.stamp(11); e.stamp(13, True)
    e.dump_stamps(sWS, 0, sWave)


def gen_compute(e, typeB):
    tb = int(typeB)
    lane = vLane
    if not typeB:
        e.salu("s_mul_i32", sOut0, sMt, H_MT_STRIDE)
        e.salu("s_lshl_b32", sT1, sCg, 12)
        e.salu("s_add_u32", sOut0, sOut0, sT1)
        e.salu("s_add_u32", sOut0, sOut0, HF)
        e.salu("s_and_b32", sT1, sCg, 15)
        e.salu("s_lshl_b32", sT1, sT1, 6)
        e.salu("s_add_u32", sT1, sT1, sMt)
        e.salu("s_cmp_lt_u32", sCg, 16)
        e.salu("s_cselect_b32", sQKstr, 11, 12)
        e.salu("s_cselect_b32", sOutQK, QF, KVF)
        e.salu("s_cselect_b32", sQKmul, hex(f2u(QSCALE)), 1.0)
        e.salu("s_lshl_b32", sQKstr, 1, sQKstr)
        e.salu("s_mul_i32", sT1, sT1, sQKstr)
        e.salu("s_add_u32", sOutQK, sOutQK, sT1)
    else:
        e.salu("s_sub_u32", sT1, sCg, 28)
        e.salu("s_lshl_b32", sT0, sT1, 8)
        e.salu("s_add_u32", sT0, sT0, sMt)
        e.salu("s_lshl_b32", sOut0, sT0, 12)
        e.salu("s_add_u32", sOut0, sOut0, KVF + 2048)
        e.salu("s_add_u32", sT0, sT1, 12)
        e.salu("s_lshl_b32", sT0, sT0, 6)
        e.salu("s_add_u32", sT0, sT0, sMt)
        e.salu("s_lshl_b32", sOutQK, sT0, 12)
        e.salu("s_add_u32", sOutQK, sOutQK, KVF)
        e.salu("s_mov_b32", sQKstr, 4096)
        e.salu("s_mov_b32", sQKmul, 1.0)
    e.valu("v_cmp_gt_u32", "vcc", 32, lane)
    e.valu("v_mov_b32", vX0, sQKmul)
    e.valu("v_mov_b32", vX1, 0)
    e.valu("v_cndmask_b32", vMulHi, vX1, vX0)
    if typeB:
        e.valu("v_and_b32", vX0, 31, lane)
        e.valu("v_cmp_eq_u32", "vcc", 28, vX0)
        e.valu("v_mov_b32", vX2, "0x3f803f80")
        e.valu("v_cndmask_b32", vVconst, vX1, vX2)
        e.valu("v_cmp_le_u32", sMask, 28, vX0)
    e.salu("s_mov_b32", sCnt, 0)
    e.salu("s_mov_b32", sSlot, 0)

    def reads(kk):
        ops = []
        for t in range(2):
            ops.append(lambda t=t: e.ds_read("ds_read_b128", AFr(kk, t), vAr[kk], offset=OA + t * 4096, tag=("f", kk)))
        for u in range(5):
            for j in range(2):
                if u < 4:
                    ops.append(lambda u=u, j=j: e.ds_read("ds_read_b64_tr_b16", BFr(kk, u)[2 * j:2 * j + 2], vTr[u >> 1],
                                                          offset=(OG, OU)[u & 1] + kk * 2048 + j * 512, tag=("f", kk)))
                else:
                    ops.append(lambda u=u, j=j: e.ds_read("ds_read_b64_tr_b16", BFr(kk, u)[2 * j:2 * j + 2], vTrQ,
                                                          offset=OQ + kk * 1024 + j * 256, tag=("f", kk)))
        return ops

    e.stamp(1)
    e.barrier()
    e.stamp(2)
    for f in reads(0): f()
    e.flush_hazards()
    e.label(f"L_k1_loop{tb}")
    for kk in range(4):
        side = []
        if kk == 0:
            def upd():
                e.salu("s_add_u32", sSlot, sSlot, 1)
                e.salu("s_cmp_eq_u32", sSlot, 3)
                e.salu("s_cselect_b32", sDelta, -2 * SLOT, sT0)
                e.salu("s_cselect_b32", sSlot, 0, sSlot)
            side.append(lambda: e.salu("s_mov_b32", sT0, SLOT))
            side.append(upd)
        if kk == 3:
            side.append(lambda: e.barrier())
            for v in (vAr[0], vTr[0], vTr[1], vTrQ):
                side.append(lambda v=v: e.valu("v_add_u32", v, sDelta, v))
        side += reads((kk + 1) % 4)
        if kk == 3:
            for v in vAr[1:]:
                side.append(lambda v=v: e.valu("v_add_u32", v, sDelta, v))
        e.wait_lg_tag(("f", kk))
        per = [3, 3, 2, 2, 2, 2, 2, 2, 2, 2] if kk == 3 else [2] * 10
        gi = 0
        for u in range(5):
            for t in range(2):
                swap = typeB and u < 4
                a, b = (AFr(kk, t), BFr(kk, u)) if swap else (BFr(kk, u), AFr(kk, t))
                e.mfma(ACC(u, t), a, b)
                for _ in range(per[gi]):
                    if side: side.pop(0)()
                gi += 1
        while side: side.pop(0)()
    e.salu("s_add_u32", sCnt, sCnt, 1)
    e.salu("s_cmp_lt_u32", sCnt, 7)
    e.raw(f"s_cbranch_scc1 L_k1_loop{tb}")
    e.stamp(8)
    T0 = 160

    def store_pair(src8, soff, off):
        for s in range(2):
            e.buf_store(src8[4 * s:4 * s + 4], vLane16, sWS, soff, offset=off + s * 1024, flags=STF)

    for t in range(2):
        X = ACC(4, t)
        T = V(T0 + 8 * t, 8)
        if typeB:
            e.valu("v_cvt_pk_bf16_f32", V(T0 + 16 + t), X[12], X[12])
        for r in range(16):
            if typeB and r < 12:
                continue
            e.valu("v_mul_f32", X[r], sQKmul if r < 12 else vMulHi, X[r])
        for i in range(8):
            e.valu("v_cvt_pk_bf16_f32", T[i], X[2 * i], X[2 * i + 1])
        if t == 1:
            e.salu("s_add_u32", sOutQK, sOutQK, sQKstr)
        store_pair(T, sOutQK, 0)
    e.stamp(9)
    if not typeB:
        for (ug, uu, foff) in ((0, 1, 0), (2, 3, 2048)):
            for t in range(2):
                G, U = ACC(ug, t), ACC(uu, t)
                T = V(T0 + 16 + 16 * t, 16)
                for r in range(16): e.valu("v_mul_f32", T[r], sNL2E, G[r])
                for r in range(16):
                    e.valu("v_exp_f32", T[r], T[r])
                    e.valu("v_mul_f32", G[r], G[r], U[r])
                for r in range(16): e.valu("v_add_f32", T[r], 1.0, T[r])
                for r in range(16): e.valu("v_rcp_f32", T[r], T[r])
                for r in range(16): e.valu("v_mul_f32", G[r], G[r], T[r])
                for i in range(8): e.valu("v_cvt_pk_bf16_f32", U[i], G[2 * i], G[2 * i + 1])
                e.salu("s_add_u32", sT1, sOut0, t * H_MT_STRIDE)
                store_pair(U[0:8], sT1, foff)
    else:
        for u, hoff in ((0, 0), (2, 1), (1, 2), (3, 3)):
            for t in range(2):
                X = ACC(u, t)
                for i in range(8):
                    e.valu("v_cvt_pk_bf16_f32", X[i], X[2 * i], X[2 * i + 1])
                for i in range(8):
                    e.valu("v_cndmask_b32", X[i], X[i], vVconst, sMask)
                e.salu("s_add_u32", sT1, sOut0, hoff * 64 * 4096 + t * 4096)
                store_pair(X[0:8], sT1, 0)
        for t in range(2):
            D = V(T0 + 16 + t)
            Gv = V(T0 + 20 + 2 * t, 2)
            e.valu("v_and_b32", D, "0xffff0000", D)
            e.valu("v_mul_f32", D, sNL2E, D)
            e.valu("v_exp_f32", D, D)
            e.valu("v_add_f32", D, 1.0, D)
            e.valu("v_rcp_f32", D, D)
            e.valu("v_cvt_pk_bf16_f32", D, D, D)
            e.valu("v_and_b32", Gv[0], "0xffff0000", D)
            e.valu("v_sub_f32", Gv[1], 1.0, Gv[0])
            e.valu("v_cvt_pk_bf16_f32", Gv[1], Gv[1], Gv[1])
            e.valu("v_and_b32", Gv[1], "0xffff0000", Gv[1])
        e.valu("v_lshlrev_b32", vX0, 3, lane)
        e.salu("s_lshl_b32", sT1, sMt, 8)
        e.salu("s_add_u32", sT1, sT1, GF - 256)
        e.raw("s_mov_b32 exec_lo, 0")
        e.buf_store(V(T0 + 20, 2), vX0, sWS, sT1, offset=0, flags=STF)
        e.buf_store(V(T0 + 22, 2), vX0, sWS, sT1, offset=256, flags=STF)
        e.raw("s_mov_b32 exec_lo, -1")
    e.stamp(10)
    if Emitter.STAMPS:
        e.wait_vm_all()
    e.stamp(11); e.stamp(13, True)
    e.dump_stamps(sWS, 0, sWave)


K1_DESC = dict(name="k1_kernel", vgpr=232, acc=232, sgpr=72, grid=256, block=512, lds=K1_LDS)
```

```python
from emit import *
from layout import *
from k1 import f2u, LOG2E
import os
ROT_KV = int(os.environ.get('ROT_KV', '0'))
ROT_G = int(os.environ.get('ROT_G', '0'))
STF = os.environ.get('STF', ' sc1')

sWS, sWd, sX, sGw = S(4, 4), S(8, 4), S(12, 4), S(16, 4)
sWo = S(64, 4)
TOUCH2 = int(os.environ.get("TOUCH2", "2"))
PRIO = int(os.environ.get("PRIO", "0"))
NOMFMA = int(os.environ.get("NOMFMA", "0"))
NOWH = int(os.environ.get("NOWH", "0"))
sWave, sXcd, sIdx, sHead, sQblk = S(20), S(21), S(22), S(23), S(24)
sKV = S(25)
sT0, sT1, sT2 = S(26), S(27), S(28)
sGwv = S(29)
sLdsKV = S(30)
sLdsW = S(31)
sWoff = S(32)
sHoff = S(33)
sHoff1 = S(34)
sMt64, sNt = S(35), S(36)
sCnt = S(37)
sSave = S(38, 2)
sRot = S(43)

KVR = 0
WR = 65536
RED = 65536
ARED = 131072
K2_LDS = 147456

L_LO = 2.0 ** -50
L_HI = 2.0 ** 60


def gen_k2(e):
    e.label("k2_kernel")
    e.salu("s_cmp_ge_u32", S(2), 256)
    e.raw("s_cbranch_scc1 L_k2_end")
    e.stamp(0); e.stamp(12, True)
    e.s_load(S(44, 2), S(0, 2), 0)
    e.s_load(S(48, 4), S(0, 2), 48)
    e.s_load(S(52, 2), S(0, 2), 80)
    e.s_load(S(46, 2), S(0, 2), 16)
    e.salu("s_and_b32", sXcd, S(2), 7)
    e.salu("s_lshr_b32", sIdx, S(2), 3)
    e.salu("s_lshr_b32", sT0, sIdx, 4)
    e.salu("s_lshl_b32", sHead, sXcd, 1)
    e.salu("s_add_u32", sHead, sHead, sT0)
    e.salu("s_and_b32", sQblk, sIdx, 15)
    e.valu("v_lshrrev_b32", V(1), 6, V(0))
    e.valu("v_and_b32", V(0), 63, V(0))
    e.valu("v_readfirstlane_b32", sWave, V(1))
    e.salu("s_lshl_b32", sKV, sHead, 18)
    e.salu("s_add_u32", sKV, sKV, KVF)
    e.wait_lg_all()

    def srd(s, lo, size):
        if s is sWS and WS_BASE:
            e.salu("s_add_u32", s[0], S(lo), WS_BASE)
            e.salu("s_addc_u32", s[1], S(lo + 1), 0)
        else:
            e.salu("s_mov_b32", s[0], S(lo))
            e.salu("s_mov_b32", s[1], S(lo + 1))
        e.salu("s_mov_b32", s[2], size)
        e.salu("s_mov_b32", s[3], "0x20000")
    srd(sWS, 52, WS_USED)
    srd(sWd, 48, 1792 * 896)
    srd(sX, 44, 2048 * 896)
    srd(sGw, 50, 896)
    srd(sWo, 46, 448 * 896)
    e.salu("s_cmp_ge_u32", sWave, 8)
    e.raw("s_cbranch_scc1 L_k2_loader")
    e.flush_hazards()
    gen_attn(e)
    e.raw("s_endpgm")
    e.label("L_k2_loader")
    e.lg, e.vm, e.last = [], [], {}
    if PRIO == 2:
        e.raw("s_setprio 2")
    e.salu("s_sub_u32", sGwv, sWave, 8)
    e.salu("s_lshl_b32", sLdsKV, sGwv, 12)
    e.salu("s_add_u32", sKV, sKV, sLdsKV)
    e.salu("s_cmp_ge_u32", sIdx, 28)
    e.raw("s_cbranch_scc1 L_k2_gjob")
    gen_loader(e, True)
    e.raw("s_endpgm")
    e.label("L_k2_gjob")
    e.lg, e.vm, e.last = [], [], {}
    gen_loader(e, False)
    e.label("L_k2_end")
    e.raw("s_endpgm")


def gen_attn(e):
    lane = V(0)
    Q = [V(8, 4), V(12, 4)]
    K = [V(16, 4), V(20, 4)]
    Vf = [[V(24, 4), V(28, 4)], [V(32, 4), V(36, 4)]]
    Sb = [V(40, 16), V(56, 16)]
    P = V(72, 8)
    O = V(80, 16)
    vKV, vL16, vRed = V(1), V(2), V(3)
    vT0, vT1, vT2, vT3 = V(4), V(5), V(6), V(7)
    X = V(96, 16)
    sQt, sKg = S(40), S(41)
    e.salu("s_and_b32", sQt, sWave, 3)
    e.salu("s_lshr_b32", sKg, sWave, 2)
    e.valu("v_lshlrev_b32", vL16, 4, lane)
    e.salu("s_lshl_b32", sT2, sWave, 12)
    e.salu("s_mov_b32", "m0", sT2)
    e.salu("s_add_u32", sT2, sT2, sKV)
    for i in range(4):
        e.buf_load_lds(vL16, sWS, sT2, offset=i * 1024, tag="KV01")
    e.salu("s_lshl_b32", sT0, sHead, 6)
    e.salu("s_lshl_b32", sT1, sQblk, 2)
    e.salu("s_add_u32", sT1, sT1, sQt)
    e.salu("s_add_u32", sT0, sT0, sT1)
    e.salu("s_lshl_b32", sT0, sT0, 11)
    if QF:
        e.salu("s_add_u32", sT0, sT0, QF)
    e.buf_load(Q[0], vL16, sWS, sT0, offset=0)
    e.buf_load(Q[1], vL16, sWS, sT0, offset=1024)
    sOo = S(42)
    e.salu("s_lshl_b32", sOo, sT1, 4)
    e.salu("s_add_u32", sOo, sOo, sHead)
    e.salu("s_lshl_b32", sOo, sOo, 11)
    e.salu("s_add_u32", sOo, sOo, OF)
    e.salu("s_lshl_b32", sT2, sKg, 13)
    e.valu("v_add_u32", vKV, sT2, vL16)
    e.salu("s_lshl_b32", sT2, sQt, 12)
    e.salu("s_add_u32", sT2, sT2, ARED)
    e.valu("v_add_u32", vRed, sT2, vL16)

    vTo, vTd = V(112), V(113)
    sTo, sSite = S(44), S(45)
    if TOUCH2 == 1:
        e.valu("v_lshrrev_b32", vT0, 3, lane)
        e.valu("v_and_b32", vT1, 7, lane)
        e.valu("v_lshlrev_b32", vT1, 7, vT1)
        e.salu("s_lshl_b32", sT0, sWave, 3)
        e.salu("s_add_u32", sT0, sT0, 3)
        e.valu("v_add_u32", vT0, sT0, vT0)
        e.valu("v_min_u32", vT0, 15, vT0)
        e.valu("v_lshl_add_u32", vTo, vT0, 14, vT1)
        e.salu("s_lshl_b32", sTo, sQblk, 10)
        e.salu("s_add_u32", sTo, sTo, sKV)
        e.salu("s_add_u32", sSite, sWave, 1)
        e.salu("s_cmp_lt_u32", sWave, 2)
        e.raw("s_cbranch_scc1 L_k2_tdone")
        e.valu("v_lshlrev_b32", vTo, 7, lane)
        e.salu("s_lshl_b32", sTo, sIdx, 1)
        e.salu("s_add_u32", sTo, sTo, sWave)
        e.salu("s_sub_u32", sTo, sTo, 5)
        e.salu("s_lshl_b32", sTo, sTo, 13)
        e.salu("s_cmp_eq_u32", sWave, 7)
        e.salu("s_cselect_b32", sSite, 0, 4)
        e.salu("s_cmp_ge_u32", sWave, 5)
        e.raw("s_cbranch_scc1 L_k2_tdone")
        e.salu("s_mul_i32", sT0, sIdx, 37)
        e.salu("s_lshr_b32", sT0, sT0, 8)
        e.salu("s_mul_i32", sT1, sT0, 7)
        e.salu("s_sub_u32", sT1, sIdx, sT1)
        e.salu("s_lshl_b32", sT2, sXcd, 2)
        e.salu("s_add_u32", sT0, sT0, sT2)
        e.salu("s_mul_i32", sTo, sT0, 2 * H_MT_STRIDE)
        e.salu("s_add_u32", sTo, sTo, HF)
        e.salu("s_mul_i32", sT2, sWave, 7)
        e.salu("s_add_u32", sT1, sT1, sT2)
        e.salu("s_sub_u32", sT1, sT1, 8)
        e.salu("s_and_b32", sT2, sT1, 1)
        e.salu("s_mul_i32", sT2, sT2, 56 * 1024)
        e.salu("s_add_u32", sTo, sTo, sT2)
        e.salu("s_lshr_b32", sT1, sT1, 1)
        e.salu("s_lshl_b32", sT1, sT1, 11)
        e.salu("s_add_u32", sTo, sTo, sT1)
        e.valu("v_lshrrev_b32", vT0, 5, lane)
        e.valu("v_mul_u32_u24", vTo, 28 * 1024, vT0)
        e.valu("v_bfe_u32", vT0, lane, 4, 1)
        e.valu("v_mul_u32_u24", vT0, H_MT_STRIDE, vT0)
        e.valu("v_add_u32", vTo, vTo, vT0)
        e.valu("v_and_b32", vT0, 15, lane)
        e.valu("v_lshl_add_u32", vTo, vT0, 7, vTo)
        e.salu("s_sub_u32", sSite, sWave, 1)
        e.salu("s_cmp_ge_u32", sIdx, 28)
        e.salu("s_cselect_b32", sSite, 0, sSite)
        e.label("L_k2_tdone")
        e.flush_hazards()

    if TOUCH2 == 2:
        e.valu("v_lshlrev_b32", vTo, 7, lane)
        e.salu("s_lshl_b32", sTo, sIdx, 1)
        e.salu("s_add_u32", sTo, sTo, sWave)
        e.salu("s_lshl_b32", sTo, sTo, 13)
        e.salu("s_cmp_lt_u32", sWave, 2)
        e.salu("s_cselect_b32", sSite, 4, 0)

    def site(n):
        if not TOUCH2 or (TOUCH2 == 2 and n != 4):
            return
        e.salu("s_cmp_lg_u32", sSite, n)
        e.raw(f"s_cbranch_scc1 L_k2_site{n}")
        e.raw(f"buffer_load_dword {vTd}, {vTo}, {sWo if n == 4 else sWS}, {sTo} offen")
        e.label(f"L_k2_site{n}")

    def toff(i): return ((i >> 1) % 4) * 16384 + (i & 1) * 4096

    def rdK(i):
        e.ds_read("ds_read_b128", K[0], vKV, offset=toff(i))
        e.ds_read("ds_read_b128", K[1], vKV, offset=toff(i) + 1024)

    def rdV(i):
        e.ds_read("ds_read_b128", Vf[i % 2][1], vKV, offset=toff(i) + 3072)
        e.ds_read("ds_read_b128", Vf[i % 2][0], vKV, offset=toff(i) + 2048)

    e.stamp(1)
    e.wait_vm_tag("KV01")
    e.barrier()
    e.stamp(2)
    rdK(0); rdV(0)
    e.mfma(Sb[0], K[0], Q[0], 0)
    e.mfma(Sb[0], K[1], Q[1])
    rdK(1)
    site(1)
    e.stamp(3)
    NT = 32
    for i in range(NT):
        Sc, Sn = Sb[i % 2], Sb[(i + 1) % 2]
        if i in (8, 16, 24): e.stamp(3 + i // 8)
        if i == 6: site(2)
        if i == 12: site(3)
        if i == 20: site(4)
        def ex(a, b):
            for r in range(a, b):
                e.valu("v_exp_f32", Sc[r], Sc[r])
        def cv(a, b):
            for j in range(a, b):
                e.valu("v_cvt_pk_bf16_f32", P[j], Sc[2 * j], Sc[2 * j + 1])
        if i + 1 < NT:
            e.mfma(Sn, K[0], Q[0], 0)
        ex(0, 3)
        if i > 0:
            e.mfma(O, Vf[(i - 1) % 2][1], P[4:8])
        if i + 1 < NT:
            rdV(i + 1)
        ex(3, 6)
        if i + 1 < NT:
            e.mfma(Sn, K[1], Q[1])
        if i + 2 < NT:
            rdK(i + 2)
        ex(6, 8)
        cv(0, 4)
        ex(8, 10)
        e.mfma(O, Vf[i % 2][0], P[0:4], 0 if i == 0 else None)
        ex(10, 16)
        cv(4, 8)
        if i % 2 == 1 and i < NT - 1:
            e.barrier()
    e.mfma(O, Vf[(NT - 1) % 2][1], P[4:8])
    e.stamp(7)
    e.salu("s_cmp_eq_u32", sKg, 0)
    e.raw("s_cbranch_scc1 L_k2_fin")
    for j in range(4):
        e.ds_write("ds_write_b128", vRed, O[4 * j:4 * j + 4], offset=j * 1024)
    e.wait_lg_all()
    e.barrier()
    e.raw("s_endpgm")
    e.label("L_k2_fin")
    e.lg = []
    e.last = {}
    e.barrier()
    for j in range(4):
        e.ds_read("ds_read_b128", X[4 * j:4 * j + 4], vRed, offset=j * 1024)
    e.nop(8)
    for r in range(16):
        e.valu("v_add_f32", O[r], O[r], X[r])
    e.valu("v_mov_b32", vT0, O[12])
    e.valu("v_mov_b32", vT1, O[12])
    e.valu("v_mov_b32", vT2, 0)
    e.valu("v_permlane32_swap_b32", vT0, vT1)
    for r in range(16):
        e.valu("v_fmac_f32", vT2, 0, O[r], dst_is_read=True)
    e.salu("s_mov_b32", sT0, hex(f2u(L_LO)))
    e.salu("s_mov_b32", sT1, hex(f2u(L_HI)))
    e.valu("v_add_f32", vT2, vT2, vT1)
    e.valu("v_cmp_le_f32", "vcc", sT0, vT2)
    e.valu("v_cmp_ge_f32", sSave, sT1, vT2)
    e.nop(1)
    e.salu("s_and_b64", "vcc", "vcc", sSave)
    e.raw("s_cmp_eq_u64 vcc, -1")
    e.raw("s_cbranch_scc0 L_k2_slow")
    e.label("L_k2_store")
    e.last = {}
    e.nop(2)
    e.valu("v_rcp_f32", vT0, vT1)
    e.valu("v_cmp_gt_u32", "vcc", 32, lane)
    e.valu("v_mov_b32", vT2, 0)
    e.valu("v_cndmask_b32", vT3, vT2, vT0)
    for r in range(16):
        e.valu("v_mul_f32", O[r], O[r], vT0 if r < 12 else vT3)
    for j in range(8):
        e.valu("v_cvt_pk_bf16_f32", P[j], O[2 * j], O[2 * j + 1])
    e.buf_store(P[0:4], vL16, sWS, sOo, offset=0, flags=STF)
    e.buf_store(P[4:8], vL16, sWS, sOo, offset=1024, flags=STF)
    e.stamp(8)
    if Emitter.STAMPS:
        e.wait_vm_all()
    e.stamp(9); e.stamp(13, True)
    e.dump_stamps(sWS, 1, sWave)
    e.raw("s_endpgm")
    e.label("L_k2_slow")
    e.lg, e.vm, e.last = [], [], {}
    vM = vT3
    Sc = Sb[0]
    e.valu("v_mov_b32", vM, "0xff800000")
    for r in range(16):
        e.valu("v_mov_b32", O[r], 0)
    e.salu("s_mov_b32", sCnt, 0)
    e.salu("s_mov_b32", sT2, sKV)
    e.label("L_k2_slow_loop")
    e.buf_load(K[0], vL16, sWS, sT2, offset=0)
    e.buf_load(K[1], vL16, sWS, sT2, offset=1024)
    e.buf_load(Vf[0][0], vL16, sWS, sT2, offset=2048)
    e.buf_load(Vf[0][1], vL16, sWS, sT2, offset=3072)
    e.mfma(Sc, K[0], Q[0], 0)
    e.mfma(Sc, K[1], Q[1])
    e.valu("v_max_f32", vT0, Sc[0], Sc[1])
    for r in range(2, 16, 2):
        e.valu("v_max3_f32", vT0, vT0, Sc[r], Sc[r + 1])
    e.valu("v_mov_b32", vT1, vT0)
    e.valu("v_permlane32_swap_b32", vT0, vT1)
    e.valu("v_max3_f32", vT0, vT0, vT1, vM)
    e.valu("v_sub_f32", vT1, vM, vT0)
    e.valu("v_exp_f32", vT1, vT1)
    e.valu("v_mov_b32", vM, vT0)
    for r in range(16):
        e.valu("v_sub_f32", Sc[r], Sc[r], vM)
    for r in range(16):
        e.valu("v_exp_f32", Sc[r], Sc[r])
    for r in range(16):
        e.valu("v_mul_f32", O[r], O[r], vT1)
    for j in range(8):
        e.valu("v_cvt_pk_bf16_f32", P[j], Sc[2 * j], Sc[2 * j + 1])
    e.mfma(O, Vf[0][0], P[0:4])
    e.mfma(O, Vf[0][1], P[4:8])
    e.salu("s_add_u32", sT2, sT2, 4096)
    e.salu("s_add_u32", sCnt, sCnt, 1)
    e.flush_hazards()
    e.salu("s_cmp_lt_u32", sCnt, 64)
    e.raw("s_cbranch_scc1 L_k2_slow_loop")
    e.valu("v_mov_b32", vT0, O[12])
    e.valu("v_mov_b32", vT1, O[12])
    e.valu("v_permlane32_swap_b32", vT0, vT1)
    e.raw("s_branch L_k2_store")


def gen_loader(e, gemm):
    lane = V(0)
    ND = 4
    ACC = [[V(80, 16), V(96, 16)], [V(112, 16), V(128, 16)]]
    def HF_(s, st, t): return V(16 + ((s % ND) * 4 + st * 2 + t) * 4, 4)
    def WF(st, u): return V(144 + (st * 2 + u) * 4, 4)
    vL16 = V(1)
    vW = [V(2), V(3), V(4), V(5)]
    vTr = [V(6), V(7)]
    vX0, vX1, vX2 = V(8), V(9), V(10)
    vRw, vRr = V(11), V(12)
    e.valu("v_lshlrev_b32", vL16, 4, lane)

    def dma_KV(s):
        e.salu("s_add_u32", "m0", sLdsKV, (s % 4) * 16384)
        e.salu("s_add_u32", sT0, sKV, s * 16384)
        for i in range(4):
            e.buf_load_lds(vL16, sWS, sT0, offset=i * 1024, tag=("KV", s))

    if gemm:
        e.salu("s_mul_i32", sT0, sIdx, 37)
        e.salu("s_lshr_b32", sT0, sT0, 8)
        e.salu("s_mul_i32", sT1, sT0, 7)
        e.salu("s_sub_u32", sNt, sIdx, sT1)
        e.salu("s_lshl_b32", sMt64, sXcd, 2)
        e.salu("s_add_u32", sMt64, sMt64, sT0)
        e.valu("v_lshrrev_b32", vX0, 3, lane)
        e.valu("v_bfe_u32", vX1, lane, 2, 1)
        e.valu("v_bfe_u32", vX2, lane, 4, 1)
        e.valu("v_xor_b32", vX1, vX1, vX2)
        e.valu("v_mul_u32_u24", vW[0], 896, vX0)
        e.valu("v_lshl_add_u32", vW[0], vX1, 6, vW[0])
        e.valu("v_and_b32", vX1, 3, lane)
        e.valu("v_lshl_add_u32", vW[0], vX1, 4, vW[0])
        for i in range(1, 4):
            e.valu("v_add_u32", vW[i], i * (8 * 896 - 1024), vW[0])
        e.salu("s_lshl_b32", sLdsW, sGwv, 14)
        e.salu("s_add_u32", sLdsW, sLdsW, WR)
        e.salu("s_mul_i32", sWoff, sGwv, 448 * 896)
        e.salu("s_lshl_b32", sT0, sNt, 7)
        e.salu("s_add_u32", sWoff, sWoff, sT0)
        e.salu("s_mul_i32", sHoff, sMt64, 2 * H_MT_STRIDE)
        e.salu("s_mul_i32", sT0, sGwv, 28 * 1024)
        e.salu("s_add_u32", sHoff, sHoff, sT0)
        e.salu("s_add_u32", sHoff, sHoff, HF)
        e.salu("s_add_u32", sHoff1, sHoff, H_MT_STRIDE)
        e.valu("v_lshrrev_b32", vX1, 5, lane)
        e.valu("v_bfe_u32", vX0, lane, 2, 2)
        e.valu("v_lshl_add_u32", vX0, vX1, 2, vX0)
        e.valu("v_bfe_u32", vX2, lane, 4, 1)
        e.valu("v_lshlrev_b32", vX2, 5, vX2)
        e.valu("v_and_b32", vX1, 3, lane)
        e.valu("v_lshl_add_u32", vX2, vX1, 3, vX2)
        e.valu("v_lshl_add_u32", vX2, vX0, 7, vX2)
        e.valu("v_bfe_u32", vX1, lane, 3, 1)
        e.valu("v_lshl_add_u32", vTr[0], vX1, 6, vX2)
        e.valu("v_xor_b32", vTr[1], 64, vTr[0])
        e.valu("v_add_u32", vTr[0], sLdsW, vTr[0])
        e.valu("v_add_u32", vTr[1], sLdsW, vTr[1])
        e.valu("v_add_u32", vRw, sLdsW, vL16)
        e.salu("s_lshl_b32", sT0, sGwv, 12)
        e.salu("s_add_u32", sT0, sT0, RED)
        e.valu("v_add_u32", vRr, sT0, vL16)

    def dma_WH_ops(s):
        ops = []
        if NOWH: return ops
        def w(i):
            if i == 0:
                e.salu("s_add_u32", sT1, sWoff, s * 32 * 896)
            e.salu("s_add_u32", "m0", sLdsW, (s % ND) * 4096)
            e.nop(1) if False else None
            e.buf_load_lds(vW[i], sWd, sT1, offset=i * 1024, tag=("W", s))
        for i in range(4):
            ops.append(lambda i=i: w(i))
        def h(st, t):
            e.salu("s_add_u32", sT2, sHoff1 if t else sHoff, s * 2048)
            e.buf_load(HF_(s, st, t), vL16, sWS, sT2, offset=st * 1024)
        for st in range(2):
            for t in range(2):
                ops.append(lambda st=st, t=t: h(st, t))
        return ops

    def compute(s, side):
        e.wait_vm_tag(("W", s))
        for st in range(2):
            for u in range(2):
                for j in range(2):
                    e.ds_read("ds_read_b64_tr_b16", WF(st, u)[2 * j:2 * j + 2], vTr[u],
                              offset=(s % ND) * 4096 + st * 2048 + j * 1024)
        if side: side.pop(0)()
        for st in range(2):
            for u in range(2):
                for t in range(2):
                    if not NOMFMA:
                        e.mfma(ACC[u][t], WF(st, u), HF_(s, st, t), 0 if (s == 0 and st == 0) else None)
                    if side: side.pop(0)()

    def gjob_parts():
        parts = []
        G = V(16, 8)
        Xr = V(32, 64)
        Acc = V(96, 16)
        vTmp = V(112, 8)
        sG = S(44)
        def p_load():
            e.salu("s_sub_u32", sT0, sIdx, 28)
            e.salu("s_lshl_b32", sT1, sXcd, 2)
            e.salu("s_add_u32", sT0, sT0, sT1)
            e.salu("s_lshl_b32", sT0, sT0, 2)
            e.salu("s_add_u32", sT0, sT0, sGwv)
            e.salu("s_mul_i32", sT1, sT0, 16 * 896)
            e.salu("s_lshl_b32", sG, sT0, 7)
            e.salu("s_add_u32", sG, sG, GF)
            e.buf_load(vTmp[0:4], vL16, sGw, 0, offset=0)
            for r in range(16):
                if r % 4 == 0 and r:
                    e.salu("s_add_u32", sT1, sT1, 4 * 896)
                e.buf_load(Xr[4 * r:4 * r + 4], vL16, sX, sT1, offset=(r % 4) * 896)
        parts.append(p_load)
        parts.append(lambda: None)
        parts.append(lambda: None)
        def p_rows(r0, r1):
            if r0 == 0:
                for j in range(4):
                    e.valu("v_lshlrev_b32", G[2 * j], 16, vTmp[j])
                    e.valu("v_and_b32", G[2 * j + 1], "0xffff0000", vTmp[j])
            for r in range(r0, r1):
                for j in range(4):
                    e.valu("v_lshlrev_b32", vTmp[4], 16, Xr[4 * r + j])
                    e.valu("v_and_b32", vTmp[5], "0xffff0000", Xr[4 * r + j])
                    if j == 0:
                        e.valu("v_mul_f32", Acc[r], vTmp[4], G[0])
                    else:
                        e.valu("v_fmac_f32", Acc[r], vTmp[4], G[2 * j], dst_is_read=True)
                    e.valu("v_fmac_f32", Acc[r], vTmp[5], G[2 * j + 1], dst_is_read=True)
        for r0 in range(0, 16, 2):
            parts.append(lambda r0=r0: p_rows(r0, r0 + 2))
        def p_red1():
            e.valu("v_cmp_gt_u32", "vcc", 56, lane)
            e.valu("v_mov_b32", vTmp[4], 0)
            for r in range(16):
                e.valu("v_cndmask_b32", Acc[r], vTmp[4], Acc[r])
            for sh in (8, 4):
                for r in range(16):
                    e.valu("v_add_f32", Acc[r], Acc[r], Acc[r], extra=f"row_shr:{sh} bound_ctrl:0")
        def p_red2():
            for sh in (2, 1):
                for r in range(16):
                    e.valu("v_add_f32", Acc[r], Acc[r], Acc[r], extra=f"row_shr:{sh} bound_ctrl:0")
            for r in range(16):
                e.valu("v_add_f32", Acc[r], Acc[r], Acc[r], extra="row_bcast:15 row_mask:0xa")
        def p_fin():
            for r in range(16):
                e.valu("v_add_f32", Acc[r], Acc[r], Acc[r], extra="row_bcast:31 row_mask:0xc")
            e.valu("v_mov_b32", vTmp[0], 0)
            for r in range(16):
                e.valu("v_readlane_b32", S(48 + r), Acc[r], 63)
            e.nop(3)
            for r in range(16):
                e.valu("v_writelane_b32", vTmp[0], S(48 + r), r, dst_is_read=True)
            e.valu("v_cvt_pk_bf16_f32", vTmp[0], vTmp[0], vTmp[0])
            e.valu("v_and_b32", vTmp[0], "0xffff0000", vTmp[0])
            e.valu("v_mul_f32", vTmp[0], hex(f2u(-LOG2E)), vTmp[0])
            e.valu("v_exp_f32", vTmp[0], vTmp[0])
            e.valu("v_add_f32", vTmp[0], 1.0, vTmp[0])
            e.valu("v_rcp_f32", vTmp[0], vTmp[0])
            e.valu("v_cvt_pk_bf16_f32", vTmp[0], vTmp[0], vTmp[0])
            e.valu("v_and_b32", vTmp[2], "0xffff0000", vTmp[0])
            e.valu("v_sub_f32", vTmp[3], 1.0, vTmp[2])
            e.valu("v_cvt_pk_bf16_f32", vTmp[3], vTmp[3], vTmp[3])
            e.valu("v_and_b32", vTmp[3], "0xffff0000", vTmp[3])
            e.valu("v_lshlrev_b32", vTmp[4], 3, lane)
            e.valu("v_cmp_gt_u32", "vcc", 16, lane)
            e.nop(1)
            e.salu("s_and_saveexec_b64", sSave, "vcc")
            e.buf_store(vTmp[2:4], vTmp[4], sWS, sG, offset=0, flags=STF)
            e.salu("s_mov_b64", "exec", sSave)
        parts += [p_red1, p_red2, p_fin]
        return parts

    gparts = None
    dma_KV(2)
    if gemm:
        for f in dma_WH_ops(0): f()
    e.barrier()
    NS = 14
    LAG = 1
    for i in range(16):
        if i in (0, 4, 8, 12, 15): e.stamp(3 + (i + 1) // 4)
        if i + 3 <= 15:
            if PRIO == 1: e.raw("s_setprio 2")
            dma_KV(i + 3)
            if PRIO == 1: e.raw("s_setprio 0")
        if gemm:
            s = i - LAG
            side = []
            if i == 0:
                side += dma_WH_ops(1) + dma_WH_ops(2)
            elif s + 3 < NS:
                side += dma_WH_ops(s + 3)
            if 0 <= s < NS:
                compute(s, side)
            while side: side.pop(0)()
            if i == 14:
                e.raw("s_setprio 2")
                for u in range(2):
                    for t in range(2):
                        for j in range(4):
                            e.ds_write("ds_write_b128", vRw, ACC[u][t][4 * j:4 * j + 4],
                                       offset=(t * 2 + u) * 4096 + j * 1024)
                e.wait_lg_all()
            if i == 15:
                X = [V(16 + 16 * w, 16) for w in range(4)]
                for w in range(4):
                    for j in range(4):
                        e.ds_read("ds_read_b128", X[w][4 * j:4 * j + 4], vRr, offset=w * 16384 + j * 1024)
                for r in range(16):
                    e.valu("v_add_f32", X[0][r], X[0][r], X[1][r])
                    e.valu("v_add_f32", X[2][r], X[2][r], X[3][r])
                for r in range(16):
                    e.valu("v_add_f32", X[0][r], X[0][r], X[2][r])
                for j in range(8):
                    e.valu("v_cvt_pk_bf16_f32", X[1][j], X[0][2 * j], X[0][2 * j + 1])
                e.salu("s_lshr_b32", sT0, sGwv, 1)
                e.salu("s_lshl_b32", sT1, sMt64, 1)
                e.salu("s_add_u32", sT0, sT0, sT1)
                e.salu("s_mul_i32", sT0, sT0, 14)
                e.salu("s_and_b32", sT1, sGwv, 1)
                e.salu("s_add_u32", sT0, sT0, sT1)
                e.salu("s_lshl_b32", sT1, sNt, 1)
                e.salu("s_add_u32", sT0, sT0, sT1)
                e.salu("s_lshl_b32", sT0, sT0, 11)
                e.salu("s_add_u32", sT0, sT0, BF)
                e.buf_store(X[1][0:4], vL16, sWS, sT0, offset=0, flags=STF)
                e.buf_store(X[1][4:8], vL16, sWS, sT0, offset=1024, flags=STF)
        elif gparts:
            gparts.pop(0)()
        if i + 2 <= 15:
            e.wait_vm_tag(("KV", i + 2))
        if i < 15:
            e.barrier()
    e.stamp(9); e.stamp(13, True)
    e.dump_stamps(sWS, 1, sWave)


K2_DESC = dict(name="k2_kernel", vgpr=160, acc=160, sgpr=72, grid=256, block=768, lds=K2_LDS)
```

```python
from emit import *
from layout import *

sWS, sWo, sOut = S(4, 4), S(8, 4), S(12, 4)
sWave, sXcd, sIdx, sMt64, sNt = S(16), S(17), S(18), S(19), S(20)
sT0, sT1, sT2 = S(21), S(22), S(23)
sOoff, sWoff, sLdsW = S(24), S(25), S(26)
sU, sTt = S(27), S(28)

OL = 0
WL = 65536
K3_LDS = 65536 + 57 * 1024


def gen_k3(e):
    e.STAMP_V = 96
    e.label("k3_kernel")
    e.salu("s_cmp_ge_u32", S(2), 224)
    e.raw("s_cbranch_scc1 L_k3_end")
    e.stamp(0); e.stamp(12, True)
    e.s_load(S(44, 2), S(0, 2), 16)
    e.s_load(S(46, 2), S(0, 2), 64)
    e.s_load(S(48, 2), S(0, 2), 80)
    lane = V(0)
    vL16 = V(1)
    vW = [V(2), V(3), V(4), V(5)]
    vTr, vOr = V(6), V(7)
    vX0, vX1, vX2 = V(8), V(9), V(10)
    vSt = V(11)
    vG = V(12, 2)
    Bv = V(16, 8)
    ACC = V(32, 16)
    T = V(48, 16)
    NB = 4
    def OFr(k): return V(64 + (k % NB) * 4, 4)
    def WFr(k): return V(80 + (k % NB) * 4, 4)
    e.salu("s_and_b32", sXcd, S(2), 7)
    e.salu("s_lshr_b32", sIdx, S(2), 3)
    e.salu("s_mul_i32", sT0, sIdx, 37)
    e.salu("s_lshr_b32", sT0, sT0, 8)
    e.salu("s_mul_i32", sT1, sT0, 7)
    e.salu("s_sub_u32", sNt, sIdx, sT1)
    e.salu("s_lshl_b32", sMt64, sXcd, 2)
    e.salu("s_add_u32", sMt64, sMt64, sT0)
    e.valu("v_lshrrev_b32", V(1), 6, V(0))
    e.valu("v_and_b32", V(0), 63, V(0))
    e.valu("v_readfirstlane_b32", sWave, V(1))
    e.valu("v_lshlrev_b32", vL16, 4, lane)
    e.valu("v_lshrrev_b32", vX0, 3, lane)
    e.valu("v_bfe_u32", vX1, lane, 2, 1)
    e.valu("v_bfe_u32", vX2, lane, 4, 1)
    e.valu("v_xor_b32", vX1, vX1, vX2)
    e.valu("v_mul_u32_u24", vW[0], 896, vX0)
    e.valu("v_lshl_add_u32", vW[0], vX1, 6, vW[0])
    e.valu("v_and_b32", vX1, 3, lane)
    e.valu("v_lshl_add_u32", vW[0], vX1, 4, vW[0])
    for i in range(1, 4):
        e.valu("v_add_u32", vW[i], i * (8 * 896 - 1024), vW[0])
    sRole = S(31)
    e.salu("s_lshr_b32", sRole, sWave, 2)
    e.salu("s_and_b32", sWave, sWave, 3)
    e.salu("s_and_b32", sU, sWave, 1)
    e.salu("s_lshr_b32", sTt, sWave, 1)
    e.salu("s_lshl_b32", sOoff, sMt64, 16)
    e.salu("s_lshl_b32", sT0, sTt, 15)
    e.salu("s_lshl_b32", sT1, sU, 12)
    e.salu("s_add_u32", sT0, sT0, sT1)
    sLdsO = S(29)
    e.salu("s_mov_b32", sLdsO, sT0)
    e.salu("s_add_u32", sOoff, sOoff, sT0)
    e.salu("s_add_u32", sOoff, sOoff, OF)
    e.salu("s_mul_i32", sWoff, sWave, 32 * 896)
    e.salu("s_lshl_b32", sT0, sNt, 7)
    e.salu("s_add_u32", sWoff, sWoff, sT0)
    e.salu("s_lshl_b32", sLdsW, sWave, 12)
    e.salu("s_add_u32", sLdsW, sLdsW, WL)
    e.wait_lg_all()

    def srd(s, lo, size):
        if s is sWS and WS_BASE:
            e.salu("s_add_u32", s[0], S(lo), WS_BASE)
            e.salu("s_addc_u32", s[1], S(lo + 1), 0)
        else:
            e.salu("s_mov_b32", s[0], S(lo))
            e.salu("s_mov_b32", s[1], S(lo + 1))
        e.salu("s_mov_b32", s[2], size)
        e.salu("s_mov_b32", s[3], "0x20000")
    srd(sWS, 48, WS_USED)
    srd(sWo, 44, 448 * 896)
    srd(sOut, 46, 2048 * 896)

    def dma_O(c):
        e.salu("s_add_u32", "m0", sLdsO, c * 8192)
        e.salu("s_add_u32", sT0, sOoff, c * 8192)
        for i in range(4):
            e.buf_load_lds(vL16, sWS, sT0, offset=i * 1024, tag=("C", c))

    def dma_W(q):
        e.salu("s_add_u32", "m0", sLdsW, q * 16384)
        e.salu("s_add_u32", sT0, sWoff, q * 128 * 896)
        for i in range(4):
            e.buf_load_lds(vW[i], sWo, sT0, offset=i * 1024, tag=("C", q))

    e.salu("s_cmp_eq_u32", sRole, 0)
    e.raw("s_cbranch_scc1 L_k3_comp")
    dma_W(0); dma_O(0); dma_W(1); dma_O(1)
    for c in range(4):
        e.wait_vm_tag(("C", c))
        e.barrier()
        if c + 2 < 4:
            dma_W(c + 2); dma_O(c + 2)
    e.raw("s_endpgm")
    e.label("L_k3_comp")
    e.vm = []
    e.salu("s_lshl_b32", sT0, sMt64, 1)
    e.salu("s_add_u32", sT0, sT0, sTt)
    e.salu("s_mul_i32", sT1, sT0, 14)
    e.salu("s_add_u32", sT1, sT1, sU)
    e.salu("s_lshl_b32", sT2, sNt, 1)
    e.salu("s_add_u32", sT1, sT1, sT2)
    e.salu("s_lshl_b32", sT1, sT1, 11)
    e.salu("s_add_u32", sT1, sT1, BF)
    e.buf_load(Bv[0:4], vL16, sWS, sT1, offset=0)
    e.buf_load(Bv[4:8], vL16, sWS, sT1, offset=1024)
    e.valu("v_and_b32", vX0, 31, lane)
    e.valu("v_lshlrev_b32", vX1, 3, vX0)
    e.salu("s_lshl_b32", sT1, sT0, 8)
    e.salu("s_add_u32", sT1, sT1, GF)
    e.buf_load(vG, vX1, sWS, sT1, offset=0)
    e.valu("v_mul_u32_u24", vSt, 896, vX0)
    e.valu("v_lshrrev_b32", vX1, 5, lane)
    e.valu("v_lshl_add_u32", vSt, vX1, 4, vSt)
    sSt = S(30)
    e.salu("s_mul_i32", sSt, sT0, 32 * 896)
    e.salu("s_add_u32", sT2, sT2, sU)
    e.salu("s_lshl_b32", sT2, sT2, 6)
    e.salu("s_add_u32", sSt, sSt, sT2)
    e.valu("v_bfe_u32", vX0, lane, 2, 2)
    e.valu("v_lshl_add_u32", vX0, vX1, 2, vX0)
    e.valu("v_bfe_u32", vX2, lane, 4, 1)
    e.valu("v_lshlrev_b32", vX2, 5, vX2)
    e.valu("v_and_b32", vX1, 3, lane)
    e.valu("v_lshl_add_u32", vX2, vX1, 3, vX2)
    e.valu("v_lshl_add_u32", vX2, vX0, 7, vX2)
    e.valu("v_bfe_u32", vX1, lane, 3, 1)
    e.valu("v_xor_b32", vX1, sU, vX1)
    e.valu("v_lshl_add_u32", vTr, vX1, 6, vX2)
    e.valu("v_add_u32", vTr, WL, vTr)
    e.salu("s_lshl_b32", sT0, sTt, 15)
    e.valu("v_add_u32", vOr, sT0, vL16)

    def rd(k):
        hd, s = k // 2, k % 2
        e.ds_read("ds_read_b128", OFr(k), vOr, offset=k * 1024, tag=("k", k))
        for j in range(2):
            e.ds_read("ds_read_b64_tr_b16", WFr(k)[2 * j:2 * j + 2], vTr, offset=(28 * hd + 16 * s + 8 * j) * 128, tag=("k", k))

    for c in range(4):
        e.stamp(1 + 2 * c)
        e.barrier()
        e.stamp(2 + 2 * c)
        ks = list(range(8 * c, 8 * c + 8))
        for k in ks[:NB - 1]:
            rd(k)
        for n, k in enumerate(ks):
            if n + NB - 1 < 8:
                rd(ks[n + NB - 1])
            e.wait_lg_tag(("k", k))
            e.mfma(ACC, WFr(k), OFr(k), 0 if k == 0 else None)
    e.stamp(9)
    for j in range(8):
        e.valu("v_lshlrev_b32", T[2 * j], 16, Bv[j])
        e.valu("v_and_b32", T[2 * j + 1], "0xffff0000", Bv[j])
    for r in range(16):
        e.valu("v_mul_f32", T[r], T[r], vG[1])
    for r in range(16):
        e.valu("v_fmac_f32", T[r], ACC[r], vG[0], dst_is_read=True)
    for j in range(8):
        e.valu("v_cvt_pk_bf16_f32", Bv[j], T[2 * j], T[2 * j + 1])
    for kk in range(2):
        e.valu("v_permlane32_swap_b32", Bv[4 * kk], Bv[4 * kk + 2])
        e.valu("v_permlane32_swap_b32", Bv[4 * kk + 1], Bv[4 * kk + 3])
        e.buf_store(Bv[4 * kk:4 * kk + 4], vSt, sOut, sSt, offset=kk * 32)
    e.stamp(10)
    if Emitter.STAMPS:
        e.wait_vm_all()
    e.stamp(11); e.stamp(13, True)
    e.dump_stamps(sWS, 1, sWave)
    e.label("L_k3_end")
    e.raw("s_endpgm")


K3_DESC = dict(name="k3_kernel", vgpr=(100 if os.environ.get('STAMPS') else 96), acc=(100 if os.environ.get('STAMPS') else 96), sgpr=56, grid=224, block=512, lds=65536 + 65536)
```

```python
MB = 1 << 20
QF = 0
KVF = 2 * MB
HF = 6 * MB
H_MT_STRIDE = 112 * 1024
BF = 14 * MB
OF = 16 * MB
GF = 18 * MB
import os
WS_USED = (24 if os.environ.get('STAMPS') else 19) * MB
WS_BASE = int(os.environ.get('WS_BASE', '0')) * MB
```

```python
s = open("v_e.s").read()
def mk(name, regions, store=False):
    b = "k0_kernel:\n    s_cmp_ge_u32 s2, 256\n    s_cbranch_scc1 L_k0_end\n"
    b += "    s_lshl_b32 s3, s2, 8\n    v_add_u32 v1, s3, v0\n    v_lshlrev_b32 v1, 7, v1\n    v_mov_b32 v2, 0\n"
    for i, (off, n) in enumerate(regions):
        b += f"    s_load_dwordx2 s[8:9], s[0:1], {off}\n    s_waitcnt lgkmcnt(0)\n    s_mov_b32 s4, s8\n    s_mov_b32 s5, s9\n    s_mov_b32 s6, {n}\n    s_mov_b32 s7, 0x20000\n"
        for j in range((n + (8 << 20) - 1) // (8 << 20)):
            b += f"    s_mov_b32 s10, {j * (8 << 20)}\n"
            if store: b += f"    buffer_store_dword v2, v1, s[4:7], s10 offen sc1\n"
            else: b += f"    buffer_load_dword v{3 + i}, v1, s[4:7], s10 offen\n"
    b += "    s_waitcnt vmcnt(0)\nL_k0_end:\n    s_endpgm\n"
    lines = s.split("\n")
    idx = [i for i, l in enumerate(lines) if l.startswith("; @launch")]
    lines.insert(idx[0], "; @launch kernel=k0_kernel grid=(256,1,1) block=(256,1,1) lds=0")
    t = "\n".join(lines)
    t = t.replace('L_code_end:\n.section .rodata,"a"', 'L_code_end:\n.globl k0_kernel\n.p2align 8\n.type k0_kernel,@function\n' + b + '.section .rodata,"a"\n.p2align 6\n.amdhsa_kernel k0_kernel\n  .amdhsa_next_free_vgpr 16\n  .amdhsa_next_free_sgpr 16\n  .amdhsa_accum_offset 16\n  .amdhsa_group_segment_fixed_size 0\n  .amdhsa_kernarg_size 88\n  .amdhsa_user_sgpr_count 2\n  .amdhsa_user_sgpr_kernarg_segment_ptr 1\n  .amdhsa_system_sgpr_workgroup_id_x 1\n.end_amdhsa_kernel\n', 1)
    open(name, "w").write(t)
inputs = [(0, 2048*896), (8, 448*2688), (16, 448*896), (32, 448*3584), (40, 448*3584), (48, 1792*896)]
mk("w_none.s", [])
mk("w_in.s", inputs)
mk("w_wsr.s", [(80, 19 << 20)])
mk("w_all.s", inputs + [(80, 19 << 20), (64, 2048*896)])
def mk2(name, regions, shift):
    b = "k0_kernel:\n    s_cmp_ge_u32 s2, 256\n    s_cbranch_scc1 L_k0_end\n"
    b += f"    v_lshlrev_b32 v1, {shift}, v0\n"
    for i, (off, n) in enumerate(regions):
        b += f"    s_load_dwordx2 s[8:9], s[0:1], {off}\n    s_waitcnt lgkmcnt(0)\n    s_mov_b32 s4, s8\n    s_mov_b32 s5, s9\n    s_mov_b32 s6, {n}\n    s_mov_b32 s7, 0x20000\n"
        step = 256 << shift
        for j in range((n + step - 1) // step):
            b += f"    s_mov_b32 s10, {j * step}\n    buffer_load_dword v{3 + i}, v1, s[4:7], s10 offen\n"
    b += "    s_waitcnt vmcnt(0)\nL_k0_end:\n    s_endpgm\n"
    lines = s.split("\n")
    idx = [i for i, l in enumerate(lines) if l.startswith("; @launch")]
    lines.insert(idx[0], "; @launch kernel=k0_kernel grid=(256,1,1) block=(256,1,1) lds=0")
    t = "\n".join(lines)
    t = t.replace('L_code_end:\n.section .rodata,"a"', 'L_code_end:\n.globl k0_kernel\n.p2align 8\n.type k0_kernel,@function\n' + b + '.section .rodata,"a"\n.p2align 6\n.amdhsa_kernel k0_kernel\n  .amdhsa_next_free_vgpr 16\n  .amdhsa_next_free_sgpr 16\n  .amdhsa_accum_offset 16\n  .amdhsa_group_segment_fixed_size 0\n  .amdhsa_kernarg_size 88\n  .amdhsa_user_sgpr_count 2\n  .amdhsa_user_sgpr_kernarg_segment_ptr 1\n  .amdhsa_system_sgpr_workgroup_id_x 1\n.end_amdhsa_kernel\n', 1)
    open(name, "w").write(t)
mk2("w_tlb17.s", [(80, 19 << 20)], 17)
mk2("w_tlball.s", inputs + [(80, 19 << 20), (64, 2048*896)], 17)
mk("w_wsw.s", [(80, 19 << 20)], store=True)
```

```python
from emit import *
from layout import *
import os
import struct

ROT1 = int(os.environ.get('ROT1', '1'))
TOUCH1 = int(os.environ.get('TOUCH1', '4'))
STF = os.environ.get('STF', ' sc1')
STF0 = os.environ.get('STF0', STF)
WBL2 = int(os.environ.get('WBL2', '0'))
CODE_CHUNKS = 6
SAFE1 = eval(os.environ.get('SAFE1', '(2, 3)'))
EB1 = int(os.environ.get('EB1', '3'))
LPRIO = int(os.environ.get('LPRIO', '99'))
CPRIO = int(os.environ.get('CPRIO', '0'))

LOG2E = 1.4426950408889634
QSCALE = (28 ** -0.5) * LOG2E


def f2u(x):
    return struct.unpack("<I", struct.pack("<f", x))[0]


sX, sWg, sWu, sWq, sWS = S(4, 4), S(8, 4), S(12, 4), S(16, 4), S(20, 4)
sWd, sGw = S(64, 4), S(60, 4)
sWave, sMblk, sCg = S(24), S(25), S(26)
sW4 = S(28)
sT0, sT1, sT2 = S(32), S(33), S(31)
sRot = S(46)

BR = 114688
K1_LDS = 163840
vX0, vX1, vX2, vLane = V(250), V(251), V(252), V(253)
vLane16 = V(254)


def gen_k1(e):
    e.label("k1_kernel")
    e.salu("s_cmp_ge_u32", S(2), 256)
    e.raw("s_cbranch_scc1 L_k1_end")
    e.stamp(0); e.stamp(12, True)
    e.s_load(S(48, 4), S(0, 2), 0)
    e.s_load(S(52, 8), S(0, 2), 32)
    e.s_load(S(68, 2), S(0, 2), 80)
    e.salu("s_and_b32", sT0, S(2), 7)
    e.salu("s_lshr_b32", sT1, S(2), 3)
    e.salu("s_and_b32", sMblk, sT0, 1)
    e.salu("s_lshl_b32", sMblk, sMblk, 3)
    e.salu("s_and_b32", sRot, sT1, 7)
    e.salu("s_add_u32", sMblk, sMblk, sRot)
    e.salu("s_lshr_b32", sT0, sT0, 1)
    e.salu("s_lshr_b32", sT1, sT1, 3)
    e.salu("s_lshl_b32", sCg, sT0, 2)
    e.salu("s_lshr_b32", sT2, sT0, 1)
    e.salu("s_sub_u32", sCg, sCg, sT2)
    e.salu("s_add_u32", sCg, sCg, sT1)
    e.salu("s_add_u32", sT2, sT2, 14)
    e.salu("s_and_b32", sT0, sT0, 1)
    e.salu("s_add_u32", sT0, sT0, sT1)
    e.salu("s_cmp_eq_u32", sT0, 4)
    e.salu("s_cselect_b32", sCg, sT2, sCg)
    if ROT1:
        e.salu("s_lshl_b32", sT1, sT1, 1)
        e.salu("s_add_u32", sRot, sRot, sT1)
        e.salu("s_sub_u32", sT0, sRot, 7)
        e.salu("s_cmp_ge_u32", sRot, 7)
        e.salu("s_cselect_b32", sRot, sT0, sRot)
    else:
        e.salu("s_mov_b32", sRot, 0)
    e.valu("v_lshrrev_b32", vX0, 6, V(0))
    e.valu("v_and_b32", vLane, 63, V(0))
    e.valu("v_readfirstlane_b32", sWave, vX0)
    e.valu("v_lshlrev_b32", vLane16, 4, vLane)
    e.salu("s_and_b32", sW4, sWave, 3)
    e.salu("s_cmp_lt_u32", sWave, 4)
    e.raw("s_cbranch_scc1 L_k1_compute")
    saved = list(e.lg)
    e.raw("s_setprio 3")
    e.salu("s_cmp_ge_u32", sCg, 14)
    e.raw("s_cbranch_scc1 L_k1_loadB")
    e.flush_hazards()
    gen_loader(e, False)
    e.raw("s_endpgm")
    e.label("L_k1_loadB")
    e.lg, e.vm, e.last, e.smem_pending = list(saved), [], {}, True
    gen_loader(e, True)
    e.raw("s_endpgm")
    e.label("L_k1_compute")
    e.lg, e.vm, e.last, e.smem_pending = list(saved), [], {}, True
    e.salu("s_cmp_ge_u32", sCg, 14)
    e.raw("s_cbranch_scc1 L_k1_compB")
    gen_compute(e, False)
    e.raw("s_endpgm")
    e.label("L_k1_compB")
    e.lg, e.vm, e.last, e.smem_pending = list(saved), [], {}, True
    gen_compute(e, True)
    e.label("L_k1_end")
    e.raw("s_endpgm")


def srd(e, s, lo, size):
    if s is sWS and WS_BASE:
        e.salu("s_add_u32", s[0], S(lo), WS_BASE)
        e.salu("s_addc_u32", s[1], S(lo + 1), 0)
    else:
        e.salu("s_mov_b32", s[0], S(lo))
        e.salu("s_mov_b32", s[1], S(lo + 1))
    e.salu("s_mov_b32", s[2], size)
    e.salu("s_mov_b32", s[3], "0x20000")


def gen_loader(e, typeB):
    tb = int(typeB)
    lane = vLane
    ldw = 2688 if typeB else 3584
    srdP = [sWq, sWq] if typeB else [sWg, sWu]
    vA = [V(1), V(2), V(3), V(4)]
    vB = [V(5), V(6)]
    vB2 = vB if typeB else [V(7), V(8)]
    vT = V(9)
    vGa = V(13)
    vG = V(16, 7)
    sAoff, sB0, sB1, sQo = S(27), S(29), S(30), S(34)
    sLA, sLB = S(35), S(36)
    sCh = [S(37 + i) for i in range(7)]
    e.valu("v_lshrrev_b32", vX0, 3, lane)
    e.valu("v_and_b32", vX1, 7, lane)
    e.valu("v_lshrrev_b32", vX2, 1, vX0)
    e.valu("v_xor_b32", vX2, vX2, vX1)
    e.valu("v_mul_u32_u24", vA[0], 896, vX0)
    e.valu("v_lshl_add_u32", vA[0], vX2, 4, vA[0])
    e.valu("v_xor_b32", vA[1], 64, vA[0])
    e.valu("v_add_u32", vA[2], 2 * 6144, vA[0])
    e.valu("v_add_u32", vA[3], 3 * 6144, vA[1])
    e.valu("v_add_u32", vA[1], 6144, vA[1])
    e.valu("v_bfe_u32", vX1, lane, 2, 1)
    e.valu("v_bfe_u32", vX2, lane, 4, 1)
    e.valu("v_xor_b32", vX1, vX1, vX2)
    e.valu("v_and_b32", vX2, 3, lane)
    for vv, l_, us in ((vB, ldw, 56 if typeB else 64),) + (() if typeB else ((vB2, 2688, 56),)):
        e.valu("v_mul_u32_u24", vv[0], l_, vX0)
        e.valu("v_mul_u32_u24", vv[1], us, vX1)
        e.valu("v_add_u32", vv[0], vv[0], vv[1])
        e.valu("v_lshl_add_u32", vv[0], vX2, 4, vv[0])
        e.valu("v_add_u32", vv[1], 8 * l_ - 1024, vv[0])
    e.salu("s_lshl_b32", sT0, sMblk, 2)
    e.salu("s_add_u32", sT0, sT0, sW4)
    e.salu("s_mul_i32", sAoff, sT0, 32 * 896)
    e.salu("s_mul_i32", sT0, sW4, 16 * ldw)
    if not typeB:
        e.salu("s_lshl_b32", sB0, sCg, 8)
        e.salu("s_add_u32", sB0, sB0, sT0)
        e.salu("s_mov_b32", sB1, sB0)
        pstep = 128
        e.salu("s_mul_i32", sQo, sCg, 112)
    else:
        e.salu("s_sub_u32", sT1, sCg, 14)
        e.salu("s_mul_i32", sB0, sT1, 448)
        e.salu("s_add_u32", sB0, sB0, sT0)
        e.salu("s_add_u32", sB0, sB0, 896 * 2)
        e.salu("s_add_u32", sB1, sB0, 112)
        pstep = 224
        e.salu("s_mul_i32", sQo, sCg, 112)
    e.salu("s_mul_i32", sT0, sW4, 16 * 2688)
    e.salu("s_add_u32", sQo, sQo, sT0)
    e.salu("s_lshl_b32", sLA, sW4, 12)
    e.salu("s_lshl_b32", sLB, sW4, 11)
    e.salu("s_add_u32", sLB, sLB, BR)
    e.salu("s_mov_b32", sCh[0], sRot)
    for c in range(1, 7):
        e.salu("s_add_u32", sCh[c], sCh[c - 1], 1)
        e.salu("s_cmp_eq_u32", sCh[c], 7)
        e.salu("s_cselect_b32", sCh[c], 0, sCh[c])
    e.wait_lg_all()
    srd(e, sX, 48, 2048 * 896)
    if not typeB:
        srd(e, sWg, 52, 448 * 3584)
        srd(e, sWu, 54, 448 * 3584)
    srd(e, sWq, 50, 448 * 2688)

    def dmaA(c):
        e.salu("s_lshl_b32", sT0, sCh[c], 7)
        e.salu("s_add_u32", "m0", sLA, c * 16384)
        e.salu("s_add_u32", sT0, sT0, sAoff)
        for i in range(4):
            e.buf_load_lds(vA[i], sX, sT0, offset=i * 1024, tag=("C", c))

    def dmaB(n):
        sl = (n % 3) * 16384
        if n < 14:
            p, c = n // 7, n % 7
            e.salu("s_mul_i32", sT1, sCh[c], 64 * ldw)
            if p: e.salu("s_add_u32", sT1, sT1, pstep)
            for r in range(2):
                e.salu("s_add_u32", "m0", sLB, sl + r * 8192)
                e.salu("s_add_u32", sT0, (sB0, sB1)[r], sT1)
                for i in range(2):
                    e.buf_load_lds(vB[i], srdP[r], sT0, offset=i * 1024, tag=("C", n))
        else:
            for r in range(2):
                c = 2 * (n - 14) + r
                if c < 7:
                    e.salu("s_mul_i32", sT1, sCh[c], 64 * 2688)
                    e.salu("s_add_u32", "m0", sLB, sl + r * 8192)
                    e.salu("s_add_u32", sT0, sQo, sT1)
                    for i in range(2):
                        e.buf_load_lds(vB2[i], sWq, sT0, offset=i * 1024, tag=("C", n))

    def land(n):
        e.wait_vm_tag(("C", n))
        if typeB and n >= 14:
            e.raw("s_mov_b64 exec, 0xffff")
            for r in range(2):
                c = 2 * (n - 14) + r
                if c < 7:
                    e.ds_write("ds_write_b16", vGa, vG[c], offset=(n % 3) * 16384 + r * 8192)
            e.raw("s_mov_b64 exec, -1")
            e.wait_lg_all()

    e.stamp(1)
    dmaA(0); dmaB(0); dmaA(1); dmaB(1)
    e.stamp(2)
    srd(e, sWd, 56, 1792 * 896)
    if Emitter.STAMPS:
        srd(e, sWS, 68, WS_USED)
    if typeB:
        e.salu("s_mov_b32", S(62), 896)
        e.salu("s_mov_b32", S(60), S(58))
        e.salu("s_mov_b32", S(61), S(59))
        e.salu("s_mov_b32", S(63), "0x20000")
    land(0)
    e.stamp(3)
    e.barrier()
    for n in range(17):
        if n == LPRIO: e.raw("s_setprio 0")
        if n + 2 < 7:
            dmaA(n + 2)
        if n + 2 < 18:
            dmaB(n + 2)
        if n == 5 and (TOUCH1 & 1):
            sTS, sTo = S(44, 4), S(70 if not Emitter.STAMPS else 98)
            e.salu("s_mov_b32", sTS[3], "0x20000")
            e.salu("s_and_b32", sT0, sMblk, 7)
            e.salu("s_mul_i32", sT0, sT0, 56)
            e.salu("s_lshl_b32", sT1, sW4, 4)
            e.salu("s_sub_u32", sT0, sT0, sT1)
            e.valu("v_min_u32", vX0, 55, lane)
            e.valu("v_mul_u32_u24", vT, ldw, vX0)
            e.salu("s_mul_i32", sT1, sT0, ldw)
            e.salu("s_add_u32", sT1, sT1, pstep)
            e.salu("s_add_u32", sTo, sT1, sB0)
            for i in range(3): e.salu("s_mov_b32", sTS[i], srdP[0][i])
            e.salu("s_cmp_eq_u32", sW4, 0)
            e.raw(f"s_cbranch_scc1 L_k1_tE{tb}")
            e.salu("s_add_u32", sTo, sT1, sB1)
            if typeB: e.salu("s_add_u32", sTo, sTo, 116)
            for i in range(3): e.salu("s_mov_b32", sTS[i], srdP[1][i])
            e.salu("s_cmp_eq_u32", sW4, 1)
            e.raw(f"s_cbranch_scc1 L_k1_tE{tb}")
            e.valu("v_mul_u32_u24", vT, 2688, vX0)
            e.salu("s_mul_i32", sT1, sT0, 2688)
            e.salu("s_add_u32", sTo, sT1, sQo)
            e.salu("s_and_b32", sT1, sW4, 1)
            e.salu("s_mul_i32", sT1, sT1, 116)
            e.salu("s_add_u32", sTo, sTo, sT1)
            for i in range(3): e.salu("s_mov_b32", sTS[i], sWq[i])
            e.label(f"L_k1_tE{tb}")
            e.last = {}
            e.buf_load(V(10), vT, sTS, sTo, offset=0)
        if n == 6 and (TOUCH1 & 8):
            e.raw("s_getpc_b64 s[44:45]")
            e.label(f"L_k1_pc{tb}")
            e.salu("s_lshr_b32", sT0, S(2), 3)
            e.salu("s_lshl_b32", sT0, sT0, 2)
            e.salu("s_add_u32", sT0, sT0, sW4)
            e.salu("s_lshl_b32", sT0, sT0, 9)
            e.raw(f"s_sub_u32 s44, s44, L_k1_pc{tb}-k1_kernel")
            e.raw("s_subb_u32 s45, s45, 0")
            e.valu("v_and_b32", vX0, 3, lane)
            e.valu("v_lshlrev_b32", vX0, 7, vX0)
            e.valu("v_add_u32", vX0, sT0, vX0)
            e.raw(f"v_min_u32 {vX0}, L_code_end-k1_kernel-4, {vX0}")
            e.raw(f"v_mov_b32 {vX2}, s45")
            e.raw(f"v_add_co_u32 {vX0}, vcc, s44, {vX0}")
            e.raw("s_nop 1")
            e.raw(f"v_addc_co_u32 {vX1}, vcc, 0, {vX2}, vcc")
            e.raw(f"global_load_dword v11, v[{vX0.lo}:{vX1.lo}], off")
            e.vm.append((-1, set(), "code"))
        if n == 8 and typeB:
            e.valu("v_and_b32", vX0, 15, lane)
            e.valu("v_lshlrev_b32", vX1, 1, vX0)
            e.salu("s_lshl_b32", sT0, sW4, 5)
            for c in range(7):
                e.salu("s_lshl_b32", sT2, sCh[c], 7)
                e.salu("s_add_u32", sT2, sT2, sT0)
                e._issue(f"buffer_load_ushort {vG[c]}, {vX1}, {sGw}, {sT2} offen", "vmem", vX1.regs() + sGw.regs() + sT2.regs(), vG[c].regs())
                e.vm.append((-1, set(vG[c].regs()), "gw"))
            e.valu("v_lshlrev_b32", vGa, 7, vX0)
            e.valu("v_bfe_u32", vX1, lane, 1, 1)
            e.valu("v_lshl_add_u32", vGa, vX1, 6, vGa)
            e.valu("v_add_u32", vGa, sLB, vGa)
            e.valu("v_add_u32", vGa, 56, vGa)
        land(n + 1)
        if WBL2 and n == 16:
            e.salu("s_lshr_b32", sT0, S(2), 3)
            e.salu("s_add_u32", sT0, sT0, sW4)
            e.salu("s_cmp_lg_u32", sT0, 0)
            e.raw(f"s_cbranch_scc1 L_k1_wb{tb}")
            e.raw("buffer_wbl2 sc1")
            e.label(f"L_k1_wb{tb}")
        if n == 16 and (TOUCH1 & 4):
            if TOUCH1 & 32:
                e.salu("s_lshr_b32", sT0, S(2), 3)
                e.salu("s_mul_i32", sT0, sT0, 392 * 128)
                e.salu("s_mul_i32", sT1, sW4, 98 * 128)
                e.salu("s_add_u32", sT0, sT0, sT1)
                e.valu("v_min_u32", vX0, 48, lane)
                e.valu("v_lshlrev_b32", vX0, 7, vX0)
                e.buf_load(V(12), vX0, sWd, sT0, offset=0)
                e.salu("s_add_u32", sT0, sT0, 49 * 128)
                e.buf_load(V(14), vX0, sWd, sT0, offset=0)
            else:
                e.salu("s_mul_i32", sT0, S(2), 49 * 128)
                e.salu("s_mul_i32", sT1, sW4, 13 * 128)
                e.salu("s_add_u32", sT0, sT0, sT1)
                e.valu("v_min_u32", vX0, 12, lane)
                e.valu("v_lshlrev_b32", vX0, 7, vX0)
                e.buf_load(V(12), vX0, sWd, sT0, offset=0)
        F0 = int(os.environ.get("F0", "7"))
        if F0 <= n < F0 + 4: e.stamp(4 + 2 * (n - F0))
        e.barrier()
        if F0 <= n < F0 + 3: e.stamp(5 + 2 * (n - F0))
    e.stamp(11); e.stamp(13, True)
    e.dump_stamps(sWS, 0, sWave)


def gen_compute(e, typeB):
    tb = int(typeB)
    lane = vLane
    sWm, sWn, sMt = S(27), S(29), S(30)
    sOut0, sOutQK, sQKstr, sQKmul, sNL2E = S(35), S(36), S(37), S(38), S(39)
    sMask = S(40, 2)
    vAr = [[V(232 + i) for i in range(4)], [V(236 + i) for i in range(4)]]
    vTr = V(240)
    vMulHi, vVconst = V(241), V(242)
    TT = 220
    def ACC(p, r, t):
        if p == 2: return V(128 + 16 * t, 16)
        return V(64 * p + 32 * r + 16 * t, 16)
    NBUF = 3
    def fA(n, t): return V(160 + (n % NBUF) * 16 + t * 4, 4)
    def fB(n, i): return V(160 + (n % NBUF) * 16 + 8 + i * 4, 4)
    e.salu("s_lshr_b32", sWm, sW4, 1)
    e.salu("s_and_b32", sWn, sW4, 1)
    e.salu("s_lshl_b32", sMt, sMblk, 1)
    e.salu("s_add_u32", sMt, sMt, sWm)
    e.salu("s_lshl_b32", sMt, sMt, 1)
    e.valu("v_and_b32", vX0, 31, lane)
    e.valu("v_lshrrev_b32", vX1, 5, lane)
    e.valu("v_bfe_u32", vX2, lane, 1, 3)
    e.valu("v_xor_b32", vX2, vX2, vX1)
    e.valu("v_lshlrev_b32", vX0, 7, vX0)
    e.salu("s_lshl_b32", sT0, sWm, 13)
    e.valu("v_add_u32", vX0, sT0, vX0)
    for k in range(4):
        e.valu("v_xor_b32", vAr[0][k], 2 * k, vX2)
        e.valu("v_lshl_add_u32", vAr[0][k], vAr[0][k], 4, vX0)
        e.valu("v_add_u32", vAr[1][k], 65536, vAr[0][k])
    e.valu("v_bfe_u32", vX0, lane, 2, 2)
    e.valu("v_lshl_add_u32", vX0, vX1, 3, vX0)
    e.valu("v_bfe_u32", vX2, lane, 4, 1)
    e.valu("v_lshlrev_b32", vX2, 5, vX2)
    e.valu("v_and_b32", vX1, 3, lane)
    e.valu("v_lshl_add_u32", vX2, vX1, 3, vX2)
    e.valu("v_lshl_add_u32", vX2, vX0, 7, vX2)
    e.valu("v_bfe_u32", vX1, lane, 3, 1)
    e.valu("v_xor_b32", vX1, sWn, vX1)
    e.valu("v_lshl_add_u32", vTr, vX1, 6, vX2)
    e.valu("v_add_u32", vTr, BR, vTr)
    e.salu("s_mov_b32", sNL2E, hex(f2u(-LOG2E)))
    e.salu("s_lshl_b32", sT2, sCg, 1)
    e.salu("s_add_u32", sT2, sT2, sWn)
    if not typeB:
        e.salu("s_mul_i32", sOut0, sMt, H_MT_STRIDE)
        e.salu("s_lshl_b32", sT1, sCg, 13)
        e.salu("s_add_u32", sOut0, sOut0, sT1)
        e.salu("s_lshl_b32", sT1, sWn, 11)
        e.salu("s_add_u32", sOut0, sOut0, sT1)
        e.salu("s_add_u32", sOut0, sOut0, HF)
    else:
        e.salu("s_sub_u32", sT1, sCg, 14)
        e.salu("s_lshl_b32", sT0, sT1, 3)
        e.salu("s_add_u32", sT0, sT0, sWn)
        e.salu("s_lshl_b32", sT0, sT0, 6)
        e.salu("s_add_u32", sT0, sT0, sMt)
        e.salu("s_lshl_b32", sOut0, sT0, 12)
        e.salu("s_add_u32", sOut0, sOut0, KVF + 2048)
    e.salu("s_and_b32", sT1, sT2, 15)
    e.salu("s_lshl_b32", sT1, sT1, 6)
    e.salu("s_add_u32", sT1, sT1, sMt)
    e.salu("s_cmp_lt_u32", sT2, 16)
    e.salu("s_cselect_b32", sQKstr, 11, 12)
    e.salu("s_cselect_b32", sOutQK, QF, KVF)
    e.salu("s_cselect_b32", sQKmul, hex(f2u(QSCALE)), 1.0)
    e.salu("s_lshl_b32", sQKstr, 1, sQKstr)
    e.salu("s_mul_i32", sT1, sT1, sQKstr)
    e.salu("s_add_u32", sOutQK, sOutQK, sT1)
    e.valu("v_cmp_gt_u32", "vcc", 32, lane)
    e.valu("v_mov_b32", vX0, sQKmul)
    e.valu("v_mov_b32", vX1, 0)
    e.valu("v_cndmask_b32", vMulHi, vX1, vX0)
    if typeB:
        e.valu("v_and_b32", vX0, 31, lane)
        e.valu("v_cmp_eq_u32", "vcc", 28, vX0)
        e.valu("v_mov_b32", vX2, "0x3f803f80")
        e.valu("v_cndmask_b32", vVconst, vX1, vX2)
        e.valu("v_cmp_le_u32", sMask, 28, vX0)
    e.wait_lg_all()
    srd(e, sWS, 68, WS_USED)

    def store_pair(src8, soff, off):
        for s_ in range(2):
            e.buf_store(src8[4 * s_:4 * s_ + 4], vLane16, sWS, soff, offset=off + s_ * 1024, flags=STF)

    def epi_h(p):
        ops = []
        for t in range(2):
            G, U = ACC(p, 0, t), ACC(p, 1, t)
            for hgrp in range(2):
                rs = list(range(8 * hgrp, 8 * hgrp + 8))
                T = V(TT, 8)
                for r in rs: ops.append((1, lambda r=r, G=G, T=T: e.valu("v_mul_f32", T[r % 8], sNL2E, G[r])))
                for r in rs:
                    ops.append((2, lambda r=r, T=T: e.valu("v_exp_f32", T[r % 8], T[r % 8])))
                    ops.append((1, lambda r=r, G=G, U=U: e.valu("v_mul_f32", G[r], G[r], U[r])))
                for r in rs: ops.append((1, lambda r=r, T=T: e.valu("v_add_f32", T[r % 8], 1.0, T[r % 8])))
                for r in rs: ops.append((2, lambda r=r, T=T: e.valu("v_rcp_f32", T[r % 8], T[r % 8])))
                for r in rs: ops.append((1, lambda r=r, G=G, T=T: e.valu("v_mul_f32", G[r], G[r], T[r % 8])))
                for i in range(4 * hgrp, 4 * hgrp + 4):
                    ops.append((1, lambda i=i, G=G, U=U: e.valu("v_cvt_pk_bf16_f32", U[i], G[2 * i], G[2 * i + 1])))
                def st(hgrp=hgrp, t=t, U=U):
                    e.salu("s_add_u32", sT1, sOut0, t * H_MT_STRIDE + p * 4096)
                    e.buf_store(U[4 * hgrp:4 * hgrp + 4], vLane16, sWS, sT1, offset=hgrp * 1024, flags=STF0)
                ops.append((-2, st))
        return ops

    def epi_v(p):
        ops = []
        for r in range(2):
            for t in range(2):
                X = ACC(p, r, t)
                for hgrp in range(2):
                    for i in range(4 * hgrp, 4 * hgrp + 4):
                        ops.append((1, lambda i=i, X=X: e.valu("v_cvt_pk_bf16_f32", X[i], X[2 * i], X[2 * i + 1])))
                    for i in range(4 * hgrp, 4 * hgrp + 4):
                        ops.append((1, lambda i=i, X=X: e.valu("v_cndmask_b32", X[i], X[i], vVconst, sMask)))
                    def st(t=t, X=X, r=r, hgrp=hgrp):
                        e.salu("s_add_u32", sT1, sOut0, (4 * p + 2 * r) * 64 * 4096 + t * 4096)
                        e.buf_store(X[4 * hgrp:4 * hgrp + 4], vLane16, sWS, sT1, offset=hgrp * 1024, flags=STF0)
                    ops.append((-2, st))
        return ops

    steps = [(p, ks) for p in range(3) for ks in range(28)]
    def bchunk(p, ks):
        c, kk = ks // 4, ks % 4
        if p < 2: return 7 * p + c, kk * 2048
        return 14 + c // 2, (c % 2) * 8192 + kk * 2048
    def rd(n):
        p, ks = steps[n]
        c, kk = ks // 4, ks % 4
        bn, boff = bchunk(p, ks)
        ops = []
        for t in range(2):
            ops.append(lambda t=t: e.ds_read("ds_read_b128", fA(n, t), vAr[c >> 2][kk], offset=(c & 3) * 16384 + t * 4096, tag=("t", n)))
        for i in range(2 if p < 2 else 1):
            for j in range(2):
                ops.append(lambda i=i, j=j: e.ds_read("ds_read_b64_tr_b16", fB(n, i)[2 * j:2 * j + 2], vTr,
                                                      offset=(bn % 3) * 16384 + boff + i * 8192 + j * 512, tag=("t", n)))
        return ops

    e.stamp(1)
    if CPRIO: e.raw(f"s_setprio {CPRIO}")
    e.barrier()
    e.stamp(2)
    for f in rd(0) + rd(1): f()
    epi = []
    stq = []
    for n, (p, ks) in enumerate(steps):
        if ks == 0 and p >= 1:
            e.stamp(2 + p)
            epi += [(6, lambda: None)] if True else []
            epi += epi_v(p - 1) if typeB else epi_h(p - 1)
        nr = 2 if p < 2 else 1
        nm = 2 * nr
        plan = [[] for _ in range(nm)]
        tgt = n + 2
        if tgt < len(steps):
            r_ = rd(tgt)
            if bchunk(*steps[tgt])[0] != bchunk(*steps[tgt - 1])[0]:
                bar = lambda tgt=tgt: (e.wait_lg_tag(("t", tgt - 1)), e.barrier())
                if steps[tgt][0] == 0:
                    plan[1] = [bar, r_[0]]; plan[2] = r_[1:4]; plan[3] = r_[4:]
                elif nm == 4:
                    plan[0] = r_[0:2]; plan[2] = [bar] + r_[2:4]; plan[3] = r_[4:]
                else:
                    plan[0] = r_[0:2]; plan[1] = [bar] + r_[2:]
            else:
                for g in range(nm):
                    k = -(-len(r_) // (nm - g))
                    plan[g] = r_[:k]; r_ = r_[k:]
        e.wait_lg_tag(("t", n))
        gi = 0
        for i in range(nr):
            for t in range(2):
                swap = typeB and p < 2
                a_, b_ = (fA(n, t), fB(n, i)) if swap else (fB(n, i), fA(n, t))
                e.mfma(ACC(p, i, t), a_, b_, 0 if ks == 0 else None)
                slots = 6 - (1 if gi == nm - 1 else 0)
                for f in plan[gi]:
                    f(); slots -= 1
                if p == 1:
                    slots = min(slots, EB1)
                safe = (ks % 4 == 1 and gi in SAFE1) if p < 2 else (ks % 8 in (3, 4, 5))
                if safe and stq:
                    stq.pop(0)(); slots -= 2
                while epi and (slots >= epi[0][0] or epi[0][0] == 6):
                    cost, f = epi.pop(0)
                    if cost < 0:
                        stq.append(f); continue
                    f(); slots -= cost
                    if cost == 6: break
                gi += 1
    e.stamp(8)
    while stq:
        stq.pop(0)()
    while epi:
        epi.pop(0)[1]()
    e.stamp(9)
    T0 = 160
    for t in range(2):
        X = ACC(2, 0, t)
        T = V(T0 + 8 * t, 8)
        if typeB:
            e.valu("v_cvt_pk_bf16_f32", V(T0 + 16 + t), X[12], X[12])
        for r in range(16):
            if typeB and r < 12:
                continue
            e.valu("v_mul_f32", X[r], sQKmul if r < 12 else vMulHi, X[r])
        for i in range(8):
            e.valu("v_cvt_pk_bf16_f32", T[i], X[2 * i], X[2 * i + 1])
        if t == 1:
            e.salu("s_add_u32", sOutQK, sOutQK, sQKstr)
        store_pair(T, sOutQK, 0)
    if typeB:
        e.salu("s_cmp_eq_u32", sWn, 0)
        e.raw("s_cbranch_scc0 L_k1_nog")
        for t in range(2):
            D = V(T0 + 16 + t)
            Gv = V(T0 + 20 + 2 * t, 2)
            e.valu("v_and_b32", D, "0xffff0000", D)
            e.valu("v_mul_f32", D, sNL2E, D)
            e.valu("v_exp_f32", D, D)
            e.valu("v_add_f32", D, 1.0, D)
            e.valu("v_rcp_f32", D, D)
            e.valu("v_cvt_pk_bf16_f32", D, D, D)
            e.valu("v_and_b32", Gv[0], "0xffff0000", D)
            e.valu("v_sub_f32", Gv[1], 1.0, Gv[0])
            e.valu("v_cvt_pk_bf16_f32", Gv[1], Gv[1], Gv[1])
            e.valu("v_and_b32", Gv[1], "0xffff0000", Gv[1])
        e.valu("v_lshlrev_b32", vX0, 3, lane)
        e.salu("s_lshl_b32", sT1, sMt, 8)
        e.salu("s_add_u32", sT1, sT1, GF - 256)
        e.raw("s_mov_b32 exec_lo, 0")
        e.buf_store(V(T0 + 20, 2), vX0, sWS, sT1, offset=0, flags=STF)
        e.buf_store(V(T0 + 22, 2), vX0, sWS, sT1, offset=256, flags=STF)
        e.raw("s_mov_b32 exec_lo, -1")
        e.label("L_k1_nog")
    e.stamp(10)
    if Emitter.STAMPS:
        e.raw("s_waitcnt vmcnt(0)")
    e.stamp(11); e.stamp(13, True)
    e.dump_stamps(sWS, 0, sWave)


K1_DESC = dict(name="k1_kernel", vgpr=256, acc=256, sgpr=72, grid=256, block=512, lds=K1_LDS)
```

```python
import re


def R(kind, lo, n=1):
    return [f"{kind}{i}" for i in range(lo, lo + n)]


def rng(kind, lo, n):
    return f"{kind}{lo}" if n == 1 else f"{kind}[{lo}:{lo + n - 1}]"


class Reg:
    def __init__(self, kind, lo, n=1):
        self.kind, self.lo, self.n = kind, lo, n

    def __str__(self):
        return rng(self.kind, self.lo, self.n)

    def regs(self):
        return R(self.kind, self.lo, self.n)

    def __getitem__(self, i):
        if isinstance(i, slice):
            start = i.start or 0
            stop = self.n if i.stop is None else i.stop
            assert 0 <= start < stop <= self.n, (i, self.n)
            return Reg(self.kind, self.lo + start, stop - start)
        assert 0 <= i < self.n
        return Reg(self.kind, self.lo + i, 1)


def V(lo, n=1): return Reg("v", lo, n)
def A(lo, n=1): return Reg("a", lo, n)
def S(lo, n=1): return Reg("s", lo, n)


def regs_of(x):
    if isinstance(x, Reg):
        return x.regs()
    if isinstance(x, str) and x in ("vcc", "exec", "m0", "scc"):
        return [x]
    return []


TRANS = ("v_exp_f32", "v_rcp_f32", "v_log_f32", "v_rsq_f32", "v_sqrt_f32")


class Emitter:
    def __init__(self):
        self.lines = []
        self.pos = 0
        self.lg = []
        self.vm = []
        self.last = {}
        self.nid = 0
        self.smem_pending = False

    def raw(self, text, states=1):
        self.lines.append("    " + text)
        self.pos += states

    def comment(self, text):
        self.lines.append("    ; " + text)

    def label(self, name):
        self.lines.append(name + ":")

    def nop(self, n):
        while n > 0:
            k = min(n, 16)
            self.raw(f"s_nop {k - 1}", k)
            n -= k

    def _wait_lg_upto(self, idx):
        n_after = len(self.lg) - 1 - idx
        if self.smem_pending:
            n_after = 0
        n_after = min(n_after, 15)
        self.raw(f"s_waitcnt lgkmcnt({n_after})")
        self.lg = self.lg[len(self.lg) - n_after:] if n_after else []
        if n_after == 0:
            self.smem_pending = False

    def _wait_vm_upto(self, idx):
        n_after = len(self.vm) - 1 - idx
        n_after = min(n_after, 63)
        self.raw(f"s_waitcnt vmcnt({n_after})")
        self.vm = self.vm[len(self.vm) - n_after:] if n_after else []

    def wait_vm_tag(self, tag):
        idx = -1
        for i, (_, _, t) in enumerate(self.vm):
            if t == tag:
                idx = i
        if idx >= 0:
            self._wait_vm_upto(idx)

    def wait_lg_tag(self, tag):
        idx = -1
        for i, (_, _, t) in enumerate(self.lg):
            if t == tag:
                idx = i
        if idx >= 0:
            self._wait_lg_upto(idx)

    def wait_lg_all(self):
        if self.lg or self.smem_pending:
            self.raw("s_waitcnt lgkmcnt(0)")
            self.lg = []
            self.smem_pending = False

    def wait_vm_all(self):
        if self.vm:
            self.raw("s_waitcnt vmcnt(0)")
            self.vm = []

    def _resolve_pending(self, touched):
        t = set(touched)
        idx = -1
        for i, (_, d, _) in enumerate(self.lg):
            if d & t:
                idx = i
        if idx >= 0:
            self._wait_lg_upto(idx)
        idx = -1
        for i, (_, d, _) in enumerate(self.vm):
            if d & t:
                idx = i
        if idx >= 0:
            self._wait_vm_upto(idx)

    def _need(self, reg, kind, states):
        p = self.last.get((reg, kind))
        if p is None:
            return 0
        return p + states + 1 - self.pos - 0 if False else max(0, states - (self.pos - p - 1))

    def _mark(self, regs, kind):
        for r in regs:
            self.last[(r, kind)] = self.pos

    def _issue(self, text, cls, reads, writes, srcc=None, mfma_passes=8):
        self._resolve_pending(reads + writes)
        need = 0
        mw = {8: 12, 4: 8}
        for r in reads:
            if cls == "mfma":
                need = max(need, self._need(r, "valu_w", 2))
                if srcc is not None and r in srcc[0]:
                    if self.last.get((r, "mfma_d_id")) != srcc[1]:
                        need = max(need, self._need(r, "mfma_w8", 10), self._need(r, "mfma_w4", 6))
                else:
                    need = max(need, self._need(r, "mfma_w8", 12), self._need(r, "mfma_w4", 8))
            elif cls in ("valu", "trans", "ds", "vmem", "perm", "rfl", "dpp"):
                need = max(need, self._need(r, "mfma_w8", 12), self._need(r, "mfma_w4", 8))
            if cls in ("valu", "perm", "rfl", "dpp", "mfma"):
                need = max(need, self._need(r, "trans_w", 1))
            if cls in ("perm", "dpp"):
                need = max(need, self._need(r, "valu_w", 2))
            if cls == "rfl":
                need = max(need, self._need(r, "valu_w", 1))
            if cls == "vmem":
                need = max(need, self._need(r, "valu_sw", 5))
            if cls in ("valu", "trans", "perm", "dpp", "mfma"):
                need = max(need, self._need(r, "valu_sw", 2))
            if r == "m0" and cls in ("vmem",):
                need = max(need, self._need(r, "salu_w", 1))
        for w in writes:
            if cls in ("valu", "trans", "perm", "dpp", "ds", "vmem"):
                need = max(need, self._need(w, "mfma_w8", 12), self._need(w, "mfma_w4", 8))
            if cls in ("valu", "trans", "perm", "dpp"):
                need = max(need, self._need(w, "mfma_c8", 7), self._need(w, "mfma_c4", 3))
                need = max(need, self._need(w, "store_r", 2))
                need = max(need, self._need(w, "trans_w", 1))
            if cls in ("ds", "vmem"):
                need = max(need, self._need(w, "store_r", 1))
            if cls == "mfma":
                if srcc is None or self.last.get((w, "mfma_d_id")) != srcc[1]:
                    need = max(need, self._need(w, "mfma_w8", 10), self._need(w, "mfma_w4", 6))
        if need > 0:
            self.nop(need)
        if cls in ("valu", "trans", "perm", "dpp", "rfl"):
            self._mark([w for w in writes if w[0] in "va" and w not in ("vcc",)], "valu_w")
            self._mark([w for w in writes if w[0] == "s" or w == "vcc"], "valu_sw")
            if cls == "trans":
                self._mark(writes, "trans_w")
        if cls == "salu":
            self._mark(writes, "salu_w")
        if cls == "mfma":
            k = "8" if mfma_passes == 8 else "4"
            self._mark(writes, "mfma_w" + k)
            for w in writes:
                self.last[(w, "mfma_d_id")] = (writes[0], len(writes))
            if srcc is not None:
                self._mark(srcc[0], "mfma_c" + k)
        else:
            for w in writes:
                self.last.pop((w, "mfma_d_id"), None)
        self.raw(text)

    def valu(self, op, dst, *srcs, extra="", dst_is_read=False):
        reads = []
        for s in srcs:
            reads += regs_of(s)
        writes = regs_of(dst)
        if dst_is_read:
            reads += writes
        if op.startswith("v_cndmask") and len(srcs) == 2:
            reads.append("vcc")
        cls = "trans" if op in TRANS else "valu"
        if "permlane" in op:
            cls = "perm"
            writes = writes + regs_of(srcs[0])
            reads = reads + regs_of(dst)
        if "readfirstlane" in op or "readlane" in op:
            cls = "rfl"
        if "row_" in extra or "quad_perm" in extra:
            cls = "dpp"
        ops = ", ".join(str(x) for x in (dst,) + srcs)
        if op.startswith("v_cndmask") and len(srcs) == 2:
            ops += ", vcc"
        self._issue(f"{op} {ops}{(' ' + extra) if extra else ''}", cls, reads, writes)

    def salu(self, op, dst, *srcs):
        reads = []
        for s in srcs:
            reads += regs_of(s)
        writes = regs_of(dst)
        ops = ", ".join(str(x) for x in (dst,) + srcs)
        self._issue(f"{op} {ops}", "salu", reads, writes)

    def mfma(self, d, a, b, c=None, op="v_mfma_f32_32x32x16_bf16"):
        passes = 8 if "32x32" in op else 4
        if c is None:
            c = d
        reads = a.regs() + b.regs()
        srcc = None
        if isinstance(c, Reg):
            reads += c.regs()
            srcc = (c.regs(), (c.regs()[0], c.n))
        self._issue(f"{op} {d}, {a}, {b}, {c}", "mfma", reads, d.regs(), srcc=srcc, mfma_passes=passes)

    def ds_read(self, op, dst, addr, offset=0, tag=None):
        assert 0 <= offset < 65536, offset
        self._issue(f"{op} {dst}, {addr} offset:{offset}", "ds", addr.regs(), dst.regs())
        self.lg.append((self.nid, set(dst.regs()), tag)); self.nid += 1

    def ds_write(self, op, addr, src, offset=0, tag=None):
        assert 0 <= offset < 65536, offset
        self._issue(f"{op} {addr}, {src} offset:{offset}", "ds", addr.regs() + src.regs(), [])
        self.lg.append((self.nid, set(), tag)); self.nid += 1
        if src.n >= 3:
            self.pos -= 1; self._mark(src.regs(), "store_r"); self.pos += 1

    def buf_load(self, dst, voff, srd, soff, offset=0, tag=None, flags=""):
        assert 0 <= offset < 4096, offset
        op = {1: "buffer_load_dword", 2: "buffer_load_dwordx2", 3: "buffer_load_dwordx3", 4: "buffer_load_dwordx4"}[dst.n]
        self._issue(f"{op} {dst}, {voff}, {srd}, {soff} offen offset:{offset}{flags}", "vmem",
                    voff.regs() + srd.regs() + regs_of(soff), dst.regs())
        self.vm.append((self.nid, set(dst.regs()), tag)); self.nid += 1

    def buf_load_lds(self, voff, srd, soff, offset=0, tag=None, flags=""):
        assert 0 <= offset < 4096, offset
        self._issue(f"buffer_load_dwordx4 {voff}, {srd}, {soff} offen offset:{offset}{flags} lds", "vmem",
                    voff.regs() + srd.regs() + regs_of(soff) + ["m0"], [])
        self.vm.append((self.nid, set(), tag)); self.nid += 1

    def buf_store(self, src, voff, srd, soff, offset=0, tag=None, flags=""):
        assert 0 <= offset < 4096, offset
        op = {1: "buffer_store_dword", 2: "buffer_store_dwordx2", 3: "buffer_store_dwordx3", 4: "buffer_store_dwordx4"}[src.n]
        self._issue(f"{op} {src}, {voff}, {srd}, {soff} offen offset:{offset}{flags}", "vmem",
                    voff.regs() + srd.regs() + regs_of(soff) + src.regs(), [])
        self.vm.append((self.nid, set(), tag)); self.nid += 1
        if src.n >= 3:
            self.pos -= 1; self._mark(src.regs(), "store_r"); self.pos += 1

    def s_load(self, dst, base, off):
        op = {1: "s_load_dword", 2: "s_load_dwordx2", 4: "s_load_dwordx4", 8: "s_load_dwordx8", 16: "s_load_dwordx16"}[dst.n]
        self._issue(f"{op} {dst}, {base}, {off}", "other", base.regs(), [])
        self.lg.append((self.nid, set(dst.regs()), "smem")); self.nid += 1
        self.smem_pending = True

    STAMPS = False
    STAMP_V = 255
    def stamp(self, idx, real=False):
        if not Emitter.STAMPS:
            return
        self.wait_lg_all()
        self.raw(f"{'s_memrealtime' if real else 's_memtime'} s[98:99]")
        self.raw("s_waitcnt lgkmcnt(0)")
        self.raw(f"v_writelane_b32 v{self.STAMP_V}, s98, {idx}")

    def dump_stamps(self, srd, kern, waveS, n=14):
        if not Emitter.STAMPS:
            return
        self.raw("s_lshl_b32 s100, s2, 4")
        self.raw(f"s_add_u32 s100, s100, {waveS}")
        self.raw("s_lshl_b32 s100, s100, 6")
        self.raw(f"s_add_u32 s100, s100, {(20 + kern) << 20}")
        self.raw("v_mbcnt_lo_u32_b32 v1, -1, 0")
        self.raw("v_lshlrev_b32 v1, 2, v1")
        self.raw("s_mov_b64 exec, 0xffff")
        self.raw(f"buffer_store_dword v{self.STAMP_V}, v1, {srd}, s100 offen")
        self.raw("s_waitcnt vmcnt(0)")

    def barrier(self):
        self.raw("s_barrier")

    def flush_hazards(self):
        worst = 0
        table = {"valu_w": 2, "valu_sw": 5, "trans_w": 1, "mfma_w8": 12, "mfma_w4": 8, "mfma_c8": 7, "mfma_c4": 3,
                 "store_r": 2, "salu_w": 1}
        for (r, k), p in self.last.items():
            if k in table:
                worst = max(worst, table[k] - (self.pos - p - 1))
        if worst > 0:
            self.nop(worst)
        self.last = {}

    def text(self):
        return "\n".join(self.lines) + "\n"
```

```python
from emit import *
from layout import *
import os
import struct

ROT1 = int(os.environ.get('ROT1', '1'))
STF = ' sc1'
LDF = ' sc1'
EB1 = int(os.environ.get('EB1', '3'))
N1 = int(os.environ.get('N1', '14'))
N1B = int(os.environ.get('N1B', '16'))
PRE = int(os.environ.get('PRE', '3'))
POLL2 = int(os.environ.get('POLL2', '6'))
SPIN = 1 << 17
SLEEP = int(os.environ.get('SLEEP', '4'))
HPRIO = int(os.environ.get('HPRIO', '0'))

LOG2E = 1.4426950408889634
QSCALE = (28 ** -0.5) * LOG2E
L_LO = 2.0 ** -50
L_HI = 2.0 ** 60


def f2u(x):
    return struct.unpack("<I", struct.pack("<f", x))[0]


sX, sWg, sWu, sWq, sWS = S(4, 4), S(8, 4), S(12, 4), S(16, 4), S(20, 4)
sWd, sGw, sDbg, sWo = S(64, 4), S(60, 4), S(44, 4), S(8, 4)
sWave, sMblk, sCg, sW4 = S(24), S(25), S(26), S(28)
sT0, sT1, sT2 = S(32), S(33), S(31)
sRot = S(3)
sXcd, sIdx = S(68), S(69)
KX, KQ, KO, KG, KU, KD, KGW, KDBG, KWS = 72, 74, 76, 80, 82, 84, 86, 88, 90

BR = 114688
WR = 65536
QL = 131072
ARED = 147456
LDS = 163840
vX0, vX1, vX2, vLane, vLane16 = V(250), V(251), V(252), V(253), V(254)


def srd(e, s, lo, size):
    e.salu("s_mov_b32", s[0], S(lo))
    e.salu("s_mov_b32", s[1], S(lo + 1))
    e.salu("s_mov_b32", s[2], size)
    e.salu("s_mov_b32", s[3], "0x20000")


def gen_k12(e):
    e.label("k12_kernel")
    e.salu("s_cmp_ge_u32", S(2), 256)
    e.raw("s_cbranch_scc1 L_k12_end")
    e.s_load(S(72, 4), S(0, 2), 0)
    e.s_load(S(76, 2), S(0, 2), 16)
    e.s_load(S(80, 8), S(0, 2), 32)
    e.s_load(S(88, 4), S(0, 2), 72)
    e.salu("s_and_b32", sXcd, S(2), 7)
    e.salu("s_lshr_b32", sIdx, S(2), 3)
    e.salu("s_and_b32", sMblk, sXcd, 1)
    e.salu("s_lshl_b32", sMblk, sMblk, 3)
    e.salu("s_and_b32", sRot, sIdx, 7)
    e.salu("s_add_u32", sMblk, sMblk, sRot)
    e.salu("s_lshr_b32", sT0, sXcd, 1)
    e.salu("s_lshr_b32", sT1, sIdx, 3)
    e.salu("s_mul_i32", sCg, sT0, 3)
    e.salu("s_add_u32", sCg, sCg, sT1)
    e.salu("s_add_u32", sT0, sT0, 12)
    e.salu("s_cmp_eq_u32", sT1, 3)
    e.salu("s_cselect_b32", sCg, sT0, sCg)
    if ROT1:
        e.salu("s_lshl_b32", sT1, sT1, 1)
        e.salu("s_add_u32", sRot, sRot, sT1)
        e.salu("s_sub_u32", sT0, sRot, 7)
        e.salu("s_cmp_ge_u32", sRot, 7)
        e.salu("s_cselect_b32", sRot, sT0, sRot)
    else:
        e.salu("s_mov_b32", sRot, 0)
    e.valu("v_lshrrev_b32", vX0, 6, V(0))
    e.valu("v_and_b32", vLane, 63, V(0))
    e.valu("v_readfirstlane_b32", sWave, vX0)
    e.valu("v_lshlrev_b32", vLane16, 4, vLane)
    e.salu("s_and_b32", sW4, sWave, 3)
    e.salu("s_cmp_lt_u32", sWave, 4)
    e.raw("s_cbranch_scc1 L_k12_heavy")
    saved = list(e.lg)

    def reset():
        e.lg, e.vm, e.last, e.smem_pending = list(saved), [], {}, True
    e.raw("s_setprio 3")
    e.stamp(12, True)
    e.salu("s_cmp_ge_u32", sCg, 12)
    e.raw("s_cbranch_scc1 L_k12_loadY")
    e.flush_hazards()
    gen_loader1(e, False)
    e.raw("s_branch L_k12_help2")
    e.label("L_k12_loadY")
    reset()
    gen_loader1(e, True)
    e.label("L_k12_help2")
    e.lg, e.vm, e.last = [], [], {}
    gen_helper2(e)
    e.label("L_k12_heavy")
    reset()
    e.salu("s_cmp_ge_u32", sCg, 12)
    e.raw("s_cbranch_scc1 L_k12_compY")
    gen_compute1(e, False)
    e.raw("s_branch L_k12_attn")
    e.label("L_k12_compY")
    reset()
    gen_compute1(e, True)
    e.label("L_k12_attn")
    e.lg, e.vm, e.last = [], [], {}
    e.nop(2)
    gen_attn(e)
    e.label("L_k12_end")
    e.raw("s_endpgm")


sNonce = S(27)


def poll(e, name, vaddr, srd_, soff, nlanes, vtmp, cmp_s):
    mask = (1 << nlanes) - 1
    e.wait_lg_all()
    e.raw(f"s_mov_b32 exec_lo, {hex(mask & 0xffffffff)}")
    e.raw(f"s_mov_b32 exec_hi, {hex(mask >> 32)}")
    e.salu("s_mov_b32", sT2, 0)
    e.label(name)
    e.raw(f"buffer_load_dword {vtmp}, {vaddr}, {srd_}, {soff} offen sc1")
    e.salu("s_add_u32", sT2, sT2, 1)
    e.raw("s_waitcnt vmcnt(0)")
    e.raw(f"v_cmp_ne_u32 vcc, {cmp_s}, {vtmp}")
    e.salu("s_cmp_gt_u32", sT2, SPIN)
    e.raw(f"s_cbranch_scc1 {name}_out")
    e.raw("s_and_b64 exec, exec, vcc")
    e.raw(f"s_cbranch_scc0 {name}_out")
    if SLEEP: e.raw(f"s_sleep {SLEEP}")
    e.raw(f"s_branch {name}")
    e.label(name + "_out")
    e.raw("s_mov_b64 exec, -1")
    e.vm = []
    e.last = {}


def flag_store(e, base):
    e.salu("s_lshl_b32", sT0, sCg, 4)
    e.salu("s_add_u32", sT0, sT0, sMblk)
    e.salu("s_lshl_b32", sT0, sT0, 7)
    e.salu("s_add_u32", sT0, sT0, base)
    e.salu("s_min_u32", sT1, sW4, 1)
    e.salu("s_lshl_b32", sT1, sT1, 19)
    e.salu("s_add_u32", sT0, sT0, sT1)
    e.valu("v_mov_b32", V(9), sNonce)
    e.valu("v_mov_b32", V(249), 0)
    e.raw("s_mov_b64 exec, 1")
    e.buf_store(V(9), V(249), sWS, sT0, offset=0, flags=" sc1")
    e.raw("s_mov_b64 exec, -1")


def gen_loader1(e, typeY):
    ty = int(typeY)
    lane = vLane
    vA = [V(1), V(2), V(3), V(4)]
    vB = [V(5), V(6)]
    vB2 = [V(7), V(8)]
    vGa = V(13)
    vG = V(16, 7)
    sAoff, sB0, sQo, sVo = S(29), S(30), S(34), S(48)
    sLA, sLB = S(35), S(36)
    sCh = [S(37 + i) for i in range(7)]
    e.valu("v_lshrrev_b32", vX0, 3, lane)
    e.valu("v_and_b32", vX1, 7, lane)
    e.valu("v_lshrrev_b32", vX2, 1, vX0)
    e.valu("v_xor_b32", vX2, vX2, vX1)
    e.valu("v_mul_u32_u24", vA[0], 896, vX0)
    e.valu("v_lshl_add_u32", vA[0], vX2, 4, vA[0])
    e.valu("v_xor_b32", vA[1], 64, vA[0])
    e.valu("v_add_u32", vA[2], 2 * 6144, vA[0])
    e.valu("v_add_u32", vA[3], 3 * 6144, vA[1])
    e.valu("v_add_u32", vA[1], 6144, vA[1])
    e.valu("v_bfe_u32", vX1, lane, 2, 1)
    e.valu("v_bfe_u32", vX2, lane, 4, 1)
    e.valu("v_xor_b32", vX1, vX1, vX2)
    e.valu("v_and_b32", vX2, 3, lane)
    for vv, l_, us in ((vB, 3584, 64), (vB2, 2688, 56)):
        e.valu("v_mul_u32_u24", vv[0], l_, vX0)
        e.valu("v_mul_u32_u24", vv[1], us, vX1)
        e.valu("v_add_u32", vv[0], vv[0], vv[1])
        e.valu("v_lshl_add_u32", vv[0], vX2, 4, vv[0])
        e.valu("v_add_u32", vv[1], 8 * l_ - 1024, vv[0])
    e.salu("s_lshl_b32", sT0, sMblk, 2)
    e.salu("s_add_u32", sT0, sT0, sW4)
    e.salu("s_mul_i32", sAoff, sT0, 32 * 896)
    e.salu("s_mul_i32", sT0, sW4, 16 * 3584)
    e.salu("s_lshl_b32", sB0, sCg, 7)
    e.salu("s_add_u32", sB0, sB0, sT0)
    e.salu("s_mul_i32", sT0, sW4, 16 * 2688)
    e.salu("s_mul_i32", sQo, sCg, 112)
    e.salu("s_add_u32", sQo, sQo, sT0)
    if typeY:
        e.salu("s_mul_i32", sVo, sCg, 224)
        e.salu("s_add_u32", sVo, sVo, sT0)
        e.salu("s_sub_u32", sVo, sVo, 12 * 224 - 1792)
    e.salu("s_lshl_b32", sLA, sW4, 12)
    e.salu("s_lshl_b32", sLB, sW4, 11)
    e.salu("s_add_u32", sLB, sLB, BR)
    e.salu("s_mov_b32", sCh[0], sRot)
    for c in range(1, 7):
        e.salu("s_add_u32", sCh[c], sCh[c - 1], 1)
        e.salu("s_cmp_eq_u32", sCh[c], 7)
        e.salu("s_cselect_b32", sCh[c], 0, sCh[c])
    e.wait_lg_all()
    srd(e, sX, KX, 2048 * 896)
    srd(e, sWg, KG, 448 * 3584)
    srd(e, sWu, KU, 448 * 3584)
    srd(e, sWq, KQ, 448 * 2688)

    def dmaA(c):
        e.salu("s_lshl_b32", sT0, sCh[c], 7)
        e.salu("s_add_u32", "m0", sLA, c * 16384)
        e.salu("s_add_u32", sT0, sT0, sAoff)
        for i in range(4):
            e.buf_load_lds(vA[i], sX, sT0, offset=i * 1024, tag=("C", c))

    def dmaB(n):
        sl = (n % 3) * 16384
        if n < 7 and typeY:
            e.salu("s_mul_i32", sT1, sCh[n], 64 * 2688)
            for r in range(2):
                e.salu("s_add_u32", "m0", sLB, sl + r * 8192)
                e.salu("s_add_u32", sT1, sT1, sVo if r == 0 else 112)
                for i in range(2):
                    e.buf_load_lds(vB2[i], sWq, sT1, offset=i * 1024, tag=("C", n))
        elif n < 7 or n >= 11:
            c = n if n < 7 else n - 11
            e.salu("s_mul_i32", sT1, sCh[c], 64 * 3584)
            e.salu("s_add_u32", sT1, sT1, sB0)
            if n >= 11: e.salu("s_add_u32", sT1, sT1, 12 * 128)
            for r in range(2):
                e.salu("s_add_u32", "m0", sLB, sl + r * 8192)
                e.nop(1)
                for i in range(2):
                    e.buf_load_lds(vB[i], (sWg, sWu)[r], sT1, offset=i * 1024, tag=("C", n))
        else:
            for r in range(2):
                c = 2 * (n - 7) + r
                if c < 7:
                    e.salu("s_mul_i32", sT1, sCh[c], 64 * 2688)
                    e.salu("s_add_u32", "m0", sLB, sl + r * 8192)
                    e.salu("s_add_u32", sT0, sQo, sT1)
                    for i in range(2):
                        e.buf_load_lds(vB2[i], sWq, sT0, offset=i * 1024, tag=("C", n))

    def land(n):
        e.wait_vm_tag(("C", n))
        if typeY and 7 <= n < 11:
            e.raw("s_mov_b64 exec, 0xffff")
            for r in range(2):
                c = 2 * (n - 7) + r
                if c < 7:
                    e.ds_write("ds_write_b16", vGa, vG[c], offset=(n % 3) * 16384 + r * 8192)
            e.raw("s_mov_b64 exec, -1")
            e.wait_lg_all()

    dmaA(0); dmaB(0); dmaA(1); dmaB(1)
    srd(e, sWS, KWS, WS_USED)
    srd(e, sDbg, KDBG, 256)
    if typeY:
        srd(e, sGw, KGW, 896)
        e.valu("v_and_b32", vX0, 15, lane)
        e.valu("v_lshlrev_b32", vX1, 1, vX0)
        e.salu("s_lshl_b32", sT0, sW4, 5)
        for c in range(7):
            e.salu("s_lshl_b32", sT2, sCh[c], 7)
            e.salu("s_add_u32", sT2, sT2, sT0)
            e._issue(f"buffer_load_ushort {vG[c]}, {vX1}, {sGw}, {sT2} offen", "vmem", vX1.regs() + sGw.regs() + sT2.regs(), vG[c].regs())
            e.vm.append((-1, set(vG[c].regs()), "gw"))
        e.valu("v_lshlrev_b32", vGa, 7, vX0)
        e.valu("v_bfe_u32", vX1, lane, 1, 1)
        e.valu("v_lshl_add_u32", vGa, vX1, 6, vGa)
        e.valu("v_add_u32", vGa, sLB, vGa)
        e.valu("v_add_u32", vGa, 56, vGa)
    land(0)
    e.barrier()
    for n in range(17):
        if n + 2 < 7:
            dmaA(n + 2)
        if n + 2 < 18:
            dmaB(n + 2)
        if n == N1:
            flag_store(e, F1)
            e.stamp(6, True)
        if n == N1B and not typeY:
            flag_store(e, F1B)
        if n == 8:
            e.valu("v_mov_b32", V(12), 0)
            e.buf_load(V(10, 2), V(12), sDbg, 0, offset=0, flags=" sc1")
        if n == 11:
            e.valu("v_readfirstlane_b32", sT0, V(10))
            e.valu("v_readfirstlane_b32", sNonce, V(11))
            e.nop(1)
            e.salu("s_cmp_eq_u32", sT0, 1)
            e.raw(f"s_cbranch_scc1 L_k12_nok{ty}")
            keep = list(e.vm)
            poll(e, f"L_k12_pn{ty}", V(12), sDbg, 0, 1, V(10), "1")
            e.raw(f"buffer_load_dword v11, v12, {sDbg}, 0 offen offset:4 sc1")
            e.raw("s_waitcnt vmcnt(0)")
            e.raw(f"v_readfirstlane_b32 {sNonce}, v11")
            e.nop(2)
            e.label(f"L_k12_nok{ty}")
            e.vm = keep
            e.last = {}
        if n == 16:
            vFl = V(14)
            e.salu("s_lshl_b32", sT0, sXcd, 4)
            e.salu("s_add_u32", sT1, sT0, 128)
            e.valu("v_add_u32", vFl, sT1, lane)
            e.salu("s_lshr_b32", sT1, sXcd, 1)
            e.salu("s_lshl_b32", sT1, sT1, 4)
            e.salu("s_add_u32", sT1, sT1, 192 - 16)
            e.valu("v_add_u32", vX0, sT1, lane)
            e.valu("v_cmp_le_u32", "vcc", 16, lane)
            e.valu("v_cndmask_b32", vFl, vFl, vX0)
            e.salu("s_and_b32", sT1, sIdx, 15)
            e.salu("s_add_u32", sT0, sT0, sT1)
            e.valu("v_mov_b32", vX0, sT0)
            e.valu("v_cmp_le_u32", "vcc", 32, lane)
            e.valu("v_cndmask_b32", vFl, vFl, vX0)
            e.valu("v_lshlrev_b32", vFl, 7, vFl)
        land(n + 1)
        e.barrier()


def gen_compute1(e, typeY):
    ty = int(typeY)
    lane = vLane
    sWm, sWn, sMt = S(29), S(30), S(34)
    sOutH, sOutV, sOutQK, sQKstr, sQKmul, sNL2E = S(35), S(48), S(36), S(37), S(38), S(39)
    sMask = S(40, 2)
    vAr = [[V(232 + i) for i in range(4)], [V(236 + i) for i in range(4)]]
    vTr = V(240)
    vMulHi, vVconst = V(241), V(242)
    TT = 220
    def ACC(p, r, t):
        if p == 1: return V(128 + 16 * t, 16)
        return V(64 * (p // 2) + 32 * r + 16 * t, 16)
    NBUF = 3
    def fA(n, t): return V(160 + (n % NBUF) * 16 + t * 4, 4)
    def fB(n, i): return V(160 + (n % NBUF) * 16 + 8 + i * 4, 4)
    e.salu("s_lshr_b32", sWm, sW4, 1)
    e.salu("s_and_b32", sWn, sW4, 1)
    e.salu("s_lshl_b32", sMt, sMblk, 1)
    e.salu("s_add_u32", sMt, sMt, sWm)
    e.salu("s_lshl_b32", sMt, sMt, 1)
    e.valu("v_and_b32", vX0, 31, lane)
    e.valu("v_lshrrev_b32", vX1, 5, lane)
    e.valu("v_bfe_u32", vX2, lane, 1, 3)
    e.valu("v_xor_b32", vX2, vX2, vX1)
    e.valu("v_lshlrev_b32", vX0, 7, vX0)
    e.salu("s_lshl_b32", sT0, sWm, 13)
    e.valu("v_add_u32", vX0, sT0, vX0)
    for k in range(4):
        e.valu("v_xor_b32", vAr[0][k], 2 * k, vX2)
        e.valu("v_lshl_add_u32", vAr[0][k], vAr[0][k], 4, vX0)
        e.valu("v_add_u32", vAr[1][k], 65536, vAr[0][k])
    e.valu("v_bfe_u32", vX0, lane, 2, 2)
    e.valu("v_lshl_add_u32", vX0, vX1, 3, vX0)
    e.valu("v_bfe_u32", vX2, lane, 4, 1)
    e.valu("v_lshlrev_b32", vX2, 5, vX2)
    e.valu("v_and_b32", vX1, 3, lane)
    e.valu("v_lshl_add_u32", vX2, vX1, 3, vX2)
    e.valu("v_lshl_add_u32", vX2, vX0, 7, vX2)
    e.valu("v_bfe_u32", vX1, lane, 3, 1)
    e.valu("v_xor_b32", vX1, sWn, vX1)
    e.valu("v_lshl_add_u32", vTr, vX1, 6, vX2)
    e.valu("v_add_u32", vTr, BR, vTr)
    e.salu("s_mov_b32", sNL2E, hex(f2u(-LOG2E)))
    e.salu("s_lshl_b32", sT2, sCg, 1)
    e.salu("s_add_u32", sT2, sT2, sWn)
    e.salu("s_mul_i32", sOutH, sMt, H_MT_STRIDE)
    e.salu("s_lshl_b32", sT1, sT2, 11)
    e.salu("s_add_u32", sOutH, sOutH, sT1)
    e.salu("s_add_u32", sOutH, sOutH, HF)
    if typeY:
        e.salu("s_sub_u32", sT1, sCg, 12)
        e.salu("s_lshl_b32", sT0, sT1, 2)
        e.salu("s_add_u32", sT0, sT0, sWn)
        e.salu("s_lshl_b32", sT0, sT0, 6)
        e.salu("s_add_u32", sT0, sT0, sMt)
        e.salu("s_lshl_b32", sOutV, sT0, 12)
        e.salu("s_add_u32", sOutV, sOutV, KVF + 2048)
    e.salu("s_and_b32", sT1, sT2, 15)
    e.salu("s_lshl_b32", sT1, sT1, 6)
    e.salu("s_add_u32", sT1, sT1, sMt)
    e.salu("s_cmp_lt_u32", sT2, 16)
    e.salu("s_cselect_b32", sQKstr, 11, 12)
    e.salu("s_cselect_b32", sOutQK, QF, KVF)
    e.salu("s_cselect_b32", sQKmul, hex(f2u(QSCALE)), 1.0)
    e.salu("s_lshl_b32", sQKstr, 1, sQKstr)
    e.salu("s_mul_i32", sT1, sT1, sQKstr)
    e.salu("s_add_u32", sOutQK, sOutQK, sT1)
    e.valu("v_cmp_gt_u32", "vcc", 32, lane)
    e.valu("v_mov_b32", vX0, sQKmul)
    e.valu("v_mov_b32", vX1, 0)
    e.valu("v_cndmask_b32", vMulHi, vX1, vX0)
    if typeY:
        e.valu("v_and_b32", vX0, 31, lane)
        e.valu("v_cmp_eq_u32", "vcc", 28, vX0)
        e.valu("v_mov_b32", vX2, "0x3f803f80")
        e.valu("v_cndmask_b32", vVconst, vX1, vX2)
        e.valu("v_cmp_le_u32", sMask, 28, vX0)
    e.wait_lg_all()
    srd(e, sWS, KWS, WS_USED)
    srd(e, sWd, KD, 1792 * 896)
    if not typeY:
        e.salu("s_add_u32", sT0, S(2), sWave)
        e.salu("s_cmp_lg_u32", sT0, 0)
        e.raw("s_cbranch_scc1 L_k12_nn")
        srd(e, sDbg, KDBG, 256)
        e.raw("s_mov_b64 exec, 1")
        e.raw("v_mov_b32 v1, 0")
        e.salu("s_mov_b32", sT0, NONCE)
        e.raw(f"buffer_load_dword v3, v1, {sWS}, {sT0} offen sc1")
        e.raw("v_mov_b32 v2, 1")
        e.raw("s_waitcnt vmcnt(0)")
        e.raw("v_add_u32 v3, 0x9e3779b9, v3")
        e.raw(f"buffer_store_dwordx2 v[2:3], v1, {sDbg}, 0 offen sc1")
        e.raw(f"buffer_store_dword v3, v1, {sWS}, {sT0} offen sc1")
        e.raw("s_mov_b64 exec, -1")
        e.label("L_k12_nn")
        e.last = {}

    def epi_h(p, pk=False):
        ops = []
        for t in range(2):
            G, U = ACC(p, 0, t), ACC(p, 1, t)
            for hgrp in range(2):
                rs = list(range(8 * hgrp, 8 * hgrp + 8))
                T = V(TT, 8)
                if not pk:
                    for r in rs: ops.append((1, lambda r=r, G=G, T=T: e.valu("v_mul_f32", T[r % 8], sNL2E, G[r])))
                    for r in rs:
                        ops.append((2, lambda r=r, T=T: e.valu("v_exp_f32", T[r % 8], T[r % 8])))
                        ops.append((1, lambda r=r, G=G, U=U: e.valu("v_mul_f32", G[r], G[r], U[r])))
                    for r in rs: ops.append((1, lambda r=r, T=T: e.valu("v_add_f32", T[r % 8], 1.0, T[r % 8])))
                    for r in rs: ops.append((2, lambda r=r, T=T: e.valu("v_rcp_f32", T[r % 8], T[r % 8])))
                    for r in rs: ops.append((1, lambda r=r, G=G, T=T: e.valu("v_mul_f32", G[r], G[r], T[r % 8])))
                else:
                    C = V(228, 4)
                    for r in rs[::2]: ops.append((1, lambda r=r, G=G, T=T: e.valu("v_pk_mul_f32", T[r % 8:r % 8 + 2], G[r:r + 2], C[0:2])))
                    for r in rs:
                        ops.append((2, lambda r=r, T=T: e.valu("v_exp_f32", T[r % 8], T[r % 8])))
                        if r % 2: ops.append((1, lambda r=r, G=G, U=U: e.valu("v_pk_mul_f32", G[r - 1:r + 1], G[r - 1:r + 1], U[r - 1:r + 1])))
                    for r in rs[::2]: ops.append((1, lambda r=r, T=T: e.valu("v_pk_add_f32", T[r % 8:r % 8 + 2], T[r % 8:r % 8 + 2], C[2:4])))
                    for r in rs: ops.append((2, lambda r=r, T=T: e.valu("v_rcp_f32", T[r % 8], T[r % 8])))
                    for r in rs[::2]: ops.append((1, lambda r=r, G=G, T=T: e.valu("v_pk_mul_f32", G[r:r + 2], G[r:r + 2], T[r % 8:r % 8 + 2])))
                for i in range(4 * hgrp, 4 * hgrp + 4):
                    ops.append((1, lambda i=i, G=G, U=U: e.valu("v_cvt_pk_bf16_f32", U[i], G[2 * i], G[2 * i + 1])))
                def st(hgrp=hgrp, t=t, U=U):
                    e.salu("s_add_u32", sT1, sOutH, t * H_MT_STRIDE + (24 * 2048 if p else 0))
                    e.buf_store(U[4 * hgrp:4 * hgrp + 4], vLane16, sWS, sT1, offset=hgrp * 1024, flags=STF)
                ops.append((-2, st))
        return ops

    def epi_v():
        ops = []
        for r in range(2):
            for t in range(2):
                X = ACC(0, r, t)
                for hgrp in range(2):
                    for i in range(4 * hgrp, 4 * hgrp + 4):
                        ops.append((1, lambda i=i, X=X: e.valu("v_cvt_pk_bf16_f32", X[i], X[2 * i], X[2 * i + 1])))
                    for i in range(4 * hgrp, 4 * hgrp + 4):
                        ops.append((1, lambda i=i, X=X: e.valu("v_cndmask_b32", X[i], X[i], vVconst, sMask)))
                    def st(t=t, X=X, r=r, hgrp=hgrp):
                        e.salu("s_add_u32", sT1, sOutV, 2 * r * 64 * 4096 + t * 4096)
                        e.buf_store(X[4 * hgrp:4 * hgrp + 4], vLane16, sWS, sT1, offset=hgrp * 1024, flags=STF, tag="qkv")
                    st.qkv = True
                    ops.append((-2, st))
        return ops

    def epi_qk():
        ops = []
        for t in range(2):
            X = ACC(1, 0, t)
            if typeY:
                ops.append((1, lambda t=t, X=X: e.valu("v_cvt_pk_bf16_f32", V(208 + t), X[12], X[12])))
            for r in range(16):
                if typeY and r < 12:
                    continue
                ops.append((1, lambda r=r, X=X: e.valu("v_mul_f32", X[r], sQKmul if r < 12 else vMulHi, X[r])))
            for hgrp in range(2):
                for i in range(4 * hgrp, 4 * hgrp + 4):
                    ops.append((1, lambda i=i, X=X: e.valu("v_cvt_pk_bf16_f32", X[i], X[2 * i], X[2 * i + 1])))
                def st(t=t, X=X, hgrp=hgrp):
                    if t == 1 and hgrp == 0:
                        e.salu("s_add_u32", sOutQK, sOutQK, sQKstr)
                    e.buf_store(X[4 * hgrp:4 * hgrp + 4], vLane16, sWS, sOutQK, offset=hgrp * 1024, flags=STF, tag="qkv")
                st.qkv = True
                ops.append((-2, st))
        if typeY:
            for t in range(2):
                D = V(208 + t)
                Gv = V(210 + 2 * t, 2)
                for f in (("v_and_b32", D, "0xffff0000", D), ("v_mul_f32", D, sNL2E, D), ("v_exp_f32", D, D),
                          ("v_mov_b32", Gv[0], 0), ("v_add_f32", D, 1.0, D), ("v_rcp_f32", D, D), ("v_mov_b32", Gv[0], 0),
                          ("v_cvt_pk_bf16_f32", D, D, D),
                          ("v_and_b32", Gv[0], "0xffff0000", D), ("v_sub_f32", Gv[1], 1.0, Gv[0]),
                          ("v_cvt_pk_bf16_f32", Gv[1], Gv[1], Gv[1]), ("v_and_b32", Gv[1], "0xffff0000", Gv[1])):
                    ops.append((2 if f[0] in TRANS else 1, lambda f=f: e.valu(*f)))
            def stg():
                e.valu("v_lshlrev_b32", vX0, 3, lane)
                e.salu("s_lshl_b32", sT1, sMt, 8)
                e.salu("s_add_u32", sT1, sT1, GF - 256)
                e.salu("s_lshl_b32", sT0, sWn, 15)
                e.salu("s_add_u32", sT1, sT1, sT0)
                e.raw("s_mov_b32 exec_lo, 0")
                e.buf_store(V(210, 2), vX0, sWS, sT1, offset=0, flags=STF)
                e.buf_store(V(212, 2), vX0, sWS, sT1, offset=256, flags=STF)
                e.raw("s_mov_b32 exec_lo, -1")
            ops.append((-2, stg))
        return ops

    steps = [(p, ks) for p in range(3) for ks in range(28)]
    def bchunk(p, ks):
        c, kk = ks // 4, ks % 4
        if p == 0: return c, kk * 2048
        if p == 2: return 11 + c, kk * 2048
        return 7 + c // 2, (c % 2) * 8192 + kk * 2048
    def rd(n):
        p, ks = steps[n]
        c, kk = ks // 4, ks % 4
        bn, boff = bchunk(p, ks)
        ops = []
        for t in range(2):
            ops.append(lambda t=t: e.ds_read("ds_read_b128", fA(n, t), vAr[c >> 2][kk], offset=(c & 3) * 16384 + t * 4096, tag=("t", n)))
        for i in range(1 if p == 1 else 2):
            for j in range(2):
                ops.append(lambda i=i, j=j: e.ds_read("ds_read_b64_tr_b16", fB(n, i)[2 * j:2 * j + 2], vTr,
                                                      offset=(bn % 3) * 16384 + boff + i * 8192 + j * 512, tag=("t", n)))
        return ops

    e.stamp(0); e.stamp(12, True)
    e.barrier()
    e.stamp(1)
    for f in rd(0) + rd(1): f()
    epi, stq = [], []
    for n, (p, ks) in enumerate(steps):
        if ks == 0 and p >= 1:
            e.stamp(1 + p)
            if p == 1:
                epi += [(6, lambda: None)] + (epi_v() if typeY else epi_h(0))
                def wdt():
                    e.salu("s_mul_i32", sT0, S(2), 49 * 128)
                    e.salu("s_mul_i32", sT1, sW4, 13 * 128)
                    e.salu("s_add_u32", sT0, sT0, sT1)
                    e.valu("v_min_u32", vX0, 12, lane)
                    e.valu("v_lshlrev_b32", vX0, 7, vX0)
                    e.buf_load(V(243), vX0, sWd, sT0, offset=0)
                if not PRE: stq.append(wdt)
            else:
                epi = [(6, lambda: None)] + epi_qk() + epi
        if p == 0 and ks == 4 * PRE and PRE:
            def pre():
                sTS = S(52, 4)
                e.salu("s_mov_b32", sTS[3], "0x20000")
                e.salu("s_mul_i32", sT0, S(2), 28)
                e.valu("v_min_u32", vX0, 27, lane)
                e.valu("v_add_u32", vX0, sT0, vX0)
                e.valu("v_lshrrev_b32", vX1, 4, vX0)
                e.valu("v_and_b32", vX0, 15, vX0)
                e.valu("v_mul_u32_u24", vX2, 3584, vX1)
                e.valu("v_lshl_add_u32", vX2, vX0, 7, vX2)
                e.salu("s_mov_b32", sT1, 12 * 128)
                e.salu("s_mov_b32", sTS[2], 448 * 3584)
                e.salu("s_mov_b32", sTS[0], S(KG)); e.salu("s_mov_b32", sTS[1], S(KG + 1))
                e.salu("s_cmp_eq_u32", sW4, 1)
                e.raw(f"s_cbranch_scc1 L_k12_pre{ty}")
                e.salu("s_mov_b32", sTS[0], S(KU)); e.salu("s_mov_b32", sTS[1], S(KU + 1))
                e.salu("s_cmp_eq_u32", sW4, 2)
                e.raw(f"s_cbranch_scc1 L_k12_pre{ty}")
                e.salu("s_mov_b32", sT1, 0)
                e.salu("s_mov_b32", sTS[2], 448 * 2688)
                e.salu("s_mov_b32", sTS[0], S(KQ)); e.salu("s_mov_b32", sTS[1], S(KQ + 1))
                e.valu("v_min_u32", vX0, 13, vX0)
                e.valu("v_mul_u32_u24", vX2, 2688, vX1)
                e.valu("v_lshl_add_u32", vX2, vX0, 7, vX2)
                e.salu("s_cmp_eq_u32", sW4, 0)
                e.raw(f"s_cbranch_scc1 L_k12_pre{ty}")
                e.salu("s_mov_b32", sTS[2], 1792 * 896)
                e.salu("s_mov_b32", sTS[0], S(KD)); e.salu("s_mov_b32", sTS[1], S(KD + 1))
                e.salu("s_mul_i32", sT1, S(2), 49 * 128)
                e.valu("v_min_u32", vX0, 48, lane)
                e.valu("v_lshlrev_b32", vX2, 7, vX0)
                e.label(f"L_k12_pre{ty}")
                e.buf_load(V(243), vX2, sTS, sT1, offset=0)
            stq.append(pre)
        nr = 1 if p == 1 else 2
        nm = 2 * nr
        plan = [[] for _ in range(nm)]
        tgt = n + 2
        if tgt < len(steps):
            r_ = rd(tgt)
            bt = bchunk(*steps[tgt])[0]
            if bt != bchunk(*steps[tgt - 1])[0]:
                def bar(tgt=tgt, bt=bt):
                    e.wait_lg_tag(("t", tgt - 1))
                    if bt == N1:
                        assert not any(getattr(f, "qkv", False) for _, f in epi) and not any(getattr(f, "qkv", False) for f in stq)
                        e.wait_vm_tag("qkv")
                    if bt == N1B:
                        assert not epi and not stq, (len(epi), len(stq))
                        e.raw("s_waitcnt vmcnt(0)")
                        e.vm = []
                    e.barrier()
                if steps[tgt][0] == 0:
                    plan[1] = [bar, r_[0]]; plan[2] = r_[1:4]; plan[3] = r_[4:]
                elif nm == 4:
                    plan[0] = r_[0:2]; plan[2] = [bar] + r_[2:4]; plan[3] = r_[4:]
                else:
                    plan[0] = r_[0:2]; plan[1] = [bar] + r_[2:]
            else:
                for g in range(nm):
                    k = -(-len(r_) // (nm - g))
                    plan[g] = r_[:k]; r_ = r_[k:]
        e.wait_lg_tag(("t", n))
        gi = 0
        for i in range(nr):
            for t in range(2):
                swap = typeY and p == 0
                a_, b_ = (fA(n, t), fB(n, i)) if swap else (fB(n, i), fA(n, t))
                e.mfma(ACC(p, i, t), a_, b_, 0 if ks == 0 else None)
                slots = 6 - (1 if gi == nm - 1 else 0)
                for f in plan[gi]:
                    f(); slots -= 1
                if p == 2:
                    slots = min(slots, 4)
                safe = (ks % 4 == 1 or (ks % 4 == 0 and gi >= 2)) if p != 1 else (ks % 8 in (3, 4, 5))
                if safe and stq:
                    stq.pop(0)(); slots -= 2
                while epi and (slots >= epi[0][0] or epi[0][0] == 6):
                    cost, f = epi.pop(0)
                    if cost < 0:
                        if getattr(f, "qkv", False):
                            k_ = sum(1 for x in stq if getattr(x, "qkv", False))
                            stq.sort(key=lambda x: not getattr(x, "qkv", False))
                            stq.insert(k_, f)
                        else:
                            stq.append(f)
                        continue
                    f(); slots -= cost
                    if cost == 6: break
                gi += 1
    e.stamp(4)
    e.valu("v_mov_b32", V(228), sNL2E)
    e.valu("v_mov_b32", V(229), sNL2E)
    e.valu("v_mov_b32", V(230), 1.0)
    e.valu("v_mov_b32", V(231), 1.0)
    for _, f in epi_h(2, pk=True):
        f()
    e.stamp(5)


def gen_attn(e):
    lane = vLane
    Q = [[V(8, 4), V(12, 4)], [V(16, 4), V(20, 4)]]
    K = [V(24, 4), V(28, 4)]
    Vf = [[V(32, 4), V(36, 4)], [V(40, 4), V(44, 4)]]
    Sb = [V(128, 16), V(144, 16)]
    P = [V(48, 8), V(56, 8)]
    O = [V(160, 16), V(176, 16)]
    X = V(192, 16)
    vKV, vRed, vQl = V(1), V(2), V(3)
    vT0, vT1, vT2, vT3 = V(4), V(5), V(6), V(7)
    sQg, sKg, sHead, sQblk, sOo, sKV, sCnt = S(29), S(30), S(34), S(35), S(36), S(37), S(38)
    sSave = S(40, 2)
    e.salu("s_and_b32", sQg, sW4, 1)
    e.salu("s_lshr_b32", sKg, sW4, 1)
    e.salu("s_lshr_b32", sT0, sIdx, 4)
    e.salu("s_lshl_b32", sHead, sXcd, 1)
    e.salu("s_add_u32", sHead, sHead, sT0)
    e.salu("s_and_b32", sQblk, sIdx, 15)
    e.salu("s_lshl_b32", sKV, sHead, 18)
    e.salu("s_add_u32", sKV, sKV, KVF)
    e.salu("s_lshl_b32", sT1, sQblk, 2)
    e.salu("s_lshl_b32", sT0, sQg, 1)
    e.salu("s_add_u32", sT1, sT1, sT0)
    e.salu("s_add_u32", sT1, sT1, sKg)
    e.salu("s_lshl_b32", sOo, sT1, 4)
    e.salu("s_add_u32", sOo, sOo, sHead)
    e.salu("s_lshl_b32", sOo, sOo, 11)
    e.salu("s_add_u32", sOo, sOo, OF)
    e.salu("s_lshl_b32", sT2, sKg, 13)
    e.valu("v_add_u32", vKV, sT2, vLane16)
    e.salu("s_lshl_b32", sT2, sQg, 12)
    e.salu("s_add_u32", sT2, sT2, QL)
    e.valu("v_add_u32", vQl, sT2, vLane16)
    e.salu("s_lshl_b32", sT2, sQg, 13)
    e.salu("s_add_u32", sT2, sT2, ARED)
    e.valu("v_add_u32", vRed, sT2, vLane16)
    for r in range(16):
        e.valu("v_mov_b32", O[0][r], 0)
        e.valu("v_mov_b32", O[1][r], 0)
    for r in range(4):
        e.valu("v_mov_b32", P[1][4 + r], 0)
        e.valu("v_mov_b32", Vf[1][1][r], 0)
    e.salu("s_mov_b32", sCnt, 0)

    def toff(i): return ((i >> 1) % 4) * 16384 + (i & 1) * 4096

    e.barrier()
    e.stamp(6)
    for q in range(2):
        for s_ in range(2):
            e.ds_read("ds_read_b128", Q[q][s_], vQl, offset=q * 2048 + s_ * 1024)
    e.ds_read("ds_read_b128", K[0], vKV, offset=0)
    e.ds_read("ds_read_b128", K[1], vKV, offset=1024)
    e.ds_read("ds_read_b128", Vf[0][1], vKV, offset=3072)
    e.ds_read("ds_read_b128", Vf[0][0], vKV, offset=2048)
    e.mfma(Sb[0], K[0], Q[0][0], 0)
    e.mfma(Sb[0], K[1], Q[0][1])
    e.wait_lg_all()
    e.flush_hazards()

    def unit(i, q):
        Sc, Sn = Sb[q], Sb[1 - q]
        nq = 1 - q
        def ex(a, b):
            for r in range(a, b): e.valu("v_exp_f32", Sc[r], Sc[r])
        def cv(a, b):
            for j in range(a, b): e.valu("v_cvt_pk_bf16_f32", P[q][j], Sc[2 * j], Sc[2 * j + 1])
        e.mfma(Sn, K[0], Q[nq][0], 0)
        if q == 1:
            e.ds_read("ds_read_b128", Vf[(i + 1) % 2][1], vKV, offset=toff(i + 1) + 3072)
        ex(0, 3)
        pi = i if q == 1 else i - 1
        e.mfma(O[nq], Vf[pi % 2][1], P[nq][4:8])
        if q == 1:
            e.ds_read("ds_read_b128", Vf[(i + 1) % 2][0], vKV, offset=toff(i + 1) + 2048)
        ex(3, 6)
        e.mfma(Sn, K[1], Q[nq][1])
        if q == 0:
            e.ds_read("ds_read_b128", K[0], vKV, offset=toff(i + 1))
        ex(6, 8); cv(0, 4); ex(8, 10)
        e.mfma(O[q], Vf[i % 2][0], P[q][0:4])
        if q == 0:
            e.ds_read("ds_read_b128", K[1], vKV, offset=toff(i + 1) + 1024)
        ex(10, 16); cv(4, 8)

    mark = len(e.lines)
    for i in (6, 7):
        for q in range(2): unit(i, q)
    del e.lines[mark:]
    e.label("L_k12_aloop")
    for i in range(8):
        for q in range(2):
            unit(i, q)
        if i % 2 == 1:
            if i == 3:
                e.raw("s_waitcnt vmcnt(0)")
            if i == 7:
                e.salu("s_add_u32", sCnt, sCnt, 1)
                e.salu("s_cmp_lt_u32", sCnt, 4)
            e.barrier()
    e.raw("s_cbranch_scc1 L_k12_aloop")
    e.mfma(O[1], Vf[1][1], P[1][4:8])
    e.stamp(7)
    e.wait_lg_all()
    e.salu("s_cmp_eq_u32", sKg, 0)
    e.raw("s_cbranch_scc1 L_k12_kg0")
    for j in range(4):
        e.ds_write("ds_write_b128", vRed, O[0][4 * j:4 * j + 4], offset=j * 1024)
    for r in range(16):
        e.valu("v_mov_b32", O[0][r], O[1][r])
    for s_ in range(2):
        for r in range(4):
            e.valu("v_mov_b32", Q[0][s_][r], Q[1][s_][r])
    e.valu("v_add_u32", vRed, 4096, vRed)
    e.raw("s_branch L_k12_kgj")
    e.label("L_k12_kg0")
    e.lg = []
    e.last = {}
    e.nop(10)
    for j in range(4):
        e.ds_write("ds_write_b128", vRed, O[1][4 * j:4 * j + 4], offset=4096 + j * 1024)
    e.label("L_k12_kgj")
    e.raw("s_waitcnt lgkmcnt(0)")
    e.lg = []
    e.last = {}
    e.barrier()
    Of, Pf, Qf = O[0], P[0], Q[0]
    for j in range(4):
        e.ds_read("ds_read_b128", X[4 * j:4 * j + 4], vRed, offset=j * 1024)
    Z = V(208, 2)
    e.valu("v_mov_b32", Z[0], 0)
    e.valu("v_mov_b32", Z[1], 0)
    e.valu("v_mov_b32", V(210), 0)
    e.valu("v_mov_b32", V(211), 0)
    for r in range(0, 16, 2):
        e.valu("v_pk_add_f32", Of[r:r + 2], Of[r:r + 2], X[r:r + 2])
    e.valu("v_mov_b32", vT0, Of[12])
    e.valu("v_mov_b32", vT1, Of[12])
    for r in range(0, 16, 2):
        e.valu("v_pk_fma_f32", Z, Of[r:r + 2], V(210, 2), Z)
        if r == 2:
            e.valu("v_permlane32_swap_b32", vT0, vT1)
    e.valu("v_add_f32", vT2, Z[0], Z[1])
    e.salu("s_mov_b32", sT0, hex(f2u(L_LO)))
    e.salu("s_mov_b32", sT1, hex(f2u(L_HI)))
    e.valu("v_add_f32", vT2, vT2, vT1)
    e.valu("v_cmp_le_f32", "vcc", sT0, vT2)
    e.valu("v_cmp_ge_f32", sSave, sT1, vT2)
    e.nop(1)
    e.salu("s_and_b64", "vcc", "vcc", sSave)
    e.raw("s_cmp_eq_u64 vcc, -1")
    e.raw("s_cbranch_scc0 L_k12_slow")
    e.label("L_k12_store")
    e.last = {}
    e.nop(2)
    e.valu("v_rcp_f32", vT0, vT1)
    e.valu("v_cmp_gt_u32", "vcc", 32, lane)
    e.valu("v_mov_b32", vT2, 0)
    e.valu("v_mov_b32", vT1, vT0)
    e.valu("v_cndmask_b32", vT2, vT2, vT0)
    e.valu("v_mov_b32", vT3, vT2)
    for r in range(0, 16, 2):
        e.valu("v_pk_mul_f32", Of[r:r + 2], Of[r:r + 2], V(4, 2) if r < 12 else V(6, 2))
    for j in range(8):
        e.valu("v_cvt_pk_bf16_f32", Pf[j], Of[2 * j], Of[2 * j + 1])
    e.buf_store(Pf[0:4], vLane16, sWS, sOo, offset=0, flags=STF)
    e.buf_store(Pf[4:8], vLane16, sWS, sOo, offset=1024, flags=STF)
    e.stamp(8)
    if Emitter.STAMPS:
        e.wait_vm_all()
    e.stamp(9); e.stamp(13, True)
    e.dump_stamps(sWS, 0, sWave)
    e.raw("s_endpgm")
    e.label("L_k12_slow")
    e.lg, e.vm, e.last = [], [], {}
    vM = vT3
    Sc = Sb[0]
    e.valu("v_mov_b32", vM, "0xff800000")
    for r in range(16):
        e.valu("v_mov_b32", Of[r], 0)
    e.salu("s_mov_b32", sCnt, 0)
    e.salu("s_mov_b32", sT2, sKV)
    e.label("L_k12_slow_loop")
    e.buf_load(K[0], vLane16, sWS, sT2, offset=0, flags=LDF)
    e.buf_load(K[1], vLane16, sWS, sT2, offset=1024, flags=LDF)
    e.buf_load(Vf[0][0], vLane16, sWS, sT2, offset=2048, flags=LDF)
    e.buf_load(Vf[0][1], vLane16, sWS, sT2, offset=3072, flags=LDF)
    e.mfma(Sc, K[0], Qf[0], 0)
    e.mfma(Sc, K[1], Qf[1])
    e.valu("v_max_f32", vT0, Sc[0], Sc[1])
    for r in range(2, 16, 2):
        e.valu("v_max3_f32", vT0, vT0, Sc[r], Sc[r + 1])
    e.valu("v_mov_b32", vT1, vT0)
    e.valu("v_permlane32_swap_b32", vT0, vT1)
    e.valu("v_max3_f32", vT0, vT0, vT1, vM)
    e.valu("v_sub_f32", vT1, vM, vT0)
    e.valu("v_exp_f32", vT1, vT1)
    e.valu("v_mov_b32", vM, vT0)
    for r in range(16):
        e.valu("v_sub_f32", Sc[r], Sc[r], vM)
    for r in range(16):
        e.valu("v_exp_f32", Sc[r], Sc[r])
    for r in range(16):
        e.valu("v_mul_f32", Of[r], Of[r], vT1)
    for j in range(8):
        e.valu("v_cvt_pk_bf16_f32", Pf[j], Sc[2 * j], Sc[2 * j + 1])
    e.mfma(Of, Vf[0][0], Pf[0:4])
    e.mfma(Of, Vf[0][1], Pf[4:8])
    e.salu("s_add_u32", sT2, sT2, 4096)
    e.salu("s_add_u32", sCnt, sCnt, 1)
    e.flush_hazards()
    e.salu("s_cmp_lt_u32", sCnt, 64)
    e.raw("s_cbranch_scc1 L_k12_slow_loop")
    e.valu("v_mov_b32", vT0, Of[12])
    e.valu("v_mov_b32", vT1, Of[12])
    e.valu("v_permlane32_swap_b32", vT0, vT1)
    e.raw("s_branch L_k12_store")


def gen_helper2(e):
    lane = vLane
    sHead, sQblk, sKV, sLdsKV = S(29), S(30), S(34), S(35)
    sMt64, sNt, sLdsW, sWoff, sHoff, sHoff1 = S(36), S(37), S(38), S(39), S(40), S(41)
    vFl = V(14)
    e.salu("s_lshr_b32", sT0, sIdx, 4)
    e.salu("s_lshl_b32", sHead, sXcd, 1)
    e.salu("s_add_u32", sHead, sHead, sT0)
    e.salu("s_and_b32", sQblk, sIdx, 15)
    e.salu("s_lshl_b32", sLdsKV, sW4, 12)
    e.salu("s_lshl_b32", sKV, sHead, 18)
    e.salu("s_add_u32", sKV, sKV, KVF)
    e.salu("s_add_u32", sKV, sKV, sLdsKV)
    e.salu("s_mul_i32", sT0, sIdx, 37)
    e.salu("s_lshr_b32", sT0, sT0, 8)
    e.salu("s_mul_i32", sT1, sT0, 7)
    e.salu("s_sub_u32", sNt, sIdx, sT1)
    e.salu("s_lshl_b32", sMt64, sXcd, 2)
    e.salu("s_add_u32", sMt64, sMt64, sT0)
    e.salu("s_min_u32", sMt64, sMt64, 31)
    def dma_KV(s):
        e.salu("s_add_u32", "m0", sLdsKV, (s % 4) * 16384)
        e.salu("s_add_u32", sT0, sKV, s * 16384)
        for i in range(4):
            e.buf_load_lds(vLane16, sWS, sT0, offset=i * 1024, tag=("KV", s), flags=LDF)

    e.stamp(0)
    e.raw(f"v_mov_b32 v8, {QL + 8192}")
    e.salu("s_cmp_lg_u32", sW4, 0)
    e.raw("s_cbranch_scc1 L_k12_wl")
    e.salu("s_mov_b32", sT0, F1)
    poll(e, "L_k12_p1", vFl, sWS, sT0, 33, V(15), sNonce)
    e.raw(f"v_mov_b32 v9, {sNonce}")
    e.raw("ds_write_b32 v8, v9")
    e.raw("s_branch L_k12_p1ok")
    e.label("L_k12_wl")
    e.salu("s_mov_b32", sT2, 0)
    e.label("L_k12_wl2")
    e.raw("ds_read_b32 v9, v8")
    e.salu("s_add_u32", sT2, sT2, 1)
    e.raw("s_waitcnt lgkmcnt(0)")
    e.raw("v_readfirstlane_b32 s33, v9")
    e.salu("s_cmp_gt_u32", sT2, SPIN * 16)
    e.raw("s_cbranch_scc1 L_k12_p1ok")
    e.raw(f"s_cmp_eq_u32 s33, {sNonce}")
    e.raw("s_cbranch_scc1 L_k12_p1ok")
    e.raw("s_sleep 1")
    e.raw("s_branch L_k12_wl2")
    e.label("L_k12_p1ok")
    e.raw("s_waitcnt vmcnt(0) lgkmcnt(0)")
    e.vm, e.last = [], {}
    e.stamp(1); e.stamp(7, True)
    dma_KV(0)
    e.salu("s_lshl_b32", sT0, sHead, 6)
    e.salu("s_lshl_b32", sT1, sQblk, 2)
    e.salu("s_add_u32", sT0, sT0, sT1)
    e.salu("s_add_u32", sT0, sT0, sW4)
    e.salu("s_lshl_b32", sT0, sT0, 11)
    e.salu("s_lshl_b32", sT1, sW4, 11)
    e.salu("s_add_u32", "m0", sT1, QL)
    if QF: e.salu("s_add_u32", sT0, sT0, QF)
    else: e.nop(1)
    for i in range(2):
        e.buf_load_lds(vLane16, sWS, sT0, offset=i * 1024, tag=("KV", 0), flags=LDF)
    dma_KV(1); dma_KV(2)
    st0 = list(e.vm)
    e.raw(f"s_setprio {HPRIO}")
    e.salu("s_cmp_ge_u32", sIdx, 28)
    e.raw("s_cbranch_scc1 L_k12_nogemm")
    helper_loop(e, True, dma_KV, sMt64, sNt, sLdsW, sWoff, sHoff, sHoff1)
    e.raw("s_endpgm")
    e.label("L_k12_nogemm")
    e.lg, e.vm, e.last = [], list(st0), {}
    helper_loop(e, False, dma_KV, sMt64, sNt, sLdsW, sWoff, sHoff, sHoff1)
    e.raw("s_endpgm")


def helper_loop(e, gemm, dma_KV, sMt64, sNt, sLdsW, sWoff, sHoff, sHoff1):
    lane = vLane
    g = int(gemm)
    ND = 4
    ACC = [[V(80, 16), V(96, 16)], [V(112, 16), V(128, 16)]]
    def HF_(s, st, t): return V(16 + ((s % ND) * 4 + st * 2 + t) * 4, 4)
    def WF(st, u): return V(144 + (st * 2 + u) * 4, 4)
    vW = [V(2), V(3), V(4), V(5)]
    vTr = [V(6), V(7)]
    vRw, vRr, vF2 = V(11), V(12), V(13)
    sWl, sHl = S(42), S(43)
    if gemm:
        srd(e, sWd, KD, 1792 * 896)
        e.valu("v_lshrrev_b32", vX0, 3, lane)
        e.valu("v_bfe_u32", vX1, lane, 2, 1)
        e.valu("v_bfe_u32", vX2, lane, 4, 1)
        e.valu("v_xor_b32", vX1, vX1, vX2)
        e.valu("v_mul_u32_u24", vW[0], 896, vX0)
        e.valu("v_lshl_add_u32", vW[0], vX1, 6, vW[0])
        e.valu("v_and_b32", vX1, 3, lane)
        e.valu("v_lshl_add_u32", vW[0], vX1, 4, vW[0])
        for i in range(1, 4):
            e.valu("v_add_u32", vW[i], i * (8 * 896 - 1024), vW[0])
        e.salu("s_lshl_b32", sLdsW, sW4, 14)
        e.salu("s_add_u32", sLdsW, sLdsW, WR)
        e.salu("s_mul_i32", sWoff, sW4, 6 * 32 * 896)
        e.salu("s_lshl_b32", sT0, sNt, 7)
        e.salu("s_add_u32", sWoff, sWoff, sT0)
        e.salu("s_lshl_b32", sT0, sW4, 1)
        e.salu("s_add_u32", sT0, sT0, 18)
        e.salu("s_mul_i32", sWl, sT0, 32 * 896)
        e.salu("s_add_u32", sWl, sWl, sWoff)
        e.salu("s_lshl_b32", sHl, sT0, 11)
        e.salu("s_mul_i32", sHoff, sMt64, 2 * H_MT_STRIDE)
        e.salu("s_mul_i32", sT0, sW4, 6 * 2048)
        e.salu("s_add_u32", sHoff, sHoff, sT0)
        e.salu("s_add_u32", sHoff, sHoff, HF)
        e.salu("s_add_u32", sHl, sHl, sHoff)
        e.valu("v_lshrrev_b32", vX1, 5, lane)
        e.valu("v_bfe_u32", vX0, lane, 2, 2)
        e.valu("v_lshl_add_u32", vX0, vX1, 2, vX0)
        e.valu("v_bfe_u32", vX2, lane, 4, 1)
        e.valu("v_lshlrev_b32", vX2, 5, vX2)
        e.valu("v_and_b32", vX1, 3, lane)
        e.valu("v_lshl_add_u32", vX2, vX1, 3, vX2)
        e.valu("v_lshl_add_u32", vX2, vX0, 7, vX2)
        e.valu("v_bfe_u32", vX1, lane, 3, 1)
        e.valu("v_lshl_add_u32", vTr[0], vX1, 6, vX2)
        e.valu("v_xor_b32", vTr[1], 64, vTr[0])
        e.valu("v_add_u32", vTr[0], sLdsW, vTr[0])
        e.valu("v_add_u32", vTr[1], sLdsW, vTr[1])
        e.valu("v_add_u32", vRw, sLdsW, vLane16)
        e.salu("s_lshl_b32", sT0, sW4, 12)
        e.salu("s_add_u32", sT0, sT0, WR)
        e.valu("v_add_u32", vRr, sT0, vLane16)
        e.salu("s_lshr_b32", sT0, sMt64, 1)
        e.valu("v_and_b32", vX0, 15, lane)
        e.valu("v_lshl_add_u32", vF2, vX0, 4, sT0)
        e.valu("v_lshlrev_b32", vF2, 7, vF2)

    def W_ops(s):
        def w(i):
            if i == 0:
                e.salu("s_add_u32", "m0", sLdsW, (s % ND) * 4096)
                e.salu("s_add_u32", sT2, sWoff if s < 6 else sWl, s * 32 * 896)
            e.buf_load_lds(vW[i], sWd, sT2, offset=i * 1024, tag=("W", s))
        return [lambda i=i: w(i) for i in range(4)]

    def H_ops(s):
        def h(st, t):
            e.salu("s_add_u32", sT1, sHoff if s < 6 else sHl, s * 2048 + t * H_MT_STRIDE)
            e.buf_load(HF_(s, st, t), vLane16, sWS, sT1, offset=st * 1024, flags=LDF)
        return [lambda st=st, t=t: h(st, t) for st in range(2) for t in range(2)]

    def compute(s, side):
        e.wait_vm_tag(("W", s))
        for st in range(2):
            for u in range(2):
                for j in range(2):
                    e.ds_read("ds_read_b64_tr_b16", WF(st, u)[2 * j:2 * j + 2], vTr[u],
                              offset=(s % ND) * 4096 + st * 2048 + j * 1024)
        if side: side.pop(0)()
        for st in range(2):
            for u in range(2):
                for t in range(2):
                    e.mfma(ACC[u][t], WF(st, u), HF_(s, st, t), 0 if (s == 0 and st == 0) else None)
                    if side: side.pop(0)()

    P2 = POLL2
    comp = {2: [0], 3: [1], 4: [2], 5: [3], 6: [4], 7: [5]}
    late = list(range(6, 14))
    i0 = max(P2 + 2, 8)
    for i in range(i0, 14):
        left = 14 - i
        k = -(-len(late) // left) if i >= 12 else 1
        comp.setdefault(i, [])
        comp[i] += late[:k]; late = late[k:]
    assert not late
    done_at = {s: i for i, l in comp.items() for s in l}
    todo = [(s, k) for s in range(14) for k in ("H", "W")]

    def check(name, base, nl):
        e.valu("v_cmp_ne_u32", "vcc", sNonce, V(8))
        e.nop(1)
        e.raw(f"s_and_b32 s33, vcc_lo, {hex((1 << nl) - 1)}")
        e.raw(f"s_cbranch_scc0 {name}ok")
        keep = list(e.vm)
        e.salu("s_mov_b32", sT0, base)
        poll(e, name, vF2, sWS, sT0, nl, V(8), sNonce)
        e.label(name + "ok")
        e.vm = keep
        e.last = {}

    e.wait_vm_tag(("KV", 1))
    e.stamp(2)
    e.barrier()
    for i in range(16):
        if i in (4, 8, 12): e.stamp(2 + i // 4)
        if i + 3 <= 15:
            dma_KV(i + 3)
        if i == 2:
            flag_store(e, F2)
        if gemm:
            if i in (0, P2 - 1):
                e.salu("s_mov_b32", sT0, F1B if i == 0 else F2)
                e.buf_load(V(8), vF2, sWS, sT0, offset=0, flags=" sc1")
            if i == 1:
                check("L_k12_p1b", F1B, 12)
            if i == P2:
                e.stamp(10)
                check("L_k12_p2", F2, 16)
                e.stamp(11)
            side = []
            budget = 3 if i < 13 else 4
            for (s, k) in list(todo):
                if budget == 0: break
                ok = (s < ND or done_at[s - ND] < i) and not (k == "H" and (i < 1 or (s >= 6 and i < P2)))
                if ok:
                    side += H_ops(s) if k == "H" else W_ops(s)
                    todo.remove((s, k)); budget -= 1
            for s in comp.get(i, []):
                compute(s, side)
            while side: side.pop(0)()
            if i == 14:
                assert not todo
                for u in range(2):
                    for t in range(2):
                        for j in range(4):
                            e.ds_write("ds_write_b128", vRw, ACC[u][t][4 * j:4 * j + 4],
                                       offset=(t * 2 + u) * 4096 + j * 1024)
                e.wait_lg_all()
                e.raw("s_setprio 2")
            if i == 15:
                X = [V(16 + 16 * w, 16) for w in range(4)]
                for w in range(4):
                    for j in range(4):
                        e.ds_read("ds_read_b128", X[w][4 * j:4 * j + 4], vRr, offset=w * 16384 + j * 1024)
                for r in range(16):
                    e.valu("v_add_f32", X[0][r], X[0][r], X[1][r])
                    e.valu("v_add_f32", X[2][r], X[2][r], X[3][r])
                for r in range(16):
                    e.valu("v_add_f32", X[0][r], X[0][r], X[2][r])
                for j in range(8):
                    e.valu("v_cvt_pk_bf16_f32", X[1][j], X[0][2 * j], X[0][2 * j + 1])
                e.salu("s_lshr_b32", sT0, sW4, 1)
                e.salu("s_lshl_b32", sT1, sMt64, 1)
                e.salu("s_add_u32", sT0, sT0, sT1)
                e.salu("s_mul_i32", sT0, sT0, 14)
                e.salu("s_and_b32", sT1, sW4, 1)
                e.salu("s_add_u32", sT0, sT0, sT1)
                e.salu("s_lshl_b32", sT1, sNt, 1)
                e.salu("s_add_u32", sT0, sT0, sT1)
                e.salu("s_lshl_b32", sT0, sT0, 11)
                e.salu("s_add_u32", sT0, sT0, BF)
                e.buf_store(X[1][0:4], vLane16, sWS, sT0, offset=0, flags=STF)
                e.buf_store(X[1][4:8], vLane16, sWS, sT0, offset=1024, flags=STF)
        if i + 2 <= 15:
            e.wait_vm_tag(("KV", i + 2))
        if i == 13:
            srd(e, sWo, KO, 448 * 896)
            e.salu("s_lshl_b32", sT0, sIdx, 2)
            e.salu("s_add_u32", sT0, sT0, sW4)
            e.salu("s_mul_i32", sT0, sT0, 25 * 128)
            e.valu("v_min_u32", vX0, 24, lane)
            e.valu("v_lshlrev_b32", vX0, 7, vX0)
            e.buf_load(V(10), vX0, sWo, sT0, offset=0)
        if i < 15:
            e.barrier()
    e.stamp(9); e.stamp(13, True)
    e.dump_stamps(sWS, 0, sWave)


K12_DESC = dict(name="k12_kernel", vgpr=256, acc=256, sgpr=96, grid=256, block=512, lds=LDS)
```

```python
MB = 1 << 20
QF = 0
KVF = 2 * MB
HF = 6 * MB
H_MT_STRIDE = 112 * 1024
BF = 14 * MB
OF = 16 * MB
GF = 18 * MB
import os
WS_USED = (24 if os.environ.get('STAMPS') else 19) * MB
WS_BASE = int(os.environ.get('WS_BASE', '0')) * MB
F1 = GF + 65536
F2 = GF + 131072
NONCE = GF + 262144
F1B = GF + 196608
F3 = GF + 327680
```

```python
import sys, os
from emit import Emitter
NAME = "gated_mix__softmax_full_mha__swiglu_ffn__prompt"

def header():
    ref = open(f"cdna_kernels/{NAME}.s.ref").read().splitlines()
    out = []
    for l in ref:
        if l.startswith(";") and "@launch" not in l and "Override launch" not in l and "grid=ceil" not in l:
            out.append(l)
        elif not l.startswith(";"):
            break
    return out

def build(kernels, path):
    lines = header()
    for _, d in kernels:
        lines.append(f"; @launch {('kernel=' + d['name'] + ' ') if (len(kernels) > 1 or os.environ.get('LIST')) else ''}grid=({d['grid']},1,1) block=({d['block']},1,1) lds={d['lds']}")
    lines.append('.amdgcn_target "amdgcn-amd-amdhsa--gfx950"')
    lines.append(".text")
    body = "\n".join(lines) + "\n"
    seen = set()
    for g, d in kernels:
        if d["name"] in seen: continue
        seen.add(d["name"])
        e = Emitter()
        g(e)
        body += f".globl {d['name']}\n.p2align 8\n.type {d['name']},@function\n" + e.text()
    body += 'L_code_end:\n.section .rodata,"a"\n'
    seen = set()
    for g, d in kernels:
        if d["name"] in seen: continue
        seen.add(d["name"])
        body += f""".p2align 6
.amdhsa_kernel {d['name']}
  .amdhsa_next_free_vgpr {d['vgpr']}
  .amdhsa_next_free_sgpr {102 if Emitter.STAMPS else d['sgpr']}
  .amdhsa_accum_offset {d['acc']}
  .amdhsa_group_segment_fixed_size 0
  .amdhsa_kernarg_size 88
  .amdhsa_user_sgpr_count 2
  .amdhsa_user_sgpr_kernarg_segment_ptr 1
  .amdhsa_system_sgpr_workgroup_id_x 1
.end_amdhsa_kernel
"""
    open(path, "w").write(body)

if __name__ == "__main__":
    import os
    if os.environ.get("STAMPS"):
        Emitter.STAMPS = True
    import k12, k3
    ks = [(k12.gen_k12, k12.K12_DESC)] + ([] if k12.FUSE3 else [(k3.gen_k3, k3.K3_DESC)])
    out = sys.argv[1] if len(sys.argv) > 1 else "cur.s"
    build(ks, out)
    print("wrote", out)
```

```python
from emit import *
from layout import *
import os
import struct

ROT1 = int(os.environ.get('ROT1', '1'))
STF = ' sc1'
LDF = ' sc1'
EB1 = int(os.environ.get('EB1', '3'))
N1 = int(os.environ.get('N1', '14'))
N1B = int(os.environ.get('N1B', '16'))
PRE = int(os.environ.get('PRE', '1'))
QANY = int(os.environ.get('QANY', '1'))
POLL2 = int(os.environ.get('POLL2', '6'))
SPIN = 1 << 17
SLEEP = int(os.environ.get('SLEEP', '4'))
HPRIO = int(os.environ.get('HPRIO', '0'))

LOG2E = 1.4426950408889634
QSCALE = (28 ** -0.5) * LOG2E
L_LO = 2.0 ** -50
L_HI = 2.0 ** 60


def f2u(x):
    return struct.unpack("<I", struct.pack("<f", x))[0]


sX, sWg, sWu, sWq, sWS = S(4, 4), S(8, 4), S(12, 4), S(16, 4), S(20, 4)
sWd, sGw, sDbg, sWo = S(64, 4), S(60, 4), S(44, 4), S(8, 4)
sWave, sMblk, sCg, sW4 = S(24), S(25), S(26), S(28)
sT0, sT1, sT2 = S(32), S(33), S(31)
sRot = S(3)
sXcd, sIdx = S(68), S(69)
KX, KQ, KO, KG, KU, KD, KGW, KDBG, KWS = 72, 74, 76, 80, 82, 84, 86, 88, 90

BR = 114688
WR = 65536
QL = 131072
ARED = 147456
LDS = 163840
vX0, vX1, vX2, vLane, vLane16 = V(250), V(251), V(252), V(253), V(254)


def srd(e, s, lo, size):
    e.salu("s_mov_b32", s[0], S(lo))
    e.salu("s_mov_b32", s[1], S(lo + 1))
    e.salu("s_mov_b32", s[2], size)
    e.salu("s_mov_b32", s[3], "0x20000")


def gen_k12(e):
    e.label("k12_kernel")
    e.salu("s_cmp_ge_u32", S(2), 256)
    e.raw("s_cbranch_scc1 L_k12_end")
    e.s_load(S(72, 4), S(0, 2), 0)
    e.s_load(S(76, 2), S(0, 2), 16)
    e.s_load(S(80, 8), S(0, 2), 32)
    e.s_load(S(88, 4), S(0, 2), 72)
    e.salu("s_and_b32", sXcd, S(2), 7)
    e.salu("s_lshr_b32", sIdx, S(2), 3)
    e.salu("s_and_b32", sMblk, sXcd, 1)
    e.salu("s_lshl_b32", sMblk, sMblk, 3)
    e.salu("s_and_b32", sRot, sIdx, 7)
    e.salu("s_add_u32", sMblk, sMblk, sRot)
    e.salu("s_lshr_b32", sT0, sXcd, 1)
    e.salu("s_lshr_b32", sT1, sIdx, 3)
    e.salu("s_mul_i32", sCg, sT0, 3)
    e.salu("s_add_u32", sCg, sCg, sT1)
    e.salu("s_add_u32", sT0, sT0, 12)
    e.salu("s_cmp_eq_u32", sT1, 3)
    e.salu("s_cselect_b32", sCg, sT0, sCg)
    if ROT1:
        e.salu("s_lshl_b32", sT1, sT1, 1)
        e.salu("s_add_u32", sRot, sRot, sT1)
        e.salu("s_sub_u32", sT0, sRot, 7)
        e.salu("s_cmp_ge_u32", sRot, 7)
        e.salu("s_cselect_b32", sRot, sT0, sRot)
    else:
        e.salu("s_mov_b32", sRot, 0)
    e.valu("v_lshrrev_b32", vX0, 6, V(0))
    e.valu("v_and_b32", vLane, 63, V(0))
    e.valu("v_readfirstlane_b32", sWave, vX0)
    e.valu("v_lshlrev_b32", vLane16, 4, vLane)
    e.salu("s_and_b32", sW4, sWave, 3)
    e.salu("s_cmp_lt_u32", sWave, 4)
    e.raw("s_cbranch_scc1 L_k12_heavy")
    saved = list(e.lg)

    def reset():
        e.lg, e.vm, e.last, e.smem_pending = list(saved), [], {}, True
    e.raw("s_setprio 3")
    e.stamp(12, True)
    e.salu("s_cmp_ge_u32", sCg, 12)
    e.raw("s_cbranch_scc1 L_k12_loadY")
    e.flush_hazards()
    gen_loader1(e, False)
    e.raw("s_branch L_k12_help2")
    e.label("L_k12_loadY")
    reset()
    gen_loader1(e, True)
    e.label("L_k12_help2")
    e.lg, e.vm, e.last = [], [], {}
    gen_helper2(e)
    e.label("L_k12_heavy")
    reset()
    e.salu("s_cmp_ge_u32", sCg, 12)
    e.raw("s_cbranch_scc1 L_k12_compY")
    gen_compute1(e, False)
    e.raw("s_branch L_k12_attn")
    e.label("L_k12_compY")
    reset()
    gen_compute1(e, True)
    e.label("L_k12_attn")
    e.lg, e.vm, e.last = [], [], {}
    e.nop(2)
    gen_attn(e)
    e.label("L_k12_end")
    e.raw("s_endpgm")


sNonce = S(27)


def poll(e, name, vaddr, srd_, soff, nlanes, vtmp, cmp_s):
    mask = (1 << nlanes) - 1
    e.wait_lg_all()
    e.raw(f"s_mov_b32 exec_lo, {hex(mask & 0xffffffff)}")
    e.raw(f"s_mov_b32 exec_hi, {hex(mask >> 32)}")
    e.salu("s_mov_b32", sT2, 0)
    e.label(name)
    e.raw(f"buffer_load_dword {vtmp}, {vaddr}, {srd_}, {soff} offen sc1")
    e.salu("s_add_u32", sT2, sT2, 1)
    e.raw("s_waitcnt vmcnt(0)")
    e.raw(f"v_cmp_ne_u32 vcc, {cmp_s}, {vtmp}")
    e.salu("s_cmp_gt_u32", sT2, SPIN)
    e.raw(f"s_cbranch_scc1 {name}_out")
    e.raw("s_and_b64 exec, exec, vcc")
    e.raw(f"s_cbranch_scc0 {name}_out")
    if SLEEP: e.raw(f"s_sleep {SLEEP}")
    e.raw(f"s_branch {name}")
    e.label(name + "_out")
    e.raw("s_mov_b64 exec, -1")
    e.vm = []
    e.last = {}


def flag_store(e, base):
    e.salu("s_lshl_b32", sT0, sCg, 4)
    e.salu("s_add_u32", sT0, sT0, sMblk)
    e.salu("s_lshl_b32", sT0, sT0, 7)
    e.salu("s_add_u32", sT0, sT0, base)
    e.salu("s_min_u32", sT1, sW4, 1)
    e.salu("s_lshl_b32", sT1, sT1, 19)
    e.salu("s_add_u32", sT0, sT0, sT1)
    e.valu("v_mov_b32", V(9), sNonce)
    e.valu("v_mov_b32", V(249), 0)
    e.raw("s_mov_b64 exec, 1")
    e.buf_store(V(9), V(249), sWS, sT0, offset=0, flags=" sc1")
    e.raw("s_mov_b64 exec, -1")


def gen_loader1(e, typeY):
    ty = int(typeY)
    lane = vLane
    vA = [V(1), V(2), V(3), V(4)]
    vB = [V(5), V(6)]
    vB2 = [V(7), V(8)]
    vGa = V(13)
    vG = V(16, 7)
    sAoff, sB0, sQo, sVo = S(29), S(30), S(34), S(48)
    sLA, sLB = S(35), S(36)
    sCh = [S(37 + i) for i in range(7)]
    e.valu("v_lshrrev_b32", vX0, 3, lane)
    e.valu("v_and_b32", vX1, 7, lane)
    e.valu("v_lshrrev_b32", vX2, 1, vX0)
    e.valu("v_xor_b32", vX2, vX2, vX1)
    e.valu("v_mul_u32_u24", vA[0], 896, vX0)
    e.valu("v_lshl_add_u32", vA[0], vX2, 4, vA[0])
    e.valu("v_xor_b32", vA[1], 64, vA[0])
    e.valu("v_add_u32", vA[2], 2 * 6144, vA[0])
    e.valu("v_add_u32", vA[3], 3 * 6144, vA[1])
    e.valu("v_add_u32", vA[1], 6144, vA[1])
    e.valu("v_bfe_u32", vX1, lane, 2, 1)
    e.valu("v_bfe_u32", vX2, lane, 4, 1)
    e.valu("v_xor_b32", vX1, vX1, vX2)
    e.valu("v_and_b32", vX2, 3, lane)
    for vv, l_, us in ((vB, 3584, 64), (vB2, 2688, 56)):
        e.valu("v_mul_u32_u24", vv[0], l_, vX0)
        e.valu("v_mul_u32_u24", vv[1], us, vX1)
        e.valu("v_add_u32", vv[0], vv[0], vv[1])
        e.valu("v_lshl_add_u32", vv[0], vX2, 4, vv[0])
        e.valu("v_add_u32", vv[1], 8 * l_ - 1024, vv[0])
    e.salu("s_lshl_b32", sT0, sMblk, 2)
    e.salu("s_add_u32", sT0, sT0, sW4)
    e.salu("s_mul_i32", sAoff, sT0, 32 * 896)
    e.salu("s_mul_i32", sT0, sW4, 16 * 3584)
    e.salu("s_lshl_b32", sB0, sCg, 7)
    e.salu("s_add_u32", sB0, sB0, sT0)
    e.salu("s_mul_i32", sT0, sW4, 16 * 2688)
    e.salu("s_mul_i32", sQo, sCg, 112)
    e.salu("s_add_u32", sQo, sQo, sT0)
    if typeY:
        e.salu("s_mul_i32", sVo, sCg, 224)
        e.salu("s_add_u32", sVo, sVo, sT0)
        e.salu("s_sub_u32", sVo, sVo, 12 * 224 - 1792)
    e.salu("s_lshl_b32", sLA, sW4, 12)
    e.salu("s_lshl_b32", sLB, sW4, 11)
    e.salu("s_add_u32", sLB, sLB, BR)
    e.salu("s_mov_b32", sCh[0], sRot)
    for c in range(1, 7):
        e.salu("s_add_u32", sCh[c], sCh[c - 1], 1)
        e.salu("s_cmp_eq_u32", sCh[c], 7)
        e.salu("s_cselect_b32", sCh[c], 0, sCh[c])
    e.wait_lg_all()
    srd(e, sX, KX, 2048 * 896)
    srd(e, sWg, KG, 448 * 3584)
    srd(e, sWu, KU, 448 * 3584)
    srd(e, sWq, KQ, 448 * 2688)

    def dmaA(c):
        e.salu("s_lshl_b32", sT0, sCh[c], 7)
        e.salu("s_add_u32", "m0", sLA, c * 16384)
        e.salu("s_add_u32", sT0, sT0, sAoff)
        for i in range(4):
            e.buf_load_lds(vA[i], sX, sT0, offset=i * 1024, tag=("C", c))

    def dmaB(n):
        sl = (n % 3) * 16384
        if n < 7 and typeY:
            e.salu("s_mul_i32", sT1, sCh[n], 64 * 2688)
            for r in range(2):
                e.salu("s_add_u32", "m0", sLB, sl + r * 8192)
                e.salu("s_add_u32", sT1, sT1, sVo if r == 0 else 112)
                for i in range(2):
                    e.buf_load_lds(vB2[i], sWq, sT1, offset=i * 1024, tag=("C", n))
        elif n < 7 or n >= 11:
            c = n if n < 7 else n - 11
            e.salu("s_mul_i32", sT1, sCh[c], 64 * 3584)
            e.salu("s_add_u32", sT1, sT1, sB0)
            if n >= 11: e.salu("s_add_u32", sT1, sT1, 12 * 128)
            for r in range(2):
                e.salu("s_add_u32", "m0", sLB, sl + r * 8192)
                e.nop(1)
                for i in range(2):
                    e.buf_load_lds(vB[i], (sWg, sWu)[r], sT1, offset=i * 1024, tag=("C", n))
        else:
            for r in range(2):
                c = 2 * (n - 7) + r
                if c < 7:
                    e.salu("s_mul_i32", sT1, sCh[c], 64 * 2688)
                    e.salu("s_add_u32", "m0", sLB, sl + r * 8192)
                    e.salu("s_add_u32", sT0, sQo, sT1)
                    for i in range(2):
                        e.buf_load_lds(vB2[i], sWq, sT0, offset=i * 1024, tag=("C", n))

    def land(n):
        e.wait_vm_tag(("C", n))
        if typeY and 7 <= n < 11:
            e.raw("s_mov_b64 exec, 0xffff")
            for r in range(2):
                c = 2 * (n - 7) + r
                if c < 7:
                    e.ds_write("ds_write_b16", vGa, vG[c], offset=(n % 3) * 16384 + r * 8192)
            e.raw("s_mov_b64 exec, -1")
            e.wait_lg_all()

    dmaA(0); dmaB(0); dmaA(1); dmaB(1)
    srd(e, sWS, KWS, WS_USED)
    srd(e, sDbg, KDBG, 256)
    if typeY:
        srd(e, sGw, KGW, 896)
        e.valu("v_and_b32", vX0, 15, lane)
        e.valu("v_lshlrev_b32", vX1, 1, vX0)
        e.salu("s_lshl_b32", sT0, sW4, 5)
        for c in range(7):
            e.salu("s_lshl_b32", sT2, sCh[c], 7)
            e.salu("s_add_u32", sT2, sT2, sT0)
            e._issue(f"buffer_load_ushort {vG[c]}, {vX1}, {sGw}, {sT2} offen", "vmem", vX1.regs() + sGw.regs() + sT2.regs(), vG[c].regs())
            e.vm.append((-1, set(vG[c].regs()), "gw"))
        e.valu("v_lshlrev_b32", vGa, 7, vX0)
        e.valu("v_bfe_u32", vX1, lane, 1, 1)
        e.valu("v_lshl_add_u32", vGa, vX1, 6, vGa)
        e.valu("v_add_u32", vGa, sLB, vGa)
        e.valu("v_add_u32", vGa, 56, vGa)
    land(0)
    e.barrier()
    for n in range(17):
        if n + 2 < 7:
            dmaA(n + 2)
        if n + 2 < 18:
            dmaB(n + 2)
        if n == N1:
            flag_store(e, F1)
            e.stamp(6, True)
        if n == N1B and not typeY:
            flag_store(e, F1B)
        if n == 8:
            e.valu("v_mov_b32", V(12), 0)
            e.buf_load(V(10, 2), V(12), sDbg, 0, offset=0, flags=" sc1")
        if n == 11:
            e.valu("v_readfirstlane_b32", sT0, V(10))
            e.valu("v_readfirstlane_b32", sNonce, V(11))
            e.nop(1)
            e.salu("s_cmp_eq_u32", sT0, 1)
            e.raw(f"s_cbranch_scc1 L_k12_nok{ty}")
            keep = list(e.vm)
            poll(e, f"L_k12_pn{ty}", V(12), sDbg, 0, 1, V(10), "1")
            e.raw(f"buffer_load_dword v11, v12, {sDbg}, 0 offen offset:4 sc1")
            e.raw("s_waitcnt vmcnt(0)")
            e.raw(f"v_readfirstlane_b32 {sNonce}, v11")
            e.nop(2)
            e.label(f"L_k12_nok{ty}")
            e.vm = keep
            e.last = {}
        if n == 16:
            vFl = V(14)
            e.salu("s_lshl_b32", sT0, sXcd, 4)
            e.salu("s_add_u32", sT1, sT0, 128)
            e.valu("v_add_u32", vFl, sT1, lane)
            e.salu("s_lshr_b32", sT1, sXcd, 1)
            e.salu("s_lshl_b32", sT1, sT1, 4)
            e.salu("s_add_u32", sT1, sT1, 192 - 16)
            e.valu("v_add_u32", vX0, sT1, lane)
            e.valu("v_cmp_le_u32", "vcc", 16, lane)
            e.valu("v_cndmask_b32", vFl, vFl, vX0)
            e.salu("s_and_b32", sT1, sIdx, 15)
            e.salu("s_add_u32", sT0, sT0, sT1)
            e.valu("v_mov_b32", vX0, sT0)
            e.valu("v_cmp_le_u32", "vcc", 32, lane)
            e.valu("v_cndmask_b32", vFl, vFl, vX0)
            e.valu("v_lshlrev_b32", vFl, 7, vFl)
        land(n + 1)
        e.barrier()


def gen_compute1(e, typeY):
    ty = int(typeY)
    lane = vLane
    sWm, sWn, sMt = S(29), S(30), S(34)
    sOutH, sOutV, sOutQK, sQKstr, sQKmul, sNL2E = S(35), S(48), S(36), S(37), S(38), S(39)
    sMask = S(40, 2)
    vAr = [[V(232 + i) for i in range(4)], [V(236 + i) for i in range(4)]]
    vTr = V(240)
    vMulHi, vVconst = V(241), V(242)
    TT = 220
    def ACC(p, r, t):
        if p == 1: return V(128 + 16 * t, 16)
        return V(64 * (p // 2) + 32 * r + 16 * t, 16)
    NBUF = 3
    def fA(n, t): return V(160 + (n % NBUF) * 16 + t * 4, 4)
    def fB(n, i): return V(160 + (n % NBUF) * 16 + 8 + i * 4, 4)
    e.salu("s_lshr_b32", sWm, sW4, 1)
    e.salu("s_and_b32", sWn, sW4, 1)
    e.salu("s_lshl_b32", sMt, sMblk, 1)
    e.salu("s_add_u32", sMt, sMt, sWm)
    e.salu("s_lshl_b32", sMt, sMt, 1)
    e.valu("v_and_b32", vX0, 31, lane)
    e.valu("v_lshrrev_b32", vX1, 5, lane)
    e.valu("v_bfe_u32", vX2, lane, 1, 3)
    e.valu("v_xor_b32", vX2, vX2, vX1)
    e.valu("v_lshlrev_b32", vX0, 7, vX0)
    e.salu("s_lshl_b32", sT0, sWm, 13)
    e.valu("v_add_u32", vX0, sT0, vX0)
    for k in range(4):
        e.valu("v_xor_b32", vAr[0][k], 2 * k, vX2)
        e.valu("v_lshl_add_u32", vAr[0][k], vAr[0][k], 4, vX0)
        e.valu("v_add_u32", vAr[1][k], 65536, vAr[0][k])
    e.valu("v_bfe_u32", vX0, lane, 2, 2)
    e.valu("v_lshl_add_u32", vX0, vX1, 3, vX0)
    e.valu("v_bfe_u32", vX2, lane, 4, 1)
    e.valu("v_lshlrev_b32", vX2, 5, vX2)
    e.valu("v_and_b32", vX1, 3, lane)
    e.valu("v_lshl_add_u32", vX2, vX1, 3, vX2)
    e.valu("v_lshl_add_u32", vX2, vX0, 7, vX2)
    e.valu("v_bfe_u32", vX1, lane, 3, 1)
    e.valu("v_xor_b32", vX1, sWn, vX1)
    e.valu("v_lshl_add_u32", vTr, vX1, 6, vX2)
    e.valu("v_add_u32", vTr, BR, vTr)
    e.salu("s_mov_b32", sNL2E, hex(f2u(-LOG2E)))
    e.salu("s_lshl_b32", sT2, sCg, 1)
    e.salu("s_add_u32", sT2, sT2, sWn)
    e.salu("s_mul_i32", sOutH, sMt, H_MT_STRIDE)
    e.salu("s_lshl_b32", sT1, sT2, 11)
    e.salu("s_add_u32", sOutH, sOutH, sT1)
    e.salu("s_add_u32", sOutH, sOutH, HF)
    if typeY:
        e.salu("s_sub_u32", sT1, sCg, 12)
        e.salu("s_lshl_b32", sT0, sT1, 2)
        e.salu("s_add_u32", sT0, sT0, sWn)
        e.salu("s_lshl_b32", sT0, sT0, 6)
        e.salu("s_add_u32", sT0, sT0, sMt)
        e.salu("s_lshl_b32", sOutV, sT0, 12)
        e.salu("s_add_u32", sOutV, sOutV, KVF + 2048)
    e.salu("s_and_b32", sT1, sT2, 15)
    e.salu("s_lshl_b32", sT1, sT1, 6)
    e.salu("s_add_u32", sT1, sT1, sMt)
    e.salu("s_cmp_lt_u32", sT2, 16)
    e.salu("s_cselect_b32", sQKstr, 11, 12)
    e.salu("s_cselect_b32", sOutQK, QF, KVF)
    e.salu("s_cselect_b32", sQKmul, hex(f2u(QSCALE)), 1.0)
    e.salu("s_lshl_b32", sQKstr, 1, sQKstr)
    e.salu("s_mul_i32", sT1, sT1, sQKstr)
    e.salu("s_add_u32", sOutQK, sOutQK, sT1)
    e.valu("v_cmp_gt_u32", "vcc", 32, lane)
    e.valu("v_mov_b32", vX0, sQKmul)
    e.valu("v_mov_b32", vX1, 0)
    e.valu("v_cndmask_b32", vMulHi, vX1, vX0)
    if typeY:
        e.valu("v_and_b32", vX0, 31, lane)
        e.valu("v_cmp_eq_u32", "vcc", 28, vX0)
        e.valu("v_mov_b32", vX2, "0x3f803f80")
        e.valu("v_cndmask_b32", vVconst, vX1, vX2)
        e.valu("v_cmp_le_u32", sMask, 28, vX0)
    e.wait_lg_all()
    srd(e, sWS, KWS, WS_USED)
    srd(e, sWd, KD, 1792 * 896)
    if not typeY:
        e.salu("s_add_u32", sT0, S(2), sWave)
        e.salu("s_cmp_lg_u32", sT0, 0)
        e.raw("s_cbranch_scc1 L_k12_nn")
        srd(e, sDbg, KDBG, 256)
        e.raw("s_mov_b64 exec, 1")
        e.raw("v_mov_b32 v1, 0")
        e.salu("s_mov_b32", sT0, NONCE)
        e.raw(f"buffer_load_dword v3, v1, {sWS}, {sT0} offen sc1")
        e.raw("v_mov_b32 v2, 1")
        e.raw("s_waitcnt vmcnt(0)")
        e.raw("v_add_u32 v3, 0x9e3779b9, v3")
        e.raw(f"buffer_store_dwordx2 v[2:3], v1, {sDbg}, 0 offen sc1")
        e.raw(f"buffer_store_dword v3, v1, {sWS}, {sT0} offen sc1")
        e.raw("s_mov_b64 exec, -1")
        e.label("L_k12_nn")
        e.last = {}

    def epi_h(p, pk=False):
        ops = []
        for t in range(2):
            G, U = ACC(p, 0, t), ACC(p, 1, t)
            for hgrp in range(2):
                rs = list(range(8 * hgrp, 8 * hgrp + 8))
                T = V(TT, 8)
                if not pk:
                    for r in rs: ops.append((1, lambda r=r, G=G, T=T: e.valu("v_mul_f32", T[r % 8], sNL2E, G[r])))
                    for r in rs:
                        ops.append((2, lambda r=r, T=T: e.valu("v_exp_f32", T[r % 8], T[r % 8])))
                        ops.append((1, lambda r=r, G=G, U=U: e.valu("v_mul_f32", G[r], G[r], U[r])))
                    for r in rs: ops.append((1, lambda r=r, T=T: e.valu("v_add_f32", T[r % 8], 1.0, T[r % 8])))
                    for r in rs: ops.append((2, lambda r=r, T=T: e.valu("v_rcp_f32", T[r % 8], T[r % 8])))
                    for r in rs: ops.append((1, lambda r=r, G=G, T=T: e.valu("v_mul_f32", G[r], G[r], T[r % 8])))
                else:
                    C = V(228, 4)
                    for r in rs[::2]: ops.append((1, lambda r=r, G=G, T=T: e.valu("v_pk_mul_f32", T[r % 8:r % 8 + 2], G[r:r + 2], C[0:2])))
                    for r in rs:
                        ops.append((2, lambda r=r, T=T: e.valu("v_exp_f32", T[r % 8], T[r % 8])))
                        if r % 2: ops.append((1, lambda r=r, G=G, U=U: e.valu("v_pk_mul_f32", G[r - 1:r + 1], G[r - 1:r + 1], U[r - 1:r + 1])))
                    for r in rs[::2]: ops.append((1, lambda r=r, T=T: e.valu("v_pk_add_f32", T[r % 8:r % 8 + 2], T[r % 8:r % 8 + 2], C[2:4])))
                    for r in rs: ops.append((2, lambda r=r, T=T: e.valu("v_rcp_f32", T[r % 8], T[r % 8])))
                    for r in rs[::2]: ops.append((1, lambda r=r, G=G, T=T: e.valu("v_pk_mul_f32", G[r:r + 2], G[r:r + 2], T[r % 8:r % 8 + 2])))
                for i in range(4 * hgrp, 4 * hgrp + 4):
                    ops.append((1, lambda i=i, G=G, U=U: e.valu("v_cvt_pk_bf16_f32", U[i], G[2 * i], G[2 * i + 1])))
                def st(hgrp=hgrp, t=t, U=U):
                    e.salu("s_add_u32", sT1, sOutH, t * H_MT_STRIDE + (24 * 2048 if p else 0))
                    e.buf_store(U[4 * hgrp:4 * hgrp + 4], vLane16, sWS, sT1, offset=hgrp * 1024, flags=STF)
                ops.append((-2, st))
        return ops

    def epi_v():
        ops = []
        for r in range(2):
            for t in range(2):
                X = ACC(0, r, t)
                for hgrp in range(2):
                    for i in range(4 * hgrp, 4 * hgrp + 4):
                        ops.append((1, lambda i=i, X=X: e.valu("v_cvt_pk_bf16_f32", X[i], X[2 * i], X[2 * i + 1])))
                    for i in range(4 * hgrp, 4 * hgrp + 4):
                        ops.append((1, lambda i=i, X=X: e.valu("v_cndmask_b32", X[i], X[i], vVconst, sMask)))
                    def st(t=t, X=X, r=r, hgrp=hgrp):
                        e.salu("s_add_u32", sT1, sOutV, 2 * r * 64 * 4096 + t * 4096)
                        e.buf_store(X[4 * hgrp:4 * hgrp + 4], vLane16, sWS, sT1, offset=hgrp * 1024, flags=STF, tag="qkv")
                    st.qkv = True
                    ops.append((-2, st))
        return ops

    def epi_qk():
        ops = []
        for t in range(2):
            X = ACC(1, 0, t)
            if typeY:
                ops.append((1, lambda t=t, X=X: e.valu("v_cvt_pk_bf16_f32", V(208 + t), X[12], X[12])))
            for r in range(16):
                if typeY and r < 12:
                    continue
                ops.append((1, lambda r=r, X=X: e.valu("v_mul_f32", X[r], sQKmul if r < 12 else vMulHi, X[r])))
            for hgrp in range(2):
                for i in range(4 * hgrp, 4 * hgrp + 4):
                    ops.append((1, lambda i=i, X=X: e.valu("v_cvt_pk_bf16_f32", X[i], X[2 * i], X[2 * i + 1])))
                def st(t=t, X=X, hgrp=hgrp):
                    if t == 1 and hgrp == 0:
                        e.salu("s_add_u32", sOutQK, sOutQK, sQKstr)
                    e.buf_store(X[4 * hgrp:4 * hgrp + 4], vLane16, sWS, sOutQK, offset=hgrp * 1024, flags=STF, tag="qkv")
                st.qkv = True
                ops.append((-2, st))
        if typeY:
            for t in range(2):
                D = V(208 + t)
                Gv = V(210 + 2 * t, 2)
                for f in (("v_and_b32", D, "0xffff0000", D), ("v_mul_f32", D, sNL2E, D), ("v_exp_f32", D, D),
                          ("v_mov_b32", Gv[0], 0), ("v_add_f32", D, 1.0, D), ("v_rcp_f32", D, D), ("v_mov_b32", Gv[0], 0),
                          ("v_cvt_pk_bf16_f32", D, D, D),
                          ("v_and_b32", Gv[0], "0xffff0000", D), ("v_sub_f32", Gv[1], 1.0, Gv[0]),
                          ("v_cvt_pk_bf16_f32", Gv[1], Gv[1], Gv[1]), ("v_and_b32", Gv[1], "0xffff0000", Gv[1])):
                    ops.append((2 if f[0] in TRANS else 1, lambda f=f: e.valu(*f)))
            def stg():
                e.valu("v_lshlrev_b32", vX0, 3, lane)
                e.salu("s_lshl_b32", sT1, sMt, 8)
                e.salu("s_add_u32", sT1, sT1, GF - 256)
                e.salu("s_lshl_b32", sT0, sWn, 15)
                e.salu("s_add_u32", sT1, sT1, sT0)
                e.raw("s_mov_b32 exec_lo, 0")
                e.buf_store(V(210, 2), vX0, sWS, sT1, offset=0, flags=STF)
                e.buf_store(V(212, 2), vX0, sWS, sT1, offset=256, flags=STF)
                e.raw("s_mov_b32 exec_lo, -1")
            ops.append((-2, stg))
        return ops

    steps = [(p, ks) for p in range(3) for ks in range(28)]
    def bchunk(p, ks):
        c, kk = ks // 4, ks % 4
        if p == 0: return c, kk * 2048
        if p == 2: return 11 + c, kk * 2048
        return 7 + c // 2, (c % 2) * 8192 + kk * 2048
    def rd(n):
        p, ks = steps[n]
        c, kk = ks // 4, ks % 4
        bn, boff = bchunk(p, ks)
        ops = []
        for t in range(2):
            ops.append(lambda t=t: e.ds_read("ds_read_b128", fA(n, t), vAr[c >> 2][kk], offset=(c & 3) * 16384 + t * 4096, tag=("t", n)))
        for i in range(1 if p == 1 else 2):
            for j in range(2):
                ops.append(lambda i=i, j=j: e.ds_read("ds_read_b64_tr_b16", fB(n, i)[2 * j:2 * j + 2], vTr,
                                                      offset=(bn % 3) * 16384 + boff + i * 8192 + j * 512, tag=("t", n)))
        return ops

    def pre():
        sTS = S(52, 4)
        e.salu("s_mov_b32", sTS[3], "0x20000")
        e.salu("s_mul_i32", sT0, S(2), 28)
        e.valu("v_min_u32", vX0, 27, lane)
        e.valu("v_add_u32", vX0, sT0, vX0)
        e.valu("v_lshrrev_b32", vX1, 4, vX0)
        e.valu("v_and_b32", vX0, 15, vX0)
        e.valu("v_mul_u32_u24", vX2, 3584, vX1)
        e.valu("v_lshl_add_u32", vX2, vX0, 7, vX2)
        e.salu("s_mov_b32", sT1, 12 * 128)
        e.salu("s_mov_b32", sTS[2], 448 * 3584)
        e.salu("s_mov_b32", sTS[0], S(KG)); e.salu("s_mov_b32", sTS[1], S(KG + 1))
        e.salu("s_cmp_eq_u32", sW4, 1)
        e.raw(f"s_cbranch_scc1 L_k12_pre{ty}")
        e.salu("s_mov_b32", sTS[0], S(KU)); e.salu("s_mov_b32", sTS[1], S(KU + 1))
        e.salu("s_cmp_eq_u32", sW4, 2)
        e.raw(f"s_cbranch_scc1 L_k12_pre{ty}")
        e.salu("s_mov_b32", sT1, 0)
        e.salu("s_mov_b32", sTS[2], 448 * 2688)
        e.salu("s_mov_b32", sTS[0], S(KQ)); e.salu("s_mov_b32", sTS[1], S(KQ + 1))
        e.valu("v_min_u32", vX0, 13, vX0)
        e.valu("v_mul_u32_u24", vX2, 2688, vX1)
        e.valu("v_lshl_add_u32", vX2, vX0, 7, vX2)
        e.salu("s_cmp_eq_u32", sW4, 0)
        e.raw(f"s_cbranch_scc1 L_k12_pre{ty}")
        e.salu("s_mov_b32", sTS[2], 1792 * 896)
        e.salu("s_mov_b32", sTS[0], S(KD)); e.salu("s_mov_b32", sTS[1], S(KD + 1))
        e.salu("s_mul_i32", sT1, S(2), 49 * 128)
        e.valu("v_min_u32", vX0, 48, lane)
        e.valu("v_lshlrev_b32", vX2, 7, vX0)
        e.label(f"L_k12_pre{ty}")
        e.buf_load(V(243), vX2, sTS, sT1, offset=0)

    e.stamp(0); e.stamp(12, True)
    if PRE < 0: pre()
    e.barrier()
    e.stamp(1)
    for f in rd(0) + rd(1): f()
    epi, stq = [], []
    for n, (p, ks) in enumerate(steps):
        if ks == 0 and p >= 1:
            e.stamp(1 + p)
            if p == 1:
                epi += [(6, lambda: None)] + (epi_v() if typeY else epi_h(0))
                def wdt():
                    e.salu("s_mul_i32", sT0, S(2), 49 * 128)
                    e.salu("s_mul_i32", sT1, sW4, 13 * 128)
                    e.salu("s_add_u32", sT0, sT0, sT1)
                    e.valu("v_min_u32", vX0, 12, lane)
                    e.valu("v_lshlrev_b32", vX0, 7, vX0)
                    e.buf_load(V(243), vX0, sWd, sT0, offset=0)
                if not PRE: stq.append(wdt)
            else:
                epi = [(6, lambda: None)] + epi_qk() + epi
        if p == 0 and PRE > 0 and ks == 4 * PRE:
            stq.append(pre)
        nr = 1 if p == 1 else 2
        nm = 2 * nr
        plan = [[] for _ in range(nm)]
        tgt = n + 2
        if tgt < len(steps):
            r_ = rd(tgt)
            bt = bchunk(*steps[tgt])[0]
            if bt != bchunk(*steps[tgt - 1])[0]:
                def bar(tgt=tgt, bt=bt):
                    e.wait_lg_tag(("t", tgt - 1))
                    if bt == N1:
                        assert not any(getattr(f, "qkv", False) for _, f in epi) and not any(getattr(f, "qkv", False) for f in stq)
                        e.wait_vm_tag("qkv")
                    if bt == N1B:
                        assert not epi and not stq, (len(epi), len(stq))
                        e.raw("s_waitcnt vmcnt(0)")
                        e.vm = []
                    e.barrier()
                if steps[tgt][0] == 0:
                    plan[1] = [bar, r_[0]]; plan[2] = r_[1:4]; plan[3] = r_[4:]
                elif nm == 4:
                    plan[0] = r_[0:2]; plan[2] = [bar] + r_[2:4]; plan[3] = r_[4:]
                else:
                    plan[0] = r_[0:2]; plan[1] = [bar] + r_[2:]
            else:
                for g in range(nm):
                    k = -(-len(r_) // (nm - g))
                    plan[g] = r_[:k]; r_ = r_[k:]
        e.wait_lg_tag(("t", n))
        gi = 0
        for i in range(nr):
            for t in range(2):
                swap = typeY and p == 0
                a_, b_ = (fA(n, t), fB(n, i)) if swap else (fB(n, i), fA(n, t))
                e.mfma(ACC(p, i, t), a_, b_, 0 if ks == 0 else None)
                slots = 6 - (1 if gi == nm - 1 else 0)
                for f in plan[gi]:
                    f(); slots -= 1
                if p == 2:
                    slots = min(slots, 4)
                safe = (ks % 4 == 1 or (ks % 4 == 0 and gi >= 2)) if p != 1 else (ks % 8 in (3, 4, 5))
                if stq and (safe or (QANY and p == 2 and getattr(stq[0], "qkv", False))):
                    stq.pop(0)(); slots -= 2
                while epi and (slots >= epi[0][0] or epi[0][0] == 6):
                    cost, f = epi.pop(0)
                    if cost < 0:
                        if getattr(f, "qkv", False):
                            k_ = sum(1 for x in stq if getattr(x, "qkv", False))
                            stq.sort(key=lambda x: not getattr(x, "qkv", False))
                            stq.insert(k_, f)
                        else:
                            stq.append(f)
                        continue
                    f(); slots -= cost
                    if cost == 6: break
                gi += 1
    e.stamp(4)
    e.valu("v_mov_b32", V(228), sNL2E)
    e.valu("v_mov_b32", V(229), sNL2E)
    e.valu("v_mov_b32", V(230), 1.0)
    e.valu("v_mov_b32", V(231), 1.0)
    for _, f in epi_h(2, pk=True):
        f()
    e.stamp(5)


def gen_attn(e):
    lane = vLane
    Q = [[V(8, 4), V(12, 4)], [V(16, 4), V(20, 4)]]
    K = [V(24, 4), V(28, 4)]
    Vf = [[V(32, 4), V(36, 4)], [V(40, 4), V(44, 4)]]
    Sb = [V(128, 16), V(144, 16)]
    P = [V(48, 8), V(56, 8)]
    O = [V(160, 16), V(176, 16)]
    X = V(192, 16)
    vKV, vRed, vQl = V(1), V(2), V(3)
    vT0, vT1, vT2, vT3 = V(4), V(5), V(6), V(7)
    sQg, sKg, sHead, sQblk, sOo, sKV, sCnt = S(29), S(30), S(34), S(35), S(36), S(37), S(38)
    sSave = S(40, 2)
    e.salu("s_and_b32", sQg, sW4, 1)
    e.salu("s_lshr_b32", sKg, sW4, 1)
    e.salu("s_lshr_b32", sT0, sIdx, 4)
    e.salu("s_lshl_b32", sHead, sXcd, 1)
    e.salu("s_add_u32", sHead, sHead, sT0)
    e.salu("s_and_b32", sQblk, sIdx, 15)
    e.salu("s_lshl_b32", sKV, sHead, 18)
    e.salu("s_add_u32", sKV, sKV, KVF)
    e.salu("s_lshl_b32", sT1, sQblk, 2)
    e.salu("s_lshl_b32", sT0, sQg, 1)
    e.salu("s_add_u32", sT1, sT1, sT0)
    e.salu("s_add_u32", sT1, sT1, sKg)
    e.salu("s_lshl_b32", sOo, sT1, 4)
    e.salu("s_add_u32", sOo, sOo, sHead)
    e.salu("s_lshl_b32", sOo, sOo, 11)
    e.salu("s_add_u32", sOo, sOo, OF)
    e.salu("s_lshl_b32", sT2, sKg, 13)
    e.valu("v_add_u32", vKV, sT2, vLane16)
    e.salu("s_lshl_b32", sT2, sQg, 12)
    e.salu("s_add_u32", sT2, sT2, QL)
    e.valu("v_add_u32", vQl, sT2, vLane16)
    e.salu("s_lshl_b32", sT2, sQg, 13)
    e.salu("s_add_u32", sT2, sT2, ARED)
    e.valu("v_add_u32", vRed, sT2, vLane16)
    for r in range(16):
        e.valu("v_mov_b32", O[0][r], 0)
        e.valu("v_mov_b32", O[1][r], 0)
    for r in range(4):
        e.valu("v_mov_b32", P[1][r], 0)
        e.valu("v_mov_b32", P[1][4 + r], 0)
        e.valu("v_mov_b32", Vf[1][0][r], 0)
        e.valu("v_mov_b32", Vf[1][1][r], 0)
    e.salu("s_mov_b32", sCnt, 0)

    def toff(i): return ((i >> 1) % 4) * 16384 + (i & 1) * 4096

    e.barrier()
    e.stamp(6)
    for q in range(2):
        for s_ in range(2):
            e.ds_read("ds_read_b128", Q[q][s_], vQl, offset=q * 2048 + s_ * 1024)
    e.ds_read("ds_read_b128", K[0], vKV, offset=0)
    e.ds_read("ds_read_b128", K[1], vKV, offset=1024)
    e.ds_read("ds_read_b128", Vf[0][1], vKV, offset=3072)
    e.ds_read("ds_read_b128", Vf[0][0], vKV, offset=2048)
    e.mfma(Sb[0], K[0], Q[0][0], 0)
    e.mfma(Sb[0], K[1], Q[0][1])
    e.wait_lg_all()
    e.flush_hazards()

    def unit(i, q):
        Sc, Sn = Sb[q], Sb[1 - q]
        nq = 1 - q
        def ex(a, b):
            for r in range(a, b): e.valu("v_exp_f32", Sc[r], Sc[r])
        def cv(a, b):
            for j in range(a, b): e.valu("v_cvt_pk_bf16_f32", P[q][j], Sc[2 * j], Sc[2 * j + 1])
        pi = i if q == 1 else i - 1
        if q == 0:
            rd = [(K[0], toff(i + 1)), (K[1], toff(i + 1) + 1024)]
        else:
            rd = [(Vf[(i + 1) % 2][1], toff(i + 1) + 3072), (Vf[(i + 1) % 2][0], toff(i + 1) + 2048)]
        e.mfma(Sn, K[0], Q[nq][0], 0)
        ex(0, 3)
        e.mfma(Sn, K[1], Q[nq][1])
        e.ds_read("ds_read_b128", rd[0][0], vKV, offset=rd[0][1])
        ex(3, 5); cv(0, 1)
        e.mfma(O[nq], Vf[pi % 2][0], P[nq][0:4])
        e.ds_read("ds_read_b128", rd[1][0], vKV, offset=rd[1][1])
        ex(5, 7); cv(1, 2)
        e.mfma(O[nq], Vf[pi % 2][1], P[nq][4:8])
        ex(7, 16); cv(2, 8)

    mark = len(e.lines)
    for i in (6, 7):
        for q in range(2): unit(i, q)
    del e.lines[mark:]
    e.label("L_k12_aloop")
    for i in range(8):
        for q in range(2):
            unit(i, q)
        if i % 2 == 1:
            if i == 3:
                e.raw("s_waitcnt vmcnt(0)")
            if i == 7:
                e.salu("s_add_u32", sCnt, sCnt, 1)
                e.salu("s_cmp_lt_u32", sCnt, 4)
            e.barrier()
    e.raw("s_cbranch_scc1 L_k12_aloop")
    e.mfma(O[1], Vf[1][0], P[1][0:4])
    e.mfma(O[1], Vf[1][1], P[1][4:8])
    e.stamp(7)
    e.wait_lg_all()
    e.salu("s_cmp_eq_u32", sKg, 0)
    e.raw("s_cbranch_scc1 L_k12_kg0")
    for j in range(4):
        e.ds_write("ds_write_b128", vRed, O[0][4 * j:4 * j + 4], offset=j * 1024)
    for r in range(16):
        e.valu("v_mov_b32", O[0][r], O[1][r])
    for s_ in range(2):
        for r in range(4):
            e.valu("v_mov_b32", Q[0][s_][r], Q[1][s_][r])
    e.valu("v_add_u32", vRed, 4096, vRed)
    e.raw("s_branch L_k12_kgj")
    e.label("L_k12_kg0")
    e.lg = []
    e.last = {}
    e.nop(10)
    for j in range(4):
        e.ds_write("ds_write_b128", vRed, O[1][4 * j:4 * j + 4], offset=4096 + j * 1024)
    e.label("L_k12_kgj")
    e.raw("s_waitcnt lgkmcnt(0)")
    e.lg = []
    e.last = {}
    e.barrier()
    Of, Pf, Qf = O[0], P[0], Q[0]
    for j in range(4):
        e.ds_read("ds_read_b128", X[4 * j:4 * j + 4], vRed, offset=j * 1024)
    Z = V(208, 2)
    e.valu("v_mov_b32", Z[0], 0)
    e.valu("v_mov_b32", Z[1], 0)
    e.valu("v_mov_b32", V(210), 0)
    e.valu("v_mov_b32", V(211), 0)
    for r in range(0, 16, 2):
        e.valu("v_pk_add_f32", Of[r:r + 2], Of[r:r + 2], X[r:r + 2])
    e.valu("v_mov_b32", vT0, Of[12])
    e.valu("v_mov_b32", vT1, Of[12])
    for r in range(0, 16, 2):
        e.valu("v_pk_fma_f32", Z, Of[r:r + 2], V(210, 2), Z)
        if r == 2:
            e.valu("v_permlane32_swap_b32", vT0, vT1)
    e.valu("v_add_f32", vT2, Z[0], Z[1])
    e.salu("s_mov_b32", sT0, hex(f2u(L_LO)))
    e.salu("s_mov_b32", sT1, hex(f2u(L_HI)))
    e.valu("v_add_f32", vT2, vT2, vT1)
    e.valu("v_cmp_le_f32", "vcc", sT0, vT2)
    e.valu("v_cmp_ge_f32", sSave, sT1, vT2)
    e.nop(1)
    e.salu("s_and_b64", "vcc", "vcc", sSave)
    e.raw("s_cmp_eq_u64 vcc, -1")
    e.raw("s_cbranch_scc0 L_k12_slow")
    e.label("L_k12_store")
    e.last = {}
    e.nop(2)
    e.valu("v_rcp_f32", vT0, vT1)
    e.valu("v_cmp_gt_u32", "vcc", 32, lane)
    e.valu("v_mov_b32", vT2, 0)
    e.valu("v_mov_b32", vT1, vT0)
    e.valu("v_cndmask_b32", vT2, vT2, vT0)
    e.valu("v_mov_b32", vT3, vT2)
    for r in range(0, 16, 2):
        e.valu("v_pk_mul_f32", Of[r:r + 2], Of[r:r + 2], V(4, 2) if r < 12 else V(6, 2))
    for j in range(8):
        e.valu("v_cvt_pk_bf16_f32", Pf[j], Of[2 * j], Of[2 * j + 1])
    e.buf_store(Pf[0:4], vLane16, sWS, sOo, offset=0, flags=STF)
    e.buf_store(Pf[4:8], vLane16, sWS, sOo, offset=1024, flags=STF)
    e.stamp(8)
    if Emitter.STAMPS:
        e.wait_vm_all()
    e.stamp(9); e.stamp(13, True)
    e.dump_stamps(sWS, 0, sWave)
    e.raw("s_endpgm")
    e.label("L_k12_slow")
    e.lg, e.vm, e.last = [], [], {}
    vM = vT3
    Sc = Sb[0]
    e.valu("v_mov_b32", vM, "0xff800000")
    for r in range(16):
        e.valu("v_mov_b32", Of[r], 0)
    e.salu("s_mov_b32", sCnt, 0)
    e.salu("s_mov_b32", sT2, sKV)
    e.label("L_k12_slow_loop")
    e.buf_load(K[0], vLane16, sWS, sT2, offset=0, flags=LDF)
    e.buf_load(K[1], vLane16, sWS, sT2, offset=1024, flags=LDF)
    e.buf_load(Vf[0][0], vLane16, sWS, sT2, offset=2048, flags=LDF)
    e.buf_load(Vf[0][1], vLane16, sWS, sT2, offset=3072, flags=LDF)
    e.mfma(Sc, K[0], Qf[0], 0)
    e.mfma(Sc, K[1], Qf[1])
    e.valu("v_max_f32", vT0, Sc[0], Sc[1])
    for r in range(2, 16, 2):
        e.valu("v_max3_f32", vT0, vT0, Sc[r], Sc[r + 1])
    e.valu("v_mov_b32", vT1, vT0)
    e.valu("v_permlane32_swap_b32", vT0, vT1)
    e.valu("v_max3_f32", vT0, vT0, vT1, vM)
    e.valu("v_sub_f32", vT1, vM, vT0)
    e.valu("v_exp_f32", vT1, vT1)
    e.valu("v_mov_b32", vM, vT0)
    for r in range(16):
        e.valu("v_sub_f32", Sc[r], Sc[r], vM)
    for r in range(16):
        e.valu("v_exp_f32", Sc[r], Sc[r])
    for r in range(16):
        e.valu("v_mul_f32", Of[r], Of[r], vT1)
    for j in range(8):
        e.valu("v_cvt_pk_bf16_f32", Pf[j], Sc[2 * j], Sc[2 * j + 1])
    e.mfma(Of, Vf[0][0], Pf[0:4])
    e.mfma(Of, Vf[0][1], Pf[4:8])
    e.salu("s_add_u32", sT2, sT2, 4096)
    e.salu("s_add_u32", sCnt, sCnt, 1)
    e.flush_hazards()
    e.salu("s_cmp_lt_u32", sCnt, 64)
    e.raw("s_cbranch_scc1 L_k12_slow_loop")
    e.valu("v_mov_b32", vT0, Of[12])
    e.valu("v_mov_b32", vT1, Of[12])
    e.valu("v_permlane32_swap_b32", vT0, vT1)
    e.raw("s_branch L_k12_store")


def gen_helper2(e):
    lane = vLane
    sHead, sQblk, sKV, sLdsKV = S(29), S(30), S(34), S(35)
    sMt64, sNt, sLdsW, sWoff, sHoff, sHoff1 = S(36), S(37), S(38), S(39), S(40), S(41)
    vFl = V(14)
    e.salu("s_lshr_b32", sT0, sIdx, 4)
    e.salu("s_lshl_b32", sHead, sXcd, 1)
    e.salu("s_add_u32", sHead, sHead, sT0)
    e.salu("s_and_b32", sQblk, sIdx, 15)
    e.salu("s_lshl_b32", sLdsKV, sW4, 12)
    e.salu("s_lshl_b32", sKV, sHead, 18)
    e.salu("s_add_u32", sKV, sKV, KVF)
    e.salu("s_add_u32", sKV, sKV, sLdsKV)
    e.salu("s_mul_i32", sT0, sIdx, 37)
    e.salu("s_lshr_b32", sT0, sT0, 8)
    e.salu("s_mul_i32", sT1, sT0, 7)
    e.salu("s_sub_u32", sNt, sIdx, sT1)
    e.salu("s_lshl_b32", sMt64, sXcd, 2)
    e.salu("s_add_u32", sMt64, sMt64, sT0)
    e.salu("s_min_u32", sMt64, sMt64, 31)
    def dma_KV(s):
        e.salu("s_add_u32", "m0", sLdsKV, (s % 4) * 16384)
        e.salu("s_add_u32", sT0, sKV, s * 16384)
        for i in range(4):
            e.buf_load_lds(vLane16, sWS, sT0, offset=i * 1024, tag=("KV", s), flags=LDF)

    e.stamp(0)
    e.raw(f"v_mov_b32 v8, {QL + 8192}")
    e.salu("s_cmp_lg_u32", sW4, 0)
    e.raw("s_cbranch_scc1 L_k12_wl")
    e.salu("s_mov_b32", sT0, F1)
    poll(e, "L_k12_p1", vFl, sWS, sT0, 33, V(15), sNonce)
    e.raw(f"v_mov_b32 v9, {sNonce}")
    e.raw("ds_write_b32 v8, v9")
    e.raw("s_branch L_k12_p1ok")
    e.label("L_k12_wl")
    e.salu("s_mov_b32", sT2, 0)
    e.label("L_k12_wl2")
    e.raw("ds_read_b32 v9, v8")
    e.salu("s_add_u32", sT2, sT2, 1)
    e.raw("s_waitcnt lgkmcnt(0)")
    e.raw("v_readfirstlane_b32 s33, v9")
    e.salu("s_cmp_gt_u32", sT2, SPIN * 16)
    e.raw("s_cbranch_scc1 L_k12_p1ok")
    e.raw(f"s_cmp_eq_u32 s33, {sNonce}")
    e.raw("s_cbranch_scc1 L_k12_p1ok")
    e.raw("s_sleep 1")
    e.raw("s_branch L_k12_wl2")
    e.label("L_k12_p1ok")
    e.raw("s_waitcnt vmcnt(0) lgkmcnt(0)")
    e.vm, e.last = [], {}
    e.stamp(1); e.stamp(7, True)
    dma_KV(0)
    e.salu("s_lshl_b32", sT0, sHead, 6)
    e.salu("s_lshl_b32", sT1, sQblk, 2)
    e.salu("s_add_u32", sT0, sT0, sT1)
    e.salu("s_add_u32", sT0, sT0, sW4)
    e.salu("s_lshl_b32", sT0, sT0, 11)
    e.salu("s_lshl_b32", sT1, sW4, 11)
    e.salu("s_add_u32", "m0", sT1, QL)
    if QF: e.salu("s_add_u32", sT0, sT0, QF)
    else: e.nop(1)
    for i in range(2):
        e.buf_load_lds(vLane16, sWS, sT0, offset=i * 1024, tag=("KV", 0), flags=LDF)
    dma_KV(1); dma_KV(2)
    st0 = list(e.vm)
    e.raw(f"s_setprio {HPRIO}")
    e.salu("s_cmp_ge_u32", sIdx, 28)
    e.raw("s_cbranch_scc1 L_k12_nogemm")
    helper_loop(e, True, dma_KV, sMt64, sNt, sLdsW, sWoff, sHoff, sHoff1)
    e.raw("s_endpgm")
    e.label("L_k12_nogemm")
    e.lg, e.vm, e.last = [], list(st0), {}
    helper_loop(e, False, dma_KV, sMt64, sNt, sLdsW, sWoff, sHoff, sHoff1)
    e.raw("s_endpgm")


def helper_loop(e, gemm, dma_KV, sMt64, sNt, sLdsW, sWoff, sHoff, sHoff1):
    lane = vLane
    g = int(gemm)
    ND = 4
    ACC = [[V(80, 16), V(96, 16)], [V(112, 16), V(128, 16)]]
    def HF_(s, st, t): return V(16 + ((s % ND) * 4 + st * 2 + t) * 4, 4)
    def WF(st, u): return V(144 + (st * 2 + u) * 4, 4)
    vW = [V(2), V(3), V(4), V(5)]
    vTr = [V(6), V(7)]
    vRw, vRr, vF2 = V(11), V(12), V(13)
    sWl, sHl = S(42), S(43)
    if gemm:
        srd(e, sWd, KD, 1792 * 896)
        e.valu("v_lshrrev_b32", vX0, 3, lane)
        e.valu("v_bfe_u32", vX1, lane, 2, 1)
        e.valu("v_bfe_u32", vX2, lane, 4, 1)
        e.valu("v_xor_b32", vX1, vX1, vX2)
        e.valu("v_mul_u32_u24", vW[0], 896, vX0)
        e.valu("v_lshl_add_u32", vW[0], vX1, 6, vW[0])
        e.valu("v_and_b32", vX1, 3, lane)
        e.valu("v_lshl_add_u32", vW[0], vX1, 4, vW[0])
        for i in range(1, 4):
            e.valu("v_add_u32", vW[i], i * (8 * 896 - 1024), vW[0])
        e.salu("s_lshl_b32", sLdsW, sW4, 14)
        e.salu("s_add_u32", sLdsW, sLdsW, WR)
        e.salu("s_mul_i32", sWoff, sW4, 6 * 32 * 896)
        e.salu("s_lshl_b32", sT0, sNt, 7)
        e.salu("s_add_u32", sWoff, sWoff, sT0)
        e.salu("s_lshl_b32", sT0, sW4, 1)
        e.salu("s_add_u32", sT0, sT0, 18)
        e.salu("s_mul_i32", sWl, sT0, 32 * 896)
        e.salu("s_add_u32", sWl, sWl, sWoff)
        e.salu("s_lshl_b32", sHl, sT0, 11)
        e.salu("s_mul_i32", sHoff, sMt64, 2 * H_MT_STRIDE)
        e.salu("s_mul_i32", sT0, sW4, 6 * 2048)
        e.salu("s_add_u32", sHoff, sHoff, sT0)
        e.salu("s_add_u32", sHoff, sHoff, HF)
        e.salu("s_add_u32", sHl, sHl, sHoff)
        e.valu("v_lshrrev_b32", vX1, 5, lane)
        e.valu("v_bfe_u32", vX0, lane, 2, 2)
        e.valu("v_lshl_add_u32", vX0, vX1, 2, vX0)
        e.valu("v_bfe_u32", vX2, lane, 4, 1)
        e.valu("v_lshlrev_b32", vX2, 5, vX2)
        e.valu("v_and_b32", vX1, 3, lane)
        e.valu("v_lshl_add_u32", vX2, vX1, 3, vX2)
        e.valu("v_lshl_add_u32", vX2, vX0, 7, vX2)
        e.valu("v_bfe_u32", vX1, lane, 3, 1)
        e.valu("v_lshl_add_u32", vTr[0], vX1, 6, vX2)
        e.valu("v_xor_b32", vTr[1], 64, vTr[0])
        e.valu("v_add_u32", vTr[0], sLdsW, vTr[0])
        e.valu("v_add_u32", vTr[1], sLdsW, vTr[1])
        e.valu("v_add_u32", vRw, sLdsW, vLane16)
        e.salu("s_lshl_b32", sT0, sW4, 12)
        e.salu("s_add_u32", sT0, sT0, WR)
        e.valu("v_add_u32", vRr, sT0, vLane16)
        e.salu("s_lshr_b32", sT0, sMt64, 1)
        e.valu("v_and_b32", vX0, 15, lane)
        e.valu("v_lshl_add_u32", vF2, vX0, 4, sT0)
        e.valu("v_lshlrev_b32", vF2, 7, vF2)

    def W_ops(s):
        def w(i):
            if i == 0:
                e.salu("s_add_u32", "m0", sLdsW, (s % ND) * 4096)
                e.salu("s_add_u32", sT2, sWoff if s < 6 else sWl, s * 32 * 896)
            e.buf_load_lds(vW[i], sWd, sT2, offset=i * 1024, tag=("W", s))
        return [lambda i=i: w(i) for i in range(4)]

    def H_ops(s):
        def h(st, t):
            e.salu("s_add_u32", sT1, sHoff if s < 6 else sHl, s * 2048 + t * H_MT_STRIDE)
            e.buf_load(HF_(s, st, t), vLane16, sWS, sT1, offset=st * 1024, flags=LDF)
        return [lambda st=st, t=t: h(st, t) for st in range(2) for t in range(2)]

    def compute(s, side):
        e.wait_vm_tag(("W", s))
        for st in range(2):
            for u in range(2):
                for j in range(2):
                    e.ds_read("ds_read_b64_tr_b16", WF(st, u)[2 * j:2 * j + 2], vTr[u],
                              offset=(s % ND) * 4096 + st * 2048 + j * 1024)
        if side: side.pop(0)()
        for st in range(2):
            for u in range(2):
                for t in range(2):
                    e.mfma(ACC[u][t], WF(st, u), HF_(s, st, t), 0 if (s == 0 and st == 0) else None)
                    if side: side.pop(0)()

    P2 = POLL2
    comp = {2: [0], 3: [1], 4: [2], 5: [3], 6: [4], 7: [5]}
    late = list(range(6, 14))
    i0 = max(P2 + 2, 8)
    for i in range(i0, 14):
        left = 14 - i
        k = -(-len(late) // left) if i >= 12 else 1
        comp.setdefault(i, [])
        comp[i] += late[:k]; late = late[k:]
    assert not late
    done_at = {s: i for i, l in comp.items() for s in l}
    todo = [(s, k) for s in range(14) for k in ("H", "W")]

    def check(name, base, nl):
        e.valu("v_cmp_ne_u32", "vcc", sNonce, V(8))
        e.nop(1)
        e.raw(f"s_and_b32 s33, vcc_lo, {hex((1 << nl) - 1)}")
        e.raw(f"s_cbranch_scc0 {name}ok")
        keep = list(e.vm)
        e.salu("s_mov_b32", sT0, base)
        poll(e, name, vF2, sWS, sT0, nl, V(8), sNonce)
        e.label(name + "ok")
        e.vm = keep
        e.last = {}

    e.wait_vm_tag(("KV", 1))
    e.stamp(2)
    e.barrier()
    for i in range(16):
        if i in (4, 8, 12): e.stamp(2 + i // 4)
        if i + 3 <= 15:
            dma_KV(i + 3)
        if i == 2:
            flag_store(e, F2)
        if gemm:
            if i in (0, P2 - 1):
                e.salu("s_mov_b32", sT0, F1B if i == 0 else F2)
                e.buf_load(V(8), vF2, sWS, sT0, offset=0, flags=" sc1")
            if i == 1:
                check("L_k12_p1b", F1B, 12)
            if i == P2:
                e.stamp(10)
                check("L_k12_p2", F2, 16)
                e.stamp(11)
            side = []
            budget = 3 if i < 13 else 4
            for (s, k) in list(todo):
                if budget == 0: break
                ok = (s < ND or done_at[s - ND] < i) and not (k == "H" and (i < 1 or (s >= 6 and i < P2)))
                if ok:
                    side += H_ops(s) if k == "H" else W_ops(s)
                    todo.remove((s, k)); budget -= 1
            for s in comp.get(i, []):
                compute(s, side)
            while side: side.pop(0)()
            if i == 14:
                assert not todo
                for u in range(2):
                    for t in range(2):
                        for j in range(4):
                            e.ds_write("ds_write_b128", vRw, ACC[u][t][4 * j:4 * j + 4],
                                       offset=(t * 2 + u) * 4096 + j * 1024)
                e.wait_lg_all()
                e.raw("s_setprio 2")
            if i == 15:
                X = [V(16 + 16 * w, 16) for w in range(4)]
                for w in range(4):
                    for j in range(4):
                        e.ds_read("ds_read_b128", X[w][4 * j:4 * j + 4], vRr, offset=w * 16384 + j * 1024)
                for r in range(16):
                    e.valu("v_add_f32", X[0][r], X[0][r], X[1][r])
                    e.valu("v_add_f32", X[2][r], X[2][r], X[3][r])
                for r in range(16):
                    e.valu("v_add_f32", X[0][r], X[0][r], X[2][r])
                for j in range(8):
                    e.valu("v_cvt_pk_bf16_f32", X[1][j], X[0][2 * j], X[0][2 * j + 1])
                e.salu("s_lshr_b32", sT0, sW4, 1)
                e.salu("s_lshl_b32", sT1, sMt64, 1)
                e.salu("s_add_u32", sT0, sT0, sT1)
                e.salu("s_mul_i32", sT0, sT0, 14)
                e.salu("s_and_b32", sT1, sW4, 1)
                e.salu("s_add_u32", sT0, sT0, sT1)
                e.salu("s_lshl_b32", sT1, sNt, 1)
                e.salu("s_add_u32", sT0, sT0, sT1)
                e.salu("s_lshl_b32", sT0, sT0, 11)
                e.salu("s_add_u32", sT0, sT0, BF)
                e.buf_store(X[1][0:4], vLane16, sWS, sT0, offset=0, flags=STF)
                e.buf_store(X[1][4:8], vLane16, sWS, sT0, offset=1024, flags=STF)
        if i + 2 <= 15:
            e.wait_vm_tag(("KV", i + 2))
        if i == 13:
            srd(e, sWo, KO, 448 * 896)
            e.salu("s_lshl_b32", sT0, sIdx, 2)
            e.salu("s_add_u32", sT0, sT0, sW4)
            e.salu("s_mul_i32", sT0, sT0, 25 * 128)
            e.valu("v_min_u32", vX0, 24, lane)
            e.valu("v_lshlrev_b32", vX0, 7, vX0)
            e.buf_load(V(10), vX0, sWo, sT0, offset=0)
        if i < 15:
            e.barrier()
    e.stamp(9); e.stamp(13, True)
    e.dump_stamps(sWS, 0, sWave)


K12_DESC = dict(name="k12_kernel", vgpr=256, acc=256, sgpr=96, grid=256, block=512, lds=LDS)
```

```python
from emit import *
from layout import *
import os
import struct

ROT1 = int(os.environ.get('ROT1', '1'))
STF = ' sc1'
LDF = ' sc1'
EB1 = int(os.environ.get('EB1', '3'))
N1 = int(os.environ.get('N1', '14'))
N1B = int(os.environ.get('N1B', '16'))
PRE = int(os.environ.get('PRE', '1'))
QANY = int(os.environ.get('QANY', '1'))
POLL2 = int(os.environ.get('POLL2', '6'))
SPIN = 1 << 17
OLEAD = int(os.environ.get('OLEAD', '2'))
FUSE3 = int(os.environ.get('FUSE3', '1'))
KOUT = 92
KNAME = "gated_mix__softmax_full_mha__swiglu_ffn__prompt_kernel" if FUSE3 else "k12_kernel"
sOut = S(12, 4)
SLEEP = int(os.environ.get('SLEEP', '4'))
HPRIO = int(os.environ.get('HPRIO', '0'))

LOG2E = 1.4426950408889634
QSCALE = (28 ** -0.5) * LOG2E
L_LO = 2.0 ** -50
L_HI = 2.0 ** 60


def f2u(x):
    return struct.unpack("<I", struct.pack("<f", x))[0]


sX, sWg, sWu, sWq, sWS = S(4, 4), S(8, 4), S(12, 4), S(16, 4), S(20, 4)
sWd, sGw, sDbg, sWo = S(64, 4), S(60, 4), S(44, 4), S(8, 4)
sWave, sMblk, sCg, sW4 = S(24), S(25), S(26), S(28)
sT0, sT1, sT2 = S(32), S(33), S(31)
sRot = S(3)
sXcd, sIdx = S(68), S(69)
KX, KQ, KO, KG, KU, KD, KGW, KDBG, KWS = 72, 74, 76, 80, 82, 84, 86, 88, 90

BR = 114688
WR = 65536
QL = 131072
ARED = 147456
LDS = 163840
vX0, vX1, vX2, vLane, vLane16 = V(250), V(251), V(252), V(253), V(254)


def srd(e, s, lo, size):
    e.salu("s_mov_b32", s[0], S(lo))
    e.salu("s_mov_b32", s[1], S(lo + 1))
    e.salu("s_mov_b32", s[2], size)
    e.salu("s_mov_b32", s[3], "0x20000")


def gen_k12(e):
    e.label(KNAME)
    e.salu("s_cmp_ge_u32", S(2), 256)
    e.raw("s_cbranch_scc1 L_k12_end")
    e.s_load(S(72, 4), S(0, 2), 0)
    e.s_load(S(76, 2), S(0, 2), 16)
    e.s_load(S(80, 8), S(0, 2), 32)
    e.s_load(S(88, 4), S(0, 2), 72)
    e.s_load(S(92, 2), S(0, 2), 64)
    e.salu("s_and_b32", sXcd, S(2), 7)
    e.salu("s_lshr_b32", sIdx, S(2), 3)
    e.salu("s_and_b32", sMblk, sXcd, 1)
    e.salu("s_lshl_b32", sMblk, sMblk, 3)
    e.salu("s_and_b32", sRot, sIdx, 7)
    e.salu("s_add_u32", sMblk, sMblk, sRot)
    e.salu("s_lshr_b32", sT0, sXcd, 1)
    e.salu("s_lshr_b32", sT1, sIdx, 3)
    e.salu("s_mul_i32", sCg, sT0, 3)
    e.salu("s_add_u32", sCg, sCg, sT1)
    e.salu("s_add_u32", sT0, sT0, 12)
    e.salu("s_cmp_eq_u32", sT1, 3)
    e.salu("s_cselect_b32", sCg, sT0, sCg)
    if ROT1:
        e.salu("s_lshl_b32", sT1, sT1, 1)
        e.salu("s_add_u32", sRot, sRot, sT1)
        e.salu("s_sub_u32", sT0, sRot, 7)
        e.salu("s_cmp_ge_u32", sRot, 7)
        e.salu("s_cselect_b32", sRot, sT0, sRot)
    else:
        e.salu("s_mov_b32", sRot, 0)
    e.valu("v_lshrrev_b32", vX0, 6, V(0))
    e.valu("v_and_b32", vLane, 63, V(0))
    e.valu("v_readfirstlane_b32", sWave, vX0)
    e.valu("v_lshlrev_b32", vLane16, 4, vLane)
    e.salu("s_and_b32", sW4, sWave, 3)
    e.salu("s_cmp_lt_u32", sWave, 4)
    e.raw("s_cbranch_scc1 L_k12_heavy")
    saved = list(e.lg)

    def reset():
        e.lg, e.vm, e.last, e.smem_pending = list(saved), [], {}, True
    e.raw("s_setprio 3")
    e.stamp(12, True)
    e.salu("s_cmp_ge_u32", sCg, 12)
    e.raw("s_cbranch_scc1 L_k12_loadY")
    e.flush_hazards()
    gen_loader1(e, False)
    e.raw("s_branch L_k12_help2")
    e.label("L_k12_loadY")
    reset()
    gen_loader1(e, True)
    e.label("L_k12_help2")
    e.lg, e.vm, e.last = [], [], {}
    gen_helper2(e)
    e.label("L_k12_heavy")
    reset()
    e.salu("s_cmp_ge_u32", sCg, 12)
    e.raw("s_cbranch_scc1 L_k12_compY")
    gen_compute1(e, False)
    e.raw("s_branch L_k12_attn")
    e.label("L_k12_compY")
    reset()
    gen_compute1(e, True)
    e.label("L_k12_attn")
    e.lg, e.vm, e.last = [], [], {}
    e.nop(2)
    gen_attn(e)
    e.label("L_k12_end")
    e.raw("s_endpgm")


sNonce = S(27)


def poll(e, name, vaddr, srd_, soff, nlanes, vtmp, cmp_s):
    mask = (1 << nlanes) - 1
    e.wait_lg_all()
    e.raw(f"s_mov_b32 exec_lo, {hex(mask & 0xffffffff)}")
    e.raw(f"s_mov_b32 exec_hi, {hex(mask >> 32)}")
    e.salu("s_mov_b32", sT2, 0)
    e.label(name)
    e.raw(f"buffer_load_dword {vtmp}, {vaddr}, {srd_}, {soff} offen sc1")
    e.salu("s_add_u32", sT2, sT2, 1)
    e.raw("s_waitcnt vmcnt(0)")
    e.raw(f"v_cmp_ne_u32 vcc, {cmp_s}, {vtmp}")
    e.salu("s_cmp_gt_u32", sT2, SPIN)
    e.raw(f"s_cbranch_scc1 {name}_out")
    e.raw("s_and_b64 exec, exec, vcc")
    e.raw(f"s_cbranch_scc0 {name}_out")
    if SLEEP: e.raw(f"s_sleep {SLEEP}")
    e.raw(f"s_branch {name}")
    e.label(name + "_out")
    e.raw("s_mov_b64 exec, -1")
    e.vm = []
    e.last = {}


def flag_store(e, base, hi=None, lo=None):
    e.salu("s_lshl_b32", sT0, hi or sCg, 4)
    e.salu("s_add_u32", sT0, sT0, lo or sMblk)
    e.salu("s_lshl_b32", sT0, sT0, 7)
    e.salu("s_add_u32", sT0, sT0, base)
    e.salu("s_min_u32", sT1, sW4, 1)
    e.salu("s_lshl_b32", sT1, sT1, 19)
    e.salu("s_add_u32", sT0, sT0, sT1)
    e.valu("v_mov_b32", V(9), sNonce)
    e.valu("v_mov_b32", V(249), 0)
    e.raw("s_mov_b64 exec, 1")
    e.buf_store(V(9), V(249), sWS, sT0, offset=0, flags=" sc1")
    e.raw("s_mov_b64 exec, -1")


def gen_loader1(e, typeY):
    ty = int(typeY)
    lane = vLane
    vA = [V(1), V(2), V(3), V(4)]
    vB = [V(5), V(6)]
    vB2 = [V(7), V(8)]
    vGa = V(13)
    vG = V(16, 7)
    sAoff, sB0, sQo, sVo = S(29), S(30), S(34), S(48)
    sLA, sLB = S(35), S(36)
    sCh = [S(37 + i) for i in range(7)]
    e.valu("v_lshrrev_b32", vX0, 3, lane)
    e.valu("v_and_b32", vX1, 7, lane)
    e.valu("v_lshrrev_b32", vX2, 1, vX0)
    e.valu("v_xor_b32", vX2, vX2, vX1)
    e.valu("v_mul_u32_u24", vA[0], 896, vX0)
    e.valu("v_lshl_add_u32", vA[0], vX2, 4, vA[0])
    e.valu("v_xor_b32", vA[1], 64, vA[0])
    e.valu("v_add_u32", vA[2], 2 * 6144, vA[0])
    e.valu("v_add_u32", vA[3], 3 * 6144, vA[1])
    e.valu("v_add_u32", vA[1], 6144, vA[1])
    e.valu("v_bfe_u32", vX1, lane, 2, 1)
    e.valu("v_bfe_u32", vX2, lane, 4, 1)
    e.valu("v_xor_b32", vX1, vX1, vX2)
    e.valu("v_and_b32", vX2, 3, lane)
    for vv, l_, us in ((vB, 3584, 64), (vB2, 2688, 56)):
        e.valu("v_mul_u32_u24", vv[0], l_, vX0)
        e.valu("v_mul_u32_u24", vv[1], us, vX1)
        e.valu("v_add_u32", vv[0], vv[0], vv[1])
        e.valu("v_lshl_add_u32", vv[0], vX2, 4, vv[0])
        e.valu("v_add_u32", vv[1], 8 * l_ - 1024, vv[0])
    e.salu("s_lshl_b32", sT0, sMblk, 2)
    e.salu("s_add_u32", sT0, sT0, sW4)
    e.salu("s_mul_i32", sAoff, sT0, 32 * 896)
    e.salu("s_mul_i32", sT0, sW4, 16 * 3584)
    e.salu("s_lshl_b32", sB0, sCg, 7)
    e.salu("s_add_u32", sB0, sB0, sT0)
    e.salu("s_mul_i32", sT0, sW4, 16 * 2688)
    e.salu("s_mul_i32", sQo, sCg, 112)
    e.salu("s_add_u32", sQo, sQo, sT0)
    if typeY:
        e.salu("s_mul_i32", sVo, sCg, 224)
        e.salu("s_add_u32", sVo, sVo, sT0)
        e.salu("s_sub_u32", sVo, sVo, 12 * 224 - 1792)
    e.salu("s_lshl_b32", sLA, sW4, 12)
    e.salu("s_lshl_b32", sLB, sW4, 11)
    e.salu("s_add_u32", sLB, sLB, BR)
    e.salu("s_mov_b32", sCh[0], sRot)
    for c in range(1, 7):
        e.salu("s_add_u32", sCh[c], sCh[c - 1], 1)
        e.salu("s_cmp_eq_u32", sCh[c], 7)
        e.salu("s_cselect_b32", sCh[c], 0, sCh[c])
    e.wait_lg_all()
    srd(e, sX, KX, 2048 * 896)
    srd(e, sWg, KG, 448 * 3584)
    srd(e, sWu, KU, 448 * 3584)
    srd(e, sWq, KQ, 448 * 2688)

    def dmaA(c):
        e.salu("s_lshl_b32", sT0, sCh[c], 7)
        e.salu("s_add_u32", "m0", sLA, c * 16384)
        e.salu("s_add_u32", sT0, sT0, sAoff)
        for i in range(4):
            e.buf_load_lds(vA[i], sX, sT0, offset=i * 1024, tag=("C", c))

    def dmaB(n):
        sl = (n % 3) * 16384
        if n < 7 and typeY:
            e.salu("s_mul_i32", sT1, sCh[n], 64 * 2688)
            for r in range(2):
                e.salu("s_add_u32", "m0", sLB, sl + r * 8192)
                e.salu("s_add_u32", sT1, sT1, sVo if r == 0 else 112)
                for i in range(2):
                    e.buf_load_lds(vB2[i], sWq, sT1, offset=i * 1024, tag=("C", n))
        elif n < 7 or n >= 11:
            c = n if n < 7 else n - 11
            e.salu("s_mul_i32", sT1, sCh[c], 64 * 3584)
            e.salu("s_add_u32", sT1, sT1, sB0)
            if n >= 11: e.salu("s_add_u32", sT1, sT1, 12 * 128)
            for r in range(2):
                e.salu("s_add_u32", "m0", sLB, sl + r * 8192)
                e.nop(1)
                for i in range(2):
                    e.buf_load_lds(vB[i], (sWg, sWu)[r], sT1, offset=i * 1024, tag=("C", n))
        else:
            for r in range(2):
                c = 2 * (n - 7) + r
                if c < 7:
                    e.salu("s_mul_i32", sT1, sCh[c], 64 * 2688)
                    e.salu("s_add_u32", "m0", sLB, sl + r * 8192)
                    e.salu("s_add_u32", sT0, sQo, sT1)
                    for i in range(2):
                        e.buf_load_lds(vB2[i], sWq, sT0, offset=i * 1024, tag=("C", n))

    def land(n):
        e.wait_vm_tag(("C", n))
        if typeY and 7 <= n < 11:
            e.raw("s_mov_b64 exec, 0xffff")
            for r in range(2):
                c = 2 * (n - 7) + r
                if c < 7:
                    e.ds_write("ds_write_b16", vGa, vG[c], offset=(n % 3) * 16384 + r * 8192)
            e.raw("s_mov_b64 exec, -1")
            e.wait_lg_all()

    dmaA(0); dmaB(0); dmaA(1); dmaB(1)
    srd(e, sWS, KWS, WS_USED)
    srd(e, sDbg, KDBG, 256)
    if typeY:
        srd(e, sGw, KGW, 896)
        e.valu("v_and_b32", vX0, 15, lane)
        e.valu("v_lshlrev_b32", vX1, 1, vX0)
        e.salu("s_lshl_b32", sT0, sW4, 5)
        for c in range(7):
            e.salu("s_lshl_b32", sT2, sCh[c], 7)
            e.salu("s_add_u32", sT2, sT2, sT0)
            e._issue(f"buffer_load_ushort {vG[c]}, {vX1}, {sGw}, {sT2} offen", "vmem", vX1.regs() + sGw.regs() + sT2.regs(), vG[c].regs())
            e.vm.append((-1, set(vG[c].regs()), "gw"))
        e.valu("v_lshlrev_b32", vGa, 7, vX0)
        e.valu("v_bfe_u32", vX1, lane, 1, 1)
        e.valu("v_lshl_add_u32", vGa, vX1, 6, vGa)
        e.valu("v_add_u32", vGa, sLB, vGa)
        e.valu("v_add_u32", vGa, 56, vGa)
    land(0)
    e.barrier()
    for n in range(17):
        if n + 2 < 7:
            dmaA(n + 2)
        if n + 2 < 18:
            dmaB(n + 2)
        if n == N1:
            flag_store(e, F1)
            if not FUSE3: e.stamp(6, True)
        if n == N1B and not typeY:
            flag_store(e, F1B)
        if n == 8:
            e.valu("v_mov_b32", V(12), 0)
            e.buf_load(V(10, 2), V(12), sDbg, 0, offset=0, flags=" sc1")
        if n == 11:
            e.valu("v_readfirstlane_b32", sT0, V(10))
            e.valu("v_readfirstlane_b32", sNonce, V(11))
            e.nop(1)
            e.salu("s_cmp_eq_u32", sT0, 1)
            e.raw(f"s_cbranch_scc1 L_k12_nok{ty}")
            keep = list(e.vm)
            poll(e, f"L_k12_pn{ty}", V(12), sDbg, 0, 1, V(10), "1")
            e.raw(f"buffer_load_dword v11, v12, {sDbg}, 0 offen offset:4 sc1")
            e.raw("s_waitcnt vmcnt(0)")
            e.raw(f"v_readfirstlane_b32 {sNonce}, v11")
            e.nop(2)
            e.label(f"L_k12_nok{ty}")
            e.vm = keep
            e.last = {}
        if n == 16:
            vFl = V(14)
            e.salu("s_lshl_b32", sT0, sXcd, 4)
            e.salu("s_add_u32", sT1, sT0, 128)
            e.valu("v_add_u32", vFl, sT1, lane)
            e.salu("s_lshr_b32", sT1, sXcd, 1)
            e.salu("s_lshl_b32", sT1, sT1, 4)
            e.salu("s_add_u32", sT1, sT1, 192 - 16)
            e.valu("v_add_u32", vX0, sT1, lane)
            e.valu("v_cmp_le_u32", "vcc", 16, lane)
            e.valu("v_cndmask_b32", vFl, vFl, vX0)
            e.salu("s_and_b32", sT1, sIdx, 15)
            e.salu("s_add_u32", sT0, sT0, sT1)
            e.valu("v_mov_b32", vX0, sT0)
            e.valu("v_cmp_le_u32", "vcc", 32, lane)
            e.valu("v_cndmask_b32", vFl, vFl, vX0)
            e.valu("v_lshlrev_b32", vFl, 7, vFl)
        land(n + 1)
        e.barrier()


def gen_compute1(e, typeY):
    ty = int(typeY)
    lane = vLane
    sWm, sWn, sMt = S(29), S(30), S(34)
    sOutH, sOutV, sOutQK, sQKstr, sQKmul, sNL2E = S(35), S(48), S(36), S(37), S(38), S(39)
    sMask = S(40, 2)
    vAr = [[V(232 + i) for i in range(4)], [V(236 + i) for i in range(4)]]
    vTr = V(240)
    vMulHi, vVconst = V(241), V(242)
    TT = 220
    def ACC(p, r, t):
        if p == 1: return V(128 + 16 * t, 16)
        return V(64 * (p // 2) + 32 * r + 16 * t, 16)
    NBUF = 3
    def fA(n, t): return V(160 + (n % NBUF) * 16 + t * 4, 4)
    def fB(n, i): return V(160 + (n % NBUF) * 16 + 8 + i * 4, 4)
    e.salu("s_lshr_b32", sWm, sW4, 1)
    e.salu("s_and_b32", sWn, sW4, 1)
    e.salu("s_lshl_b32", sMt, sMblk, 1)
    e.salu("s_add_u32", sMt, sMt, sWm)
    e.salu("s_lshl_b32", sMt, sMt, 1)
    e.valu("v_and_b32", vX0, 31, lane)
    e.valu("v_lshrrev_b32", vX1, 5, lane)
    e.valu("v_bfe_u32", vX2, lane, 1, 3)
    e.valu("v_xor_b32", vX2, vX2, vX1)
    e.valu("v_lshlrev_b32", vX0, 7, vX0)
    e.salu("s_lshl_b32", sT0, sWm, 13)
    e.valu("v_add_u32", vX0, sT0, vX0)
    for k in range(4):
        e.valu("v_xor_b32", vAr[0][k], 2 * k, vX2)
        e.valu("v_lshl_add_u32", vAr[0][k], vAr[0][k], 4, vX0)
        e.valu("v_add_u32", vAr[1][k], 65536, vAr[0][k])
    e.valu("v_bfe_u32", vX0, lane, 2, 2)
    e.valu("v_lshl_add_u32", vX0, vX1, 3, vX0)
    e.valu("v_bfe_u32", vX2, lane, 4, 1)
    e.valu("v_lshlrev_b32", vX2, 5, vX2)
    e.valu("v_and_b32", vX1, 3, lane)
    e.valu("v_lshl_add_u32", vX2, vX1, 3, vX2)
    e.valu("v_lshl_add_u32", vX2, vX0, 7, vX2)
    e.valu("v_bfe_u32", vX1, lane, 3, 1)
    e.valu("v_xor_b32", vX1, sWn, vX1)
    e.valu("v_lshl_add_u32", vTr, vX1, 6, vX2)
    e.valu("v_add_u32", vTr, BR, vTr)
    e.salu("s_mov_b32", sNL2E, hex(f2u(-LOG2E)))
    e.salu("s_lshl_b32", sT2, sCg, 1)
    e.salu("s_add_u32", sT2, sT2, sWn)
    e.salu("s_mul_i32", sOutH, sMt, H_MT_STRIDE)
    e.salu("s_lshl_b32", sT1, sT2, 11)
    e.salu("s_add_u32", sOutH, sOutH, sT1)
    e.salu("s_add_u32", sOutH, sOutH, HF)
    if typeY:
        e.salu("s_sub_u32", sT1, sCg, 12)
        e.salu("s_lshl_b32", sT0, sT1, 2)
        e.salu("s_add_u32", sT0, sT0, sWn)
        e.salu("s_lshl_b32", sT0, sT0, 6)
        e.salu("s_add_u32", sT0, sT0, sMt)
        e.salu("s_lshl_b32", sOutV, sT0, 12)
        e.salu("s_add_u32", sOutV, sOutV, KVF + 2048)
    e.salu("s_and_b32", sT1, sT2, 15)
    e.salu("s_lshl_b32", sT1, sT1, 6)
    e.salu("s_add_u32", sT1, sT1, sMt)
    e.salu("s_cmp_lt_u32", sT2, 16)
    e.salu("s_cselect_b32", sQKstr, 11, 12)
    e.salu("s_cselect_b32", sOutQK, QF, KVF)
    e.salu("s_cselect_b32", sQKmul, hex(f2u(QSCALE)), 1.0)
    e.salu("s_lshl_b32", sQKstr, 1, sQKstr)
    e.salu("s_mul_i32", sT1, sT1, sQKstr)
    e.salu("s_add_u32", sOutQK, sOutQK, sT1)
    e.valu("v_cmp_gt_u32", "vcc", 32, lane)
    e.valu("v_mov_b32", vX0, sQKmul)
    e.valu("v_mov_b32", vX1, 0)
    e.valu("v_cndmask_b32", vMulHi, vX1, vX0)
    if typeY:
        e.valu("v_and_b32", vX0, 31, lane)
        e.valu("v_cmp_eq_u32", "vcc", 28, vX0)
        e.valu("v_mov_b32", vX2, "0x3f803f80")
        e.valu("v_cndmask_b32", vVconst, vX1, vX2)
        e.valu("v_cmp_le_u32", sMask, 28, vX0)
    e.wait_lg_all()
    srd(e, sWS, KWS, WS_USED)
    srd(e, sWd, KD, 1792 * 896)
    if not typeY:
        e.salu("s_add_u32", sT0, S(2), sWave)
        e.salu("s_cmp_lg_u32", sT0, 0)
        e.raw("s_cbranch_scc1 L_k12_nn")
        srd(e, sDbg, KDBG, 256)
        e.raw("s_mov_b64 exec, 1")
        e.raw("v_mov_b32 v1, 0")
        e.salu("s_mov_b32", sT0, NONCE)
        e.raw(f"buffer_load_dword v3, v1, {sWS}, {sT0} offen sc1")
        e.raw("v_mov_b32 v2, 1")
        e.raw("s_waitcnt vmcnt(0)")
        e.raw("v_add_u32 v3, 0x9e3779b9, v3")
        e.raw(f"buffer_store_dwordx2 v[2:3], v1, {sDbg}, 0 offen sc1")
        e.raw(f"buffer_store_dword v3, v1, {sWS}, {sT0} offen sc1")
        e.raw("s_mov_b64 exec, -1")
        e.label("L_k12_nn")
        e.last = {}

    def epi_h(p, pk=False):
        ops = []
        for t in range(2):
            G, U = ACC(p, 0, t), ACC(p, 1, t)
            for hgrp in range(2):
                rs = list(range(8 * hgrp, 8 * hgrp + 8))
                T = V(TT, 8)
                if not pk:
                    for r in rs: ops.append((1, lambda r=r, G=G, T=T: e.valu("v_mul_f32", T[r % 8], sNL2E, G[r])))
                    for r in rs:
                        ops.append((2, lambda r=r, T=T: e.valu("v_exp_f32", T[r % 8], T[r % 8])))
                        ops.append((1, lambda r=r, G=G, U=U: e.valu("v_mul_f32", G[r], G[r], U[r])))
                    for r in rs: ops.append((1, lambda r=r, T=T: e.valu("v_add_f32", T[r % 8], 1.0, T[r % 8])))
                    for r in rs: ops.append((2, lambda r=r, T=T: e.valu("v_rcp_f32", T[r % 8], T[r % 8])))
                    for r in rs: ops.append((1, lambda r=r, G=G, T=T: e.valu("v_mul_f32", G[r], G[r], T[r % 8])))
                else:
                    C = V(228, 4)
                    for r in rs[::2]: ops.append((1, lambda r=r, G=G, T=T: e.valu("v_pk_mul_f32", T[r % 8:r % 8 + 2], G[r:r + 2], C[0:2])))
                    for r in rs:
                        ops.append((2, lambda r=r, T=T: e.valu("v_exp_f32", T[r % 8], T[r % 8])))
                        if r % 2: ops.append((1, lambda r=r, G=G, U=U: e.valu("v_pk_mul_f32", G[r - 1:r + 1], G[r - 1:r + 1], U[r - 1:r + 1])))
                    for r in rs[::2]: ops.append((1, lambda r=r, T=T: e.valu("v_pk_add_f32", T[r % 8:r % 8 + 2], T[r % 8:r % 8 + 2], C[2:4])))
                    for r in rs: ops.append((2, lambda r=r, T=T: e.valu("v_rcp_f32", T[r % 8], T[r % 8])))
                    for r in rs[::2]: ops.append((1, lambda r=r, G=G, T=T: e.valu("v_pk_mul_f32", G[r:r + 2], G[r:r + 2], T[r % 8:r % 8 + 2])))
                for i in range(4 * hgrp, 4 * hgrp + 4):
                    ops.append((1, lambda i=i, G=G, U=U: e.valu("v_cvt_pk_bf16_f32", U[i], G[2 * i], G[2 * i + 1])))
                def st(hgrp=hgrp, t=t, U=U):
                    e.salu("s_add_u32", sT1, sOutH, t * H_MT_STRIDE + (24 * 2048 if p else 0))
                    e.buf_store(U[4 * hgrp:4 * hgrp + 4], vLane16, sWS, sT1, offset=hgrp * 1024, flags=STF)
                ops.append((-2, st))
        return ops

    def epi_v():
        ops = []
        for r in range(2):
            for t in range(2):
                X = ACC(0, r, t)
                for hgrp in range(2):
                    for i in range(4 * hgrp, 4 * hgrp + 4):
                        ops.append((1, lambda i=i, X=X: e.valu("v_cvt_pk_bf16_f32", X[i], X[2 * i], X[2 * i + 1])))
                    for i in range(4 * hgrp, 4 * hgrp + 4):
                        ops.append((1, lambda i=i, X=X: e.valu("v_cndmask_b32", X[i], X[i], vVconst, sMask)))
                    def st(t=t, X=X, r=r, hgrp=hgrp):
                        e.salu("s_add_u32", sT1, sOutV, 2 * r * 64 * 4096 + t * 4096)
                        e.buf_store(X[4 * hgrp:4 * hgrp + 4], vLane16, sWS, sT1, offset=hgrp * 1024, flags=STF, tag="qkv")
                    st.qkv = True
                    ops.append((-2, st))
        return ops

    def epi_qk():
        ops = []
        for t in range(2):
            X = ACC(1, 0, t)
            if typeY:
                ops.append((1, lambda t=t, X=X: e.valu("v_cvt_pk_bf16_f32", V(208 + t), X[12], X[12])))
            for r in range(16):
                if typeY and r < 12:
                    continue
                ops.append((1, lambda r=r, X=X: e.valu("v_mul_f32", X[r], sQKmul if r < 12 else vMulHi, X[r])))
            for hgrp in range(2):
                for i in range(4 * hgrp, 4 * hgrp + 4):
                    ops.append((1, lambda i=i, X=X: e.valu("v_cvt_pk_bf16_f32", X[i], X[2 * i], X[2 * i + 1])))
                def st(t=t, X=X, hgrp=hgrp):
                    if t == 1 and hgrp == 0:
                        e.salu("s_add_u32", sOutQK, sOutQK, sQKstr)
                    e.buf_store(X[4 * hgrp:4 * hgrp + 4], vLane16, sWS, sOutQK, offset=hgrp * 1024, flags=STF, tag="qkv")
                st.qkv = True
                ops.append((-2, st))
        if typeY:
            for t in range(2):
                D = V(208 + t)
                Gv = V(210 + 2 * t, 2)
                for f in (("v_and_b32", D, "0xffff0000", D), ("v_mul_f32", D, sNL2E, D), ("v_exp_f32", D, D),
                          ("v_mov_b32", Gv[0], 0), ("v_add_f32", D, 1.0, D), ("v_rcp_f32", D, D), ("v_mov_b32", Gv[0], 0),
                          ("v_cvt_pk_bf16_f32", D, D, D),
                          ("v_and_b32", Gv[0], "0xffff0000", D), ("v_sub_f32", Gv[1], 1.0, Gv[0]),
                          ("v_cvt_pk_bf16_f32", Gv[1], Gv[1], Gv[1]), ("v_and_b32", Gv[1], "0xffff0000", Gv[1])):
                    ops.append((2 if f[0] in TRANS else 1, lambda f=f: e.valu(*f)))
            def stg():
                e.valu("v_lshlrev_b32", vX0, 3, lane)
                e.salu("s_lshl_b32", sT1, sMt, 8)
                e.salu("s_add_u32", sT1, sT1, GF - 256)
                e.salu("s_lshl_b32", sT0, sWn, 15)
                e.salu("s_add_u32", sT1, sT1, sT0)
                e.raw("s_mov_b32 exec_lo, 0")
                e.buf_store(V(210, 2), vX0, sWS, sT1, offset=0, flags=STF, tag="qkv")
                e.buf_store(V(212, 2), vX0, sWS, sT1, offset=256, flags=STF, tag="qkv")
                e.raw("s_mov_b32 exec_lo, -1")
            stg.qkv = True
            ops.append((-2, stg))
        return ops

    steps = [(p, ks) for p in range(3) for ks in range(28)]
    def bchunk(p, ks):
        c, kk = ks // 4, ks % 4
        if p == 0: return c, kk * 2048
        if p == 2: return 11 + c, kk * 2048
        return 7 + c // 2, (c % 2) * 8192 + kk * 2048
    def rd(n):
        p, ks = steps[n]
        c, kk = ks // 4, ks % 4
        bn, boff = bchunk(p, ks)
        ops = []
        for t in range(2):
            ops.append(lambda t=t: e.ds_read("ds_read_b128", fA(n, t), vAr[c >> 2][kk], offset=(c & 3) * 16384 + t * 4096, tag=("t", n)))
        for i in range(1 if p == 1 else 2):
            for j in range(2):
                ops.append(lambda i=i, j=j: e.ds_read("ds_read_b64_tr_b16", fB(n, i)[2 * j:2 * j + 2], vTr,
                                                      offset=(bn % 3) * 16384 + boff + i * 8192 + j * 512, tag=("t", n)))
        return ops

    def pre():
        sTS = S(52, 4)
        e.salu("s_mov_b32", sTS[3], "0x20000")
        e.salu("s_mul_i32", sT0, S(2), 28)
        e.valu("v_min_u32", vX0, 27, lane)
        e.valu("v_add_u32", vX0, sT0, vX0)
        e.valu("v_lshrrev_b32", vX1, 4, vX0)
        e.valu("v_and_b32", vX0, 15, vX0)
        e.valu("v_mul_u32_u24", vX2, 3584, vX1)
        e.valu("v_lshl_add_u32", vX2, vX0, 7, vX2)
        e.salu("s_mov_b32", sT1, 12 * 128)
        e.salu("s_mov_b32", sTS[2], 448 * 3584)
        e.salu("s_mov_b32", sTS[0], S(KG)); e.salu("s_mov_b32", sTS[1], S(KG + 1))
        e.salu("s_cmp_eq_u32", sW4, 1)
        e.raw(f"s_cbranch_scc1 L_k12_pre{ty}")
        e.salu("s_mov_b32", sTS[0], S(KU)); e.salu("s_mov_b32", sTS[1], S(KU + 1))
        e.salu("s_cmp_eq_u32", sW4, 2)
        e.raw(f"s_cbranch_scc1 L_k12_pre{ty}")
        e.salu("s_mov_b32", sT1, 0)
        e.salu("s_mov_b32", sTS[2], 448 * 2688)
        e.salu("s_mov_b32", sTS[0], S(KQ)); e.salu("s_mov_b32", sTS[1], S(KQ + 1))
        e.valu("v_min_u32", vX0, 13, vX0)
        e.valu("v_mul_u32_u24", vX2, 2688, vX1)
        e.valu("v_lshl_add_u32", vX2, vX0, 7, vX2)
        e.salu("s_cmp_eq_u32", sW4, 0)
        e.raw(f"s_cbranch_scc1 L_k12_pre{ty}")
        e.salu("s_mov_b32", sTS[2], 1792 * 896)
        e.salu("s_mov_b32", sTS[0], S(KD)); e.salu("s_mov_b32", sTS[1], S(KD + 1))
        e.salu("s_mul_i32", sT1, S(2), 49 * 128)
        e.valu("v_min_u32", vX0, 48, lane)
        e.valu("v_lshlrev_b32", vX2, 7, vX0)
        e.label(f"L_k12_pre{ty}")
        e.buf_load(V(243), vX2, sTS, sT1, offset=0)

    e.stamp(0); e.stamp(12, True)
    if PRE < 0: pre()
    e.barrier()
    e.stamp(1)
    for f in rd(0) + rd(1): f()
    epi, stq = [], []
    for n, (p, ks) in enumerate(steps):
        if ks == 0 and p >= 1:
            e.stamp(1 + p)
            if p == 1:
                epi += [(6, lambda: None)] + (epi_v() if typeY else epi_h(0))
                def wdt():
                    e.salu("s_mul_i32", sT0, S(2), 49 * 128)
                    e.salu("s_mul_i32", sT1, sW4, 13 * 128)
                    e.salu("s_add_u32", sT0, sT0, sT1)
                    e.valu("v_min_u32", vX0, 12, lane)
                    e.valu("v_lshlrev_b32", vX0, 7, vX0)
                    e.buf_load(V(243), vX0, sWd, sT0, offset=0)
                if not PRE: stq.append(wdt)
            else:
                epi = [(6, lambda: None)] + epi_qk() + epi
        if p == 0 and PRE > 0 and ks == 4 * PRE:
            stq.append(pre)
        nr = 1 if p == 1 else 2
        nm = 2 * nr
        plan = [[] for _ in range(nm)]
        tgt = n + 2
        if tgt < len(steps):
            r_ = rd(tgt)
            bt = bchunk(*steps[tgt])[0]
            if bt != bchunk(*steps[tgt - 1])[0]:
                def bar(tgt=tgt, bt=bt):
                    e.wait_lg_tag(("t", tgt - 1))
                    if bt == N1:
                        assert not any(getattr(f, "qkv", False) for _, f in epi) and not any(getattr(f, "qkv", False) for f in stq)
                        e.wait_vm_tag("qkv")
                    if bt == N1B:
                        assert not epi and not stq, (len(epi), len(stq))
                        e.raw("s_waitcnt vmcnt(0)")
                        e.vm = []
                    e.barrier()
                if steps[tgt][0] == 0:
                    plan[1] = [bar, r_[0]]; plan[2] = r_[1:4]; plan[3] = r_[4:]
                elif nm == 4:
                    plan[0] = r_[0:2]; plan[2] = [bar] + r_[2:4]; plan[3] = r_[4:]
                else:
                    plan[0] = r_[0:2]; plan[1] = [bar] + r_[2:]
            else:
                for g in range(nm):
                    k = -(-len(r_) // (nm - g))
                    plan[g] = r_[:k]; r_ = r_[k:]
        e.wait_lg_tag(("t", n))
        gi = 0
        for i in range(nr):
            for t in range(2):
                swap = typeY and p == 0
                a_, b_ = (fA(n, t), fB(n, i)) if swap else (fB(n, i), fA(n, t))
                e.mfma(ACC(p, i, t), a_, b_, 0 if ks == 0 else None)
                slots = 6 - (1 if gi == nm - 1 else 0)
                for f in plan[gi]:
                    f(); slots -= 1
                if p == 2:
                    slots = min(slots, 4)
                safe = (ks % 4 == 1 or (ks % 4 == 0 and gi >= 2)) if p != 1 else (ks % 8 in (3, 4, 5))
                if stq and (safe or (QANY and p == 2 and getattr(stq[0], "qkv", False))):
                    stq.pop(0)(); slots -= 2
                while epi and (slots >= epi[0][0] or epi[0][0] == 6):
                    cost, f = epi.pop(0)
                    if cost < 0:
                        if getattr(f, "qkv", False):
                            k_ = sum(1 for x in stq if getattr(x, "qkv", False))
                            stq.sort(key=lambda x: not getattr(x, "qkv", False))
                            stq.insert(k_, f)
                        else:
                            stq.append(f)
                        continue
                    f(); slots -= cost
                    if cost == 6: break
                gi += 1
    e.stamp(4)
    e.valu("v_mov_b32", V(228), sNL2E)
    e.valu("v_mov_b32", V(229), sNL2E)
    e.valu("v_mov_b32", V(230), 1.0)
    e.valu("v_mov_b32", V(231), 1.0)
    for _, f in epi_h(2, pk=True):
        f()
    e.stamp(5)


def gen_attn(e):
    lane = vLane
    Q = [[V(8, 4), V(12, 4)], [V(16, 4), V(20, 4)]]
    K = [V(24, 4), V(28, 4)]
    Vf = [[V(32, 4), V(36, 4)], [V(40, 4), V(44, 4)]]
    Sb = [V(128, 16), V(144, 16)]
    P = [V(48, 8), V(56, 8)]
    O = [V(160, 16), V(176, 16)]
    X = V(192, 16)
    vKV, vRed, vQl = V(1), V(2), V(3)
    vT0, vT1, vT2, vT3 = V(4), V(5), V(6), V(7)
    sQg, sKg, sHead, sQblk, sOo, sKV, sCnt = S(29), S(30), S(34), S(35), S(36), S(37), S(38)
    sSave = S(40, 2)
    e.salu("s_and_b32", sQg, sW4, 1)
    e.salu("s_lshr_b32", sKg, sW4, 1)
    e.salu("s_lshr_b32", sT0, sIdx, 4)
    e.salu("s_lshl_b32", sHead, sXcd, 1)
    e.salu("s_add_u32", sHead, sHead, sT0)
    e.salu("s_and_b32", sQblk, sIdx, 15)
    e.salu("s_lshl_b32", sKV, sHead, 18)
    e.salu("s_add_u32", sKV, sKV, KVF)
    e.salu("s_lshl_b32", sT1, sQblk, 2)
    e.salu("s_lshl_b32", sT0, sQg, 1)
    e.salu("s_add_u32", sT1, sT1, sT0)
    e.salu("s_add_u32", sT1, sT1, sKg)
    e.salu("s_lshl_b32", sOo, sT1, 4)
    e.salu("s_add_u32", sOo, sOo, sHead)
    e.salu("s_lshl_b32", sOo, sOo, 11)
    e.salu("s_add_u32", sOo, sOo, OF)
    e.salu("s_lshl_b32", sT2, sKg, 13)
    e.valu("v_add_u32", vKV, sT2, vLane16)
    e.salu("s_lshl_b32", sT2, sQg, 12)
    e.salu("s_add_u32", sT2, sT2, QL)
    e.valu("v_add_u32", vQl, sT2, vLane16)
    e.salu("s_lshl_b32", sT2, sQg, 13)
    e.salu("s_add_u32", sT2, sT2, ARED)
    e.valu("v_add_u32", vRed, sT2, vLane16)
    for r in range(16):
        e.valu("v_mov_b32", O[0][r], 0)
        e.valu("v_mov_b32", O[1][r], 0)
    for r in range(4):
        e.valu("v_mov_b32", P[1][r], 0)
        e.valu("v_mov_b32", P[1][4 + r], 0)
        e.valu("v_mov_b32", Vf[1][0][r], 0)
        e.valu("v_mov_b32", Vf[1][1][r], 0)
    e.salu("s_mov_b32", sCnt, 0)

    def toff(i): return ((i >> 1) % 4) * 16384 + (i & 1) * 4096

    e.barrier()
    e.stamp(6)
    for q in range(2):
        for s_ in range(2):
            e.ds_read("ds_read_b128", Q[q][s_], vQl, offset=q * 2048 + s_ * 1024)
    e.ds_read("ds_read_b128", K[0], vKV, offset=0)
    e.ds_read("ds_read_b128", K[1], vKV, offset=1024)
    e.ds_read("ds_read_b128", Vf[0][1], vKV, offset=3072)
    e.ds_read("ds_read_b128", Vf[0][0], vKV, offset=2048)
    e.mfma(Sb[0], K[0], Q[0][0], 0)
    e.mfma(Sb[0], K[1], Q[0][1])
    e.wait_lg_all()
    e.flush_hazards()

    def unit(i, q):
        Sc, Sn = Sb[q], Sb[1 - q]
        nq = 1 - q
        def ex(a, b):
            for r in range(a, b): e.valu("v_exp_f32", Sc[r], Sc[r])
        def cv(a, b):
            for j in range(a, b): e.valu("v_cvt_pk_bf16_f32", P[q][j], Sc[2 * j], Sc[2 * j + 1])
        pi = i if q == 1 else i - 1
        if q == 0:
            rd = [(K[0], toff(i + 1)), (K[1], toff(i + 1) + 1024)]
        else:
            rd = [(Vf[(i + 1) % 2][1], toff(i + 1) + 3072), (Vf[(i + 1) % 2][0], toff(i + 1) + 2048)]
        e.mfma(Sn, K[0], Q[nq][0], 0)
        ex(0, 3)
        e.mfma(Sn, K[1], Q[nq][1])
        e.ds_read("ds_read_b128", rd[0][0], vKV, offset=rd[0][1])
        ex(3, 5); cv(0, 1)
        e.mfma(O[nq], Vf[pi % 2][0], P[nq][0:4])
        e.ds_read("ds_read_b128", rd[1][0], vKV, offset=rd[1][1])
        ex(5, 7); cv(1, 2)
        e.mfma(O[nq], Vf[pi % 2][1], P[nq][4:8])
        ex(7, 16); cv(2, 8)

    mark = len(e.lines)
    for i in (6, 7):
        for q in range(2): unit(i, q)
    del e.lines[mark:]
    e.label("L_k12_aloop")
    for i in range(8):
        for q in range(2):
            unit(i, q)
        if i % 2 == 1:
            if i == 3:
                e.raw("s_waitcnt vmcnt(0)")
            if i == 7:
                e.salu("s_add_u32", sCnt, sCnt, 1)
                e.salu("s_cmp_lt_u32", sCnt, 4)
            e.barrier()
    e.raw("s_cbranch_scc1 L_k12_aloop")
    e.mfma(O[1], Vf[1][0], P[1][0:4])
    e.mfma(O[1], Vf[1][1], P[1][4:8])
    e.stamp(7)
    e.wait_lg_all()
    e.salu("s_cmp_eq_u32", sKg, 0)
    e.raw("s_cbranch_scc1 L_k12_kg0")
    for j in range(4):
        e.ds_write("ds_write_b128", vRed, O[0][4 * j:4 * j + 4], offset=j * 1024)
    for r in range(16):
        e.valu("v_mov_b32", O[0][r], O[1][r])
    for s_ in range(2):
        for r in range(4):
            e.valu("v_mov_b32", Q[0][s_][r], Q[1][s_][r])
    e.valu("v_add_u32", vRed, 4096, vRed)
    e.raw("s_branch L_k12_kgj")
    e.label("L_k12_kg0")
    e.lg = []
    e.last = {}
    e.nop(10)
    for j in range(4):
        e.ds_write("ds_write_b128", vRed, O[1][4 * j:4 * j + 4], offset=4096 + j * 1024)
    e.label("L_k12_kgj")
    e.raw("s_waitcnt lgkmcnt(0)")
    e.lg = []
    e.last = {}
    e.barrier()
    Of, Pf, Qf = O[0], P[0], Q[0]
    for j in range(4):
        e.ds_read("ds_read_b128", X[4 * j:4 * j + 4], vRed, offset=j * 1024)
    Z = V(208, 2)
    e.valu("v_mov_b32", Z[0], 0)
    e.valu("v_mov_b32", Z[1], 0)
    e.valu("v_mov_b32", V(210), 0)
    e.valu("v_mov_b32", V(211), 0)
    for r in range(0, 16, 2):
        e.valu("v_pk_add_f32", Of[r:r + 2], Of[r:r + 2], X[r:r + 2])
    e.valu("v_mov_b32", vT0, Of[12])
    e.valu("v_mov_b32", vT1, Of[12])
    for r in range(0, 16, 2):
        e.valu("v_pk_fma_f32", Z, Of[r:r + 2], V(210, 2), Z)
        if r == 2:
            e.valu("v_permlane32_swap_b32", vT0, vT1)
    e.valu("v_add_f32", vT2, Z[0], Z[1])
    e.salu("s_mov_b32", sT0, hex(f2u(L_LO)))
    e.salu("s_mov_b32", sT1, hex(f2u(L_HI)))
    e.valu("v_add_f32", vT2, vT2, vT1)
    e.valu("v_cmp_le_f32", "vcc", sT0, vT2)
    e.valu("v_cmp_ge_f32", sSave, sT1, vT2)
    e.nop(1)
    e.salu("s_and_b64", "vcc", "vcc", sSave)
    e.raw("s_cmp_eq_u64 vcc, -1")
    e.raw("s_cbranch_scc0 L_k12_slow")
    e.label("L_k12_store")
    e.last = {}
    e.nop(2)
    e.valu("v_rcp_f32", vT0, vT1)
    e.valu("v_cmp_gt_u32", "vcc", 32, lane)
    e.valu("v_mov_b32", vT2, 0)
    e.valu("v_mov_b32", vT1, vT0)
    e.valu("v_cndmask_b32", vT2, vT2, vT0)
    e.valu("v_mov_b32", vT3, vT2)
    for r in range(0, 16, 2):
        e.valu("v_pk_mul_f32", Of[r:r + 2], Of[r:r + 2], V(4, 2) if r < 12 else V(6, 2))
    for j in range(8):
        e.valu("v_cvt_pk_bf16_f32", Pf[j], Of[2 * j], Of[2 * j + 1])
    e.buf_store(Pf[0:4], vLane16, sWS, sOo, offset=0, flags=STF)
    e.buf_store(Pf[4:8], vLane16, sWS, sOo, offset=1024, flags=STF)
    e.stamp(8)
    if FUSE3:
        gen_phase3_heavy(e)
    if Emitter.STAMPS:
        e.raw("s_waitcnt vmcnt(0)")
    e.stamp(9); e.stamp(13, True)
    e.dump_stamps(sWS, 0, sWave)
    e.raw("s_endpgm")
    e.label("L_k12_slow")
    e.lg, e.vm, e.last = [], [], {}
    vM = vT3
    Sc = Sb[0]
    e.valu("v_mov_b32", vM, "0xff800000")
    for r in range(16):
        e.valu("v_mov_b32", Of[r], 0)
    e.salu("s_mov_b32", sCnt, 0)
    e.salu("s_mov_b32", sT2, sKV)
    e.label("L_k12_slow_loop")
    e.buf_load(K[0], vLane16, sWS, sT2, offset=0, flags=LDF)
    e.buf_load(K[1], vLane16, sWS, sT2, offset=1024, flags=LDF)
    e.buf_load(Vf[0][0], vLane16, sWS, sT2, offset=2048, flags=LDF)
    e.buf_load(Vf[0][1], vLane16, sWS, sT2, offset=3072, flags=LDF)
    e.mfma(Sc, K[0], Qf[0], 0)
    e.mfma(Sc, K[1], Qf[1])
    e.valu("v_max_f32", vT0, Sc[0], Sc[1])
    for r in range(2, 16, 2):
        e.valu("v_max3_f32", vT0, vT0, Sc[r], Sc[r + 1])
    e.valu("v_mov_b32", vT1, vT0)
    e.valu("v_permlane32_swap_b32", vT0, vT1)
    e.valu("v_max3_f32", vT0, vT0, vT1, vM)
    e.valu("v_sub_f32", vT1, vM, vT0)
    e.valu("v_exp_f32", vT1, vT1)
    e.valu("v_mov_b32", vM, vT0)
    for r in range(16):
        e.valu("v_sub_f32", Sc[r], Sc[r], vM)
    for r in range(16):
        e.valu("v_exp_f32", Sc[r], Sc[r])
    for r in range(16):
        e.valu("v_mul_f32", Of[r], Of[r], vT1)
    for j in range(8):
        e.valu("v_cvt_pk_bf16_f32", Pf[j], Sc[2 * j], Sc[2 * j + 1])
    e.mfma(Of, Vf[0][0], Pf[0:4])
    e.mfma(Of, Vf[0][1], Pf[4:8])
    e.salu("s_add_u32", sT2, sT2, 4096)
    e.salu("s_add_u32", sCnt, sCnt, 1)
    e.flush_hazards()
    e.salu("s_cmp_lt_u32", sCnt, 64)
    e.raw("s_cbranch_scc1 L_k12_slow_loop")
    e.valu("v_mov_b32", vT0, Of[12])
    e.valu("v_mov_b32", vT1, Of[12])
    e.valu("v_permlane32_swap_b32", vT0, vT1)
    e.raw("s_branch L_k12_store")


def gen_phase3_heavy(e):
    lane = vLane
    sU, sTt, sMt64, sNt, sSt = S(29), S(30), S(34), S(35), S(36)
    vRr, vTr, vOr, vSt = V(1), V(2), V(3), V(4)
    vG = V(6, 2)
    Bx = [V(64 + 16 * w, 16) for w in range(4)]
    ACC = V(128, 16)
    NB = 4
    def OFr(k): return V(8 + (k % NB) * 4, 4)
    def WFr(k): return V(24 + (k % NB) * 4, 4)
    e.salu("s_cmp_ge_u32", sIdx, 28)
    e.raw("s_cbranch_scc0 L_k12_h3")
    e.raw("s_waitcnt vmcnt(0)")
    e.barrier()
    e.raw("s_branch L_k12_h3end")
    e.label("L_k12_h3")
    e.salu("s_lshl_b32", sT0, sW4, 12)
    e.salu("s_add_u32", sT0, sT0, WR)
    e.valu("v_add_u32", vRr, sT0, vLane16)
    for w in range(4):
        for j in range(4):
            e.ds_read("ds_read_b128", Bx[w][4 * j:4 * j + 4], vRr, offset=w * 16384 + j * 1024)
    e.salu("s_mul_i32", sT0, sIdx, 37)
    e.salu("s_lshr_b32", sT0, sT0, 8)
    e.salu("s_mul_i32", sT1, sT0, 7)
    e.salu("s_sub_u32", sNt, sIdx, sT1)
    e.salu("s_lshl_b32", sMt64, sXcd, 2)
    e.salu("s_add_u32", sMt64, sMt64, sT0)
    e.salu("s_and_b32", sU, sW4, 1)
    e.salu("s_lshr_b32", sTt, sW4, 1)
    srd(e, sOut, KOUT, 2048 * 896)
    e.salu("s_lshl_b32", sT0, sMt64, 1)
    e.salu("s_add_u32", sT0, sT0, sTt)
    e.salu("s_mul_i32", sSt, sT0, 32 * 896)
    e.salu("s_lshl_b32", sT2, sNt, 1)
    e.salu("s_add_u32", sT2, sT2, sU)
    e.salu("s_lshl_b32", sT2, sT2, 6)
    e.salu("s_add_u32", sSt, sSt, sT2)
    e.salu("s_lshl_b32", S(37), sT0, 8)
    e.salu("s_add_u32", S(37), S(37), GF)
    e.valu("v_and_b32", vX0, 31, lane)
    e.valu("v_lshlrev_b32", V(5), 3, vX0)
    e.valu("v_mul_u32_u24", vSt, 896, vX0)
    e.valu("v_lshrrev_b32", vX1, 5, lane)
    e.valu("v_lshl_add_u32", vSt, vX1, 4, vSt)
    e.valu("v_bfe_u32", vX0, lane, 2, 2)
    e.valu("v_lshl_add_u32", vX0, vX1, 2, vX0)
    e.valu("v_bfe_u32", vX2, lane, 4, 1)
    e.valu("v_lshlrev_b32", vX2, 5, vX2)
    e.valu("v_and_b32", vX1, 3, lane)
    e.valu("v_lshl_add_u32", vX2, vX1, 3, vX2)
    e.valu("v_lshl_add_u32", vX2, vX0, 7, vX2)
    e.valu("v_bfe_u32", vX1, lane, 3, 1)
    e.valu("v_xor_b32", vX1, sU, vX1)
    e.valu("v_lshl_add_u32", vTr, vX1, 6, vX2)
    e.salu("s_lshl_b32", sT0, sTt, 15)
    e.salu("s_add_u32", sT0, sT0, WR)
    e.valu("v_add_u32", vOr, sT0, vLane16)
    for r in range(0, 16, 2):
        e.valu("v_pk_add_f32", Bx[0][r:r + 2], Bx[0][r:r + 2], Bx[1][r:r + 2])
        e.valu("v_pk_add_f32", Bx[2][r:r + 2], Bx[2][r:r + 2], Bx[3][r:r + 2])
    e.raw("s_waitcnt vmcnt(0)")
    e.vm = []
    e.barrier()
    e.buf_load(vG, V(5), sWS, S(37), offset=0, flags=LDF)
    for r in range(0, 16, 2):
        e.valu("v_pk_add_f32", Bx[0][r:r + 2], Bx[0][r:r + 2], Bx[2][r:r + 2])
    for j in range(8):
        e.valu("v_cvt_pk_bf16_f32", Bx[1][j], Bx[0][2 * j], Bx[0][2 * j + 1])
    for j in range(8):
        e.valu("v_lshlrev_b32", Bx[0][2 * j], 16, Bx[1][j])
        e.valu("v_and_b32", Bx[0][2 * j + 1], "0xffff0000", Bx[1][j])

    for r in range(16):
        e.valu("v_mul_f32", Bx[0][r], Bx[0][r], vG[1])

    def rd(k):
        hd, s_ = k // 2, k % 2
        e.ds_read("ds_read_b128", OFr(k), vOr, offset=k * 1024, tag=("k", k))

    def rdw(k):
        hd, s_ = k // 2, k % 2
        for j in range(2):
            e.ds_read("ds_read_b64_tr_b16", WA(k)[2 * j:2 * j + 2], vTr, offset=(28 * hd + 16 * s_ + 8 * j) * 128, tag=("w", k))

    def WA(k): return V(144 + 4 * k, 4) if k < 26 else V(80 + 4 * (k - 26), 4)
    def OFr(k): return V(8 + (k % 8) * 4, 4)
    for k in range(32):
        rdw(k)
    e.wait_lg_all()
    for c in range(4):
        e.barrier()
        if c == 0: e.stamp(10)
        ks = list(range(8 * c, 8 * c + 8))
        for k in ks:
            rd(k)
        for k in ks:
            e.mfma(ACC, WA(k), OFr(k), 0 if k == 0 else None)
    e.stamp(11)
    for r in range(16):
        e.valu("v_fmac_f32", Bx[0][r], ACC[r], vG[0], dst_is_read=True)
    Bv = Bx[3]
    for j in range(8):
        e.valu("v_cvt_pk_bf16_f32", Bv[j], Bx[0][2 * j], Bx[0][2 * j + 1])
    for kk in range(2):
        e.valu("v_permlane32_swap_b32", Bv[4 * kk], Bv[4 * kk + 2])
        e.valu("v_permlane32_swap_b32", Bv[4 * kk + 1], Bv[4 * kk + 3])
        e.buf_store(Bv[4 * kk:4 * kk + 4], vSt, sOut, sSt, offset=kk * 32)
    e.label("L_k12_h3end")
    e.last = {}


def gen_helper2(e):
    lane = vLane
    sHead, sQblk, sKV, sLdsKV = S(29), S(30), S(34), S(35)
    sMt64, sNt, sLdsW, sWoff, sHoff, sHoff1 = S(36), S(37), S(38), S(39), S(40), S(41)
    vFl = V(14)
    e.salu("s_lshr_b32", sT0, sIdx, 4)
    e.salu("s_lshl_b32", sHead, sXcd, 1)
    e.salu("s_add_u32", sHead, sHead, sT0)
    e.salu("s_and_b32", sQblk, sIdx, 15)
    e.salu("s_lshl_b32", sLdsKV, sW4, 12)
    e.salu("s_lshl_b32", sKV, sHead, 18)
    e.salu("s_add_u32", sKV, sKV, KVF)
    e.salu("s_add_u32", sKV, sKV, sLdsKV)
    e.salu("s_mul_i32", sT0, sIdx, 37)
    e.salu("s_lshr_b32", sT0, sT0, 8)
    e.salu("s_mul_i32", sT1, sT0, 7)
    e.salu("s_sub_u32", sNt, sIdx, sT1)
    e.salu("s_lshl_b32", sMt64, sXcd, 2)
    e.salu("s_add_u32", sMt64, sMt64, sT0)
    e.salu("s_min_u32", sMt64, sMt64, 31)
    def dma_KV(s):
        e.salu("s_add_u32", "m0", sLdsKV, (s % 4) * 16384)
        e.salu("s_add_u32", sT0, sKV, s * 16384)
        for i in range(4):
            e.buf_load_lds(vLane16, sWS, sT0, offset=i * 1024, tag=("KV", s), flags=LDF)

    e.stamp(0)
    e.raw(f"v_mov_b32 v8, {QL + 8192}")
    e.salu("s_cmp_lg_u32", sW4, 0)
    e.raw("s_cbranch_scc1 L_k12_wl")
    e.salu("s_mov_b32", sT0, F1)
    poll(e, "L_k12_p1", vFl, sWS, sT0, 33, V(15), sNonce)
    e.raw(f"v_mov_b32 v9, {sNonce}")
    e.raw("ds_write_b32 v8, v9")
    e.raw("s_branch L_k12_p1ok")
    e.label("L_k12_wl")
    e.salu("s_mov_b32", sT2, 0)
    e.label("L_k12_wl2")
    e.raw("ds_read_b32 v9, v8")
    e.salu("s_add_u32", sT2, sT2, 1)
    e.raw("s_waitcnt lgkmcnt(0)")
    e.raw("v_readfirstlane_b32 s33, v9")
    e.salu("s_cmp_gt_u32", sT2, SPIN * 16)
    e.raw("s_cbranch_scc1 L_k12_p1ok")
    e.raw(f"s_cmp_eq_u32 s33, {sNonce}")
    e.raw("s_cbranch_scc1 L_k12_p1ok")
    e.raw("s_sleep 1")
    e.raw("s_branch L_k12_wl2")
    e.label("L_k12_p1ok")
    e.raw("s_waitcnt vmcnt(0) lgkmcnt(0)")
    e.vm, e.last = [], {}
    e.stamp(1)
    if not FUSE3: e.stamp(7, True)
    dma_KV(0)
    e.salu("s_lshl_b32", sT0, sHead, 6)
    e.salu("s_lshl_b32", sT1, sQblk, 2)
    e.salu("s_add_u32", sT0, sT0, sT1)
    e.salu("s_add_u32", sT0, sT0, sW4)
    e.salu("s_lshl_b32", sT0, sT0, 11)
    e.salu("s_lshl_b32", sT1, sW4, 11)
    e.salu("s_add_u32", "m0", sT1, QL)
    if QF: e.salu("s_add_u32", sT0, sT0, QF)
    else: e.nop(1)
    for i in range(2):
        e.buf_load_lds(vLane16, sWS, sT0, offset=i * 1024, tag=("KV", 0), flags=LDF)
    dma_KV(1); dma_KV(2)
    st0 = list(e.vm)
    e.raw(f"s_setprio {HPRIO}")
    e.salu("s_cmp_ge_u32", sIdx, 28)
    e.raw("s_cbranch_scc1 L_k12_nogemm")
    helper_loop(e, True, dma_KV, sMt64, sNt, sLdsW, sWoff, sHoff, sHoff1)
    e.raw("s_endpgm")
    e.label("L_k12_nogemm")
    e.lg, e.vm, e.last = [], list(st0), {}
    helper_loop(e, False, dma_KV, sMt64, sNt, sLdsW, sWoff, sHoff, sHoff1)
    e.raw("s_endpgm")


def helper_loop(e, gemm, dma_KV, sMt64, sNt, sLdsW, sWoff, sHoff, sHoff1):
    lane = vLane
    g = int(gemm)
    ND = 4
    ACC = [[V(80, 16), V(96, 16)], [V(112, 16), V(128, 16)]]
    def HF_(s, st, t): return V(16 + ((s % ND) * 4 + st * 2 + t) * 4, 4)
    def WF(st, u): return V(144 + (st * 2 + u) * 4, 4)
    vW = [V(2), V(3), V(4), V(5)]
    vTr = [V(6), V(7)]
    vRw, vRr, vF2 = V(11), V(12), V(13)
    sWl, sHl = S(42), S(43)
    if gemm:
        srd(e, sWd, KD, 1792 * 896)
        e.valu("v_lshrrev_b32", vX0, 3, lane)
        e.valu("v_bfe_u32", vX1, lane, 2, 1)
        e.valu("v_bfe_u32", vX2, lane, 4, 1)
        e.valu("v_xor_b32", vX1, vX1, vX2)
        e.valu("v_mul_u32_u24", vW[0], 896, vX0)
        e.valu("v_lshl_add_u32", vW[0], vX1, 6, vW[0])
        e.valu("v_and_b32", vX1, 3, lane)
        e.valu("v_lshl_add_u32", vW[0], vX1, 4, vW[0])
        for i in range(1, 4):
            e.valu("v_add_u32", vW[i], i * (8 * 896 - 1024), vW[0])
        e.salu("s_lshl_b32", sLdsW, sW4, 14)
        e.salu("s_add_u32", sLdsW, sLdsW, WR)
        e.salu("s_mul_i32", sWoff, sW4, 6 * 32 * 896)
        e.salu("s_lshl_b32", sT0, sNt, 7)
        e.salu("s_add_u32", sWoff, sWoff, sT0)
        e.salu("s_lshl_b32", sT0, sW4, 1)
        e.salu("s_add_u32", sT0, sT0, 18)
        e.salu("s_mul_i32", sWl, sT0, 32 * 896)
        e.salu("s_add_u32", sWl, sWl, sWoff)
        e.salu("s_lshl_b32", sHl, sT0, 11)
        e.salu("s_mul_i32", sHoff, sMt64, 2 * H_MT_STRIDE)
        e.salu("s_mul_i32", sT0, sW4, 6 * 2048)
        e.salu("s_add_u32", sHoff, sHoff, sT0)
        e.salu("s_add_u32", sHoff, sHoff, HF)
        e.salu("s_add_u32", sHl, sHl, sHoff)
        e.valu("v_lshrrev_b32", vX1, 5, lane)
        e.valu("v_bfe_u32", vX0, lane, 2, 2)
        e.valu("v_lshl_add_u32", vX0, vX1, 2, vX0)
        e.valu("v_bfe_u32", vX2, lane, 4, 1)
        e.valu("v_lshlrev_b32", vX2, 5, vX2)
        e.valu("v_and_b32", vX1, 3, lane)
        e.valu("v_lshl_add_u32", vX2, vX1, 3, vX2)
        e.valu("v_lshl_add_u32", vX2, vX0, 7, vX2)
        e.valu("v_bfe_u32", vX1, lane, 3, 1)
        e.valu("v_lshl_add_u32", vTr[0], vX1, 6, vX2)
        e.valu("v_xor_b32", vTr[1], 64, vTr[0])
        e.valu("v_add_u32", vTr[0], sLdsW, vTr[0])
        e.valu("v_add_u32", vTr[1], sLdsW, vTr[1])
        e.valu("v_add_u32", vRw, sLdsW, vLane16)
        e.salu("s_lshl_b32", sT0, sW4, 12)
        e.salu("s_add_u32", sT0, sT0, WR)
        e.valu("v_add_u32", vRr, sT0, vLane16)
        e.salu("s_lshr_b32", sT0, sMt64, 1)
        e.valu("v_and_b32", vX0, 15, lane)
        e.valu("v_lshl_add_u32", vF2, vX0, 4, sT0)
        e.valu("v_lshlrev_b32", vF2, 7, vF2)

    def dma_Wo(q):
        if q == 0:
            srd(e, sWo, KO, 448 * 896)
        e.salu("s_mul_i32", sT1, sW4, 32 * 896)
        e.salu("s_lshl_b32", sT0, sNt, 7)
        e.salu("s_add_u32", sT1, sT1, sT0)
        e.salu("s_lshl_b32", sT2, sW4, 12)
        e.salu("s_add_u32", "m0", sT2, q * 16384)
        e.salu("s_add_u32", sT0, sT1, q * 128 * 896)
        for i in range(4):
            e.buf_load_lds(vW[i], sWo, sT0, offset=i * 1024, tag="Wo")

    def W_ops(s):
        def w(i):
            if i == 0:
                e.salu("s_add_u32", "m0", sLdsW, (s % ND) * 4096)
                e.salu("s_add_u32", sT2, sWoff if s < 6 else sWl, s * 32 * 896)
            e.buf_load_lds(vW[i], sWd, sT2, offset=i * 1024, tag=("W", s))
        return [lambda i=i: w(i) for i in range(4)]

    def H_ops(s):
        def h(st, t):
            e.salu("s_add_u32", sT1, sHoff if s < 6 else sHl, s * 2048 + t * H_MT_STRIDE)
            e.buf_load(HF_(s, st, t), vLane16, sWS, sT1, offset=st * 1024, flags=LDF)
        return [lambda st=st, t=t: h(st, t) for st in range(2) for t in range(2)]

    def compute(s, side):
        e.wait_vm_tag(("W", s))
        for st in range(2):
            for u in range(2):
                for j in range(2):
                    e.ds_read("ds_read_b64_tr_b16", WF(st, u)[2 * j:2 * j + 2], vTr[u],
                              offset=(s % ND) * 4096 + st * 2048 + j * 1024)
        if side: side.pop(0)()
        for st in range(2):
            for u in range(2):
                for t in range(2):
                    e.mfma(ACC[u][t], WF(st, u), HF_(s, st, t), 0 if (s == 0 and st == 0) else None)
                    if side: side.pop(0)()

    P2 = POLL2
    comp = {2: [0], 3: [1], 4: [2], 5: [3], 6: [4], 7: [5]}
    late = list(range(6, 14))
    i0 = max(P2 + 2, 8)
    for i in range(i0, 14):
        left = 14 - i
        k = -(-len(late) // left) if i >= 12 else 1
        comp.setdefault(i, [])
        comp[i] += late[:k]; late = late[k:]
    assert not late
    done_at = {s: i for i, l in comp.items() for s in l}
    todo = [(s, k) for s in range(14) for k in ("H", "W")]

    def check(name, base, nl):
        e.valu("v_cmp_ne_u32", "vcc", sNonce, V(8))
        e.nop(1)
        e.raw(f"s_and_b32 s33, vcc_lo, {hex((1 << nl) - 1)}")
        e.raw(f"s_cbranch_scc0 {name}ok")
        keep = list(e.vm)
        e.salu("s_mov_b32", sT0, base)
        poll(e, name, vF2, sWS, sT0, nl, V(8), sNonce)
        e.label(name + "ok")
        e.vm = keep
        e.last = {}

    e.wait_vm_tag(("KV", 1))
    e.stamp(2)
    e.barrier()
    for i in range(16):
        if i in (4, 8, 12): e.stamp(2 + i // 4)
        if i + 3 <= 15:
            dma_KV(i + 3)
        if i == 2:
            flag_store(e, F2)
        if gemm:
            if i in (0, P2 - 1):
                e.salu("s_mov_b32", sT0, F1B if i == 0 else F2)
                e.buf_load(V(8), vF2, sWS, sT0, offset=0, flags=" sc1")
            if i == 1:
                check("L_k12_p1b", F1B, 12)
            if i == P2:
                e.stamp(10)
                check("L_k12_p2", F2, 16)
                e.stamp(11)
            side = []
            budget = 3 if i < 13 else 4
            for (s, k) in list(todo):
                if budget == 0: break
                ok = (s < ND or done_at[s - ND] < i) and not (k == "H" and (i < 1 or (s >= 6 and i < P2)))
                if ok:
                    side += H_ops(s) if k == "H" else W_ops(s)
                    todo.remove((s, k)); budget -= 1
            for s in comp.get(i, []):
                compute(s, side)
            while side: side.pop(0)()
            if i == 14:
                assert not todo
                for u in range(2):
                    for t in range(2):
                        for j in range(4):
                            e.ds_write("ds_write_b128", vRw, ACC[u][t][4 * j:4 * j + 4],
                                       offset=(t * 2 + u) * 4096 + j * 1024)
                e.wait_lg_all()
                if not FUSE3: e.raw("s_setprio 2")
            if i == 15 and not FUSE3:
                X = [V(16 + 16 * w, 16) for w in range(4)]
                for w in range(4):
                    for j in range(4):
                        e.ds_read("ds_read_b128", X[w][4 * j:4 * j + 4], vRr, offset=w * 16384 + j * 1024)
                for r in range(16):
                    e.valu("v_add_f32", X[0][r], X[0][r], X[1][r])
                    e.valu("v_add_f32", X[2][r], X[2][r], X[3][r])
                for r in range(16):
                    e.valu("v_add_f32", X[0][r], X[0][r], X[2][r])
                for j in range(8):
                    e.valu("v_cvt_pk_bf16_f32", X[1][j], X[0][2 * j], X[0][2 * j + 1])
                e.salu("s_lshr_b32", sT0, sW4, 1)
                e.salu("s_lshl_b32", sT1, sMt64, 1)
                e.salu("s_add_u32", sT0, sT0, sT1)
                e.salu("s_mul_i32", sT0, sT0, 14)
                e.salu("s_and_b32", sT1, sW4, 1)
                e.salu("s_add_u32", sT0, sT0, sT1)
                e.salu("s_lshl_b32", sT1, sNt, 1)
                e.salu("s_add_u32", sT0, sT0, sT1)
                e.salu("s_lshl_b32", sT0, sT0, 11)
                e.salu("s_add_u32", sT0, sT0, BF)
                e.buf_store(X[1][0:4], vLane16, sWS, sT0, offset=0, flags=STF)
                e.buf_store(X[1][4:8], vLane16, sWS, sT0, offset=1024, flags=STF)
        if i + 2 <= 15:
            e.wait_vm_tag(("KV", i + 2))
        if i == 13 and not FUSE3:
            srd(e, sWo, KO, 448 * 896)
            e.salu("s_lshl_b32", sT0, sIdx, 2)
            e.salu("s_add_u32", sT0, sT0, sW4)
            e.salu("s_mul_i32", sT0, sT0, 25 * 128)
            e.valu("v_min_u32", vX0, 24, lane)
            e.valu("v_lshlrev_b32", vX0, 7, vX0)
            e.buf_load(V(10), vX0, sWo, sT0, offset=0)
        if FUSE3 and gemm and i >= 13:
            dma_Wo(i - 13)
        if i < 15 or FUSE3:
            e.barrier()
    if FUSE3:
        sHead, sQblk = S(29), S(30)
        e.raw("s_setprio 3")
        e.barrier()
        if gemm:
            dma_Wo(3)
            e.wait_vm_all()
        e.barrier()
        flag_store(e, F3, sQblk, sHead)
        if gemm:
            e.stamp(6, True)
            e.salu("s_lshr_b32", sT0, sMt64, 1)
            e.salu("s_lshl_b32", sT0, sT0, 11)
            e.salu("s_add_u32", sT0, sT0, F3)
            e.valu("v_lshlrev_b32", vF2, 7, lane)
            e.raw(f"v_mov_b32 v8, {QL + 8192 + 64}")
            e.salu("s_cmp_lg_u32", sW4, 1)
            e.raw("s_cbranch_scc1 L_k12_w3")
            poll(e, "L_k12_p3", vF2, sWS, sT0, 16, V(15), sNonce)
            e.raw(f"v_mov_b32 v9, {sNonce}")
            e.raw("ds_write_b32 v8, v9")
            e.raw("s_branch L_k12_p3ok")
            e.label("L_k12_w3")
            e.salu("s_mov_b32", sT2, 0)
            e.label("L_k12_w3b")
            e.raw("ds_read_b32 v9, v8")
            e.salu("s_add_u32", sT2, sT2, 1)
            e.raw("s_waitcnt lgkmcnt(0)")
            e.raw("v_readfirstlane_b32 s33, v9")
            e.salu("s_cmp_gt_u32", sT2, SPIN * 16)
            e.raw("s_cbranch_scc1 L_k12_p3ok")
            e.raw(f"s_cmp_eq_u32 s33, {sNonce}")
            e.raw("s_cbranch_scc1 L_k12_p3ok")
            e.raw("s_sleep 1")
            e.raw("s_branch L_k12_w3b")
            e.label("L_k12_p3ok")
            e.vm, e.last = [], {}
            e.stamp(7, True)
            e.salu("s_lshr_b32", sT0, sW4, 1)
            e.salu("s_lshl_b32", sT0, sT0, 15)
            e.salu("s_and_b32", sT1, sW4, 1)
            e.salu("s_lshl_b32", sT1, sT1, 12)
            e.salu("s_add_u32", sT2, sT0, sT1)
            e.salu("s_lshl_b32", sT1, sMt64, 16)
            e.salu("s_add_u32", sT1, sT1, sT2)
            e.salu("s_add_u32", sT1, sT1, OF)
            for c in range(4):
                e.salu("s_add_u32", "m0", sT2, WR + c * 8192)
                e.salu("s_add_u32", sT0, sT1, c * 8192)
                for i in range(4):
                    e.buf_load_lds(vLane16, sWS, sT0, offset=i * 1024, tag=("O", c), flags=LDF)
                if c >= OLEAD:
                    e.wait_vm_tag(("O", c - OLEAD))
                    e.barrier()
            for c in range(4 - OLEAD, 4):
                e.wait_vm_tag(("O", c))
                e.barrier()
    e.stamp(9); e.stamp(13, True)
    e.dump_stamps(sWS, 0, sWave)


K12_DESC = dict(name=KNAME, vgpr=256, acc=256, sgpr=96, grid=256, block=512, lds=LDS)
```

```python
from emit import *
from layout import *

sWS, sWo, sOut = S(4, 4), S(8, 4), S(12, 4)
sWave, sXcd, sIdx, sMt64, sNt = S(16), S(17), S(18), S(19), S(20)
sT0, sT1, sT2 = S(21), S(22), S(23)
sOoff, sWoff, sLdsW = S(24), S(25), S(26)
sU, sTt = S(27), S(28)

OL = 0
WL = 65536
K3_LDS = 65536 + 57 * 1024


def gen_k3(e):
    e.STAMP_V = 96
    e.label("k3_kernel")
    e.salu("s_cmp_ge_u32", S(2), 224)
    e.raw("s_cbranch_scc1 L_k3_end")
    e.stamp(0); e.stamp(12, True)
    e.s_load(S(44, 2), S(0, 2), 16)
    e.s_load(S(46, 2), S(0, 2), 64)
    e.s_load(S(48, 2), S(0, 2), 80)
    lane = V(0)
    vL16 = V(1)
    vW = [V(2), V(3), V(4), V(5)]
    vTr, vOr = V(6), V(7)
    vX0, vX1, vX2 = V(8), V(9), V(10)
    vSt = V(11)
    vG = V(12, 2)
    Bv = V(16, 8)
    ACC = V(32, 16)
    T = V(48, 16)
    NB = 4
    def OFr(k): return V(64 + (k % NB) * 4, 4)
    def WFr(k): return V(80 + (k % NB) * 4, 4)
    e.salu("s_and_b32", sXcd, S(2), 7)
    e.salu("s_lshr_b32", sIdx, S(2), 3)
    e.salu("s_mul_i32", sT0, sIdx, 37)
    e.salu("s_lshr_b32", sT0, sT0, 8)
    e.salu("s_mul_i32", sT1, sT0, 7)
    e.salu("s_sub_u32", sNt, sIdx, sT1)
    e.salu("s_lshl_b32", sMt64, sXcd, 2)
    e.salu("s_add_u32", sMt64, sMt64, sT0)
    e.valu("v_lshrrev_b32", V(1), 6, V(0))
    e.valu("v_and_b32", V(0), 63, V(0))
    e.valu("v_readfirstlane_b32", sWave, V(1))
    e.valu("v_lshlrev_b32", vL16, 4, lane)
    e.valu("v_lshrrev_b32", vX0, 3, lane)
    e.valu("v_bfe_u32", vX1, lane, 2, 1)
    e.valu("v_bfe_u32", vX2, lane, 4, 1)
    e.valu("v_xor_b32", vX1, vX1, vX2)
    e.valu("v_mul_u32_u24", vW[0], 896, vX0)
    e.valu("v_lshl_add_u32", vW[0], vX1, 6, vW[0])
    e.valu("v_and_b32", vX1, 3, lane)
    e.valu("v_lshl_add_u32", vW[0], vX1, 4, vW[0])
    for i in range(1, 4):
        e.valu("v_add_u32", vW[i], i * (8 * 896 - 1024), vW[0])
    sRole = S(31)
    e.salu("s_lshr_b32", sRole, sWave, 2)
    e.salu("s_and_b32", sWave, sWave, 3)
    e.salu("s_and_b32", sU, sWave, 1)
    e.salu("s_lshr_b32", sTt, sWave, 1)
    e.salu("s_lshl_b32", sOoff, sMt64, 16)
    e.salu("s_lshl_b32", sT0, sTt, 15)
    e.salu("s_lshl_b32", sT1, sU, 12)
    e.salu("s_add_u32", sT0, sT0, sT1)
    sLdsO = S(29)
    e.salu("s_mov_b32", sLdsO, sT0)
    e.salu("s_add_u32", sOoff, sOoff, sT0)
    e.salu("s_add_u32", sOoff, sOoff, OF)
    e.salu("s_mul_i32", sWoff, sWave, 32 * 896)
    e.salu("s_lshl_b32", sT0, sNt, 7)
    e.salu("s_add_u32", sWoff, sWoff, sT0)
    e.salu("s_lshl_b32", sLdsW, sWave, 12)
    e.salu("s_add_u32", sLdsW, sLdsW, WL)
    e.wait_lg_all()

    def srd(s, lo, size):
        if s is sWS and WS_BASE:
            e.salu("s_add_u32", s[0], S(lo), WS_BASE)
            e.salu("s_addc_u32", s[1], S(lo + 1), 0)
        else:
            e.salu("s_mov_b32", s[0], S(lo))
            e.salu("s_mov_b32", s[1], S(lo + 1))
        e.salu("s_mov_b32", s[2], size)
        e.salu("s_mov_b32", s[3], "0x20000")
    srd(sWS, 48, WS_USED)
    srd(sWo, 44, 448 * 896)
    srd(sOut, 46, 2048 * 896)

    def dma_O(c):
        e.salu("s_add_u32", "m0", sLdsO, c * 8192)
        e.salu("s_add_u32", sT0, sOoff, c * 8192)
        for i in range(4):
            e.buf_load_lds(vL16, sWS, sT0, offset=i * 1024, tag=("C", c))

    def dma_W(q):
        e.salu("s_add_u32", "m0", sLdsW, q * 16384)
        e.salu("s_add_u32", sT0, sWoff, q * 128 * 896)
        for i in range(4):
            e.buf_load_lds(vW[i], sWo, sT0, offset=i * 1024, tag=("C", q))

    e.salu("s_cmp_eq_u32", sRole, 0)
    e.raw("s_cbranch_scc1 L_k3_comp")
    dma_W(0); dma_O(0); dma_W(1); dma_O(1)
    for c in range(4):
        e.wait_vm_tag(("C", c))
        e.barrier()
        if c + 2 < 4:
            dma_W(c + 2); dma_O(c + 2)
    e.raw("s_endpgm")
    e.label("L_k3_comp")
    e.vm = []
    e.salu("s_lshl_b32", sT0, sMt64, 1)
    e.salu("s_add_u32", sT0, sT0, sTt)
    e.salu("s_mul_i32", sT1, sT0, 14)
    e.salu("s_add_u32", sT1, sT1, sU)
    e.salu("s_lshl_b32", sT2, sNt, 1)
    e.salu("s_add_u32", sT1, sT1, sT2)
    e.salu("s_lshl_b32", sT1, sT1, 11)
    e.salu("s_add_u32", sT1, sT1, BF)
    e.buf_load(Bv[0:4], vL16, sWS, sT1, offset=0)
    e.buf_load(Bv[4:8], vL16, sWS, sT1, offset=1024)
    e.valu("v_and_b32", vX0, 31, lane)
    e.valu("v_lshlrev_b32", vX1, 3, vX0)
    e.salu("s_lshl_b32", sT1, sT0, 8)
    e.salu("s_add_u32", sT1, sT1, GF)
    e.buf_load(vG, vX1, sWS, sT1, offset=0)
    e.valu("v_mul_u32_u24", vSt, 896, vX0)
    e.valu("v_lshrrev_b32", vX1, 5, lane)
    e.valu("v_lshl_add_u32", vSt, vX1, 4, vSt)
    sSt = S(30)
    e.salu("s_mul_i32", sSt, sT0, 32 * 896)
    e.salu("s_add_u32", sT2, sT2, sU)
    e.salu("s_lshl_b32", sT2, sT2, 6)
    e.salu("s_add_u32", sSt, sSt, sT2)
    e.valu("v_bfe_u32", vX0, lane, 2, 2)
    e.valu("v_lshl_add_u32", vX0, vX1, 2, vX0)
    e.valu("v_bfe_u32", vX2, lane, 4, 1)
    e.valu("v_lshlrev_b32", vX2, 5, vX2)
    e.valu("v_and_b32", vX1, 3, lane)
    e.valu("v_lshl_add_u32", vX2, vX1, 3, vX2)
    e.valu("v_lshl_add_u32", vX2, vX0, 7, vX2)
    e.valu("v_bfe_u32", vX1, lane, 3, 1)
    e.valu("v_xor_b32", vX1, sU, vX1)
    e.valu("v_lshl_add_u32", vTr, vX1, 6, vX2)
    e.valu("v_add_u32", vTr, WL, vTr)
    e.salu("s_lshl_b32", sT0, sTt, 15)
    e.valu("v_add_u32", vOr, sT0, vL16)

    def rd(k):
        hd, s = k // 2, k % 2
        e.ds_read("ds_read_b128", OFr(k), vOr, offset=k * 1024, tag=("k", k))
        for j in range(2):
            e.ds_read("ds_read_b64_tr_b16", WFr(k)[2 * j:2 * j + 2], vTr, offset=(28 * hd + 16 * s + 8 * j) * 128, tag=("k", k))

    for c in range(4):
        e.stamp(1 + 2 * c)
        e.barrier()
        e.stamp(2 + 2 * c)
        ks = list(range(8 * c, 8 * c + 8))
        for k in ks[:NB - 1]:
            rd(k)
        for n, k in enumerate(ks):
            if n + NB - 1 < 8:
                rd(ks[n + NB - 1])
            e.wait_lg_tag(("k", k))
            e.mfma(ACC, WFr(k), OFr(k), 0 if k == 0 else None)
    e.stamp(9)
    for j in range(8):
        e.valu("v_lshlrev_b32", T[2 * j], 16, Bv[j])
        e.valu("v_and_b32", T[2 * j + 1], "0xffff0000", Bv[j])
    for r in range(16):
        e.valu("v_mul_f32", T[r], T[r], vG[1])
    for r in range(16):
        e.valu("v_fmac_f32", T[r], ACC[r], vG[0], dst_is_read=True)
    for j in range(8):
        e.valu("v_cvt_pk_bf16_f32", Bv[j], T[2 * j], T[2 * j + 1])
    for kk in range(2):
        e.valu("v_permlane32_swap_b32", Bv[4 * kk], Bv[4 * kk + 2])
        e.valu("v_permlane32_swap_b32", Bv[4 * kk + 1], Bv[4 * kk + 3])
        e.buf_store(Bv[4 * kk:4 * kk + 4], vSt, sOut, sSt, offset=kk * 32)
    e.stamp(10)
    if Emitter.STAMPS:
        e.wait_vm_all()
    e.stamp(11); e.stamp(13, True)
    e.dump_stamps(sWS, 1, sWave)
    if Emitter.STAMPS:
        e.raw("s_add_u32 s33, s2, s16")
        e.raw("s_cmp_lg_u32 s33, 0")
        e.raw("s_cbranch_scc1 L_k3_end")
        e.raw("s_load_dwordx2 s[40:41], s[0:1], 72")
        e.raw("s_waitcnt lgkmcnt(0)")
        e.raw("s_mov_b32 s36, s40")
        e.raw("s_mov_b32 s37, s41")
        e.raw("s_mov_b32 s38, 256")
        e.raw("s_mov_b32 s39, 0x20000")
        e.raw(f"s_mov_b32 s33, {(20 << 20) + (9 * 16 + 4) * 64}")
        e.raw(f"buffer_load_dword v2, v1, {sWS}, s33 offen")
        e.raw(f"s_mov_b32 s33, {(20 << 20) + (9 * 16 + 0) * 64}")
        e.raw(f"buffer_load_dword v3, v1, {sWS}, s33 offen")
        e.raw("s_waitcnt vmcnt(0)")
        e.raw("v_readlane_b32 s33, v3, 0")
        e.raw("v_readlane_b32 s34, v2, 12")
        e.raw("s_nop 3")
        e.raw("v_subrev_u32 v3, s33, v3")
        e.raw("v_subrev_u32 v2, s34, v2")
        e.raw("v_subrev_u32 v4, s34, v96")
        e.raw("s_nop 1")
        for dst, (reg, ln) in {10: (2, 6), 11: (2, 7), 12: (2, 13), 13: (4, 12), 14: (4, 13)}.items():
            e.raw(f"v_readlane_b32 s35, v{reg}, {ln}")
            e.raw("s_nop 3")
            e.raw(f"v_writelane_b32 v3, s35, {dst}")
        e.raw("buffer_store_dword v3, v1, s[36:39], 0 offen")
        e.raw("s_waitcnt vmcnt(0)")
    e.label("L_k3_end")
    e.raw("s_endpgm")


K3_DESC = dict(name="k3_kernel", vgpr=(100 if os.environ.get('STAMPS') else 96), acc=(100 if os.environ.get('STAMPS') else 96), sgpr=56, grid=224, block=512, lds=65536 + 65536)
```

```python
from emit import *
from layout import *
import os
import struct

ROT1 = int(os.environ.get('ROT1', '1'))
STF = ' sc1'
LDF = ' sc1'
EB1 = int(os.environ.get('EB1', '3'))
N1 = int(os.environ.get('N1', '14'))
N1B = int(os.environ.get('N1B', '17'))
N1X = int(os.environ.get('N1X', '9'))
PRE = int(os.environ.get('PRE', '1'))
QANY = int(os.environ.get('QANY', '1'))
PRES = eval(os.environ.get('PRES', '(4, 24, 44)'))
C0 = int(os.environ.get('C0', '2'))
POLL2 = int(os.environ.get('POLL2', '6'))
SPIN = 1 << 17
OLEAD = int(os.environ.get('OLEAD', '3'))
FUSE3 = int(os.environ.get('FUSE3', '1'))
KOUT = 92
KNAME = "gated_mix__softmax_full_mha__swiglu_ffn__prompt_kernel" if FUSE3 else "k12_kernel"
sOut = S(12, 4)
SLEEP = int(os.environ.get('SLEEP', '4'))
HPRIO = int(os.environ.get('HPRIO', '0'))

LOG2E = 1.4426950408889634
QSCALE = (28 ** -0.5) * LOG2E
L_LO = 2.0 ** -50
L_HI = 2.0 ** 60


def f2u(x):
    return struct.unpack("<I", struct.pack("<f", x))[0]


sX, sWg, sWu, sWq, sWS = S(4, 4), S(8, 4), S(12, 4), S(16, 4), S(20, 4)
sWd, sGw, sDbg, sWo = S(64, 4), S(60, 4), S(44, 4), S(8, 4)
sWave, sMblk, sCg, sW4 = S(24), S(25), S(26), S(28)
sT0, sT1, sT2 = S(32), S(33), S(31)
sRot = S(3)
sXcd, sIdx = S(68), S(69)
KX, KQ, KO, KG, KU, KD, KGW, KDBG, KWS = 72, 74, 76, 80, 82, 84, 86, 88, 90

BR = 114688
WR = 65536
QL = 65536 + 8192
SIG = 131072
ARED = 147456
LDS = 163840
vX0, vX1, vX2, vLane, vLane16 = V(250), V(251), V(252), V(253), V(254)


def srd(e, s, lo, size):
    e.salu("s_mov_b32", s[0], S(lo))
    e.salu("s_mov_b32", s[1], S(lo + 1))
    e.salu("s_mov_b32", s[2], size)
    e.salu("s_mov_b32", s[3], "0x20000")


def gen_k12(e):
    e.label(KNAME)
    e.salu("s_cmp_ge_u32", S(2), 256)
    e.raw("s_cbranch_scc1 L_k12_end")
    e.s_load(S(72, 4), S(0, 2), 0)
    e.s_load(S(76, 2), S(0, 2), 16)
    e.s_load(S(80, 8), S(0, 2), 32)
    e.s_load(S(88, 4), S(0, 2), 72)
    e.s_load(S(92, 2), S(0, 2), 64)
    e.salu("s_and_b32", sXcd, S(2), 7)
    e.salu("s_lshr_b32", sIdx, S(2), 3)
    e.salu("s_and_b32", sMblk, sXcd, 1)
    e.salu("s_lshl_b32", sMblk, sMblk, 3)
    e.salu("s_and_b32", sRot, sIdx, 7)
    e.salu("s_add_u32", sMblk, sMblk, sRot)
    e.salu("s_lshr_b32", sT0, sXcd, 1)
    e.salu("s_lshr_b32", sT1, sIdx, 3)
    e.salu("s_mul_i32", sCg, sT0, 3)
    e.salu("s_add_u32", sCg, sCg, sT1)
    e.salu("s_add_u32", sT0, sT0, 12)
    e.salu("s_cmp_eq_u32", sT1, 3)
    e.salu("s_cselect_b32", sCg, sT0, sCg)
    if ROT1:
        e.salu("s_lshl_b32", sT1, sT1, 1)
        e.salu("s_add_u32", sRot, sRot, sT1)
        e.salu("s_sub_u32", sT0, sRot, 7)
        e.salu("s_cmp_ge_u32", sRot, 7)
        e.salu("s_cselect_b32", sRot, sT0, sRot)
    else:
        e.salu("s_mov_b32", sRot, 0)
    e.valu("v_lshrrev_b32", vX0, 6, V(0))
    e.valu("v_and_b32", vLane, 63, V(0))
    e.valu("v_readfirstlane_b32", sWave, vX0)
    e.valu("v_lshlrev_b32", vLane16, 4, vLane)
    e.salu("s_and_b32", sW4, sWave, 3)
    e.salu("s_cmp_lt_u32", sWave, 4)
    e.raw("s_cbranch_scc1 L_k12_heavy")
    saved = list(e.lg)

    def reset():
        e.lg, e.vm, e.last, e.smem_pending = list(saved), [], {}, True
    e.raw("s_setprio 3")
    e.stamp(12, True)
    e.salu("s_cmp_ge_u32", sCg, 12)
    e.raw("s_cbranch_scc1 L_k12_loadY")
    e.flush_hazards()
    gen_loader1(e, False)
    e.raw("s_branch L_k12_help2")
    e.label("L_k12_loadY")
    reset()
    gen_loader1(e, True)
    e.label("L_k12_help2")
    e.lg, e.vm, e.last = [], [], {}
    gen_helper2(e)
    e.label("L_k12_heavy")
    reset()
    e.salu("s_cmp_ge_u32", sCg, 12)
    e.raw("s_cbranch_scc1 L_k12_compY")
    gen_compute1(e, False)
    e.raw("s_branch L_k12_attn")
    e.label("L_k12_compY")
    reset()
    gen_compute1(e, True)
    e.label("L_k12_attn")
    e.lg, e.vm, e.last = [], [], {}
    e.nop(2)
    gen_attn(e)
    e.label("L_k12_end")
    e.raw("s_endpgm")


sNonce = S(27)


def poll(e, name, vaddr, srd_, soff, nlanes, vtmp, cmp_s):
    mask = (1 << nlanes) - 1
    e.wait_lg_all()
    e.raw(f"s_mov_b32 exec_lo, {hex(mask & 0xffffffff)}")
    e.raw(f"s_mov_b32 exec_hi, {hex(mask >> 32)}")
    e.salu("s_mov_b32", sT2, 0)
    e.label(name)
    e.raw(f"buffer_load_dword {vtmp}, {vaddr}, {srd_}, {soff} offen sc1")
    e.salu("s_add_u32", sT2, sT2, 1)
    e.raw("s_waitcnt vmcnt(0)")
    e.raw(f"v_cmp_ne_u32 vcc, {cmp_s}, {vtmp}")
    e.salu("s_cmp_gt_u32", sT2, SPIN)
    e.raw(f"s_cbranch_scc1 {name}_out")
    e.raw("s_and_b64 exec, exec, vcc")
    e.raw(f"s_cbranch_scc0 {name}_out")
    if SLEEP: e.raw(f"s_sleep {SLEEP}")
    e.raw(f"s_branch {name}")
    e.label(name + "_out")
    e.raw("s_mov_b64 exec, -1")
    e.vm = []
    e.last = {}


def flag_store(e, base, hi=None, lo=None):
    e.salu("s_lshl_b32", sT0, hi or sCg, 4)
    e.salu("s_add_u32", sT0, sT0, lo or sMblk)
    e.salu("s_lshl_b32", sT0, sT0, 7)
    e.salu("s_add_u32", sT0, sT0, base)
    e.salu("s_min_u32", sT1, sW4, 1)
    e.salu("s_lshl_b32", sT1, sT1, 19)
    e.salu("s_add_u32", sT0, sT0, sT1)
    e.valu("v_mov_b32", V(9), sNonce)
    e.valu("v_mov_b32", V(249), 0)
    e.raw("s_mov_b64 exec, 1")
    e.buf_store(V(9), V(249), sWS, sT0, offset=0, flags=" sc1")
    e.raw("s_mov_b64 exec, -1")


def gen_loader1(e, typeY):
    ty = int(typeY)
    lane = vLane
    vA = [V(1), V(2), V(3), V(4)]
    vB = [V(5), V(6)]
    vB2 = [V(7), V(8)]
    vGa = V(13)
    vG = V(16, 7)
    sAoff, sB0, sQo, sVo = S(29), S(30), S(34), S(48)
    sLA, sLB = S(35), S(36)
    sCh = [S(37 + i) for i in range(7)]
    e.valu("v_lshrrev_b32", vX0, 3, lane)
    e.valu("v_and_b32", vX1, 7, lane)
    e.valu("v_lshrrev_b32", vX2, 1, vX0)
    e.valu("v_xor_b32", vX2, vX2, vX1)
    e.valu("v_mul_u32_u24", vA[0], 896, vX0)
    e.valu("v_lshl_add_u32", vA[0], vX2, 4, vA[0])
    e.valu("v_xor_b32", vA[1], 64, vA[0])
    e.valu("v_add_u32", vA[2], 2 * 6144, vA[0])
    e.valu("v_add_u32", vA[3], 3 * 6144, vA[1])
    e.valu("v_add_u32", vA[1], 6144, vA[1])
    e.valu("v_bfe_u32", vX1, lane, 2, 1)
    e.valu("v_bfe_u32", vX2, lane, 4, 1)
    e.valu("v_xor_b32", vX1, vX1, vX2)
    e.valu("v_and_b32", vX2, 3, lane)
    for vv, l_, us in ((vB, 3584, 64), (vB2, 2688, 56)):
        e.valu("v_mul_u32_u24", vv[0], l_, vX0)
        e.valu("v_mul_u32_u24", vv[1], us, vX1)
        e.valu("v_add_u32", vv[0], vv[0], vv[1])
        e.valu("v_lshl_add_u32", vv[0], vX2, 4, vv[0])
        e.valu("v_add_u32", vv[1], 8 * l_ - 1024, vv[0])
    e.salu("s_lshl_b32", sT0, sMblk, 2)
    e.salu("s_add_u32", sT0, sT0, sW4)
    e.salu("s_mul_i32", sAoff, sT0, 32 * 896)
    e.salu("s_mul_i32", sT0, sW4, 16 * 3584)
    e.salu("s_lshl_b32", sB0, sCg, 7)
    e.salu("s_add_u32", sB0, sB0, sT0)
    e.salu("s_mul_i32", sT0, sW4, 16 * 2688)
    e.salu("s_mul_i32", sQo, sCg, 112)
    e.salu("s_add_u32", sQo, sQo, sT0)
    if typeY:
        e.salu("s_mul_i32", sVo, sCg, 224)
        e.salu("s_add_u32", sVo, sVo, sT0)
        e.salu("s_sub_u32", sVo, sVo, 12 * 224 - 1792)
    e.salu("s_lshl_b32", sLA, sW4, 12)
    e.salu("s_lshl_b32", sLB, sW4, 11)
    e.salu("s_add_u32", sLB, sLB, BR)
    e.salu("s_mov_b32", sCh[0], sRot)
    for c in range(1, 7):
        e.salu("s_add_u32", sCh[c], sCh[c - 1], 1)
        e.salu("s_cmp_eq_u32", sCh[c], 7)
        e.salu("s_cselect_b32", sCh[c], 0, sCh[c])
    e.wait_lg_all()
    srd(e, sX, KX, 2048 * 896)
    srd(e, sWg, KG, 448 * 3584)
    srd(e, sWu, KU, 448 * 3584)
    srd(e, sWq, KQ, 448 * 2688)

    def dmaA(c):
        e.salu("s_lshl_b32", sT0, sCh[c], 7)
        e.salu("s_add_u32", "m0", sLA, c * 16384)
        e.salu("s_add_u32", sT0, sT0, sAoff)
        for i in range(4):
            e.buf_load_lds(vA[i], sX, sT0, offset=i * 1024, tag=("C", c // 2))

    def dmaB(n):
        sl = (n % 3) * 16384
        if n < 4:
            for r in range(2):
                c = 2 * n + r
                if c < 7:
                    dmaA(c)
                    e.salu("s_mul_i32", sT1, sCh[c], 64 * 2688)
                    e.salu("s_add_u32", "m0", sLB, sl + r * 8192)
                    e.salu("s_add_u32", sT0, sQo, sT1)
                    for i in range(2):
                        e.buf_load_lds(vB2[i], sWq, sT0, offset=i * 1024, tag=("C", n))
        elif n < 11 and typeY:
            e.salu("s_mul_i32", sT1, sCh[n - 4], 64 * 2688)
            for r in range(2):
                e.salu("s_add_u32", "m0", sLB, sl + r * 8192)
                e.salu("s_add_u32", sT1, sT1, sVo if r == 0 else 112)
                for i in range(2):
                    e.buf_load_lds(vB2[i], sWq, sT1, offset=i * 1024, tag=("C", n))
        else:
            c = n - 4 if n < 11 else n - 11
            e.salu("s_mul_i32", sT1, sCh[c], 64 * 3584)
            e.salu("s_add_u32", sT1, sT1, sB0)
            if n >= 11: e.salu("s_add_u32", sT1, sT1, 12 * 128)
            for r in range(2):
                e.salu("s_add_u32", "m0", sLB, sl + r * 8192)
                e.nop(1)
                for i in range(2):
                    e.buf_load_lds(vB[i], (sWg, sWu)[r], sT1, offset=i * 1024, tag=("C", n))

    def land(n):
        e.wait_vm_tag(("C", n))
        if typeY and n < 4:
            e.raw("s_mov_b64 exec, 0xffff")
            for r in range(2):
                c = 2 * n + r
                if c < 7:
                    e.ds_write("ds_write_b16", vGa, vG[c], offset=(n % 3) * 16384 + r * 8192)
            e.raw("s_mov_b64 exec, -1")
            e.wait_lg_all()

    if typeY:
        srd(e, sGw, KGW, 896)
        e.valu("v_and_b32", vX0, 15, lane)
        e.valu("v_lshlrev_b32", vX1, 1, vX0)
        e.salu("s_lshl_b32", sT0, sW4, 5)
        for c in range(7):
            e.salu("s_lshl_b32", sT2, sCh[c], 7)
            e.salu("s_add_u32", sT2, sT2, sT0)
            e._issue(f"buffer_load_ushort {vG[c]}, {vX1}, {sGw}, {sT2} offen", "vmem", vX1.regs() + sGw.regs() + sT2.regs(), vG[c].regs())
            e.vm.append((-1, set(vG[c].regs()), "gw"))
        e.valu("v_lshlrev_b32", vGa, 7, vX0)
        e.valu("v_bfe_u32", vX1, lane, 1, 1)
        e.valu("v_lshl_add_u32", vGa, vX1, 6, vGa)
        e.valu("v_add_u32", vGa, sLB, vGa)
        e.valu("v_add_u32", vGa, 56, vGa)
    dmaB(0); dmaB(1)
    srd(e, sWS, KWS, WS_USED)
    srd(e, sDbg, KDBG, 256)
    e.valu("v_mov_b32", V(12), 0)
    e.salu("s_mov_b32", sT0, NONCE)
    e.buf_load(V(11), V(12), sWS, sT0, offset=0, flags=" sc1")
    land(0)
    e.barrier()
    for n in range(16):
        if n + 2 < 18:
            dmaB(n + 2)
        if n == (N1 if typeY else N1X):
            flag_store(e, F1)
            if not FUSE3: e.stamp(6, True)
        if n == 2:
            e.valu("v_readfirstlane_b32", sNonce, V(11))
            e.nop(1)
            e.salu("s_add_u32", sNonce, sNonce, "0x9e3779b9")
        if n == 15:
            vFl = V(14)
            e.salu("s_lshl_b32", sT0, sXcd, 4)
            e.salu("s_add_u32", sT1, sT0, 128)
            e.valu("v_add_u32", vFl, sT1, lane)
            e.salu("s_lshr_b32", sT1, sXcd, 1)
            e.salu("s_lshl_b32", sT1, sT1, 4)
            e.salu("s_add_u32", sT1, sT1, 192 - 16)
            e.valu("v_add_u32", vX0, sT1, lane)
            e.valu("v_cmp_le_u32", "vcc", 16, lane)
            e.valu("v_cndmask_b32", vFl, vFl, vX0)
            e.salu("s_and_b32", sT1, sIdx, 15)
            e.salu("s_add_u32", sT0, sT0, sT1)
            e.valu("v_mov_b32", vX0, sT0)
            e.valu("v_cmp_le_u32", "vcc", 32, lane)
            e.valu("v_cndmask_b32", vFl, vFl, vX0)
            e.valu("v_lshlrev_b32", vFl, 7, vFl)
        land(n + 1)
        e.barrier()


def gen_compute1(e, typeY):
    ty = int(typeY)
    lane = vLane
    sWm, sWn, sMt = S(29), S(30), S(34)
    sOutH, sOutV, sOutQK, sQKstr, sQKmul, sNL2E = S(35), S(48), S(36), S(37), S(38), S(39)
    sMask = S(40, 2)
    vAr = [[V(232 + i) for i in range(4)], [V(236 + i) for i in range(4)]]
    vTr = V(240)
    vMulHi, vVconst = V(241), V(242)
    TT = 220
    def ACC(p, r, t):
        if p == 0: return V(128 + 16 * t, 16)
        return V(64 * (p - 1) + 32 * r + 16 * t, 16)
    NBUF = 3
    def fA(n, t): return V(160 + (n % NBUF) * 16 + t * 4, 4)
    def fB(n, i): return V(160 + (n % NBUF) * 16 + 8 + i * 4, 4)
    e.salu("s_lshr_b32", sWm, sW4, 1)
    e.salu("s_and_b32", sWn, sW4, 1)
    e.salu("s_lshl_b32", sMt, sMblk, 1)
    e.salu("s_add_u32", sMt, sMt, sWm)
    e.salu("s_lshl_b32", sMt, sMt, 1)
    e.valu("v_and_b32", vX0, 31, lane)
    e.valu("v_lshrrev_b32", vX1, 5, lane)
    e.valu("v_bfe_u32", vX2, lane, 1, 3)
    e.valu("v_xor_b32", vX2, vX2, vX1)
    e.valu("v_lshlrev_b32", vX0, 7, vX0)
    e.salu("s_lshl_b32", sT0, sWm, 13)
    e.valu("v_add_u32", vX0, sT0, vX0)
    for k in range(4):
        e.valu("v_xor_b32", vAr[0][k], 2 * k, vX2)
        e.valu("v_lshl_add_u32", vAr[0][k], vAr[0][k], 4, vX0)
        e.valu("v_add_u32", vAr[1][k], 65536, vAr[0][k])
    e.valu("v_bfe_u32", vX0, lane, 2, 2)
    e.valu("v_lshl_add_u32", vX0, vX1, 3, vX0)
    e.valu("v_bfe_u32", vX2, lane, 4, 1)
    e.valu("v_lshlrev_b32", vX2, 5, vX2)
    e.valu("v_and_b32", vX1, 3, lane)
    e.valu("v_lshl_add_u32", vX2, vX1, 3, vX2)
    e.valu("v_lshl_add_u32", vX2, vX0, 7, vX2)
    e.valu("v_bfe_u32", vX1, lane, 3, 1)
    e.valu("v_xor_b32", vX1, sWn, vX1)
    e.valu("v_lshl_add_u32", vTr, vX1, 6, vX2)
    e.valu("v_add_u32", vTr, BR, vTr)
    e.salu("s_mov_b32", sNL2E, hex(f2u(-LOG2E)))
    e.salu("s_lshl_b32", sT2, sCg, 1)
    e.salu("s_add_u32", sT2, sT2, sWn)
    e.salu("s_mul_i32", sOutH, sMt, H_MT_STRIDE)
    e.salu("s_lshl_b32", sT1, sT2, 11)
    e.salu("s_add_u32", sOutH, sOutH, sT1)
    e.salu("s_add_u32", sOutH, sOutH, HF)
    if typeY:
        e.salu("s_sub_u32", sT1, sCg, 12)
        e.salu("s_lshl_b32", sT0, sT1, 2)
        e.salu("s_add_u32", sT0, sT0, sWn)
        e.salu("s_lshl_b32", sT0, sT0, 6)
        e.salu("s_add_u32", sT0, sT0, sMt)
        e.salu("s_lshl_b32", sOutV, sT0, 12)
        e.salu("s_add_u32", sOutV, sOutV, KVF + 2048)
    e.salu("s_and_b32", sT1, sT2, 15)
    e.salu("s_lshl_b32", sT1, sT1, 6)
    e.salu("s_add_u32", sT1, sT1, sMt)
    e.salu("s_cmp_lt_u32", sT2, 16)
    e.salu("s_cselect_b32", sQKstr, 11, 12)
    e.salu("s_cselect_b32", sOutQK, QF, KVF)
    e.salu("s_cselect_b32", sQKmul, hex(f2u(QSCALE)), 1.0)
    e.salu("s_lshl_b32", sQKstr, 1, sQKstr)
    e.salu("s_mul_i32", sT1, sT1, sQKstr)
    e.salu("s_add_u32", sOutQK, sOutQK, sT1)
    e.valu("v_cmp_gt_u32", "vcc", 32, lane)
    e.valu("v_mov_b32", vX0, sQKmul)
    e.valu("v_mov_b32", vX1, 0)
    e.valu("v_cndmask_b32", vMulHi, vX1, vX0)
    if typeY:
        e.valu("v_and_b32", vX0, 31, lane)
        e.valu("v_cmp_eq_u32", "vcc", 28, vX0)
        e.valu("v_mov_b32", vX2, "0x3f803f80")
        e.valu("v_cndmask_b32", vVconst, vX1, vX2)
        e.valu("v_cmp_le_u32", sMask, 28, vX0)
    e.wait_lg_all()
    srd(e, sWS, KWS, WS_USED)
    srd(e, sWd, KD, 1792 * 896)
    srd(e, sDbg, KDBG, 256)

    def epi_h(p, pk=False):
        ops = []
        for t in range(2):
            G, U = ACC(p, 0, t), ACC(p, 1, t)
            for hgrp in range(2):
                rs = list(range(8 * hgrp, 8 * hgrp + 8))
                T = V(TT, 8)
                if not pk:
                    for r in rs: ops.append((1, lambda r=r, G=G, T=T: e.valu("v_mul_f32", T[r % 8], sNL2E, G[r])))
                    for r in rs:
                        ops.append((2, lambda r=r, T=T: e.valu("v_exp_f32", T[r % 8], T[r % 8])))
                        ops.append((1, lambda r=r, G=G, U=U: e.valu("v_mul_f32", G[r], G[r], U[r])))
                    for r in rs: ops.append((1, lambda r=r, T=T: e.valu("v_add_f32", T[r % 8], 1.0, T[r % 8])))
                    for r in rs: ops.append((2, lambda r=r, T=T: e.valu("v_rcp_f32", T[r % 8], T[r % 8])))
                    for r in rs: ops.append((1, lambda r=r, G=G, T=T: e.valu("v_mul_f32", G[r], G[r], T[r % 8])))
                else:
                    C = V(228, 4)
                    for r in rs[::2]: ops.append((1, lambda r=r, G=G, T=T: e.valu("v_pk_mul_f32", T[r % 8:r % 8 + 2], G[r:r + 2], C[0:2])))
                    for r in rs:
                        ops.append((2, lambda r=r, T=T: e.valu("v_exp_f32", T[r % 8], T[r % 8])))
                        if r % 2: ops.append((1, lambda r=r, G=G, U=U: e.valu("v_pk_mul_f32", G[r - 1:r + 1], G[r - 1:r + 1], U[r - 1:r + 1])))
                    for r in rs[::2]: ops.append((1, lambda r=r, T=T: e.valu("v_pk_add_f32", T[r % 8:r % 8 + 2], T[r % 8:r % 8 + 2], C[2:4])))
                    for r in rs: ops.append((2, lambda r=r, T=T: e.valu("v_rcp_f32", T[r % 8], T[r % 8])))
                    for r in rs[::2]: ops.append((1, lambda r=r, G=G, T=T: e.valu("v_pk_mul_f32", G[r:r + 2], G[r:r + 2], T[r % 8:r % 8 + 2])))
                for i in range(4 * hgrp, 4 * hgrp + 4):
                    ops.append((1, lambda i=i, G=G, U=U: e.valu("v_cvt_pk_bf16_f32", U[i], G[2 * i], G[2 * i + 1])))
                def st(hgrp=hgrp, t=t, U=U):
                    e.salu("s_add_u32", sT1, sOutH, t * H_MT_STRIDE + (24 * 2048 if p == 2 else 0))
                    e.buf_store(U[4 * hgrp:4 * hgrp + 4], vLane16, sWS, sT1, offset=hgrp * 1024, flags=STF)
                ops.append((-2, st))
        return ops

    def epi_v():
        ops = []
        for r in range(2):
            for t in range(2):
                X = ACC(1, r, t)
                for hgrp in range(2):
                    for i in range(4 * hgrp, 4 * hgrp + 4):
                        ops.append((1, lambda i=i, X=X: e.valu("v_cvt_pk_bf16_f32", X[i], X[2 * i], X[2 * i + 1])))
                    for i in range(4 * hgrp, 4 * hgrp + 4):
                        ops.append((1, lambda i=i, X=X: e.valu("v_cndmask_b32", X[i], X[i], vVconst, sMask)))
                    def st(t=t, X=X, r=r, hgrp=hgrp):
                        e.salu("s_add_u32", sT1, sOutV, 2 * r * 64 * 4096 + t * 4096)
                        e.buf_store(X[4 * hgrp:4 * hgrp + 4], vLane16, sWS, sT1, offset=hgrp * 1024, flags=STF, tag="qkv")
                    st.qkv = True
                    ops.append((-2, st))
        return ops

    def epi_qk():
        ops = []
        for t in range(2):
            X = ACC(0, 0, t)
            if typeY:
                ops.append((1, lambda t=t, X=X: e.valu("v_cvt_pk_bf16_f32", V(208 + t), X[12], X[12])))
            for r in range(16):
                if typeY and r < 12:
                    continue
                ops.append((1, lambda r=r, X=X: e.valu("v_mul_f32", X[r], sQKmul if r < 12 else vMulHi, X[r])))
            for hgrp in range(2):
                for i in range(4 * hgrp, 4 * hgrp + 4):
                    ops.append((1, lambda i=i, X=X: e.valu("v_cvt_pk_bf16_f32", X[i], X[2 * i], X[2 * i + 1])))
                def st(t=t, X=X, hgrp=hgrp):
                    if t == 1 and hgrp == 0:
                        e.salu("s_add_u32", sOutQK, sOutQK, sQKstr)
                    e.buf_store(X[4 * hgrp:4 * hgrp + 4], vLane16, sWS, sOutQK, offset=hgrp * 1024, flags=STF, tag="qkv")
                st.qkv = True
                ops.append((-2, st))
        if typeY:
            for t in range(2):
                D = V(208 + t)
                Gv = V(210 + 2 * t, 2)
                for f in (("v_and_b32", D, "0xffff0000", D), ("v_mul_f32", D, sNL2E, D), ("v_exp_f32", D, D),
                          ("v_mov_b32", Gv[0], 0), ("v_add_f32", D, 1.0, D), ("v_rcp_f32", D, D), ("v_mov_b32", Gv[0], 0),
                          ("v_cvt_pk_bf16_f32", D, D, D),
                          ("v_and_b32", Gv[0], "0xffff0000", D), ("v_sub_f32", Gv[1], 1.0, Gv[0]),
                          ("v_cvt_pk_bf16_f32", Gv[1], Gv[1], Gv[1]), ("v_and_b32", Gv[1], "0xffff0000", Gv[1])):
                    ops.append((2 if f[0] in TRANS else 1, lambda f=f: e.valu(*f)))
            def stg():
                e.valu("v_lshlrev_b32", vX0, 3, lane)
                e.salu("s_lshl_b32", sT1, sMt, 8)
                e.salu("s_add_u32", sT1, sT1, GF - 256)
                e.salu("s_lshl_b32", sT0, sWn, 15)
                e.salu("s_add_u32", sT1, sT1, sT0)
                e.raw("s_mov_b32 exec_lo, 0")
                e.buf_store(V(210, 2), vX0, sWS, sT1, offset=0, flags=STF, tag="qkv")
                e.buf_store(V(212, 2), vX0, sWS, sT1, offset=256, flags=STF, tag="qkv")
                e.raw("s_mov_b32 exec_lo, -1")
            stg.qkv = True
            ops.append((-2, stg))
        return ops

    steps = [(p, ks) for p in range(3) for ks in range(28)]
    def bchunk(p, ks):
        c, kk = ks // 4, ks % 4
        if p == 1: return 4 + c, kk * 2048
        if p == 2: return 11 + c, kk * 2048
        return c // 2, (c % 2) * 8192 + kk * 2048
    def rd(n):
        p, ks = steps[n]
        c, kk = ks // 4, ks % 4
        bn, boff = bchunk(p, ks)
        ops = []
        for t in range(2):
            ops.append(lambda t=t: e.ds_read("ds_read_b128", fA(n, t), vAr[c >> 2][kk], offset=(c & 3) * 16384 + t * 4096, tag=("t", n)))
        for i in range(1 if p == 0 else 2):
            for j in range(2):
                ops.append(lambda i=i, j=j: e.ds_read("ds_read_b64_tr_b16", fB(n, i)[2 * j:2 * j + 2], vTr,
                                                      offset=(bn % 3) * 16384 + boff + i * 8192 + j * 512, tag=("t", n)))
        return ops

    def pre(stage):
        sTS = S(52, 4)
        e.salu("s_mov_b32", sTS[3], "0x20000")
        e.salu("s_mov_b32", sTS[2], 448 * 3584)
        if stage < 2:
            e.salu("s_and_b32", sT0, sW4, 1)
            e.salu("s_cmp_eq_u32", sT0, 0)
            e.salu("s_cselect_b32", sTS[0], S(KG), S(KU))
            e.salu("s_cselect_b32", sTS[1], S(KG + 1), S(KU + 1))
        if stage == 0:
            e.salu("s_mul_i32", sT1, S(2), 21)
            e.valu("v_min_u32", vX0, 20, lane)
            e.valu("v_add_u32", vX0, sT1, vX0)
            e.salu("s_mov_b32", sT1, 43691)
            e.valu("v_mul_u32_u24", vX1, sT1, vX0)
            e.valu("v_lshrrev_b32", vX1, 19, vX1)
            e.valu("v_mul_u32_u24", vX2, 3584 - 12 * 128, vX1)
            e.valu("v_lshl_add_u32", vX2, vX0, 7, vX2)
            e.salu("s_mov_b32", sT1, 0)
            e.salu("s_cmp_lt_u32", sW4, 2)
            e.raw(f"s_cbranch_scc1 L_k12_pre{ty}")
            e.salu("s_mov_b32", sTS[2], 448 * 2688)
            e.salu("s_mov_b32", sTS[0], S(KQ)); e.salu("s_mov_b32", sTS[1], S(KQ + 1))
            e.salu("s_lshl_b32", sT1, S(2), 1)
            e.salu("s_add_u32", sT1, sT1, sT0)
            e.salu("s_mul_i32", sT1, sT1, 2688)
            e.salu("s_add_u32", sT1, sT1, 1792)
            e.valu("v_min_u32", vX0, 6, lane)
            e.valu("v_lshlrev_b32", vX2, 7, vX0)
            e.label(f"L_k12_pre{ty}")
        elif stage == 1:
            e.salu("s_lshl_b32", sT1, S(2), 1)
            e.salu("s_lshr_b32", sT0, sW4, 1)
            e.salu("s_add_u32", sT1, sT1, sT0)
            e.salu("s_mul_i32", sT1, sT1, 14)
            e.valu("v_min_u32", vX0, 13, lane)
            e.valu("v_add_u32", vX0, sT1, vX0)
            e.valu("v_lshrrev_b32", vX1, 4, vX0)
            e.valu("v_and_b32", vX0, 15, vX0)
            e.valu("v_mul_u32_u24", vX2, 3584, vX1)
            e.valu("v_lshl_add_u32", vX2, vX0, 7, vX2)
            e.salu("s_mov_b32", sT1, 12 * 128)
        else:
            e.salu("s_mov_b32", sTS[0], S(KD)); e.salu("s_mov_b32", sTS[1], S(KD + 1))
            e.salu("s_mul_i32", sT0, S(2), 49 * 128)
            e.salu("s_mul_i32", sT1, sW4, 13 * 128)
            e.salu("s_add_u32", sT1, sT0, sT1)
            e.valu("v_min_u32", vX0, 12, lane)
            e.valu("v_lshlrev_b32", vX2, 7, vX0)
        e.buf_load(V(243 + stage), vX2, sTS, sT1, offset=0)

    e.stamp(0); e.stamp(12, True)
    for st_, at in enumerate(PRES):
        if at < 0: pre(st_)
    e.barrier()
    e.stamp(1)
    for f in rd(0) + rd(1): f()
    epi, stq = [], []
    for n, (p, ks) in enumerate(steps):
        if ks == 0 and p >= 1:
            e.stamp(1 + p)
            if p == 1:
                epi += [(6, lambda: None)] + epi_qk()
            else:
                epi += [(6, lambda: None)] + (epi_v() if typeY else epi_h(1))
        for st_, at in enumerate(PRES):
            if at == n: stq.append(lambda st_=st_: pre(st_))
        nr = 1 if p == 0 else 2
        nm = 2 * nr
        plan = [[] for _ in range(nm)]
        tgt = n + 2
        if tgt < len(steps):
            r_ = rd(tgt)
            bt = bchunk(*steps[tgt])[0]
            if bt != bchunk(*steps[tgt - 1])[0]:
                def bar(tgt=tgt, bt=bt):
                    e.wait_lg_tag(("t", tgt - 1))
                    if bt == (N1 if typeY else N1X):
                        assert not any(getattr(f, "qkv", False) for _, f in epi) and not any(getattr(f, "qkv", False) for f in stq)
                        e.wait_vm_tag("qkv")
                    if bt == N1B:
                        assert not epi and not stq, (len(epi), len(stq))
                        e.raw("s_waitcnt vmcnt(0)")
                        e.vm = []
                    e.barrier()
                    if bt == 3:
                        e.salu("s_cmp_lg_u32", sW4, 0)
                        e.raw(f"s_cbranch_scc1 L_k12_na{ty}")
                        e.raw("v_mov_b32 v246, 1")
                        e.raw("v_mov_b32 v247, 0")
                        e.raw("s_mov_b64 exec, 1")
                        e.raw(f"buffer_atomic_add v246, v247, {sDbg}, 0 offen sc1")
                        e.raw("s_mov_b64 exec, -1")
                        e.label(f"L_k12_na{ty}")
                if steps[tgt][0] == 0:
                    plan[1] = [bar] + r_
                elif nm == 4:
                    plan[0] = r_[0:2]; plan[2] = [bar] + r_[2:4]; plan[3] = r_[4:]
                else:
                    plan[0] = r_[0:2]; plan[1] = [bar] + r_[2:]
            else:
                for g in range(nm):
                    k = -(-len(r_) // (nm - g))
                    plan[g] = r_[:k]; r_ = r_[k:]
        e.wait_lg_tag(("t", n))
        gi = 0
        for i in range(nr):
            for t in range(2):
                swap = typeY and p == 1
                a_, b_ = (fA(n, t), fB(n, i)) if swap else (fB(n, i), fA(n, t))
                e.mfma(ACC(p, i, t), a_, b_, 0 if ks == 0 else None)
                slots = 6 - (1 if gi == nm - 1 else 0)
                for f in plan[gi]:
                    f(); slots -= 1
                slots = min(slots, EB1 if p == 1 else 4)
                safe = (ks % 4 == 1 or (ks % 4 == 0 and gi >= 2)) if p != 0 else True
                if stq and (safe or (QANY and p == 2 and getattr(stq[0], "qkv", False))):
                    stq.pop(0)(); slots -= 2
                while epi and (slots >= epi[0][0] or epi[0][0] == 6):
                    cost, f = epi.pop(0)
                    if cost < 0:
                        if getattr(f, "qkv", False):
                            k_ = sum(1 for x in stq if getattr(x, "qkv", False))
                            stq.sort(key=lambda x: not getattr(x, "qkv", False))
                            stq.insert(k_, f)
                        else:
                            stq.append(f)
                        continue
                    f(); slots -= cost
                    if cost == 6: break
                gi += 1
    e.stamp(4)
    e.valu("v_mov_b32", V(228), sNL2E)
    e.valu("v_mov_b32", V(229), sNL2E)
    e.valu("v_mov_b32", V(230), 1.0)
    e.valu("v_mov_b32", V(231), 1.0)
    for _, f in epi_h(2, pk=True):
        f()
    e.stamp(5)


def gen_attn(e):
    lane = vLane
    Q = [[V(8, 4), V(12, 4)], [V(16, 4), V(20, 4)]]
    K = [V(24, 4), V(28, 4)]
    Vf = [[V(32, 4), V(36, 4)], [V(40, 4), V(44, 4)]]
    Sb = [V(128, 16), V(144, 16)]
    P = [V(48, 8), V(56, 8)]
    O = [V(160, 16), V(176, 16)]
    X = V(192, 16)
    vKV, vRed, vQl = V(1), V(2), V(3)
    vT0, vT1, vT2, vT3 = V(4), V(5), V(6), V(7)
    sQg, sKg, sHead, sQblk, sOo, sKV, sCnt = S(29), S(30), S(34), S(35), S(36), S(37), S(38)
    sSave = S(40, 2)
    e.salu("s_and_b32", sQg, sW4, 1)
    e.salu("s_lshr_b32", sKg, sW4, 1)
    e.salu("s_lshr_b32", sT0, sIdx, 4)
    e.salu("s_lshl_b32", sHead, sXcd, 1)
    e.salu("s_add_u32", sHead, sHead, sT0)
    e.salu("s_and_b32", sQblk, sIdx, 15)
    e.salu("s_lshl_b32", sKV, sHead, 18)
    e.salu("s_add_u32", sKV, sKV, KVF)
    e.salu("s_lshl_b32", sT1, sQblk, 2)
    e.salu("s_lshl_b32", sT0, sQg, 1)
    e.salu("s_add_u32", sT1, sT1, sT0)
    e.salu("s_add_u32", sT1, sT1, sKg)
    e.salu("s_lshl_b32", sOo, sT1, 4)
    e.salu("s_add_u32", sOo, sOo, sHead)
    e.salu("s_lshl_b32", sOo, sOo, 11)
    e.salu("s_add_u32", sOo, sOo, OF)
    e.salu("s_lshl_b32", sT2, sKg, 13)
    e.valu("v_add_u32", vKV, sT2, vLane16)
    e.salu("s_lshl_b32", sT2, sQg, 12)
    e.salu("s_add_u32", sT2, sT2, QL)
    e.valu("v_add_u32", vQl, sT2, vLane16)
    e.salu("s_lshl_b32", sT2, sQg, 13)
    e.salu("s_add_u32", sT2, sT2, ARED)
    e.valu("v_add_u32", vRed, sT2, vLane16)
    for r in range(16):
        e.valu("v_mov_b32", O[0][r], 0)
        e.valu("v_mov_b32", O[1][r], 0)
    for r in range(4):
        e.valu("v_mov_b32", P[1][r], 0)
        e.valu("v_mov_b32", P[1][4 + r], 0)
        e.valu("v_mov_b32", Vf[1][0][r], 0)
        e.valu("v_mov_b32", Vf[1][1][r], 0)
    e.salu("s_mov_b32", sCnt, 0)

    def toff(i): return ((i >> 1) % 4) * 16384 + (i & 1) * 4096

    e.barrier()
    e.stamp(6)
    for q in range(2):
        for s_ in range(2):
            e.ds_read("ds_read_b128", Q[q][s_], vQl, offset=q * 2048 + s_ * 1024)
    e.ds_read("ds_read_b128", K[0], vKV, offset=0)
    e.ds_read("ds_read_b128", K[1], vKV, offset=1024)
    e.ds_read("ds_read_b128", Vf[0][1], vKV, offset=3072)
    e.ds_read("ds_read_b128", Vf[0][0], vKV, offset=2048)
    e.mfma(Sb[0], K[0], Q[0][0], 0)
    e.mfma(Sb[0], K[1], Q[0][1])
    e.wait_lg_all()
    e.flush_hazards()

    def unit(i, q):
        Sc, Sn = Sb[q], Sb[1 - q]
        nq = 1 - q
        def ex(a, b):
            for r in range(a, b): e.valu("v_exp_f32", Sc[r], Sc[r])
        def cv(a, b):
            for j in range(a, b): e.valu("v_cvt_pk_bf16_f32", P[q][j], Sc[2 * j], Sc[2 * j + 1])
        pi = i if q == 1 else i - 1
        if q == 0:
            rd = [(K[0], toff(i + 1)), (K[1], toff(i + 1) + 1024)]
        else:
            rd = [(Vf[(i + 1) % 2][1], toff(i + 1) + 3072), (Vf[(i + 1) % 2][0], toff(i + 1) + 2048)]
        e.mfma(Sn, K[0], Q[nq][0], 0)
        ex(0, 3)
        e.mfma(Sn, K[1], Q[nq][1])
        e.ds_read("ds_read_b128", rd[0][0], vKV, offset=rd[0][1])
        ex(3, 5); cv(0, 1)
        e.mfma(O[nq], Vf[pi % 2][0], P[nq][0:4])
        e.ds_read("ds_read_b128", rd[1][0], vKV, offset=rd[1][1])
        ex(5, 7); cv(1, 2)
        e.mfma(O[nq], Vf[pi % 2][1], P[nq][4:8])
        ex(7, 16); cv(2, 8)

    mark = len(e.lines)
    for i in (6, 7):
        for q in range(2): unit(i, q)
    del e.lines[mark:]
    e.label("L_k12_aloop")
    for i in range(8):
        for q in range(2):
            unit(i, q)
        if i % 2 == 1:
            if i == 3:
                e.raw("s_waitcnt vmcnt(0)")
            if i == 7:
                e.salu("s_add_u32", sCnt, sCnt, 1)
                e.salu("s_cmp_lt_u32", sCnt, 4)
            e.barrier()
    e.raw("s_cbranch_scc1 L_k12_aloop")
    e.mfma(O[1], Vf[1][0], P[1][0:4])
    e.mfma(O[1], Vf[1][1], P[1][4:8])
    e.stamp(7)
    e.wait_lg_all()
    e.salu("s_cmp_eq_u32", sKg, 0)
    e.raw("s_cbranch_scc1 L_k12_kg0")
    for j in range(4):
        e.ds_write("ds_write_b128", vRed, O[0][4 * j:4 * j + 4], offset=j * 1024)
    for r in range(16):
        e.valu("v_mov_b32", O[0][r], O[1][r])
    for s_ in range(2):
        for r in range(4):
            e.valu("v_mov_b32", Q[0][s_][r], Q[1][s_][r])
    e.valu("v_add_u32", vRed, 4096, vRed)
    e.raw("s_branch L_k12_kgj")
    e.label("L_k12_kg0")
    e.lg = []
    e.last = {}
    e.nop(10)
    for j in range(4):
        e.ds_write("ds_write_b128", vRed, O[1][4 * j:4 * j + 4], offset=4096 + j * 1024)
    e.label("L_k12_kgj")
    e.raw("s_waitcnt lgkmcnt(0)")
    e.lg = []
    e.last = {}
    e.barrier()
    Of, Pf, Qf = O[0], P[0], Q[0]
    for j in range(4):
        e.ds_read("ds_read_b128", X[4 * j:4 * j + 4], vRed, offset=j * 1024)
    Z = V(208, 2)
    e.valu("v_mov_b32", Z[0], 0)
    e.valu("v_mov_b32", Z[1], 0)
    e.valu("v_mov_b32", V(210), 0)
    e.valu("v_mov_b32", V(211), 0)
    for r in range(0, 16, 2):
        e.valu("v_pk_add_f32", Of[r:r + 2], Of[r:r + 2], X[r:r + 2])
    e.valu("v_mov_b32", vT0, Of[12])
    e.valu("v_mov_b32", vT1, Of[12])
    for r in range(0, 16, 2):
        e.valu("v_pk_fma_f32", Z, Of[r:r + 2], V(210, 2), Z)
        if r == 2:
            e.valu("v_permlane32_swap_b32", vT0, vT1)
    e.valu("v_add_f32", vT2, Z[0], Z[1])
    e.salu("s_mov_b32", sT0, hex(f2u(L_LO)))
    e.salu("s_mov_b32", sT1, hex(f2u(L_HI)))
    e.valu("v_add_f32", vT2, vT2, vT1)
    e.valu("v_cmp_le_f32", "vcc", sT0, vT2)
    e.valu("v_cmp_ge_f32", sSave, sT1, vT2)
    e.nop(1)
    e.salu("s_and_b64", "vcc", "vcc", sSave)
    e.raw("s_cmp_eq_u64 vcc, -1")
    e.raw("s_cbranch_scc0 L_k12_slow")
    e.label("L_k12_store")
    e.last = {}
    e.nop(2)
    e.valu("v_rcp_f32", vT0, vT1)
    e.valu("v_cmp_gt_u32", "vcc", 32, lane)
    e.valu("v_mov_b32", vT2, 0)
    e.valu("v_mov_b32", vT1, vT0)
    e.valu("v_cndmask_b32", vT2, vT2, vT0)
    e.valu("v_mov_b32", vT3, vT2)
    for r in range(0, 16, 2):
        e.valu("v_pk_mul_f32", Of[r:r + 2], Of[r:r + 2], V(4, 2) if r < 12 else V(6, 2))
    for j in range(8):
        e.valu("v_cvt_pk_bf16_f32", Pf[j], Of[2 * j], Of[2 * j + 1])
    e.buf_store(Pf[0:4], vLane16, sWS, sOo, offset=0, flags=STF)
    e.buf_store(Pf[4:8], vLane16, sWS, sOo, offset=1024, flags=STF)
    e.stamp(8)
    if FUSE3:
        gen_phase3_heavy(e)
    if Emitter.STAMPS:
        e.raw("s_waitcnt vmcnt(0)")
    e.stamp(9); e.stamp(13, True)
    e.dump_stamps(sWS, 0, sWave)
    e.raw("s_endpgm")
    e.label("L_k12_slow")
    e.lg, e.vm, e.last = [], [], {}
    vM = vT3
    Sc = Sb[0]
    e.valu("v_mov_b32", vM, "0xff800000")
    for r in range(16):
        e.valu("v_mov_b32", Of[r], 0)
    e.salu("s_mov_b32", sCnt, 0)
    e.salu("s_mov_b32", sT2, sKV)
    e.label("L_k12_slow_loop")
    e.buf_load(K[0], vLane16, sWS, sT2, offset=0, flags=LDF)
    e.buf_load(K[1], vLane16, sWS, sT2, offset=1024, flags=LDF)
    e.buf_load(Vf[0][0], vLane16, sWS, sT2, offset=2048, flags=LDF)
    e.buf_load(Vf[0][1], vLane16, sWS, sT2, offset=3072, flags=LDF)
    e.mfma(Sc, K[0], Qf[0], 0)
    e.mfma(Sc, K[1], Qf[1])
    e.valu("v_max_f32", vT0, Sc[0], Sc[1])
    for r in range(2, 16, 2):
        e.valu("v_max3_f32", vT0, vT0, Sc[r], Sc[r + 1])
    e.valu("v_mov_b32", vT1, vT0)
    e.valu("v_permlane32_swap_b32", vT0, vT1)
    e.valu("v_max3_f32", vT0, vT0, vT1, vM)
    e.valu("v_sub_f32", vT1, vM, vT0)
    e.valu("v_exp_f32", vT1, vT1)
    e.valu("v_mov_b32", vM, vT0)
    for r in range(16):
        e.valu("v_sub_f32", Sc[r], Sc[r], vM)
    for r in range(16):
        e.valu("v_exp_f32", Sc[r], Sc[r])
    for r in range(16):
        e.valu("v_mul_f32", Of[r], Of[r], vT1)
    for j in range(8):
        e.valu("v_cvt_pk_bf16_f32", Pf[j], Sc[2 * j], Sc[2 * j + 1])
    e.mfma(Of, Vf[0][0], Pf[0:4])
    e.mfma(Of, Vf[0][1], Pf[4:8])
    e.salu("s_add_u32", sT2, sT2, 4096)
    e.salu("s_add_u32", sCnt, sCnt, 1)
    e.flush_hazards()
    e.salu("s_cmp_lt_u32", sCnt, 64)
    e.raw("s_cbranch_scc1 L_k12_slow_loop")
    e.valu("v_mov_b32", vT0, Of[12])
    e.valu("v_mov_b32", vT1, Of[12])
    e.valu("v_permlane32_swap_b32", vT0, vT1)
    e.raw("s_branch L_k12_store")


def gen_phase3_heavy(e):
    lane = vLane
    sU, sTt, sMt64, sNt, sSt = S(29), S(30), S(34), S(35), S(36)
    vRr, vTr, vOr, vSt = V(1), V(2), V(3), V(4)
    vG = V(6, 2)
    Bx = [V(64 + 16 * w, 16) for w in range(4)]
    ACC = V(128, 16)
    NB = 4
    def OFr(k): return V(8 + (k % NB) * 4, 4)
    def WFr(k): return V(24 + (k % NB) * 4, 4)
    e.salu("s_cmp_ge_u32", sIdx, 28)
    e.raw("s_cbranch_scc0 L_k12_h3")
    e.raw("s_waitcnt vmcnt(0)")
    e.barrier()
    e.raw("s_branch L_k12_h3end")
    e.label("L_k12_h3")
    e.salu("s_lshl_b32", sT0, sW4, 12)
    e.salu("s_add_u32", sT0, sT0, WR)
    e.valu("v_add_u32", vRr, sT0, vLane16)
    for w in range(4):
        for j in range(4):
            e.ds_read("ds_read_b128", Bx[w][4 * j:4 * j + 4], vRr, offset=w * 16384 + j * 1024)
    e.salu("s_mul_i32", sT0, sIdx, 37)
    e.salu("s_lshr_b32", sT0, sT0, 8)
    e.salu("s_mul_i32", sT1, sT0, 7)
    e.salu("s_sub_u32", sNt, sIdx, sT1)
    e.salu("s_lshl_b32", sMt64, sXcd, 2)
    e.salu("s_add_u32", sMt64, sMt64, sT0)
    e.salu("s_and_b32", sU, sW4, 1)
    e.salu("s_lshr_b32", sTt, sW4, 1)
    srd(e, sOut, KOUT, 2048 * 896)
    e.salu("s_lshl_b32", sT0, sMt64, 1)
    e.salu("s_add_u32", sT0, sT0, sTt)
    e.salu("s_mul_i32", sSt, sT0, 32 * 896)
    e.salu("s_lshl_b32", sT2, sNt, 1)
    e.salu("s_add_u32", sT2, sT2, sU)
    e.salu("s_lshl_b32", sT2, sT2, 6)
    e.salu("s_add_u32", sSt, sSt, sT2)
    e.salu("s_lshl_b32", S(37), sT0, 8)
    e.salu("s_add_u32", S(37), S(37), GF)
    e.valu("v_and_b32", vX0, 31, lane)
    e.valu("v_lshlrev_b32", V(5), 3, vX0)
    e.valu("v_mul_u32_u24", vSt, 896, vX0)
    e.valu("v_lshrrev_b32", vX1, 5, lane)
    e.valu("v_lshl_add_u32", vSt, vX1, 4, vSt)
    e.valu("v_bfe_u32", vX0, lane, 2, 2)
    e.valu("v_lshl_add_u32", vX0, vX1, 2, vX0)
    e.valu("v_bfe_u32", vX2, lane, 4, 1)
    e.valu("v_lshlrev_b32", vX2, 5, vX2)
    e.valu("v_and_b32", vX1, 3, lane)
    e.valu("v_lshl_add_u32", vX2, vX1, 3, vX2)
    e.valu("v_lshl_add_u32", vX2, vX0, 7, vX2)
    e.valu("v_bfe_u32", vX1, lane, 3, 1)
    e.valu("v_xor_b32", vX1, sU, vX1)
    e.valu("v_lshl_add_u32", vTr, vX1, 6, vX2)
    e.salu("s_lshl_b32", sT0, sTt, 15)
    e.salu("s_add_u32", sT0, sT0, WR)
    e.valu("v_add_u32", vOr, sT0, vLane16)
    for r in range(0, 16, 2):
        e.valu("v_pk_add_f32", Bx[0][r:r + 2], Bx[0][r:r + 2], Bx[1][r:r + 2])
        e.valu("v_pk_add_f32", Bx[2][r:r + 2], Bx[2][r:r + 2], Bx[3][r:r + 2])
    e.raw("s_waitcnt vmcnt(0)")
    e.vm = []
    e.barrier()
    e.buf_load(vG, V(5), sWS, S(37), offset=0, flags=LDF)
    for r in range(0, 16, 2):
        e.valu("v_pk_add_f32", Bx[0][r:r + 2], Bx[0][r:r + 2], Bx[2][r:r + 2])
    for j in range(8):
        e.valu("v_cvt_pk_bf16_f32", Bx[1][j], Bx[0][2 * j], Bx[0][2 * j + 1])
    for j in range(8):
        e.valu("v_lshlrev_b32", Bx[0][2 * j], 16, Bx[1][j])
        e.valu("v_and_b32", Bx[0][2 * j + 1], "0xffff0000", Bx[1][j])

    for r in range(16):
        e.valu("v_mul_f32", Bx[0][r], Bx[0][r], vG[1])

    def rd(k):
        hd, s_ = k // 2, k % 2
        e.ds_read("ds_read_b128", OFr(k), vOr, offset=k * 1024, tag=("k", k))

    def rdw(k):
        hd, s_ = k // 2, k % 2
        for j in range(2):
            e.ds_read("ds_read_b64_tr_b16", WA(k)[2 * j:2 * j + 2], vTr, offset=(28 * hd + 16 * s_ + 8 * j) * 128, tag=("w", k))

    def WA(k): return V(144 + 4 * k, 4) if k < 26 else V(80 + 4 * (k - 26), 4)
    def OFr(k): return V(8 + (k % 8) * 4, 4)
    for k in range(32):
        rdw(k)
    e.wait_lg_all()
    for c in range(4):
        e.barrier()
        if c == 0: e.stamp(10)
        ks = list(range(8 * c, 8 * c + 8))
        for k in ks:
            rd(k)
        for k in ks:
            e.mfma(ACC, WA(k), OFr(k), 0 if k == 0 else None)
    e.stamp(11)
    for r in range(16):
        e.valu("v_fmac_f32", Bx[0][r], ACC[r], vG[0], dst_is_read=True)
    Bv = Bx[3]
    for j in range(8):
        e.valu("v_cvt_pk_bf16_f32", Bv[j], Bx[0][2 * j], Bx[0][2 * j + 1])
    for kk in range(2):
        e.valu("v_permlane32_swap_b32", Bv[4 * kk], Bv[4 * kk + 2])
        e.valu("v_permlane32_swap_b32", Bv[4 * kk + 1], Bv[4 * kk + 3])
        e.buf_store(Bv[4 * kk:4 * kk + 4], vSt, sOut, sSt, offset=kk * 32)
    e.label("L_k12_h3end")
    e.last = {}


def gen_helper2(e):
    lane = vLane
    sHead, sQblk, sKV, sLdsKV = S(29), S(30), S(34), S(35)
    sMt64, sNt, sLdsW, sWoff, sHoff, sHoff1 = S(36), S(37), S(38), S(39), S(40), S(41)
    vFl = V(14)
    e.salu("s_lshr_b32", sT0, sIdx, 4)
    e.salu("s_lshl_b32", sHead, sXcd, 1)
    e.salu("s_add_u32", sHead, sHead, sT0)
    e.salu("s_and_b32", sQblk, sIdx, 15)
    e.salu("s_lshl_b32", sLdsKV, sW4, 12)
    e.salu("s_lshl_b32", sKV, sHead, 18)
    e.salu("s_add_u32", sKV, sKV, KVF)
    e.salu("s_add_u32", sKV, sKV, sLdsKV)
    e.salu("s_mul_i32", sT0, sIdx, 37)
    e.salu("s_lshr_b32", sT0, sT0, 8)
    e.salu("s_mul_i32", sT1, sT0, 7)
    e.salu("s_sub_u32", sNt, sIdx, sT1)
    e.salu("s_lshl_b32", sMt64, sXcd, 2)
    e.salu("s_add_u32", sMt64, sMt64, sT0)
    e.salu("s_min_u32", sMt64, sMt64, 31)
    def dma_KV(s):
        e.salu("s_add_u32", "m0", sLdsKV, (s % 4) * 16384)
        e.salu("s_add_u32", sT0, sKV, s * 16384)
        for i in range(4):
            e.buf_load_lds(vLane16, sWS, sT0, offset=i * 1024, tag=("KV", s), flags=LDF)

    def first_loads():
        dma_KV(0)
        e.salu("s_lshl_b32", sT0, sHead, 6)
        e.salu("s_lshl_b32", sT1, sQblk, 2)
        e.salu("s_add_u32", sT0, sT0, sT1)
        e.salu("s_add_u32", sT0, sT0, sW4)
        e.salu("s_lshl_b32", sT0, sT0, 11)
        e.salu("s_lshl_b32", sT1, sW4, 11)
        e.salu("s_add_u32", "m0", sT1, QL)
        if QF: e.salu("s_add_u32", sT0, sT0, QF)
        else: e.nop(1)
        for i in range(2):
            e.buf_load_lds(vLane16, sWS, sT0, offset=i * 1024, tag=("KV", 0), flags=LDF)
        dma_KV(1); dma_KV(2)

    gemm_setup(e, sMt64, sNt, sLdsW, sWoff, sHoff)
    e.raw(f"v_mov_b32 v8, {SIG}")
    e.raw("s_waitcnt vmcnt(0)")
    e.barrier()
    e.stamp(0)
    e.salu("s_cmp_eq_u32", sW4, 1)
    e.raw("s_cbranch_scc1 L_k12_pl")
    e.salu("s_cmp_lg_u32", sW4, 0)
    e.raw("s_cbranch_scc1 L_k12_wl")
    flag_store(e, F1B)
    e.label("L_k12_wl")
    e.salu("s_mov_b32", sT2, 0)
    e.label("L_k12_wl2")
    e.raw("ds_read_b32 v9, v8")
    e.salu("s_add_u32", sT2, sT2, 1)
    e.raw("s_waitcnt lgkmcnt(0)")
    e.raw("v_readfirstlane_b32 s33, v9")
    e.salu("s_cmp_gt_u32", sT2, SPIN * 16)
    e.raw("s_cbranch_scc1 L_k12_p1ok")
    e.raw(f"s_cmp_eq_u32 s33, {sNonce}")
    e.raw("s_cbranch_scc1 L_k12_p1ok")
    e.raw("s_sleep 1")
    e.raw("s_branch L_k12_wl2")
    e.label("L_k12_pl")
    e.salu("s_mov_b32", sT0, F1)
    poll(e, "L_k12_p1", vFl, sWS, sT0, 33, V(15), sNonce)
    e.raw(f"v_mov_b32 v9, {sNonce}")
    e.raw("ds_write_b32 v8, v9")
    e.label("L_k12_p1ok")
    e.vm, e.last = [], {}
    e.stamp(1)
    first_loads()
    st0 = list(e.vm)
    e.raw(f"s_setprio {HPRIO}")
    e.salu("s_cmp_ge_u32", sIdx, 28)
    e.raw("s_cbranch_scc1 L_k12_nogemm")
    helper_loop(e, True, dma_KV, sMt64, sNt, sLdsW, sWoff, sHoff, sHoff1)
    e.raw("s_endpgm")
    e.label("L_k12_nogemm")
    e.lg, e.vm, e.last = [], list(st0), {}
    helper_loop(e, False, dma_KV, sMt64, sNt, sLdsW, sWoff, sHoff, sHoff1)
    e.raw("s_endpgm")


def gemm_setup(e, sMt64, sNt, sLdsW, sWoff, sHoff):
    lane = vLane
    vW = [V(2), V(3), V(4), V(5)]
    vTr = [V(6), V(7)]
    vRw, vRr, vF2 = V(11), V(12), V(13)
    sWl, sHl = S(42), S(43)
    srd(e, sWd, KD, 1792 * 896)
    e.valu("v_lshrrev_b32", vX0, 3, lane)
    e.valu("v_bfe_u32", vX1, lane, 2, 1)
    e.valu("v_bfe_u32", vX2, lane, 4, 1)
    e.valu("v_xor_b32", vX1, vX1, vX2)
    e.valu("v_mul_u32_u24", vW[0], 896, vX0)
    e.valu("v_lshl_add_u32", vW[0], vX1, 6, vW[0])
    e.valu("v_and_b32", vX1, 3, lane)
    e.valu("v_lshl_add_u32", vW[0], vX1, 4, vW[0])
    for i in range(1, 4):
        e.valu("v_add_u32", vW[i], i * (8 * 896 - 1024), vW[0])
    e.salu("s_lshl_b32", sLdsW, sW4, 14)
    e.salu("s_add_u32", sLdsW, sLdsW, WR)
    e.salu("s_mul_i32", sWoff, sW4, 6 * 32 * 896)
    e.salu("s_lshl_b32", sT0, sNt, 7)
    e.salu("s_add_u32", sWoff, sWoff, sT0)
    e.salu("s_lshl_b32", sT0, sW4, 1)
    e.salu("s_add_u32", sT0, sT0, 18)
    e.salu("s_mul_i32", sWl, sT0, 32 * 896)
    e.salu("s_add_u32", sWl, sWl, sWoff)
    e.salu("s_lshl_b32", sHl, sT0, 11)
    e.salu("s_mul_i32", sHoff, sMt64, 2 * H_MT_STRIDE)
    e.salu("s_mul_i32", sT0, sW4, 6 * 2048)
    e.salu("s_add_u32", sHoff, sHoff, sT0)
    e.salu("s_add_u32", sHoff, sHoff, HF)
    e.salu("s_add_u32", sHl, sHl, sHoff)
    e.valu("v_lshrrev_b32", vX1, 5, lane)
    e.valu("v_bfe_u32", vX0, lane, 2, 2)
    e.valu("v_lshl_add_u32", vX0, vX1, 2, vX0)
    e.valu("v_bfe_u32", vX2, lane, 4, 1)
    e.valu("v_lshlrev_b32", vX2, 5, vX2)
    e.valu("v_and_b32", vX1, 3, lane)
    e.valu("v_lshl_add_u32", vX2, vX1, 3, vX2)
    e.valu("v_lshl_add_u32", vX2, vX0, 7, vX2)
    e.valu("v_bfe_u32", vX1, lane, 3, 1)
    e.valu("v_lshl_add_u32", vTr[0], vX1, 6, vX2)
    e.valu("v_xor_b32", vTr[1], 64, vTr[0])
    e.valu("v_add_u32", vTr[0], sLdsW, vTr[0])
    e.valu("v_add_u32", vTr[1], sLdsW, vTr[1])
    e.valu("v_add_u32", vRw, sLdsW, vLane16)
    e.salu("s_lshl_b32", sT0, sW4, 12)
    e.salu("s_add_u32", sT0, sT0, WR)
    e.valu("v_add_u32", vRr, sT0, vLane16)
    e.salu("s_lshr_b32", sT0, sMt64, 1)
    e.valu("v_and_b32", vX0, 15, lane)
    e.valu("v_lshl_add_u32", vF2, vX0, 4, sT0)
    e.valu("v_lshlrev_b32", vF2, 7, vF2)


def helper_loop(e, gemm, dma_KV, sMt64, sNt, sLdsW, sWoff, sHoff, sHoff1):
    lane = vLane
    g = int(gemm)
    ND = 4
    ACC = [[V(80, 16), V(96, 16)], [V(112, 16), V(128, 16)]]
    def HF_(s, st, t): return V(16 + ((s % ND) * 4 + st * 2 + t) * 4, 4)
    def WF(st, u): return V(144 + (st * 2 + u) * 4, 4)
    vW = [V(2), V(3), V(4), V(5)]
    vTr = [V(6), V(7)]
    vRw, vRr, vF2 = V(11), V(12), V(13)
    sWl, sHl = S(42), S(43)
    def dma_Wo(q):
        if q == 0:
            srd(e, sWo, KO, 448 * 896)
        e.salu("s_mul_i32", sT1, sW4, 32 * 896)
        e.salu("s_lshl_b32", sT0, sNt, 7)
        e.salu("s_add_u32", sT1, sT1, sT0)
        e.salu("s_lshl_b32", sT2, sW4, 12)
        e.salu("s_add_u32", "m0", sT2, q * 16384)
        e.salu("s_add_u32", sT0, sT1, q * 128 * 896)
        for i in range(4):
            e.buf_load_lds(vW[i], sWo, sT0, offset=i * 1024, tag="Wo")

    def W_ops(s):
        def w(i):
            if i == 0:
                e.salu("s_add_u32", "m0", sLdsW, (s % ND) * 4096)
                e.salu("s_add_u32", sT2, sWoff if s < 6 else sWl, s * 32 * 896)
            e.buf_load_lds(vW[i], sWd, sT2, offset=i * 1024, tag=("W", s))
        return [lambda i=i: w(i) for i in range(4)]

    def H_ops(s):
        def h(st, t):
            e.salu("s_add_u32", sT1, sHoff if s < 6 else sHl, s * 2048 + t * H_MT_STRIDE)
            e.buf_load(HF_(s, st, t), vLane16, sWS, sT1, offset=st * 1024, flags=LDF)
        return [lambda st=st, t=t: h(st, t) for st in range(2) for t in range(2)]

    def compute(s, side):
        e.wait_vm_tag(("W", s))
        for st in range(2):
            for u in range(2):
                for j in range(2):
                    e.ds_read("ds_read_b64_tr_b16", WF(st, u)[2 * j:2 * j + 2], vTr[u],
                              offset=(s % ND) * 4096 + st * 2048 + j * 1024)
        if side: side.pop(0)()
        for st in range(2):
            for u in range(2):
                for t in range(2):
                    e.mfma(ACC[u][t], WF(st, u), HF_(s, st, t), 0 if (s == 0 and st == 0) else None)
                    if side: side.pop(0)()

    P2 = POLL2
    comp = {C0 + s: [s] for s in range(6)}
    late = list(range(6, 14))
    i0 = max(P2 + 2, C0 + 6)
    LASTI = 15 if FUSE3 else 14
    for i in range(i0, LASTI):
        left = LASTI - i
        k = -(-len(late) // left) if len(late) > left and i >= 12 else 1
        comp.setdefault(i, [])
        comp[i] += late[:k]; late = late[k:]
    assert not late, late
    done_at = {s: i for i, l in comp.items() for s in l}
    todo = [(s, k) for s in range(14) for k in ("H", "W")]

    def check(name, base, nl):
        e.valu("v_cmp_ne_u32", "vcc", sNonce, V(8))
        e.nop(1)
        e.raw(f"s_and_b32 s33, vcc_lo, {hex((1 << nl) - 1)}")
        e.raw(f"s_cbranch_scc0 {name}ok")
        keep = list(e.vm)
        e.salu("s_mov_b32", sT0, base)
        poll(e, name, vF2, sWS, sT0, nl, V(8), sNonce)
        e.label(name + "ok")
        e.vm = keep
        e.last = {}

    e.wait_vm_tag(("KV", 1))
    e.stamp(2)
    e.barrier()
    for i in range(16):
        if i in (4, 8, 12): e.stamp(2 + i // 4)
        if i + 3 <= 15:
            dma_KV(i + 3)
        if i == 2:
            flag_store(e, F2)
        if gemm:
            if i in (C0 - 2, P2 - 1):
                e.salu("s_mov_b32", sT0, F1B if i == C0 - 2 else F2)
                e.buf_load(V(8), vF2, sWS, sT0, offset=0, flags=" sc1")
            if i == C0 - 1:
                check("L_k12_p1b", F1B, 12)
            if i == P2:
                e.stamp(10)
                check("L_k12_p2", F2, 16)
                e.stamp(11)
            side = []
            budget = 3 if i < 13 else 4
            for (s, k) in list(todo):
                if budget == 0: break
                ok = (s < ND or done_at[s - ND] < i) and not (k == "H" and (i < C0 - 1 or (s >= 6 and i < P2))) and not (k == "W" and s >= 2 and i < 1)
                if ok:
                    side += H_ops(s) if k == "H" else W_ops(s)
                    todo.remove((s, k)); budget -= 1
            for s in comp.get(i, []):
                compute(s, side)
            while side: side.pop(0)()
            if i == LASTI:
                assert not todo
                for u in range(2):
                    for t in range(2):
                        for j in range(4):
                            e.ds_write("ds_write_b128", vRw, ACC[u][t][4 * j:4 * j + 4],
                                       offset=(t * 2 + u) * 4096 + j * 1024)
                e.wait_lg_all()
                if not FUSE3: e.raw("s_setprio 2")
            if i == 15 and not FUSE3:
                X = [V(16 + 16 * w, 16) for w in range(4)]
                for w in range(4):
                    for j in range(4):
                        e.ds_read("ds_read_b128", X[w][4 * j:4 * j + 4], vRr, offset=w * 16384 + j * 1024)
                for r in range(16):
                    e.valu("v_add_f32", X[0][r], X[0][r], X[1][r])
                    e.valu("v_add_f32", X[2][r], X[2][r], X[3][r])
                for r in range(16):
                    e.valu("v_add_f32", X[0][r], X[0][r], X[2][r])
                for j in range(8):
                    e.valu("v_cvt_pk_bf16_f32", X[1][j], X[0][2 * j], X[0][2 * j + 1])
                e.salu("s_lshr_b32", sT0, sW4, 1)
                e.salu("s_lshl_b32", sT1, sMt64, 1)
                e.salu("s_add_u32", sT0, sT0, sT1)
                e.salu("s_mul_i32", sT0, sT0, 14)
                e.salu("s_and_b32", sT1, sW4, 1)
                e.salu("s_add_u32", sT0, sT0, sT1)
                e.salu("s_lshl_b32", sT1, sNt, 1)
                e.salu("s_add_u32", sT0, sT0, sT1)
                e.salu("s_lshl_b32", sT0, sT0, 11)
                e.salu("s_add_u32", sT0, sT0, BF)
                e.buf_store(X[1][0:4], vLane16, sWS, sT0, offset=0, flags=STF)
                e.buf_store(X[1][4:8], vLane16, sWS, sT0, offset=1024, flags=STF)
        if i + 2 <= 15:
            e.wait_vm_tag(("KV", i + 2))
        if i == 13 and not FUSE3:
            srd(e, sWo, KO, 448 * 896)
            e.salu("s_lshl_b32", sT0, sIdx, 2)
            e.salu("s_add_u32", sT0, sT0, sW4)
            e.salu("s_mul_i32", sT0, sT0, 25 * 128)
            e.valu("v_min_u32", vX0, 24, lane)
            e.valu("v_lshlrev_b32", vX0, 7, vX0)
            e.buf_load(V(10), vX0, sWo, sT0, offset=0)
        if FUSE3 and gemm and i >= 13:
            dma_Wo(i - 13)
        if i < 15 or FUSE3:
            e.barrier()
    if FUSE3:
        sHead, sQblk = S(29), S(30)
        e.raw("s_setprio 3")
        e.barrier()
        if gemm:
            dma_Wo(3)
            e.wait_vm_all()
        e.barrier()
        flag_store(e, F3, sQblk, sHead)
        if not gemm:
            e.salu("s_sub_u32", sT0, S(2), sW4)
            e.salu("s_cmp_lg_u32", sT0, 255)
            e.raw("s_cbranch_scc1 L_k12_nadv")
            e.salu("s_mov_b32", S(36), 256)
            poll(e, "L_k12_pc", V(249), sDbg, 0, 1, V(15), S(36))
            e.salu("s_mov_b32", sT0, NONCE)
            e.raw("s_mov_b64 exec, 1")
            e.buf_store(V(9), V(249), sWS, sT0, offset=0, flags=" sc1")
            e.raw("s_mov_b64 exec, -1")
            e.label("L_k12_nadv")
        if gemm:
            e.stamp(6, True)
            e.salu("s_lshr_b32", sT0, sMt64, 1)
            e.salu("s_lshl_b32", sT0, sT0, 11)
            e.salu("s_add_u32", sT0, sT0, F3)
            e.valu("v_lshlrev_b32", vF2, 7, lane)
            e.raw(f"v_mov_b32 v8, {SIG + 64}")
            e.salu("s_cmp_lg_u32", sW4, 1)
            e.raw("s_cbranch_scc1 L_k12_w3")
            poll(e, "L_k12_p3", vF2, sWS, sT0, 16, V(15), sNonce)
            e.raw(f"v_mov_b32 v9, {sNonce}")
            e.raw("ds_write_b32 v8, v9")
            e.raw("s_branch L_k12_p3ok")
            e.label("L_k12_w3")
            e.salu("s_mov_b32", sT2, 0)
            e.label("L_k12_w3b")
            e.raw("ds_read_b32 v9, v8")
            e.salu("s_add_u32", sT2, sT2, 1)
            e.raw("s_waitcnt lgkmcnt(0)")
            e.raw("v_readfirstlane_b32 s33, v9")
            e.salu("s_cmp_gt_u32", sT2, SPIN * 16)
            e.raw("s_cbranch_scc1 L_k12_p3ok")
            e.raw(f"s_cmp_eq_u32 s33, {sNonce}")
            e.raw("s_cbranch_scc1 L_k12_p3ok")
            e.raw("s_sleep 1")
            e.raw("s_branch L_k12_w3b")
            e.label("L_k12_p3ok")
            e.vm, e.last = [], {}
            e.stamp(7, True)
            e.salu("s_lshr_b32", sT0, sW4, 1)
            e.salu("s_lshl_b32", sT0, sT0, 15)
            e.salu("s_and_b32", sT1, sW4, 1)
            e.salu("s_lshl_b32", sT1, sT1, 12)
            e.salu("s_add_u32", sT2, sT0, sT1)
            e.salu("s_lshl_b32", sT1, sMt64, 16)
            e.salu("s_add_u32", sT1, sT1, sT2)
            e.salu("s_add_u32", sT1, sT1, OF)
            for c in range(4):
                e.salu("s_add_u32", "m0", sT2, WR + c * 8192)
                e.salu("s_add_u32", sT0, sT1, c * 8192)
                for i in range(4):
                    e.buf_load_lds(vLane16, sWS, sT0, offset=i * 1024, tag=("O", c), flags=LDF)
                if c >= OLEAD:
                    e.wait_vm_tag(("O", c - OLEAD))
                    e.barrier()
            for c in range(4 - OLEAD, 4):
                e.wait_vm_tag(("O", c))
                e.barrier()
    e.stamp(9); e.stamp(13, True)
    e.dump_stamps(sWS, 0, sWave)


K12_DESC = dict(name=KNAME, vgpr=256, acc=256, sgpr=96, grid=256, block=512, lds=LDS)
```

```python
from emit import *
from layout import *
import os
import struct

ROT1 = int(os.environ.get('ROT1', '1'))
STF = ' sc1'
LDF = ' sc1'
EB1 = int(os.environ.get('EB1', '3'))
N1 = int(os.environ.get('N1', '14'))
N1B = int(os.environ.get('N1B', '17'))
N1X = int(os.environ.get('N1X', '9'))
PRE = int(os.environ.get('PRE', '1'))
QANY = int(os.environ.get('QANY', '1'))
PRES = eval(os.environ.get('PRES', '(4, 24, 44)'))
C0 = int(os.environ.get('C0', '2'))
POLL2 = int(os.environ.get('POLL2', '6'))
SPIN = 1 << 17
MAP = int(os.environ.get('MAP', '1'))
DSPLIT = int(os.environ.get('DSPLIT', '2'))
BUD = int(os.environ.get('BUD', '2'))
DEFER = int(os.environ.get('DEFER', '4'))
S1ST = int(os.environ.get('S1ST', '0'))
TPRIO = int(os.environ.get('TPRIO', '0'))
WSL = int(os.environ.get('WSL', '2'))
LP0 = int(os.environ.get('LP0', '99'))
OLEAD = int(os.environ.get('OLEAD', '3'))
FUSE3 = int(os.environ.get('FUSE3', '1'))
KOUT = 92
KNAME = "gated_mix__softmax_full_mha__swiglu_ffn__prompt_kernel" if FUSE3 else "k12_kernel"
sOut = S(12, 4)
SLEEP = int(os.environ.get('SLEEP', '4'))
HPRIO = int(os.environ.get('HPRIO', '0'))

LOG2E = 1.4426950408889634
QSCALE = (28 ** -0.5) * LOG2E
L_LO = 2.0 ** -50
L_HI = 2.0 ** 60


def f2u(x):
    return struct.unpack("<I", struct.pack("<f", x))[0]


sX, sWg, sWu, sWq, sWS = S(4, 4), S(8, 4), S(12, 4), S(16, 4), S(20, 4)
sWd, sGw, sDbg, sWo = S(64, 4), S(60, 4), S(44, 4), S(8, 4)
sWave, sMblk, sCg, sW4 = S(24), S(25), S(26), S(28)
sT0, sT1, sT2 = S(32), S(33), S(31)
sRot = S(3)
sXcd, sIdx = S(68), S(69)
KX, KQ, KO, KG, KU, KD, KGW, KDBG, KWS = 72, 74, 76, 80, 82, 84, 86, 88, 90

BR = 114688
WR = 65536
QL = 65536 + 8192
SIG = 131072
SIG1 = 49152
ARED = 147456
LDS = 163840
vX0, vX1, vX2, vLane, vLane16 = V(250), V(251), V(252), V(253), V(254)


def srd(e, s, lo, size):
    e.salu("s_mov_b32", s[0], S(lo))
    e.salu("s_mov_b32", s[1], S(lo + 1))
    e.salu("s_mov_b32", s[2], size)
    e.salu("s_mov_b32", s[3], "0x20000")


def gen_k12(e):
    e.label(KNAME)
    e.salu("s_cmp_ge_u32", S(2), 256)
    e.raw("s_cbranch_scc1 L_k12_end")
    e.s_load(S(72, 4), S(0, 2), 0)
    e.s_load(S(76, 2), S(0, 2), 16)
    e.s_load(S(80, 8), S(0, 2), 32)
    e.s_load(S(88, 4), S(0, 2), 72)
    e.s_load(S(92, 2), S(0, 2), 64)
    e.salu("s_and_b32", sXcd, S(2), 7)
    e.salu("s_lshr_b32", sIdx, S(2), 3)
    if MAP == 0:
        e.salu("s_and_b32", sMblk, sXcd, 1)
        e.salu("s_lshl_b32", sMblk, sMblk, 3)
        e.salu("s_and_b32", sRot, sIdx, 7)
        e.salu("s_add_u32", sMblk, sMblk, sRot)
        e.salu("s_lshr_b32", sT0, sXcd, 1)
        e.salu("s_lshr_b32", sT1, sIdx, 3)
        e.salu("s_mul_i32", sCg, sT0, 3)
        e.salu("s_add_u32", sCg, sCg, sT1)
        e.salu("s_add_u32", sT0, sT0, 12)
        e.salu("s_cmp_eq_u32", sT1, 3)
        e.salu("s_cselect_b32", sCg, sT0, sCg)
        if ROT1:
            e.salu("s_lshl_b32", sT1, sT1, 1)
            e.salu("s_add_u32", sRot, sRot, sT1)
            e.salu("s_sub_u32", sT0, sRot, 7)
            e.salu("s_cmp_ge_u32", sRot, 7)
            e.salu("s_cselect_b32", sRot, sT0, sRot)
    else:
        e.salu("s_and_b32", sMblk, sXcd, 3)
        e.salu("s_lshl_b32", sMblk, sMblk, 2)
        e.salu("s_and_b32", sRot, sIdx, 3)
        e.salu("s_add_u32", sMblk, sMblk, sRot)
        e.salu("s_lshr_b32", sT0, sXcd, 2)
        e.salu("s_lshr_b32", sT1, sIdx, 2)
        e.salu("s_mul_i32", sCg, sT0, 6)
        e.salu("s_add_u32", sCg, sCg, sT1)
        e.salu("s_lshl_b32", sT0, sT0, 1)
        e.salu("s_add_u32", sT0, sT0, sT1)
        e.salu("s_add_u32", sT0, sT0, 6)
        e.salu("s_cmp_ge_u32", sT1, 6)
        e.salu("s_cselect_b32", sCg, sT0, sCg)
        e.salu("s_lshl_b32", sRot, sRot, 1)
        e.salu("s_add_u32", sRot, sRot, sT1)
        e.salu("s_sub_u32", sT0, sRot, 7)
        e.salu("s_cmp_ge_u32", sRot, 7)
        e.salu("s_cselect_b32", sRot, sT0, sRot)
    if ROT1:
        pass
    else:
        e.salu("s_mov_b32", sRot, 0)
    e.valu("v_lshrrev_b32", vX0, 6, V(0))
    e.valu("v_and_b32", vLane, 63, V(0))
    e.valu("v_readfirstlane_b32", sWave, vX0)
    e.valu("v_lshlrev_b32", vLane16, 4, vLane)
    e.salu("s_and_b32", sW4, sWave, 3)
    e.salu("s_cmp_lt_u32", sWave, 4)
    e.raw("s_cbranch_scc1 L_k12_heavy")
    saved = list(e.lg)

    def reset():
        e.lg, e.vm, e.last, e.smem_pending = list(saved), [], {}, True
    e.raw("s_setprio 3")
    e.stamp(12, True)
    e.salu("s_cmp_ge_u32", sCg, 12)
    e.raw("s_cbranch_scc1 L_k12_loadY")
    e.flush_hazards()
    gen_loader1(e, False)
    e.raw("s_branch L_k12_help2")
    e.label("L_k12_loadY")
    reset()
    gen_loader1(e, True)
    e.label("L_k12_help2")
    e.lg, e.vm, e.last = [], [], {}
    gen_helper2(e)
    e.label("L_k12_heavy")
    reset()
    e.salu("s_cmp_ge_u32", sCg, 12)
    e.raw("s_cbranch_scc1 L_k12_compY")
    gen_compute1(e, False)
    e.raw("s_branch L_k12_attn")
    e.label("L_k12_compY")
    reset()
    gen_compute1(e, True)
    e.label("L_k12_attn")
    e.lg, e.vm, e.last = [], [], {}
    e.nop(2)
    gen_attn(e)
    e.label("L_k12_end")
    e.raw("s_endpgm")


sNonce = S(27)


def poll(e, name, vaddr, srd_, soff, nlanes, vtmp, cmp_s):
    mask = (1 << nlanes) - 1
    e.wait_lg_all()
    e.raw(f"s_mov_b32 exec_lo, {hex(mask & 0xffffffff)}")
    e.raw(f"s_mov_b32 exec_hi, {hex(mask >> 32)}")
    e.salu("s_mov_b32", sT2, 0)
    e.label(name)
    e.raw(f"buffer_load_dword {vtmp}, {vaddr}, {srd_}, {soff} offen sc1")
    e.salu("s_add_u32", sT2, sT2, 1)
    e.raw("s_waitcnt vmcnt(0)")
    e.raw(f"v_cmp_ne_u32 vcc, {cmp_s}, {vtmp}")
    e.salu("s_cmp_gt_u32", sT2, SPIN)
    e.raw(f"s_cbranch_scc1 {name}_out")
    e.raw("s_and_b64 exec, exec, vcc")
    e.raw(f"s_cbranch_scc0 {name}_out")
    if SLEEP: e.raw(f"s_sleep {SLEEP}")
    e.raw(f"s_branch {name}")
    e.label(name + "_out")
    e.raw("s_mov_b64 exec, -1")
    e.vm = []
    e.last = {}


def flag_store(e, base, hi=None, lo=None):
    e.salu("s_lshl_b32", sT0, hi or sCg, 4)
    e.salu("s_add_u32", sT0, sT0, lo or sMblk)
    e.salu("s_lshl_b32", sT0, sT0, 7)
    e.salu("s_add_u32", sT0, sT0, base)
    e.salu("s_min_u32", sT1, sW4, 1)
    e.salu("s_lshl_b32", sT1, sT1, 19)
    e.salu("s_add_u32", sT0, sT0, sT1)
    e.valu("v_mov_b32", V(9), sNonce)
    e.valu("v_mov_b32", V(249), 0)
    e.raw("s_mov_b64 exec, 1")
    e.buf_store(V(9), V(249), sWS, sT0, offset=0, flags=" sc1")
    e.raw("s_mov_b64 exec, -1")


def gen_loader1(e, typeY):
    ty = int(typeY)
    lane = vLane
    vA = [V(1), V(2), V(3), V(4)]
    vB = [V(5), V(6)]
    vB2 = [V(7), V(8)]
    vGa = V(13)
    vG = V(16, 7)
    sAoff, sB0, sQo, sVo = S(29), S(30), S(34), S(48)
    sLA, sLB = S(35), S(36)
    sCh = [S(37 + i) for i in range(7)]
    e.valu("v_lshrrev_b32", vX0, 3, lane)
    e.valu("v_and_b32", vX1, 7, lane)
    e.valu("v_lshrrev_b32", vX2, 1, vX0)
    e.valu("v_xor_b32", vX2, vX2, vX1)
    e.valu("v_mul_u32_u24", vA[0], 896, vX0)
    e.valu("v_lshl_add_u32", vA[0], vX2, 4, vA[0])
    e.valu("v_xor_b32", vA[1], 64, vA[0])
    e.valu("v_add_u32", vA[2], 2 * 6144, vA[0])
    e.valu("v_add_u32", vA[3], 3 * 6144, vA[1])
    e.valu("v_add_u32", vA[1], 6144, vA[1])
    e.valu("v_bfe_u32", vX1, lane, 2, 1)
    e.valu("v_bfe_u32", vX2, lane, 4, 1)
    e.valu("v_xor_b32", vX1, vX1, vX2)
    e.valu("v_and_b32", vX2, 3, lane)
    for vv, l_, us in ((vB, 3584, 64), (vB2, 2688, 56)):
        e.valu("v_mul_u32_u24", vv[0], l_, vX0)
        e.valu("v_mul_u32_u24", vv[1], us, vX1)
        e.valu("v_add_u32", vv[0], vv[0], vv[1])
        e.valu("v_lshl_add_u32", vv[0], vX2, 4, vv[0])
        e.valu("v_add_u32", vv[1], 8 * l_ - 1024, vv[0])
    e.salu("s_lshl_b32", sT0, sMblk, 2)
    e.salu("s_add_u32", sT0, sT0, sW4)
    e.salu("s_mul_i32", sAoff, sT0, 32 * 896)
    e.salu("s_mul_i32", sT0, sW4, 16 * 3584)
    e.salu("s_lshl_b32", sB0, sCg, 7)
    e.salu("s_add_u32", sB0, sB0, sT0)
    e.salu("s_mul_i32", sT0, sW4, 16 * 2688)
    e.salu("s_mul_i32", sQo, sCg, 112)
    e.salu("s_add_u32", sQo, sQo, sT0)
    if typeY:
        e.salu("s_mul_i32", sVo, sCg, 224)
        e.salu("s_add_u32", sVo, sVo, sT0)
        e.salu("s_sub_u32", sVo, sVo, 12 * 224 - 1792)
    e.salu("s_lshl_b32", sLA, sW4, 12)
    e.salu("s_lshl_b32", sLB, sW4, 11)
    e.salu("s_add_u32", sLB, sLB, BR)
    e.salu("s_mov_b32", sCh[0], sRot)
    for c in range(1, 7):
        e.salu("s_add_u32", sCh[c], sCh[c - 1], 1)
        e.salu("s_cmp_eq_u32", sCh[c], 7)
        e.salu("s_cselect_b32", sCh[c], 0, sCh[c])
    e.wait_lg_all()
    srd(e, sX, KX, 2048 * 896)
    srd(e, sWg, KG, 448 * 3584)
    srd(e, sWu, KU, 448 * 3584)
    srd(e, sWq, KQ, 448 * 2688)

    pair0 = 7 if typeY else 0

    def dmaA(c, n):
        e.salu("s_lshl_b32", sT0, sCh[c], 7)
        e.salu("s_add_u32", "m0", sLA, c * 16384)
        e.salu("s_add_u32", sT0, sT0, sAoff)
        for i in range(4):
            e.buf_load_lds(vA[i], sX, sT0, offset=i * 1024, tag=("C", n))

    def dmaB(n):
        sl = (n % 3) * 16384
        if pair0 <= n < pair0 + 4:
            for r in range(2):
                c = 2 * (n - pair0) + r
                if c < 7:
                    if not typeY: dmaA(c, n)
                    e.salu("s_mul_i32", sT1, sCh[c], 64 * 2688)
                    e.salu("s_add_u32", "m0", sLB, sl + r * 8192)
                    e.salu("s_add_u32", sT0, sQo, sT1)
                    for i in range(2):
                        e.buf_load_lds(vB2[i], sWq, sT0, offset=i * 1024, tag=("C", n))
        elif n < 7 and typeY:
            dmaA(n, n)
            e.salu("s_mul_i32", sT1, sCh[n], 64 * 2688)
            for r in range(2):
                e.salu("s_add_u32", "m0", sLB, sl + r * 8192)
                e.salu("s_add_u32", sT1, sT1, sVo if r == 0 else 112)
                for i in range(2):
                    e.buf_load_lds(vB2[i], sWq, sT1, offset=i * 1024, tag=("C", n))
        else:
            c = n - 4 if n < 11 else n - 11
            e.salu("s_mul_i32", sT1, sCh[c], 64 * 3584)
            e.salu("s_add_u32", sT1, sT1, sB0)
            if n >= 11: e.salu("s_add_u32", sT1, sT1, 12 * 128)
            for r in range(2):
                e.salu("s_add_u32", "m0", sLB, sl + r * 8192)
                e.nop(1)
                for i in range(2):
                    e.buf_load_lds(vB[i], (sWg, sWu)[r], sT1, offset=i * 1024, tag=("C", n))

    def land(n):
        e.wait_vm_tag(("C", n))
        if not typeY and n < 4:
            e.raw("s_mov_b64 exec, 0xffff")
            for r in range(2):
                c = 2 * n + r
                if c < 7:
                    e.ds_write("ds_write_b16", vGa, vG[c], offset=(n % 3) * 16384 + r * 8192)
            e.raw("s_mov_b64 exec, -1")
            e.wait_lg_all()

    dmaB(0)
    if not typeY:
        srd(e, sGw, KGW, 896)
        e.valu("v_and_b32", vX0, 15, lane)
        e.valu("v_lshlrev_b32", vX1, 1, vX0)
        e.salu("s_lshl_b32", sT0, sW4, 5)
        e.salu("s_lshl_b32", sT2, sCg, 12)
        e.salu("s_add_u32", sT0, sT0, sT2)
        for c in range(7):
            e.salu("s_lshl_b32", sT2, sCh[c], 7)
            e.salu("s_add_u32", sT2, sT2, sT0)
            e._issue(f"buffer_load_ushort {vG[c]}, {vX1}, {sGw}, {sT2} offen", "vmem", vX1.regs() + sGw.regs() + sT2.regs(), vG[c].regs())
            e.vm.append((-1, set(vG[c].regs()), "gw"))
        e.valu("v_lshlrev_b32", vGa, 7, vX0)
        e.valu("v_bfe_u32", vX1, lane, 1, 1)
        e.valu("v_lshl_add_u32", vGa, vX1, 6, vGa)
        e.valu("v_add_u32", vGa, sLB, vGa)
        e.valu("v_add_u32", vGa, 56, vGa)
    dmaB(1)
    srd(e, sWS, KWS, WS_USED)
    e.valu("v_mov_b32", V(12), 0)
    e.salu("s_mov_b32", sT0, NONCE)
    e.buf_load(V(11), V(12), sWS, sT0, offset=0, flags=" sc1")
    land(0)
    e.barrier()
    for n in range(16):
        if n == LP0: e.raw('s_setprio 0')
        if n + 2 < 18:
            dmaB(n + 2)
        if n == (N1 if typeY else N1X):
            flag_store(e, F1)
            if S1ST: e.stamp(6, True)
        if n == 2:
            e.valu("v_readfirstlane_b32", sNonce, V(11))
            e.nop(1)
            e.salu("s_add_u32", sNonce, sNonce, "0x9e3779b9")
        if n == 15:
            vFl = V(14)
            e.salu("s_lshl_b32", sT0, sXcd, 4)
            e.salu("s_add_u32", sT1, sT0, 128)
            e.valu("v_add_u32", vFl, sT1, lane)
            e.salu("s_lshr_b32", sT1, sXcd, 1)
            e.salu("s_lshl_b32", sT1, sT1, 4)
            e.salu("s_add_u32", sT1, sT1, 192 - 16)
            e.valu("v_add_u32", vX0, sT1, lane)
            e.valu("v_cmp_le_u32", "vcc", 16, lane)
            e.valu("v_cndmask_b32", vFl, vFl, vX0)
            e.salu("s_and_b32", sT1, sIdx, 15)
            e.salu("s_add_u32", sT0, sT0, sT1)
            e.valu("v_mov_b32", vX0, sT0)
            e.valu("v_cmp_le_u32", "vcc", 32, lane)
            e.valu("v_cndmask_b32", vFl, vFl, vX0)
            e.valu("v_lshlrev_b32", vFl, 7, vFl)
        land(n + 1)
        e.barrier()


def gen_compute1(e, typeY):
    ty = int(typeY)
    lane = vLane
    sWm, sWn, sMt = S(29), S(30), S(34)
    sOutH, sOutV, sOutQK, sQKstr, sQKmul, sNL2E = S(35), S(48), S(36), S(37), S(38), S(39)
    sMask = S(40, 2)
    vAr = [[V(232 + i) for i in range(4)], [V(236 + i) for i in range(4)]]
    vTr = V(240)
    vMulHi, vVconst = V(241), V(242)
    TT = 220
    def ACC(p, r, t):
        if p == 0: return V(128 + 16 * t, 16)
        return V(64 * (p - 1) + 32 * r + 16 * t, 16)
    NBUF = 3
    def fA(n, t): return V(160 + (n % NBUF) * 16 + t * 4, 4)
    def fB(n, i): return V(160 + (n % NBUF) * 16 + 8 + i * 4, 4)
    e.salu("s_lshr_b32", sWm, sW4, 1)
    e.salu("s_and_b32", sWn, sW4, 1)
    e.salu("s_lshl_b32", sMt, sMblk, 1)
    e.salu("s_add_u32", sMt, sMt, sWm)
    e.salu("s_lshl_b32", sMt, sMt, 1)
    e.valu("v_and_b32", vX0, 31, lane)
    e.valu("v_lshrrev_b32", vX1, 5, lane)
    e.valu("v_bfe_u32", vX2, lane, 1, 3)
    e.valu("v_xor_b32", vX2, vX2, vX1)
    e.valu("v_lshlrev_b32", vX0, 7, vX0)
    e.salu("s_lshl_b32", sT0, sWm, 13)
    e.valu("v_add_u32", vX0, sT0, vX0)
    for k in range(4):
        e.valu("v_xor_b32", vAr[0][k], 2 * k, vX2)
        e.valu("v_lshl_add_u32", vAr[0][k], vAr[0][k], 4, vX0)
        e.valu("v_add_u32", vAr[1][k], 65536, vAr[0][k])
    e.valu("v_bfe_u32", vX0, lane, 2, 2)
    e.valu("v_lshl_add_u32", vX0, vX1, 3, vX0)
    e.valu("v_bfe_u32", vX2, lane, 4, 1)
    e.valu("v_lshlrev_b32", vX2, 5, vX2)
    e.valu("v_and_b32", vX1, 3, lane)
    e.valu("v_lshl_add_u32", vX2, vX1, 3, vX2)
    e.valu("v_lshl_add_u32", vX2, vX0, 7, vX2)
    e.valu("v_bfe_u32", vX1, lane, 3, 1)
    e.valu("v_xor_b32", vX1, sWn, vX1)
    e.valu("v_lshl_add_u32", vTr, vX1, 6, vX2)
    e.valu("v_add_u32", vTr, BR, vTr)
    e.salu("s_mov_b32", sNL2E, hex(f2u(-LOG2E)))
    e.salu("s_lshl_b32", sT2, sCg, 1)
    e.salu("s_add_u32", sT2, sT2, sWn)
    e.salu("s_mul_i32", sOutH, sMt, H_MT_STRIDE)
    e.salu("s_lshl_b32", sT1, sT2, 11)
    e.salu("s_add_u32", sOutH, sOutH, sT1)
    e.salu("s_add_u32", sOutH, sOutH, HF)
    if typeY:
        e.salu("s_sub_u32", sT1, sCg, 12)
        e.salu("s_lshl_b32", sT0, sT1, 2)
        e.salu("s_add_u32", sT0, sT0, sWn)
        e.salu("s_lshl_b32", sT0, sT0, 6)
        e.salu("s_add_u32", sT0, sT0, sMt)
        e.salu("s_lshl_b32", sOutV, sT0, 12)
        e.salu("s_add_u32", sOutV, sOutV, KVF + 2048)
    e.salu("s_and_b32", sT1, sT2, 15)
    e.salu("s_lshl_b32", sT1, sT1, 6)
    e.salu("s_add_u32", sT1, sT1, sMt)
    e.salu("s_cmp_lt_u32", sT2, 16)
    e.salu("s_cselect_b32", sQKstr, 11, 12)
    e.salu("s_cselect_b32", sOutQK, QF, KVF)
    e.salu("s_cselect_b32", sQKmul, hex(f2u(QSCALE)), 1.0)
    e.salu("s_lshl_b32", sQKstr, 1, sQKstr)
    e.salu("s_mul_i32", sT1, sT1, sQKstr)
    e.salu("s_add_u32", sOutQK, sOutQK, sT1)
    e.valu("v_cmp_gt_u32", "vcc", 32, lane)
    e.valu("v_mov_b32", vX0, sQKmul)
    e.valu("v_mov_b32", vX1, 0)
    e.valu("v_cndmask_b32", vMulHi, vX1, vX0)
    if typeY:
        e.valu("v_and_b32", vX0, 31, lane)
        e.valu("v_cmp_eq_u32", "vcc", 28, vX0)
        e.valu("v_mov_b32", vX2, "0x3f803f80")
        e.valu("v_cndmask_b32", vVconst, vX1, vX2)
        e.valu("v_cmp_le_u32", sMask, 28, vX0)
    e.wait_lg_all()
    srd(e, sWS, KWS, WS_USED)
    srd(e, sWd, KD, 1792 * 896)

    def epi_h(p, pk=False):
        ops = []
        for t in range(2):
            G, U = ACC(p, 0, t), ACC(p, 1, t)
            for hgrp in range(2):
                rs = list(range(8 * hgrp, 8 * hgrp + 8))
                T = V(TT, 8)
                if not pk:
                    for r in rs: ops.append((1, lambda r=r, G=G, T=T: e.valu("v_mul_f32", T[r % 8], sNL2E, G[r])))
                    for r in rs:
                        ops.append((2, lambda r=r, T=T: e.valu("v_exp_f32", T[r % 8], T[r % 8])))
                        ops.append((1, lambda r=r, G=G, U=U: e.valu("v_mul_f32", G[r], G[r], U[r])))
                    for r in rs: ops.append((1, lambda r=r, T=T: e.valu("v_add_f32", T[r % 8], 1.0, T[r % 8])))
                    for r in rs: ops.append((2, lambda r=r, T=T: e.valu("v_rcp_f32", T[r % 8], T[r % 8])))
                    for r in rs: ops.append((1, lambda r=r, G=G, T=T: e.valu("v_mul_f32", G[r], G[r], T[r % 8])))
                else:
                    C = V(228, 4)
                    for r in rs[::2]: ops.append((1, lambda r=r, G=G, T=T: e.valu("v_pk_mul_f32", T[r % 8:r % 8 + 2], G[r:r + 2], C[0:2])))
                    for r in rs:
                        ops.append((2, lambda r=r, T=T: e.valu("v_exp_f32", T[r % 8], T[r % 8])))
                        if r % 2: ops.append((1, lambda r=r, G=G, U=U: e.valu("v_pk_mul_f32", G[r - 1:r + 1], G[r - 1:r + 1], U[r - 1:r + 1])))
                    for r in rs[::2]: ops.append((1, lambda r=r, T=T: e.valu("v_pk_add_f32", T[r % 8:r % 8 + 2], T[r % 8:r % 8 + 2], C[2:4])))
                    for r in rs: ops.append((2, lambda r=r, T=T: e.valu("v_rcp_f32", T[r % 8], T[r % 8])))
                    for r in rs[::2]: ops.append((1, lambda r=r, G=G, T=T: e.valu("v_pk_mul_f32", G[r:r + 2], G[r:r + 2], T[r % 8:r % 8 + 2])))
                for i in range(4 * hgrp, 4 * hgrp + 4):
                    ops.append((1, lambda i=i, G=G, U=U: e.valu("v_cvt_pk_bf16_f32", U[i], G[2 * i], G[2 * i + 1])))
                def st(hgrp=hgrp, t=t, U=U):
                    e.salu("s_add_u32", sT1, sOutH, t * H_MT_STRIDE + (24 * 2048 if p == 2 else 0))
                    e.buf_store(U[4 * hgrp:4 * hgrp + 4], vLane16, sWS, sT1, offset=hgrp * 1024, flags=STF)
                ops.append((-2, st))
        return ops

    def epi_v():
        ops = []
        for r in range(2):
            for t in range(2):
                X = ACC(1, r, t)
                for hgrp in range(2):
                    for i in range(4 * hgrp, 4 * hgrp + 4):
                        ops.append((1, lambda i=i, X=X: e.valu("v_cvt_pk_bf16_f32", X[i], X[2 * i], X[2 * i + 1])))
                    for i in range(4 * hgrp, 4 * hgrp + 4):
                        ops.append((1, lambda i=i, X=X: e.valu("v_cndmask_b32", X[i], X[i], vVconst, sMask)))
                    def st(t=t, X=X, r=r, hgrp=hgrp):
                        e.salu("s_add_u32", sT1, sOutV, 2 * r * 64 * 4096 + t * 4096)
                        e.buf_store(X[4 * hgrp:4 * hgrp + 4], vLane16, sWS, sT1, offset=hgrp * 1024, flags=STF, tag="qkv")
                    st.qkv = True
                    ops.append((-2, st))
        return ops

    def epi_qk():
        ops = []
        for t in range(2):
            X = ACC(0, 0, t)
            if not typeY:
                ops.append((1, lambda t=t, X=X: e.valu("v_cvt_pk_bf16_f32", V(208 + t), X[12], X[12])))
            for r in range(16):
                if typeY and r < 12:
                    continue
                ops.append((1, lambda r=r, X=X: e.valu("v_mul_f32", X[r], sQKmul if r < 12 else vMulHi, X[r])))
            for hgrp in range(2):
                for i in range(4 * hgrp, 4 * hgrp + 4):
                    ops.append((1, lambda i=i, X=X: e.valu("v_cvt_pk_bf16_f32", X[i], X[2 * i], X[2 * i + 1])))
                def st(t=t, X=X, hgrp=hgrp):
                    if t == 1 and hgrp == 0:
                        e.salu("s_add_u32", sOutQK, sOutQK, sQKstr)
                    e.buf_store(X[4 * hgrp:4 * hgrp + 4], vLane16, sWS, sOutQK, offset=hgrp * 1024, flags=STF, tag="qkv")
                st.qkv = True
                ops.append((-2, st))
        if not typeY:
            for t in range(2):
                D = V(208 + t)
                Gv = V(210 + 2 * t, 2)
                for f in (("v_and_b32", D, "0xffff0000", D), ("v_mul_f32", D, sNL2E, D), ("v_exp_f32", D, D),
                          ("v_mov_b32", Gv[0], 0), ("v_add_f32", D, 1.0, D), ("v_rcp_f32", D, D), ("v_mov_b32", Gv[0], 0),
                          ("v_cvt_pk_bf16_f32", D, D, D),
                          ("v_and_b32", Gv[0], "0xffff0000", D), ("v_sub_f32", Gv[1], 1.0, Gv[0]),
                          ("v_cvt_pk_bf16_f32", Gv[1], Gv[1], Gv[1]), ("v_and_b32", Gv[1], "0xffff0000", Gv[1])):
                    ops.append((2 if f[0] in TRANS else 1, lambda f=f: e.valu(*f)))
            def stg():
                e.valu("v_lshlrev_b32", vX0, 3, lane)
                e.salu("s_lshl_b32", sT1, sMt, 8)
                e.salu("s_add_u32", sT1, sT1, GF - 256)
                e.salu("s_add_u32", sT0, sWn, sCg)
                e.salu("s_min_u32", sT0, sT0, 1)
                e.salu("s_lshl_b32", sT0, sT0, 15)
                e.salu("s_add_u32", sT1, sT1, sT0)
                e.raw("s_mov_b32 exec_lo, 0")
                e.buf_store(V(210, 2), vX0, sWS, sT1, offset=0, flags=STF, tag="qkv")
                e.buf_store(V(212, 2), vX0, sWS, sT1, offset=256, flags=STF, tag="qkv")
                e.raw("s_mov_b32 exec_lo, -1")
            stg.qkv = True
            ops.append((-2, stg))
        return ops

    order = (1, 0, 2) if typeY else (0, 1, 2)
    steps = [(p, ks) for p in order for ks in range(28)]
    def bchunk(p, ks):
        c, kk = ks // 4, ks % 4
        if p == 1: return (0 if typeY else 4) + c, kk * 2048
        if p == 2: return 11 + c, kk * 2048
        return (7 if typeY else 0) + c // 2, (c % 2) * 8192 + kk * 2048
    def rd(n):
        p, ks = steps[n]
        c, kk = ks // 4, ks % 4
        bn, boff = bchunk(p, ks)
        ops = []
        for t in range(2):
            ops.append(lambda t=t: e.ds_read("ds_read_b128", fA(n, t), vAr[c >> 2][kk], offset=(c & 3) * 16384 + t * 4096, tag=("t", n)))
        for i in range(1 if p == 0 else 2):
            for j in range(2):
                ops.append(lambda i=i, j=j: e.ds_read("ds_read_b64_tr_b16", fB(n, i)[2 * j:2 * j + 2], vTr,
                                                      offset=(bn % 3) * 16384 + boff + i * 8192 + j * 512, tag=("t", n)))
        return ops

    def pre(stage):
        sTS = S(52, 4)
        e.salu("s_mov_b32", sTS[3], "0x20000")
        e.salu("s_mov_b32", sTS[2], 448 * 3584)
        if stage < 2:
            e.salu("s_and_b32", sT0, sW4, 1)
            e.salu("s_cmp_eq_u32", sT0, 0)
            e.salu("s_cselect_b32", sTS[0], S(KG), S(KU))
            e.salu("s_cselect_b32", sTS[1], S(KG + 1), S(KU + 1))
        if stage == 0:
            e.salu("s_mul_i32", sT1, S(2), 21)
            e.valu("v_min_u32", vX0, 20, lane)
            e.valu("v_add_u32", vX0, sT1, vX0)
            e.salu("s_mov_b32", sT1, 43691)
            e.valu("v_mul_u32_u24", vX1, sT1, vX0)
            e.valu("v_lshrrev_b32", vX1, 19, vX1)
            e.valu("v_mul_u32_u24", vX2, 3584 - 12 * 128, vX1)
            e.valu("v_lshl_add_u32", vX2, vX0, 7, vX2)
            e.salu("s_mov_b32", sT1, 0)
            e.salu("s_cmp_lt_u32", sW4, 2)
            e.raw(f"s_cbranch_scc1 L_k12_pre{ty}")
            e.salu("s_mov_b32", sTS[2], 448 * 2688)
            e.salu("s_mov_b32", sTS[0], S(KQ)); e.salu("s_mov_b32", sTS[1], S(KQ + 1))
            e.salu("s_lshl_b32", sT1, S(2), 1)
            e.salu("s_add_u32", sT1, sT1, sT0)
            e.salu("s_mul_i32", sT1, sT1, 2688)
            e.salu("s_add_u32", sT1, sT1, 1280)
            e.valu("v_min_u32", vX0, 3, lane)
            e.valu("v_lshlrev_b32", vX2, 7, vX0)
            e.label(f"L_k12_pre{ty}")
        elif stage == 1:
            e.salu("s_lshl_b32", sT1, S(2), 1)
            e.salu("s_lshr_b32", sT0, sW4, 1)
            e.salu("s_add_u32", sT1, sT1, sT0)
            e.salu("s_mul_i32", sT1, sT1, 14)
            e.valu("v_min_u32", vX0, 13, lane)
            e.valu("v_add_u32", vX0, sT1, vX0)
            e.valu("v_lshrrev_b32", vX1, 4, vX0)
            e.valu("v_and_b32", vX0, 15, vX0)
            e.valu("v_mul_u32_u24", vX2, 3584, vX1)
            e.valu("v_lshl_add_u32", vX2, vX0, 7, vX2)
            e.salu("s_mov_b32", sT1, 12 * 128)
        else:
            e.salu("s_mov_b32", sTS[0], S(KD)); e.salu("s_mov_b32", sTS[1], S(KD + 1))
            e.salu("s_mul_i32", sT0, S(2), 49 * 128)
            e.salu("s_mul_i32", sT1, sW4, 13 * 128)
            e.salu("s_add_u32", sT1, sT0, sT1)
            e.valu("v_min_u32", vX0, 12, lane)
            e.valu("v_lshlrev_b32", vX2, 7, vX0)
        e.buf_load(V(243 + stage), vX2, sTS, sT1, offset=0)

    e.stamp(0); e.stamp(12, True)
    for st_, at in enumerate(PRES):
        if at < 0: pre(st_)
    e.barrier()
    e.stamp(1)
    for f in rd(0) + rd(1): f()
    epi, stq = [], []
    for n, (p, ks) in enumerate(steps):
        if ks == 0 and n > 0:
            e.stamp(1 + n // 28)
            prev = steps[n - 1][0]
            epi += [(6, lambda: None)] + (epi_qk() if prev == 0 else epi_v() if typeY else epi_h(1))
        for st_, at in enumerate(PRES):
            if at == n: stq.append(lambda st_=st_: pre(st_))
        nr = 1 if p == 0 else 2
        nm = 2 * nr
        plan = [[] for _ in range(nm)]
        tgt = n + 2
        if tgt < len(steps):
            r_ = rd(tgt)
            bt = bchunk(*steps[tgt])[0]
            if bt != bchunk(*steps[tgt - 1])[0]:
                def bar(tgt=tgt, bt=bt):
                    e.wait_lg_tag(("t", tgt - 1))
                    if bt == (N1 if typeY else N1X):
                        assert not any(getattr(f, "qkv", False) for _, f in epi) and not any(getattr(f, "qkv", False) for f in stq)
                        e.wait_vm_tag("qkv")
                    if bt == N1B:
                        assert not epi and not stq, (len(epi), len(stq))
                        e.raw("s_waitcnt vmcnt(0)")
                        e.vm = []
                    e.barrier()
                if tgt < 28 and nm == 2:
                    plan[1] = [bar] + r_
                elif tgt < 28:
                    plan[1] = [bar, r_[0]]; plan[2] = r_[1:4]; plan[3] = r_[4:]
                elif nm == 4:
                    plan[0] = r_[0:2]; plan[2] = [bar] + r_[2:4]; plan[3] = r_[4:]
                else:
                    plan[0] = r_[0:2]; plan[1] = [bar] + r_[2:]
            else:
                for g in range(nm):
                    k = -(-len(r_) // (nm - g))
                    plan[g] = r_[:k]; r_ = r_[k:]
        e.wait_lg_tag(("t", n))
        gi = 0
        for i in range(nr):
            for t in range(2):
                swap = typeY and p == 1
                a_, b_ = (fA(n, t), fB(n, i)) if swap else (fB(n, i), fA(n, t))
                e.mfma(ACC(p, i, t), a_, b_, 0 if ks == 0 else None)
                slots = 6 - (1 if gi == nm - 1 else 0)
                for f in plan[gi]:
                    f(); slots -= 1
                slots = min(slots, EB1 if p == 1 else 4)
                safe = (ks % 4 == 1 or (ks % 4 == 0 and gi >= 2)) if p != 0 else (n < 28 or ks % 8 in (2, 3, 4, 5))
                if stq and (safe or (QANY and p == 2 and getattr(stq[0], "qkv", False))):
                    stq.pop(0)(); slots -= 2
                while epi and (slots >= epi[0][0] or epi[0][0] == 6):
                    cost, f = epi.pop(0)
                    if cost < 0:
                        if getattr(f, "qkv", False):
                            k_ = sum(1 for x in stq if getattr(x, "qkv", False))
                            stq.sort(key=lambda x: not getattr(x, "qkv", False))
                            stq.insert(k_, f)
                        else:
                            stq.append(f)
                        continue
                    f(); slots -= cost
                    if cost == 6: break
                gi += 1
    e.stamp(4)
    e.valu("v_mov_b32", V(228), sNL2E)
    e.valu("v_mov_b32", V(229), sNL2E)
    e.valu("v_mov_b32", V(230), 1.0)
    e.valu("v_mov_b32", V(231), 1.0)
    for _, f in epi_h(2, pk=True):
        f()
    e.stamp(5)


def gen_attn(e):
    lane = vLane
    Q = [[V(8, 4), V(12, 4)], [V(16, 4), V(20, 4)]]
    K = [V(24, 4), V(28, 4)]
    Vf = [[V(32, 4), V(36, 4)], [V(40, 4), V(44, 4)]]
    Sb = [V(128, 16), V(144, 16)]
    P = [V(48, 8), V(56, 8)]
    O = [V(160, 16), V(176, 16)]
    X = V(192, 16)
    vKV, vRed, vQl = V(1), V(2), V(3)
    vT0, vT1, vT2, vT3 = V(4), V(5), V(6), V(7)
    sQg, sKg, sHead, sQblk, sOo, sKV, sCnt = S(29), S(30), S(34), S(35), S(36), S(37), S(38)
    sSave = S(40, 2)
    e.salu("s_and_b32", sQg, sW4, 1)
    e.salu("s_lshr_b32", sKg, sW4, 1)
    e.salu("s_lshr_b32", sT0, sIdx, 4)
    e.salu("s_lshl_b32", sHead, sXcd, 1)
    e.salu("s_add_u32", sHead, sHead, sT0)
    e.salu("s_and_b32", sQblk, sIdx, 15)
    e.salu("s_lshl_b32", sKV, sHead, 18)
    e.salu("s_add_u32", sKV, sKV, KVF)
    e.salu("s_lshl_b32", sT1, sQblk, 2)
    e.salu("s_lshl_b32", sT0, sQg, 1)
    e.salu("s_add_u32", sT1, sT1, sT0)
    e.salu("s_add_u32", sT1, sT1, sKg)
    e.salu("s_lshl_b32", sOo, sT1, 4)
    e.salu("s_add_u32", sOo, sOo, sHead)
    e.salu("s_lshl_b32", sOo, sOo, 11)
    e.salu("s_add_u32", sOo, sOo, OF)
    e.salu("s_lshl_b32", sT2, sKg, 13)
    e.valu("v_add_u32", vKV, sT2, vLane16)
    e.salu("s_lshl_b32", sT2, sQg, 12)
    e.salu("s_add_u32", sT2, sT2, QL)
    e.valu("v_add_u32", vQl, sT2, vLane16)
    e.salu("s_lshl_b32", sT2, sQg, 13)
    e.salu("s_add_u32", sT2, sT2, ARED)
    e.valu("v_add_u32", vRed, sT2, vLane16)
    for r in range(16):
        e.valu("v_mov_b32", O[0][r], 0)
        e.valu("v_mov_b32", O[1][r], 0)
    for r in range(4):
        e.valu("v_mov_b32", P[1][r], 0)
        e.valu("v_mov_b32", P[1][4 + r], 0)
        e.valu("v_mov_b32", Vf[1][0][r], 0)
        e.valu("v_mov_b32", Vf[1][1][r], 0)
    e.salu("s_mov_b32", sCnt, 0)

    def toff(i): return ((i >> 1) % 4) * 16384 + (i & 1) * 4096

    e.barrier()
    e.stamp(6)
    for q in range(2):
        for s_ in range(2):
            e.ds_read("ds_read_b128", Q[q][s_], vQl, offset=q * 2048 + s_ * 1024)
    e.ds_read("ds_read_b128", K[0], vKV, offset=0)
    e.ds_read("ds_read_b128", K[1], vKV, offset=1024)
    e.ds_read("ds_read_b128", Vf[0][1], vKV, offset=3072)
    e.ds_read("ds_read_b128", Vf[0][0], vKV, offset=2048)
    e.mfma(Sb[0], K[0], Q[0][0], 0)
    e.mfma(Sb[0], K[1], Q[0][1])
    e.wait_lg_all()
    e.flush_hazards()

    def unit(i, q):
        Sc, Sn = Sb[q], Sb[1 - q]
        nq = 1 - q
        def ex(a, b):
            for r in range(a, b): e.valu("v_exp_f32", Sc[r], Sc[r])
        def cv(a, b):
            for j in range(a, b): e.valu("v_cvt_pk_bf16_f32", P[q][j], Sc[2 * j], Sc[2 * j + 1])
        pi = i if q == 1 else i - 1
        if q == 0:
            rd = [(K[0], toff(i + 1)), (K[1], toff(i + 1) + 1024)]
        else:
            rd = [(Vf[(i + 1) % 2][1], toff(i + 1) + 3072), (Vf[(i + 1) % 2][0], toff(i + 1) + 2048)]
        e.mfma(Sn, K[0], Q[nq][0], 0)
        ex(0, 3)
        e.mfma(Sn, K[1], Q[nq][1])
        e.ds_read("ds_read_b128", rd[0][0], vKV, offset=rd[0][1])
        ex(3, 5); cv(0, 1)
        e.mfma(O[nq], Vf[pi % 2][0], P[nq][0:4])
        e.ds_read("ds_read_b128", rd[1][0], vKV, offset=rd[1][1])
        ex(5, 7); cv(1, 2)
        e.mfma(O[nq], Vf[pi % 2][1], P[nq][4:8])
        ex(7, 16); cv(2, 8)

    mark = len(e.lines)
    for i in (6, 7):
        for q in range(2): unit(i, q)
    del e.lines[mark:]
    e.label("L_k12_aloop")
    for i in range(8):
        for q in range(2):
            unit(i, q)
        if i % 2 == 1:
            if i == 3:
                e.raw("s_waitcnt vmcnt(0)")
            if i == 7:
                e.salu("s_add_u32", sCnt, sCnt, 1)
                e.salu("s_cmp_lt_u32", sCnt, 4)
            e.barrier()
    e.raw("s_cbranch_scc1 L_k12_aloop")
    e.mfma(O[1], Vf[1][0], P[1][0:4])
    e.mfma(O[1], Vf[1][1], P[1][4:8])
    e.stamp(7)
    e.wait_lg_all()
    e.salu("s_cmp_eq_u32", sKg, 0)
    e.raw("s_cbranch_scc1 L_k12_kg0")
    for j in range(4):
        e.ds_write("ds_write_b128", vRed, O[0][4 * j:4 * j + 4], offset=j * 1024)
    for r in range(16):
        e.valu("v_mov_b32", O[0][r], O[1][r])
    for s_ in range(2):
        for r in range(4):
            e.valu("v_mov_b32", Q[0][s_][r], Q[1][s_][r])
    e.valu("v_add_u32", vRed, 4096, vRed)
    e.raw("s_branch L_k12_kgj")
    e.label("L_k12_kg0")
    e.lg = []
    e.last = {}
    e.nop(10)
    for j in range(4):
        e.ds_write("ds_write_b128", vRed, O[1][4 * j:4 * j + 4], offset=4096 + j * 1024)
    e.label("L_k12_kgj")
    e.raw("s_waitcnt lgkmcnt(0)")
    e.lg = []
    e.last = {}
    e.barrier()
    Of, Pf, Qf = O[0], P[0], Q[0]
    for j in range(4):
        e.ds_read("ds_read_b128", X[4 * j:4 * j + 4], vRed, offset=j * 1024)
    Z = V(208, 2)
    e.valu("v_mov_b32", Z[0], 0)
    e.valu("v_mov_b32", Z[1], 0)
    e.valu("v_mov_b32", V(210), 0)
    e.valu("v_mov_b32", V(211), 0)
    for r in range(0, 16, 2):
        e.valu("v_pk_add_f32", Of[r:r + 2], Of[r:r + 2], X[r:r + 2])
    e.valu("v_mov_b32", vT0, Of[12])
    e.valu("v_mov_b32", vT1, Of[12])
    for r in range(0, 16, 2):
        e.valu("v_pk_fma_f32", Z, Of[r:r + 2], V(210, 2), Z)
        if r == 2:
            e.valu("v_permlane32_swap_b32", vT0, vT1)
    e.valu("v_add_f32", vT2, Z[0], Z[1])
    e.salu("s_mov_b32", sT0, hex(f2u(L_LO)))
    e.salu("s_mov_b32", sT1, hex(f2u(L_HI)))
    e.valu("v_add_f32", vT2, vT2, vT1)
    e.valu("v_cmp_le_f32", "vcc", sT0, vT2)
    e.valu("v_cmp_ge_f32", sSave, sT1, vT2)
    e.nop(1)
    e.salu("s_and_b64", "vcc", "vcc", sSave)
    e.raw("s_cmp_eq_u64 vcc, -1")
    e.raw("s_cbranch_scc0 L_k12_slow")
    e.label("L_k12_store")
    e.last = {}
    e.nop(2)
    e.valu("v_rcp_f32", vT0, vT1)
    e.valu("v_cmp_gt_u32", "vcc", 32, lane)
    e.valu("v_mov_b32", vT2, 0)
    e.valu("v_mov_b32", vT1, vT0)
    e.valu("v_cndmask_b32", vT2, vT2, vT0)
    e.valu("v_mov_b32", vT3, vT2)
    for r in range(0, 16, 2):
        e.valu("v_pk_mul_f32", Of[r:r + 2], Of[r:r + 2], V(4, 2) if r < 12 else V(6, 2))
    for j in range(8):
        e.valu("v_cvt_pk_bf16_f32", Pf[j], Of[2 * j], Of[2 * j + 1])
    e.buf_store(Pf[0:4], vLane16, sWS, sOo, offset=0, flags=STF)
    e.buf_store(Pf[4:8], vLane16, sWS, sOo, offset=1024, flags=STF)
    e.stamp(8)
    if FUSE3:
        gen_phase3_heavy(e)
    if Emitter.STAMPS:
        e.raw("s_waitcnt vmcnt(0)")
    e.stamp(9); e.stamp(13, True)
    e.dump_stamps(sWS, 0, sWave)
    e.raw("s_endpgm")
    e.label("L_k12_slow")
    e.lg, e.vm, e.last = [], [], {}
    vM = vT3
    Sc = Sb[0]
    e.valu("v_mov_b32", vM, "0xff800000")
    for r in range(16):
        e.valu("v_mov_b32", Of[r], 0)
    e.salu("s_mov_b32", sCnt, 0)
    e.salu("s_mov_b32", sT2, sKV)
    e.label("L_k12_slow_loop")
    e.buf_load(K[0], vLane16, sWS, sT2, offset=0, flags=LDF)
    e.buf_load(K[1], vLane16, sWS, sT2, offset=1024, flags=LDF)
    e.buf_load(Vf[0][0], vLane16, sWS, sT2, offset=2048, flags=LDF)
    e.buf_load(Vf[0][1], vLane16, sWS, sT2, offset=3072, flags=LDF)
    e.mfma(Sc, K[0], Qf[0], 0)
    e.mfma(Sc, K[1], Qf[1])
    e.valu("v_max_f32", vT0, Sc[0], Sc[1])
    for r in range(2, 16, 2):
        e.valu("v_max3_f32", vT0, vT0, Sc[r], Sc[r + 1])
    e.valu("v_mov_b32", vT1, vT0)
    e.valu("v_permlane32_swap_b32", vT0, vT1)
    e.valu("v_max3_f32", vT0, vT0, vT1, vM)
    e.valu("v_sub_f32", vT1, vM, vT0)
    e.valu("v_exp_f32", vT1, vT1)
    e.valu("v_mov_b32", vM, vT0)
    for r in range(16):
        e.valu("v_sub_f32", Sc[r], Sc[r], vM)
    for r in range(16):
        e.valu("v_exp_f32", Sc[r], Sc[r])
    for r in range(16):
        e.valu("v_mul_f32", Of[r], Of[r], vT1)
    for j in range(8):
        e.valu("v_cvt_pk_bf16_f32", Pf[j], Sc[2 * j], Sc[2 * j + 1])
    e.mfma(Of, Vf[0][0], Pf[0:4])
    e.mfma(Of, Vf[0][1], Pf[4:8])
    e.salu("s_add_u32", sT2, sT2, 4096)
    e.salu("s_add_u32", sCnt, sCnt, 1)
    e.flush_hazards()
    e.salu("s_cmp_lt_u32", sCnt, 64)
    e.raw("s_cbranch_scc1 L_k12_slow_loop")
    e.valu("v_mov_b32", vT0, Of[12])
    e.valu("v_mov_b32", vT1, Of[12])
    e.valu("v_permlane32_swap_b32", vT0, vT1)
    e.raw("s_branch L_k12_store")


def gen_phase3_heavy(e):
    lane = vLane
    sU, sTt, sMt64, sNt, sSt = S(29), S(30), S(34), S(35), S(36)
    vRr, vTr, vOr, vSt = V(1), V(2), V(3), V(4)
    vG = V(6, 2)
    Bx = [V(64 + 16 * w, 16) for w in range(4)]
    ACC = V(128, 16)
    NB = 4
    def OFr(k): return V(8 + (k % NB) * 4, 4)
    def WFr(k): return V(24 + (k % NB) * 4, 4)
    e.salu("s_cmp_ge_u32", sIdx, 28)
    e.raw("s_cbranch_scc0 L_k12_h3")
    e.raw("s_waitcnt vmcnt(0)")
    e.barrier()
    e.raw("s_branch L_k12_h3end")
    e.label("L_k12_h3")
    e.salu("s_lshl_b32", sT0, sW4, 12)
    e.salu("s_add_u32", sT0, sT0, WR)
    e.valu("v_add_u32", vRr, sT0, vLane16)
    def rdB():
        for w in range(4):
            for j in range(4):
                e.ds_read("ds_read_b128", Bx[w][4 * j:4 * j + 4], vRr, offset=w * 16384 + j * 1024)
    if not DEFER: rdB()
    e.salu("s_mul_i32", sT0, sIdx, 37)
    e.salu("s_lshr_b32", sT0, sT0, 8)
    e.salu("s_mul_i32", sT1, sT0, 7)
    e.salu("s_sub_u32", sNt, sIdx, sT1)
    e.salu("s_lshl_b32", sMt64, sXcd, 2)
    e.salu("s_add_u32", sMt64, sMt64, sT0)
    e.salu("s_and_b32", sU, sW4, 1)
    e.salu("s_lshr_b32", sTt, sW4, 1)
    srd(e, sOut, KOUT, 2048 * 896)
    e.salu("s_lshl_b32", sT0, sMt64, 1)
    e.salu("s_add_u32", sT0, sT0, sTt)
    e.salu("s_mul_i32", sSt, sT0, 32 * 896)
    e.salu("s_lshl_b32", sT2, sNt, 1)
    e.salu("s_add_u32", sT2, sT2, sU)
    e.salu("s_lshl_b32", sT2, sT2, 6)
    e.salu("s_add_u32", sSt, sSt, sT2)
    e.salu("s_lshl_b32", S(37), sT0, 8)
    e.salu("s_add_u32", S(37), S(37), GF)
    e.valu("v_and_b32", vX0, 31, lane)
    e.valu("v_lshlrev_b32", V(5), 3, vX0)
    e.valu("v_mul_u32_u24", vSt, 896, vX0)
    e.valu("v_lshrrev_b32", vX1, 5, lane)
    e.valu("v_lshl_add_u32", vSt, vX1, 4, vSt)
    e.valu("v_bfe_u32", vX0, lane, 2, 2)
    e.valu("v_lshl_add_u32", vX0, vX1, 2, vX0)
    e.valu("v_bfe_u32", vX2, lane, 4, 1)
    e.valu("v_lshlrev_b32", vX2, 5, vX2)
    e.valu("v_and_b32", vX1, 3, lane)
    e.valu("v_lshl_add_u32", vX2, vX1, 3, vX2)
    e.valu("v_lshl_add_u32", vX2, vX0, 7, vX2)
    e.valu("v_bfe_u32", vX1, lane, 3, 1)
    e.valu("v_xor_b32", vX1, sU, vX1)
    e.valu("v_lshl_add_u32", vTr, vX1, 6, vX2)
    e.salu("s_lshl_b32", sT0, sTt, 15)
    e.salu("s_add_u32", sT0, sT0, WR)
    e.valu("v_add_u32", vOr, sT0, vLane16)
    def rd(k):
        e.ds_read("ds_read_b128", OFr(k), vOr, offset=k * 1024, tag=("k", k))

    def rdw(k):
        hd, s_ = k // 2, k % 2
        for j in range(2):
            e.ds_read("ds_read_b64_tr_b16", WA(k)[2 * j:2 * j + 2], vTr, offset=(28 * hd + 16 * s_ + 8 * j) * 128, tag=("w", k))

    def WA(k): return V(144 + 4 * k, 4) if k < 26 else V(40 + 4 * (k - 26), 4)
    def OFr(k): return V(8 + (k % 8) * 4, 4)
    if not DEFER: e.wait_lg_all()
    e.raw("s_waitcnt vmcnt(0)")
    e.vm = []
    e.barrier()
    e.buf_load(vG, V(5), sWS, S(37), offset=0, flags=LDF)
    for k in range(32):
        rdw(k)
    if DEFER:
        e.barrier()
        rdB()
        e.wait_lg_all()
        e.barrier()
    for r in range(0, 16, 2):
        e.valu("v_pk_add_f32", Bx[0][r:r + 2], Bx[0][r:r + 2], Bx[1][r:r + 2])
        e.valu("v_pk_add_f32", Bx[2][r:r + 2], Bx[2][r:r + 2], Bx[3][r:r + 2])
    for r in range(0, 16, 2):
        e.valu("v_pk_add_f32", Bx[0][r:r + 2], Bx[0][r:r + 2], Bx[2][r:r + 2])
    for j in range(8):
        e.valu("v_cvt_pk_bf16_f32", Bx[1][j], Bx[0][2 * j], Bx[0][2 * j + 1])
    for j in range(8):
        e.valu("v_lshlrev_b32", Bx[0][2 * j], 16, Bx[1][j])
        e.valu("v_and_b32", Bx[0][2 * j + 1], "0xffff0000", Bx[1][j])
    for r in range(16):
        e.valu("v_mul_f32", Bx[0][r], Bx[0][r], vG[1])
    e.wait_lg_all()
    for c in range(4):
        e.barrier()
        if c == 0: e.stamp(10)
        ks = list(range(8 * c, 8 * c + 8))
        for k in ks:
            rd(k)
        for k in ks:
            e.mfma(ACC, WA(k), OFr(k), 0 if k == 0 else None)
    e.stamp(11)
    for r in range(16):
        e.valu("v_fmac_f32", Bx[0][r], ACC[r], vG[0], dst_is_read=True)
    Bv = Bx[3]
    for j in range(8):
        e.valu("v_cvt_pk_bf16_f32", Bv[j], Bx[0][2 * j], Bx[0][2 * j + 1])
    for kk in range(2):
        e.valu("v_permlane32_swap_b32", Bv[4 * kk], Bv[4 * kk + 2])
        e.valu("v_permlane32_swap_b32", Bv[4 * kk + 1], Bv[4 * kk + 3])
        e.buf_store(Bv[4 * kk:4 * kk + 4], vSt, sOut, sSt, offset=kk * 32)
    e.label("L_k12_h3end")
    e.last = {}


def gen_helper2(e):
    lane = vLane
    sHead, sQblk, sKV, sLdsKV = S(29), S(30), S(34), S(35)
    sMt64, sNt, sLdsW, sWoff, sHoff, sHoff1 = S(36), S(37), S(38), S(39), S(40), S(41)
    vFl = V(14)
    e.salu("s_lshr_b32", sT0, sIdx, 4)
    e.salu("s_lshl_b32", sHead, sXcd, 1)
    e.salu("s_add_u32", sHead, sHead, sT0)
    e.salu("s_and_b32", sQblk, sIdx, 15)
    e.salu("s_lshl_b32", sLdsKV, sW4, 12)
    e.salu("s_lshl_b32", sKV, sHead, 18)
    e.salu("s_add_u32", sKV, sKV, KVF)
    e.salu("s_add_u32", sKV, sKV, sLdsKV)
    e.salu("s_mul_i32", sT0, sIdx, 37)
    e.salu("s_lshr_b32", sT0, sT0, 8)
    e.salu("s_mul_i32", sT1, sT0, 7)
    e.salu("s_sub_u32", sNt, sIdx, sT1)
    e.salu("s_lshl_b32", sMt64, sXcd, 2)
    e.salu("s_add_u32", sMt64, sMt64, sT0)
    e.salu("s_min_u32", sMt64, sMt64, 31)
    def dma_KV(s):
        e.salu("s_add_u32", "m0", sLdsKV, (s % 4) * 16384)
        e.salu("s_add_u32", sT0, sKV, s * 16384)
        for i in range(4):
            e.buf_load_lds(vLane16, sWS, sT0, offset=i * 1024, tag=("KV", s), flags=LDF)

    def first_loads():
        dma_KV(0)
        e.salu("s_lshl_b32", sT0, sHead, 6)
        e.salu("s_lshl_b32", sT1, sQblk, 2)
        e.salu("s_add_u32", sT0, sT0, sT1)
        e.salu("s_add_u32", sT0, sT0, sW4)
        e.salu("s_lshl_b32", sT0, sT0, 11)
        e.salu("s_lshl_b32", sT1, sW4, 11)
        e.salu("s_add_u32", "m0", sT1, QL)
        if QF: e.salu("s_add_u32", sT0, sT0, QF)
        else: e.nop(1)
        for i in range(2):
            e.buf_load_lds(vLane16, sWS, sT0, offset=i * 1024, tag=("KV", 0), flags=LDF)
        dma_KV(1); dma_KV(2)

    gemm_setup(e, sMt64, sNt, sLdsW, sWoff, sHoff)
    e.raw(f"v_mov_b32 v8, {SIG1}")
    e.raw(f"v_not_b32 v9, {sNonce}")
    e.raw("ds_write_b32 v8, v9")
    e.raw("s_waitcnt vmcnt(0) lgkmcnt(0)")
    e.barrier()
    if TPRIO < 3: e.raw(f"s_setprio {TPRIO}")
    e.stamp(0)
    e.salu("s_cmp_eq_u32", sW4, 1)
    e.raw("s_cbranch_scc1 L_k12_pl")
    e.salu("s_cmp_lg_u32", sW4, 0)
    e.raw("s_cbranch_scc1 L_k12_wl")
    flag_store(e, F1B)
    e.label("L_k12_wl")
    e.salu("s_mov_b32", sT2, 0)
    e.label("L_k12_wl2")
    e.raw("ds_read_b32 v9, v8")
    e.salu("s_add_u32", sT2, sT2, 1)
    e.raw("s_waitcnt lgkmcnt(0)")
    e.raw("v_readfirstlane_b32 s33, v9")
    e.salu("s_cmp_gt_u32", sT2, SPIN * 16)
    e.raw("s_cbranch_scc1 L_k12_p1ok")
    e.raw(f"s_cmp_eq_u32 s33, {sNonce}")
    e.raw("s_cbranch_scc1 L_k12_p1ok")
    e.raw(f"s_sleep {WSL}")
    e.raw("s_branch L_k12_wl2")
    e.label("L_k12_pl")
    e.salu("s_mov_b32", sT0, F1)
    poll(e, "L_k12_p1", vFl, sWS, sT0, 33, V(15), sNonce)
    e.raw(f"v_mov_b32 v9, {sNonce}")
    e.raw("ds_write_b32 v8, v9")
    e.label("L_k12_p1ok")
    e.vm, e.last = [], {}
    e.stamp(1)
    if S1ST: e.stamp(7, True)
    first_loads()
    st0 = list(e.vm)
    e.raw(f"s_setprio {HPRIO}")
    e.salu("s_cmp_ge_u32", sIdx, 28)
    e.raw("s_cbranch_scc1 L_k12_nogemm")
    helper_loop(e, True, dma_KV, sMt64, sNt, sLdsW, sWoff, sHoff, sHoff1)
    e.raw("s_endpgm")
    e.label("L_k12_nogemm")
    e.lg, e.vm, e.last = [], list(st0), {}
    helper_loop(e, False, dma_KV, sMt64, sNt, sLdsW, sWoff, sHoff, sHoff1)
    e.raw("s_endpgm")


def gemm_setup(e, sMt64, sNt, sLdsW, sWoff, sHoff):
    lane = vLane
    vW = [V(2), V(3), V(4), V(5)]
    vTr = [V(6), V(7)]
    vRw, vRr, vF2 = V(11), V(12), V(13)
    sWl, sHl = S(42), S(43)
    srd(e, sWd, KD, 1792 * 896)
    e.valu("v_lshrrev_b32", vX0, 3, lane)
    e.valu("v_bfe_u32", vX1, lane, 2, 1)
    e.valu("v_bfe_u32", vX2, lane, 4, 1)
    e.valu("v_xor_b32", vX1, vX1, vX2)
    e.valu("v_mul_u32_u24", vW[0], 896, vX0)
    e.valu("v_lshl_add_u32", vW[0], vX1, 6, vW[0])
    e.valu("v_and_b32", vX1, 3, lane)
    e.valu("v_lshl_add_u32", vW[0], vX1, 4, vW[0])
    for i in range(1, 4):
        e.valu("v_add_u32", vW[i], i * (8 * 896 - 1024), vW[0])
    e.salu("s_lshl_b32", sLdsW, sW4, 14)
    e.salu("s_add_u32", sLdsW, sLdsW, WR)
    e.salu("s_mul_i32", sWoff, sW4, 6 * 32 * 896)
    e.salu("s_lshl_b32", sT0, sNt, 7)
    e.salu("s_add_u32", sWoff, sWoff, sT0)
    e.salu("s_lshl_b32", sT0, sW4, 1)
    e.salu("s_add_u32", sT0, sT0, 18)
    e.salu("s_mul_i32", sWl, sT0, 32 * 896)
    e.salu("s_add_u32", sWl, sWl, sWoff)
    e.salu("s_lshl_b32", sHl, sT0, 11)
    e.salu("s_mul_i32", sHoff, sMt64, 2 * H_MT_STRIDE)
    e.salu("s_mul_i32", sT0, sW4, 6 * 2048)
    e.salu("s_add_u32", sHoff, sHoff, sT0)
    e.salu("s_add_u32", sHoff, sHoff, HF)
    e.salu("s_add_u32", sHl, sHl, sHoff)
    e.valu("v_lshrrev_b32", vX1, 5, lane)
    e.valu("v_bfe_u32", vX0, lane, 2, 2)
    e.valu("v_lshl_add_u32", vX0, vX1, 2, vX0)
    e.valu("v_bfe_u32", vX2, lane, 4, 1)
    e.valu("v_lshlrev_b32", vX2, 5, vX2)
    e.valu("v_and_b32", vX1, 3, lane)
    e.valu("v_lshl_add_u32", vX2, vX1, 3, vX2)
    e.valu("v_lshl_add_u32", vX2, vX0, 7, vX2)
    e.valu("v_bfe_u32", vX1, lane, 3, 1)
    e.valu("v_lshl_add_u32", vTr[0], vX1, 6, vX2)
    e.valu("v_xor_b32", vTr[1], 64, vTr[0])
    e.valu("v_add_u32", vTr[0], sLdsW, vTr[0])
    e.valu("v_add_u32", vTr[1], sLdsW, vTr[1])
    e.valu("v_add_u32", vRw, sLdsW, vLane16)
    e.salu("s_lshl_b32", sT0, sW4, 12)
    e.salu("s_add_u32", sT0, sT0, WR)
    e.valu("v_add_u32", vRr, sT0, vLane16)
    e.salu("s_lshr_b32", sT0, sMt64, 1)
    e.valu("v_and_b32", vX0, 15, lane)
    e.valu("v_lshl_add_u32", vF2, vX0, 4, sT0)
    e.valu("v_lshlrev_b32", vF2, 7, vF2)


def helper_loop(e, gemm, dma_KV, sMt64, sNt, sLdsW, sWoff, sHoff, sHoff1):
    lane = vLane
    g = int(gemm)
    ND = 4
    ACC = [[V(80, 16), V(96, 16)], [V(112, 16), V(128, 16)]]
    def HF_(s, st, t): return V(16 + ((s % ND) * 4 + st * 2 + t) * 4, 4)
    def WF(st, u): return V(144 + (st * 2 + u) * 4, 4)
    vW = [V(2), V(3), V(4), V(5)]
    vTr = [V(6), V(7)]
    vRw, vRr, vF2 = V(11), V(12), V(13)
    sWl, sHl = S(42), S(43)
    def dma_Wo(q):
        if q == 0:
            srd(e, sWo, KO, 448 * 896)
        e.salu("s_mul_i32", sT1, sW4, 32 * 896)
        e.salu("s_lshl_b32", sT0, sNt, 7)
        e.salu("s_add_u32", sT1, sT1, sT0)
        e.salu("s_lshl_b32", sT2, sW4, 12)
        e.salu("s_add_u32", "m0", sT2, q * 16384)
        e.salu("s_add_u32", sT0, sT1, q * 128 * 896)
        for i in range(4):
            e.buf_load_lds(vW[i], sWo, sT0, offset=i * 1024, tag="Wo")

    def W_ops(s):
        def w(i):
            if i == 0:
                e.salu("s_add_u32", "m0", sLdsW, (s % ND) * 4096)
                e.salu("s_add_u32", sT2, sWoff if s < 6 else sWl, s * 32 * 896)
            e.buf_load_lds(vW[i], sWd, sT2, offset=i * 1024, tag=("W", s))
        return [lambda i=i: w(i) for i in range(4)]

    def H_ops(s):
        def h(st, t):
            e.salu("s_add_u32", sT1, sHoff if s < 6 else sHl, s * 2048 + t * H_MT_STRIDE)
            e.buf_load(HF_(s, st, t), vLane16, sWS, sT1, offset=st * 1024, flags=LDF)
        return [lambda st=st, t=t: h(st, t) for st in range(2) for t in range(2)]

    def compute(s, side):
        e.wait_vm_tag(("W", s))
        for st in range(2):
            for u in range(2):
                for j in range(2):
                    e.ds_read("ds_read_b64_tr_b16", WF(st, u)[2 * j:2 * j + 2], vTr[u],
                              offset=(s % ND) * 4096 + st * 2048 + j * 1024)
        if side: side.pop(0)()
        for st in range(2):
            for u in range(2):
                for t in range(2):
                    e.mfma(ACC[u][t], WF(st, u), HF_(s, st, t), 0 if (s == 0 and st == 0) else None)
                    if side: side.pop(0)()

    P2 = POLL2
    comp = {C0 + s: [s] for s in range(6)}
    late = list(range(6, 14 - DEFER))
    i0 = max(P2 + 2, C0 + 6)
    LASTI = 15 if FUSE3 else 14
    for i in range(i0, LASTI):
        left = LASTI - i
        k = -(-len(late) // left) if len(late) > left and i >= 12 else 1
        comp.setdefault(i, [])
        comp[i] += late[:k]; late = late[k:]
    assert not late, late
    done_at = {s: i for i, l in comp.items() for s in l}
    todo = [(s, k) for s in range(14) for k in ("H", "W")]

    def check(name, base, nl):
        e.valu("v_cmp_ne_u32", "vcc", sNonce, V(8))
        e.nop(1)
        e.raw(f"s_and_b32 s33, vcc_lo, {hex((1 << nl) - 1)}")
        e.raw(f"s_cbranch_scc0 {name}ok")
        keep = list(e.vm)
        e.salu("s_mov_b32", sT0, base)
        poll(e, name, vF2, sWS, sT0, nl, V(8), sNonce)
        e.label(name + "ok")
        e.vm = keep
        e.last = {}

    e.wait_vm_tag(("KV", 1))
    e.stamp(2)
    e.barrier()
    for i in range(16):
        if i in (4, 8, 12): e.stamp(2 + i // 4)
        if i + 3 <= 15:
            dma_KV(i + 3)
        if i == 2:
            flag_store(e, F2)
        if i == 3 and gemm:
            e.valu("v_mov_b32", V(248), SIG + 64)
            e.valu("v_not_b32", V(247), sNonce)
            e.ds_write("ds_write_b32", V(248), V(247))
        if gemm:
            if i in (C0 - 2, P2 - 1):
                e.salu("s_mov_b32", sT0, F1B if i == C0 - 2 else F2)
                e.buf_load(V(8), vF2, sWS, sT0, offset=0, flags=" sc1")
            if i == C0 - 1:
                check("L_k12_p1b", F1B, 12)
            if i == P2:
                e.stamp(10)
                check("L_k12_p2", F2, 16)
                e.stamp(11)
            side = []
            budget = (3 if i < 13 else 4) if not DEFER else BUD
            for (s, k) in list(todo):
                if budget == 0: break
                ok = (s < ND or done_at[s - ND] < i) and not (k == "H" and (i < C0 - 1 or (s >= 6 and i < P2))) and not (k == "W" and s >= 2 and i < 1)
                if ok:
                    side += H_ops(s) if k == "H" else W_ops(s)
                    todo.remove((s, k)); budget -= 1
            for s in comp.get(i, []):
                compute(s, side)
            while side: side.pop(0)()
            if i == LASTI and not DEFER:
                assert not todo
                for u in range(2):
                    for t in range(2):
                        for j in range(4):
                            e.ds_write("ds_write_b128", vRw, ACC[u][t][4 * j:4 * j + 4],
                                       offset=(t * 2 + u) * 4096 + j * 1024)
                e.wait_lg_all()
                if not FUSE3: e.raw("s_setprio 2")
            if i == 15 and not FUSE3:
                X = [V(16 + 16 * w, 16) for w in range(4)]
                for w in range(4):
                    for j in range(4):
                        e.ds_read("ds_read_b128", X[w][4 * j:4 * j + 4], vRr, offset=w * 16384 + j * 1024)
                for r in range(16):
                    e.valu("v_add_f32", X[0][r], X[0][r], X[1][r])
                    e.valu("v_add_f32", X[2][r], X[2][r], X[3][r])
                for r in range(16):
                    e.valu("v_add_f32", X[0][r], X[0][r], X[2][r])
                for j in range(8):
                    e.valu("v_cvt_pk_bf16_f32", X[1][j], X[0][2 * j], X[0][2 * j + 1])
                e.salu("s_lshr_b32", sT0, sW4, 1)
                e.salu("s_lshl_b32", sT1, sMt64, 1)
                e.salu("s_add_u32", sT0, sT0, sT1)
                e.salu("s_mul_i32", sT0, sT0, 14)
                e.salu("s_and_b32", sT1, sW4, 1)
                e.salu("s_add_u32", sT0, sT0, sT1)
                e.salu("s_lshl_b32", sT1, sNt, 1)
                e.salu("s_add_u32", sT0, sT0, sT1)
                e.salu("s_lshl_b32", sT0, sT0, 11)
                e.salu("s_add_u32", sT0, sT0, BF)
                e.buf_store(X[1][0:4], vLane16, sWS, sT0, offset=0, flags=STF)
                e.buf_store(X[1][4:8], vLane16, sWS, sT0, offset=1024, flags=STF)
        if i + 2 <= 15:
            e.wait_vm_tag(("KV", i + 2))
        if i == 13 and not FUSE3:
            srd(e, sWo, KO, 448 * 896)
            e.salu("s_lshl_b32", sT0, sIdx, 2)
            e.salu("s_add_u32", sT0, sT0, sW4)
            e.salu("s_mul_i32", sT0, sT0, 25 * 128)
            e.valu("v_min_u32", vX0, 24, lane)
            e.valu("v_lshlrev_b32", vX0, 7, vX0)
            e.buf_load(V(10), vX0, sWo, sT0, offset=0)
        if FUSE3 and gemm and i >= 13:
            dma_Wo(i - 13)
        if i < 15 or FUSE3:
            e.barrier()
    if FUSE3:
        sHead, sQblk = S(29), S(30)
        e.barrier()
        if gemm:
            assert not todo
            dma_Wo(3)
            dl = list(range(14 - DEFER, 14))
            for s_ in dl[:DSPLIT]:
                compute(s_, [])
            e.wait_vm_all()
        e.raw("s_setprio 3")
        e.barrier()
        flag_store(e, F3, sQblk, sHead)
        if gemm and DEFER:
            for s_ in dl[DSPLIT:]:
                compute(s_, [])
            for u in range(2):
                for t in range(2):
                    for j in range(4):
                        e.ds_write("ds_write_b128", vRw, ACC[u][t][4 * j:4 * j + 4],
                                   offset=(t * 2 + u) * 4096 + j * 1024)
            e.wait_lg_all()
            e.barrier()
            e.barrier()
        if not gemm:
            e.salu("s_sub_u32", sT0, S(2), sW4)
            e.salu("s_cmp_lg_u32", sT0, 255)
            e.raw("s_cbranch_scc1 L_k12_nadv")
            e.valu("v_lshlrev_b32", vF2, 7, lane)
            for j in range(4):
                e.salu("s_mov_b32", sT0, F2 + j * 8192)
                poll(e, f"L_k12_pc{j}", vF2, sWS, sT0, 64, V(15), sNonce)
            e.salu("s_mov_b32", sT0, NONCE)
            e.raw("s_mov_b64 exec, 1")
            e.buf_store(V(9), V(249), sWS, sT0, offset=0, flags=" sc1")
            e.raw("s_mov_b64 exec, -1")
            e.label("L_k12_nadv")
        if gemm:
            if not S1ST: e.stamp(6, True)
            e.salu("s_lshr_b32", sT0, sMt64, 1)
            e.salu("s_lshl_b32", sT0, sT0, 11)
            e.salu("s_add_u32", sT0, sT0, F3)
            e.valu("v_lshlrev_b32", vF2, 7, lane)
            e.raw(f"v_mov_b32 v8, {SIG + 64}")
            e.salu("s_cmp_lg_u32", sW4, 1)
            e.raw("s_cbranch_scc1 L_k12_w3")
            poll(e, "L_k12_p3", vF2, sWS, sT0, 16, V(15), sNonce)
            e.raw(f"v_mov_b32 v9, {sNonce}")
            e.raw("ds_write_b32 v8, v9")
            e.raw("s_branch L_k12_p3ok")
            e.label("L_k12_w3")
            e.salu("s_mov_b32", sT2, 0)
            e.label("L_k12_w3b")
            e.raw("ds_read_b32 v9, v8")
            e.salu("s_add_u32", sT2, sT2, 1)
            e.raw("s_waitcnt lgkmcnt(0)")
            e.raw("v_readfirstlane_b32 s33, v9")
            e.salu("s_cmp_gt_u32", sT2, SPIN * 16)
            e.raw("s_cbranch_scc1 L_k12_p3ok")
            e.raw(f"s_cmp_eq_u32 s33, {sNonce}")
            e.raw("s_cbranch_scc1 L_k12_p3ok")
            e.raw("s_sleep 1")
            e.raw("s_branch L_k12_w3b")
            e.label("L_k12_p3ok")
            e.vm, e.last = [], {}
            if not S1ST: e.stamp(7, True)
            e.salu("s_lshr_b32", sT0, sW4, 1)
            e.salu("s_lshl_b32", sT0, sT0, 15)
            e.salu("s_and_b32", sT1, sW4, 1)
            e.salu("s_lshl_b32", sT1, sT1, 12)
            e.salu("s_add_u32", sT2, sT0, sT1)
            e.salu("s_lshl_b32", sT1, sMt64, 16)
            e.salu("s_add_u32", sT1, sT1, sT2)
            e.salu("s_add_u32", sT1, sT1, OF)
            for c in range(4):
                e.salu("s_add_u32", "m0", sT2, WR + c * 8192)
                e.salu("s_add_u32", sT0, sT1, c * 8192)
                for i in range(4):
                    e.buf_load_lds(vLane16, sWS, sT0, offset=i * 1024, tag=("O", c), flags=LDF)
                if c >= OLEAD:
                    e.wait_vm_tag(("O", c - OLEAD))
                    e.barrier()
            for c in range(4 - OLEAD, 4):
                e.wait_vm_tag(("O", c))
                e.barrier()
    e.stamp(9); e.stamp(13, True)
    e.dump_stamps(sWS, 0, sWave)


K12_DESC = dict(name=KNAME, vgpr=256, acc=256, sgpr=96, grid=256, block=512, lds=LDS)
```

```python
from emit import *
from layout import *
import os
import struct

ROT1 = int(os.environ.get('ROT1', '1'))
STF = ' sc1'
LDF = ' sc1'
EB1 = int(os.environ.get('EB1', '3'))
N1 = int(os.environ.get('N1', '13'))
N1B = int(os.environ.get('N1B', '17'))
N1X = int(os.environ.get('N1X', '9'))
PRE = int(os.environ.get('PRE', '1'))
QANY = int(os.environ.get('QANY', '1'))
PRES = eval(os.environ.get('PRES', '(4, 24, 44)'))
C0 = int(os.environ.get('C0', '2'))
POLL2 = int(os.environ.get('POLL2', '6'))
SPIN = 1 << 17
XORD = int(os.environ.get('XORD', '0'))
EARLYP = int(os.environ.get('EARLYP', '1'))
MAP = int(os.environ.get('MAP', '0'))
DSPLIT = int(os.environ.get('DSPLIT', '0'))
BUD = int(os.environ.get('BUD', '2'))
DEFER = int(os.environ.get('DEFER', '4'))
S1ST = int(os.environ.get('S1ST', '0'))
TPRIO = int(os.environ.get('TPRIO', '0'))
WSL = int(os.environ.get('WSL', '2'))
LP0 = int(os.environ.get('LP0', '99'))
OLEAD = int(os.environ.get('OLEAD', '3'))
FUSE3 = int(os.environ.get('FUSE3', '1'))
KOUT = 92
KNAME = "gated_mix__softmax_full_mha__swiglu_ffn__prompt_kernel" if FUSE3 else "k12_kernel"
sOut = S(12, 4)
SLEEP = int(os.environ.get('SLEEP', '4'))
HPRIO = int(os.environ.get('HPRIO', '0'))

LOG2E = 1.4426950408889634
QSCALE = (28 ** -0.5) * LOG2E
L_LO = 2.0 ** -50
L_HI = 2.0 ** 60


def f2u(x):
    return struct.unpack("<I", struct.pack("<f", x))[0]


sX, sWg, sWu, sWq, sWS = S(4, 4), S(8, 4), S(12, 4), S(16, 4), S(20, 4)
sWd, sGw, sDbg, sWo = S(64, 4), S(60, 4), S(44, 4), S(8, 4)
sWave, sMblk, sCg, sW4 = S(24), S(25), S(26), S(28)
sT0, sT1, sT2 = S(32), S(33), S(31)
sRot = S(3)
sXcd, sIdx = S(68), S(69)
KX, KQ, KO, KG, KU, KD, KGW, KDBG, KWS = 72, 74, 76, 80, 82, 84, 86, 88, 90

BR = 114688
WR = 65536
QL = 65536 + 8192
SIG = 131072
SIG1 = 49152
ARED = 147456
LDS = 163840
vX0, vX1, vX2, vLane, vLane16 = V(250), V(251), V(252), V(253), V(254)


def srd(e, s, lo, size):
    e.salu("s_mov_b32", s[0], S(lo))
    e.salu("s_mov_b32", s[1], S(lo + 1))
    e.salu("s_mov_b32", s[2], size)
    e.salu("s_mov_b32", s[3], "0x20000")


def gen_k12(e):
    e.label(KNAME)
    e.salu("s_cmp_ge_u32", S(2), 256)
    e.raw("s_cbranch_scc1 L_k12_end")
    e.s_load(S(72, 4), S(0, 2), 0)
    e.s_load(S(76, 2), S(0, 2), 16)
    e.s_load(S(80, 8), S(0, 2), 32)
    e.s_load(S(88, 4), S(0, 2), 72)
    e.s_load(S(92, 2), S(0, 2), 64)
    e.salu("s_and_b32", sXcd, S(2), 7)
    e.salu("s_lshr_b32", sIdx, S(2), 3)
    if MAP == 0:
        e.salu("s_and_b32", sMblk, sXcd, 1)
        e.salu("s_lshl_b32", sMblk, sMblk, 3)
        e.salu("s_and_b32", sRot, sIdx, 7)
        e.salu("s_add_u32", sMblk, sMblk, sRot)
        e.salu("s_lshr_b32", sT0, sXcd, 1)
        e.salu("s_lshr_b32", sT1, sIdx, 3)
        e.salu("s_mul_i32", sCg, sT0, 3)
        e.salu("s_add_u32", sCg, sCg, sT1)
        e.salu("s_add_u32", sT0, sT0, 12)
        e.salu("s_cmp_eq_u32", sT1, 3)
        e.salu("s_cselect_b32", sCg, sT0, sCg)
        if ROT1:
            e.salu("s_lshl_b32", sT1, sT1, 1)
            e.salu("s_add_u32", sRot, sRot, sT1)
            e.salu("s_sub_u32", sT0, sRot, 7)
            e.salu("s_cmp_ge_u32", sRot, 7)
            e.salu("s_cselect_b32", sRot, sT0, sRot)
    else:
        e.salu("s_and_b32", sMblk, sXcd, 3)
        e.salu("s_lshl_b32", sMblk, sMblk, 2)
        e.salu("s_and_b32", sRot, sIdx, 3)
        e.salu("s_add_u32", sMblk, sMblk, sRot)
        e.salu("s_lshr_b32", sT0, sXcd, 2)
        e.salu("s_lshr_b32", sT1, sIdx, 2)
        e.salu("s_mul_i32", sCg, sT0, 6)
        e.salu("s_add_u32", sCg, sCg, sT1)
        e.salu("s_lshl_b32", sT0, sT0, 1)
        e.salu("s_add_u32", sT0, sT0, sT1)
        e.salu("s_add_u32", sT0, sT0, 6)
        e.salu("s_cmp_ge_u32", sT1, 6)
        e.salu("s_cselect_b32", sCg, sT0, sCg)
        e.salu("s_lshl_b32", sRot, sRot, 1)
        e.salu("s_add_u32", sRot, sRot, sT1)
        e.salu("s_sub_u32", sT0, sRot, 7)
        e.salu("s_cmp_ge_u32", sRot, 7)
        e.salu("s_cselect_b32", sRot, sT0, sRot)
    if ROT1:
        pass
    else:
        e.salu("s_mov_b32", sRot, 0)
    e.valu("v_lshrrev_b32", vX0, 6, V(0))
    e.valu("v_and_b32", vLane, 63, V(0))
    e.valu("v_readfirstlane_b32", sWave, vX0)
    e.valu("v_lshlrev_b32", vLane16, 4, vLane)
    e.salu("s_and_b32", sW4, sWave, 3)
    e.salu("s_cmp_lt_u32", sWave, 4)
    e.raw("s_cbranch_scc1 L_k12_heavy")
    saved = list(e.lg)

    def reset():
        e.lg, e.vm, e.last, e.smem_pending = list(saved), [], {}, True
    e.raw("s_setprio 3")
    e.stamp(12, True)
    e.salu("s_cmp_ge_u32", sCg, 12)
    e.raw("s_cbranch_scc1 L_k12_loadY")
    e.flush_hazards()
    gen_loader1(e, False)
    e.raw("s_branch L_k12_help2")
    e.label("L_k12_loadY")
    reset()
    gen_loader1(e, True)
    e.label("L_k12_help2")
    e.lg, e.vm, e.last = [], [], {}
    gen_helper2(e)
    e.label("L_k12_heavy")
    reset()
    e.salu("s_cmp_ge_u32", sCg, 12)
    e.raw("s_cbranch_scc1 L_k12_compY")
    gen_compute1(e, False)
    e.raw("s_branch L_k12_attn")
    e.label("L_k12_compY")
    reset()
    gen_compute1(e, True)
    e.label("L_k12_attn")
    e.lg, e.vm, e.last = [], [], {}
    e.nop(2)
    gen_attn(e)
    e.label("L_k12_end")
    e.raw("s_endpgm")


sNonce = S(27)


def poll(e, name, vaddr, srd_, soff, nlanes, vtmp, cmp_s):
    mask = (1 << nlanes) - 1
    e.wait_lg_all()
    e.raw(f"s_mov_b32 exec_lo, {hex(mask & 0xffffffff)}")
    e.raw(f"s_mov_b32 exec_hi, {hex(mask >> 32)}")
    e.salu("s_mov_b32", sT2, 0)
    e.label(name)
    e.raw(f"buffer_load_dword {vtmp}, {vaddr}, {srd_}, {soff} offen sc1")
    e.salu("s_add_u32", sT2, sT2, 1)
    e.raw("s_waitcnt vmcnt(0)")
    e.raw(f"v_cmp_ne_u32 vcc, {cmp_s}, {vtmp}")
    e.salu("s_cmp_gt_u32", sT2, SPIN)
    e.raw(f"s_cbranch_scc1 {name}_out")
    e.raw("s_and_b64 exec, exec, vcc")
    e.raw(f"s_cbranch_scc0 {name}_out")
    if SLEEP: e.raw(f"s_sleep {SLEEP}")
    e.raw(f"s_branch {name}")
    e.label(name + "_out")
    e.raw("s_mov_b64 exec, -1")
    e.vm = []
    e.last = {}


def flag_store(e, base, hi=None, lo=None):
    e.salu("s_lshl_b32", sT0, hi or sCg, 4)
    e.salu("s_add_u32", sT0, sT0, lo or sMblk)
    e.salu("s_lshl_b32", sT0, sT0, 7)
    e.salu("s_add_u32", sT0, sT0, base)
    e.salu("s_min_u32", sT1, sW4, 1)
    e.salu("s_lshl_b32", sT1, sT1, 19)
    e.salu("s_add_u32", sT0, sT0, sT1)
    e.valu("v_mov_b32", V(9), sNonce)
    e.valu("v_mov_b32", V(249), 0)
    e.raw("s_mov_b64 exec, 1")
    e.buf_store(V(9), V(249), sWS, sT0, offset=0, flags=" sc1")
    e.raw("s_mov_b64 exec, -1")


def gen_loader1(e, typeY):
    ty = int(typeY)
    lane = vLane
    vA = [V(1), V(2), V(3), V(4)]
    vB = [V(5), V(6)]
    vB2 = [V(7), V(8)]
    vGa = V(13)
    vG = V(16, 7)
    sAoff, sB0, sQo, sVo = S(29), S(30), S(34), S(48)
    sLA, sLB = S(35), S(36)
    sCh = [S(37 + i) for i in range(7)]
    e.valu("v_lshrrev_b32", vX0, 3, lane)
    e.valu("v_and_b32", vX1, 7, lane)
    e.valu("v_lshrrev_b32", vX2, 1, vX0)
    e.valu("v_xor_b32", vX2, vX2, vX1)
    e.valu("v_mul_u32_u24", vA[0], 896, vX0)
    e.valu("v_lshl_add_u32", vA[0], vX2, 4, vA[0])
    e.valu("v_xor_b32", vA[1], 64, vA[0])
    e.valu("v_add_u32", vA[2], 2 * 6144, vA[0])
    e.valu("v_add_u32", vA[3], 3 * 6144, vA[1])
    e.valu("v_add_u32", vA[1], 6144, vA[1])
    e.valu("v_bfe_u32", vX1, lane, 2, 1)
    e.valu("v_bfe_u32", vX2, lane, 4, 1)
    e.valu("v_xor_b32", vX1, vX1, vX2)
    e.valu("v_and_b32", vX2, 3, lane)
    for vv, l_, us in ((vB, 3584, 64), (vB2, 2688, 56)):
        e.valu("v_mul_u32_u24", vv[0], l_, vX0)
        e.valu("v_mul_u32_u24", vv[1], us, vX1)
        e.valu("v_add_u32", vv[0], vv[0], vv[1])
        e.valu("v_lshl_add_u32", vv[0], vX2, 4, vv[0])
        e.valu("v_add_u32", vv[1], 8 * l_ - 1024, vv[0])
    e.salu("s_lshl_b32", sT0, sMblk, 2)
    e.salu("s_add_u32", sT0, sT0, sW4)
    e.salu("s_mul_i32", sAoff, sT0, 32 * 896)
    e.salu("s_mul_i32", sT0, sW4, 16 * 3584)
    e.salu("s_lshl_b32", sB0, sCg, 7)
    e.salu("s_add_u32", sB0, sB0, sT0)
    e.salu("s_mul_i32", sT0, sW4, 16 * 2688)
    e.salu("s_mul_i32", sQo, sCg, 112)
    e.salu("s_add_u32", sQo, sQo, sT0)
    if typeY:
        e.salu("s_mul_i32", sVo, sCg, 224)
        e.salu("s_add_u32", sVo, sVo, sT0)
        e.salu("s_sub_u32", sVo, sVo, 12 * 224 - 1792)
    e.salu("s_lshl_b32", sLA, sW4, 12)
    e.salu("s_lshl_b32", sLB, sW4, 11)
    e.salu("s_add_u32", sLB, sLB, BR)
    e.salu("s_mov_b32", sCh[0], sRot)
    for c in range(1, 7):
        e.salu("s_add_u32", sCh[c], sCh[c - 1], 1)
        e.salu("s_cmp_eq_u32", sCh[c], 7)
        e.salu("s_cselect_b32", sCh[c], 0, sCh[c])
    e.wait_lg_all()
    srd(e, sX, KX, 2048 * 896)
    srd(e, sWg, KG, 448 * 3584)
    srd(e, sWu, KU, 448 * 3584)
    srd(e, sWq, KQ, 448 * 2688)

    ff = typeY or XORD
    pair0 = 7 if ff else 0

    def dmaA(c, n):
        e.salu("s_lshl_b32", sT0, sCh[c], 7)
        e.salu("s_add_u32", "m0", sLA, c * 16384)
        e.salu("s_add_u32", sT0, sT0, sAoff)
        for i in range(4):
            e.buf_load_lds(vA[i], sX, sT0, offset=i * 1024, tag=("C", n))

    def dmaB(n):
        sl = (n % 3) * 16384
        if pair0 <= n < pair0 + 4:
            for r in range(2):
                c = 2 * (n - pair0) + r
                if c < 7:
                    if not ff: dmaA(c, n)
                    e.salu("s_mul_i32", sT1, sCh[c], 64 * 2688)
                    e.salu("s_add_u32", "m0", sLB, sl + r * 8192)
                    e.salu("s_add_u32", sT0, sQo, sT1)
                    for i in range(2):
                        e.buf_load_lds(vB2[i], sWq, sT0, offset=i * 1024, tag=("C", n))
        elif n < 7 and typeY:
            dmaA(n, n)
            e.salu("s_mul_i32", sT1, sCh[n], 64 * 2688)
            for r in range(2):
                e.salu("s_add_u32", "m0", sLB, sl + r * 8192)
                e.salu("s_add_u32", sT1, sT1, sVo if r == 0 else 112)
                for i in range(2):
                    e.buf_load_lds(vB2[i], sWq, sT1, offset=i * 1024, tag=("C", n))
        else:
            c = (n if ff else n - 4) if n < 11 else n - 11
            if ff and n < 7: dmaA(n, n)
            e.salu("s_mul_i32", sT1, sCh[c], 64 * 3584)
            e.salu("s_add_u32", sT1, sT1, sB0)
            if n >= 11: e.salu("s_add_u32", sT1, sT1, 12 * 128)
            for r in range(2):
                e.salu("s_add_u32", "m0", sLB, sl + r * 8192)
                e.nop(1)
                for i in range(2):
                    e.buf_load_lds(vB[i], (sWg, sWu)[r], sT1, offset=i * 1024, tag=("C", n))

    def land(n):
        e.wait_vm_tag(("C", n))
        if not typeY and pair0 <= n < pair0 + 4:
            e.raw("s_mov_b64 exec, 0xffff")
            for r in range(2):
                c = 2 * (n - pair0) + r
                if c < 7:
                    e.ds_write("ds_write_b16", vGa, vG[c], offset=(n % 3) * 16384 + r * 8192)
            e.raw("s_mov_b64 exec, -1")
            e.wait_lg_all()

    dmaB(0)
    if not typeY:
        srd(e, sGw, KGW, 896)
        e.valu("v_and_b32", vX0, 15, lane)
        e.valu("v_lshlrev_b32", vX1, 1, vX0)
        e.salu("s_lshl_b32", sT0, sW4, 5)
        e.salu("s_lshl_b32", sT2, sCg, 12)
        e.salu("s_add_u32", sT0, sT0, sT2)
        for c in range(7):
            e.salu("s_lshl_b32", sT2, sCh[c], 7)
            e.salu("s_add_u32", sT2, sT2, sT0)
            e._issue(f"buffer_load_ushort {vG[c]}, {vX1}, {sGw}, {sT2} offen", "vmem", vX1.regs() + sGw.regs() + sT2.regs(), vG[c].regs())
            e.vm.append((-1, set(vG[c].regs()), "gw"))
        e.valu("v_lshlrev_b32", vGa, 7, vX0)
        e.valu("v_bfe_u32", vX1, lane, 1, 1)
        e.valu("v_lshl_add_u32", vGa, vX1, 6, vGa)
        e.valu("v_add_u32", vGa, sLB, vGa)
        e.valu("v_add_u32", vGa, 56, vGa)
    dmaB(1)
    srd(e, sWS, KWS, WS_USED)
    e.valu("v_mov_b32", V(12), 0)
    e.salu("s_mov_b32", sT0, NONCE)
    e.buf_load(V(11), V(12), sWS, sT0, offset=0, flags=" sc1")
    land(0)
    e.barrier()
    for n in range(16):
        if n == LP0: e.raw('s_setprio 0')
        if n + 2 < 18:
            dmaB(n + 2)
        if n == (N1 if ff else N1X):
            flag_store(e, F1)
            if S1ST: e.stamp(6, True)
        if n == 2:
            e.valu("v_readfirstlane_b32", sNonce, V(11))
            e.nop(1)
            e.salu("s_add_u32", sNonce, sNonce, "0x9e3779b9")
        if n == 15:
            vFl = V(14)
            e.salu("s_lshl_b32", sT0, sXcd, 4)
            e.salu("s_add_u32", sT1, sT0, 128)
            e.valu("v_add_u32", vFl, sT1, lane)
            e.salu("s_lshr_b32", sT1, sXcd, 1)
            e.salu("s_lshl_b32", sT1, sT1, 4)
            e.salu("s_add_u32", sT1, sT1, 192 - 16)
            e.valu("v_add_u32", vX0, sT1, lane)
            e.valu("v_cmp_le_u32", "vcc", 16, lane)
            e.valu("v_cndmask_b32", vFl, vFl, vX0)
            e.salu("s_and_b32", sT1, sIdx, 15)
            e.salu("s_add_u32", sT0, sT0, sT1)
            e.valu("v_mov_b32", vX0, sT0)
            e.valu("v_cmp_le_u32", "vcc", 32, lane)
            e.valu("v_cndmask_b32", vFl, vFl, vX0)
            e.valu("v_lshlrev_b32", vFl, 7, vFl)
        land(n + 1)
        e.barrier()


def gen_compute1(e, typeY):
    ty = int(typeY)
    lane = vLane
    sWm, sWn, sMt = S(29), S(30), S(34)
    sOutH, sOutV, sOutQK, sQKstr, sQKmul, sNL2E = S(35), S(48), S(36), S(37), S(38), S(39)
    sMask = S(40, 2)
    vAr = [[V(232 + i) for i in range(4)], [V(236 + i) for i in range(4)]]
    vTr = V(240)
    vMulHi, vVconst = V(241), V(242)
    TT = 220
    def ACC(p, r, t):
        if p == 0: return V(128 + 16 * t, 16)
        return V(64 * (p - 1) + 32 * r + 16 * t, 16)
    NBUF = 3
    def fA(n, t): return V(160 + (n % NBUF) * 16 + t * 4, 4)
    def fB(n, i): return V(160 + (n % NBUF) * 16 + 8 + i * 4, 4)
    e.salu("s_lshr_b32", sWm, sW4, 1)
    e.salu("s_and_b32", sWn, sW4, 1)
    e.salu("s_lshl_b32", sMt, sMblk, 1)
    e.salu("s_add_u32", sMt, sMt, sWm)
    e.salu("s_lshl_b32", sMt, sMt, 1)
    e.valu("v_and_b32", vX0, 31, lane)
    e.valu("v_lshrrev_b32", vX1, 5, lane)
    e.valu("v_bfe_u32", vX2, lane, 1, 3)
    e.valu("v_xor_b32", vX2, vX2, vX1)
    e.valu("v_lshlrev_b32", vX0, 7, vX0)
    e.salu("s_lshl_b32", sT0, sWm, 13)
    e.valu("v_add_u32", vX0, sT0, vX0)
    for k in range(4):
        e.valu("v_xor_b32", vAr[0][k], 2 * k, vX2)
        e.valu("v_lshl_add_u32", vAr[0][k], vAr[0][k], 4, vX0)
        e.valu("v_add_u32", vAr[1][k], 65536, vAr[0][k])
    e.valu("v_bfe_u32", vX0, lane, 2, 2)
    e.valu("v_lshl_add_u32", vX0, vX1, 3, vX0)
    e.valu("v_bfe_u32", vX2, lane, 4, 1)
    e.valu("v_lshlrev_b32", vX2, 5, vX2)
    e.valu("v_and_b32", vX1, 3, lane)
    e.valu("v_lshl_add_u32", vX2, vX1, 3, vX2)
    e.valu("v_lshl_add_u32", vX2, vX0, 7, vX2)
    e.valu("v_bfe_u32", vX1, lane, 3, 1)
    e.valu("v_xor_b32", vX1, sWn, vX1)
    e.valu("v_lshl_add_u32", vTr, vX1, 6, vX2)
    e.valu("v_add_u32", vTr, BR, vTr)
    e.salu("s_mov_b32", sNL2E, hex(f2u(-LOG2E)))
    e.salu("s_lshl_b32", sT2, sCg, 1)
    e.salu("s_add_u32", sT2, sT2, sWn)
    e.salu("s_mul_i32", sOutH, sMt, H_MT_STRIDE)
    e.salu("s_lshl_b32", sT1, sT2, 11)
    e.salu("s_add_u32", sOutH, sOutH, sT1)
    e.salu("s_add_u32", sOutH, sOutH, HF)
    if typeY:
        e.salu("s_sub_u32", sT1, sCg, 12)
        e.salu("s_lshl_b32", sT0, sT1, 2)
        e.salu("s_add_u32", sT0, sT0, sWn)
        e.salu("s_lshl_b32", sT0, sT0, 6)
        e.salu("s_add_u32", sT0, sT0, sMt)
        e.salu("s_lshl_b32", sOutV, sT0, 12)
        e.salu("s_add_u32", sOutV, sOutV, KVF + 2048)
    e.salu("s_and_b32", sT1, sT2, 15)
    e.salu("s_lshl_b32", sT1, sT1, 6)
    e.salu("s_add_u32", sT1, sT1, sMt)
    e.salu("s_cmp_lt_u32", sT2, 16)
    e.salu("s_cselect_b32", sQKstr, 11, 12)
    e.salu("s_cselect_b32", sOutQK, QF, KVF)
    e.salu("s_cselect_b32", sQKmul, hex(f2u(QSCALE)), 1.0)
    e.salu("s_lshl_b32", sQKstr, 1, sQKstr)
    e.salu("s_mul_i32", sT1, sT1, sQKstr)
    e.salu("s_add_u32", sOutQK, sOutQK, sT1)
    e.valu("v_cmp_gt_u32", "vcc", 32, lane)
    e.valu("v_mov_b32", vX0, sQKmul)
    e.valu("v_mov_b32", vX1, 0)
    e.valu("v_cndmask_b32", vMulHi, vX1, vX0)
    if typeY:
        e.valu("v_and_b32", vX0, 31, lane)
        e.valu("v_cmp_eq_u32", "vcc", 28, vX0)
        e.valu("v_mov_b32", vX2, "0x3f803f80")
        e.valu("v_cndmask_b32", vVconst, vX1, vX2)
        e.valu("v_cmp_le_u32", sMask, 28, vX0)
    e.wait_lg_all()
    srd(e, sWS, KWS, WS_USED)
    srd(e, sWd, KD, 1792 * 896)

    def epi_h(p, pk=False):
        ops = []
        for t in range(2):
            G, U = ACC(p, 0, t), ACC(p, 1, t)
            for hgrp in range(2):
                rs = list(range(8 * hgrp, 8 * hgrp + 8))
                T = V(TT, 8)
                if not pk:
                    for r in rs: ops.append((1, lambda r=r, G=G, T=T: e.valu("v_mul_f32", T[r % 8], sNL2E, G[r])))
                    for r in rs:
                        ops.append((2, lambda r=r, T=T: e.valu("v_exp_f32", T[r % 8], T[r % 8])))
                        ops.append((1, lambda r=r, G=G, U=U: e.valu("v_mul_f32", G[r], G[r], U[r])))
                    for r in rs: ops.append((1, lambda r=r, T=T: e.valu("v_add_f32", T[r % 8], 1.0, T[r % 8])))
                    for r in rs: ops.append((2, lambda r=r, T=T: e.valu("v_rcp_f32", T[r % 8], T[r % 8])))
                    for r in rs: ops.append((1, lambda r=r, G=G, T=T: e.valu("v_mul_f32", G[r], G[r], T[r % 8])))
                else:
                    C = V(228, 4)
                    for r in rs[::2]: ops.append((1, lambda r=r, G=G, T=T: e.valu("v_pk_mul_f32", T[r % 8:r % 8 + 2], G[r:r + 2], C[0:2])))
                    for r in rs:
                        ops.append((2, lambda r=r, T=T: e.valu("v_exp_f32", T[r % 8], T[r % 8])))
                        if r % 2: ops.append((1, lambda r=r, G=G, U=U: e.valu("v_pk_mul_f32", G[r - 1:r + 1], G[r - 1:r + 1], U[r - 1:r + 1])))
                    for r in rs[::2]: ops.append((1, lambda r=r, T=T: e.valu("v_pk_add_f32", T[r % 8:r % 8 + 2], T[r % 8:r % 8 + 2], C[2:4])))
                    for r in rs: ops.append((2, lambda r=r, T=T: e.valu("v_rcp_f32", T[r % 8], T[r % 8])))
                    for r in rs[::2]: ops.append((1, lambda r=r, G=G, T=T: e.valu("v_pk_mul_f32", G[r:r + 2], G[r:r + 2], T[r % 8:r % 8 + 2])))
                for i in range(4 * hgrp, 4 * hgrp + 4):
                    ops.append((1, lambda i=i, G=G, U=U: e.valu("v_cvt_pk_bf16_f32", U[i], G[2 * i], G[2 * i + 1])))
                def st(hgrp=hgrp, t=t, U=U):
                    e.salu("s_add_u32", sT1, sOutH, t * H_MT_STRIDE + (24 * 2048 if p == 2 else 0))
                    e.buf_store(U[4 * hgrp:4 * hgrp + 4], vLane16, sWS, sT1, offset=hgrp * 1024, flags=STF)
                ops.append((-2, st))
        return ops

    def epi_v():
        ops = []
        for r in range(2):
            for t in range(2):
                X = ACC(1, r, t)
                for hgrp in range(2):
                    for i in range(4 * hgrp, 4 * hgrp + 4):
                        ops.append((1, lambda i=i, X=X: e.valu("v_cvt_pk_bf16_f32", X[i], X[2 * i], X[2 * i + 1])))
                    for i in range(4 * hgrp, 4 * hgrp + 4):
                        ops.append((1, lambda i=i, X=X: e.valu("v_cndmask_b32", X[i], X[i], vVconst, sMask)))
                    def st(t=t, X=X, r=r, hgrp=hgrp):
                        e.salu("s_add_u32", sT1, sOutV, 2 * r * 64 * 4096 + t * 4096)
                        e.buf_store(X[4 * hgrp:4 * hgrp + 4], vLane16, sWS, sT1, offset=hgrp * 1024, flags=STF, tag="qkv")
                    st.qkv = True
                    ops.append((-2, st))
        return ops

    def epi_qk():
        ops = []
        for t in range(2):
            X = ACC(0, 0, t)
            if not typeY:
                ops.append((1, lambda t=t, X=X: e.valu("v_cvt_pk_bf16_f32", V(208 + t), X[12], X[12])))
            for r in range(16):
                if typeY and r < 12:
                    continue
                ops.append((1, lambda r=r, X=X: e.valu("v_mul_f32", X[r], sQKmul if r < 12 else vMulHi, X[r])))
            for hgrp in range(2):
                for i in range(4 * hgrp, 4 * hgrp + 4):
                    ops.append((1, lambda i=i, X=X: e.valu("v_cvt_pk_bf16_f32", X[i], X[2 * i], X[2 * i + 1])))
                def st(t=t, X=X, hgrp=hgrp):
                    if t == 1 and hgrp == 0:
                        e.salu("s_add_u32", sOutQK, sOutQK, sQKstr)
                    e.buf_store(X[4 * hgrp:4 * hgrp + 4], vLane16, sWS, sOutQK, offset=hgrp * 1024, flags=STF, tag="qkv")
                st.qkv = True
                ops.append((-2, st))
        if not typeY:
            for t in range(2):
                D = V(208 + t)
                Gv = V(210 + 2 * t, 2)
                for f in (("v_and_b32", D, "0xffff0000", D), ("v_mul_f32", D, sNL2E, D), ("v_exp_f32", D, D),
                          ("v_mov_b32", Gv[0], 0), ("v_add_f32", D, 1.0, D), ("v_rcp_f32", D, D), ("v_mov_b32", Gv[0], 0),
                          ("v_cvt_pk_bf16_f32", D, D, D),
                          ("v_and_b32", Gv[0], "0xffff0000", D), ("v_sub_f32", Gv[1], 1.0, Gv[0]),
                          ("v_cvt_pk_bf16_f32", Gv[1], Gv[1], Gv[1]), ("v_and_b32", Gv[1], "0xffff0000", Gv[1])):
                    ops.append((2 if f[0] in TRANS else 1, lambda f=f: e.valu(*f)))
            def stg():
                e.valu("v_lshlrev_b32", vX0, 3, lane)
                e.salu("s_lshl_b32", sT1, sMt, 8)
                e.salu("s_add_u32", sT1, sT1, GF - 256)
                e.salu("s_add_u32", sT0, sWn, sCg)
                e.salu("s_min_u32", sT0, sT0, 1)
                e.salu("s_lshl_b32", sT0, sT0, 15)
                e.salu("s_add_u32", sT1, sT1, sT0)
                e.raw("s_mov_b32 exec_lo, 0")
                e.buf_store(V(210, 2), vX0, sWS, sT1, offset=0, flags=STF, tag="qkv")
                e.buf_store(V(212, 2), vX0, sWS, sT1, offset=256, flags=STF, tag="qkv")
                e.raw("s_mov_b32 exec_lo, -1")
            stg.qkv = True
            ops.append((-2, stg))
        return ops

    ff = typeY or XORD
    order = (1, 0, 2) if ff else (0, 1, 2)
    steps = [(p, ks) for p in order for ks in range(28)]
    def bchunk(p, ks):
        c, kk = ks // 4, ks % 4
        if p == 1: return (0 if ff else 4) + c, kk * 2048
        if p == 2: return 11 + c, kk * 2048
        return (7 if ff else 0) + c // 2, (c % 2) * 8192 + kk * 2048
    def rd(n):
        p, ks = steps[n]
        c, kk = ks // 4, ks % 4
        bn, boff = bchunk(p, ks)
        ops = []
        for t in range(2):
            ops.append(lambda t=t: e.ds_read("ds_read_b128", fA(n, t), vAr[c >> 2][kk], offset=(c & 3) * 16384 + t * 4096, tag=("t", n)))
        for i in range(1 if p == 0 else 2):
            for j in range(2):
                ops.append(lambda i=i, j=j: e.ds_read("ds_read_b64_tr_b16", fB(n, i)[2 * j:2 * j + 2], vTr,
                                                      offset=(bn % 3) * 16384 + boff + i * 8192 + j * 512, tag=("t", n)))
        return ops

    def pre(stage):
        sTS = S(52, 4)
        e.salu("s_mov_b32", sTS[3], "0x20000")
        e.salu("s_mov_b32", sTS[2], 448 * 3584)
        if stage < 2:
            e.salu("s_and_b32", sT0, sW4, 1)
            e.salu("s_cmp_eq_u32", sT0, 0)
            e.salu("s_cselect_b32", sTS[0], S(KG), S(KU))
            e.salu("s_cselect_b32", sTS[1], S(KG + 1), S(KU + 1))
        if stage == 0 and XORD:
            e.salu("s_mov_b32", sTS[2], 448 * 2688)
            e.salu("s_mov_b32", sTS[0], S(KQ)); e.salu("s_mov_b32", sTS[1], S(KQ + 1))
            e.salu("s_lshl_b32", sT1, S(2), 1)
            e.salu("s_add_u32", sT1, sT1, sT0)
            e.salu("s_mul_i32", sT1, sT1, 2688)
            e.salu("s_lshr_b32", sT0, sW4, 1)
            e.salu("s_mul_i32", sT0, sT0, 896)
            e.salu("s_add_u32", sT1, sT1, sT0)
            e.valu("v_min_u32", vX0, 6, lane)
            e.valu("v_lshlrev_b32", vX2, 7, vX0)
        elif stage == 0:
            e.salu("s_mul_i32", sT1, S(2), 21)
            e.valu("v_min_u32", vX0, 20, lane)
            e.valu("v_add_u32", vX0, sT1, vX0)
            e.salu("s_mov_b32", sT1, 43691)
            e.valu("v_mul_u32_u24", vX1, sT1, vX0)
            e.valu("v_lshrrev_b32", vX1, 19, vX1)
            e.valu("v_mul_u32_u24", vX2, 3584 - 12 * 128, vX1)
            e.valu("v_lshl_add_u32", vX2, vX0, 7, vX2)
            e.salu("s_mov_b32", sT1, 0)
            e.salu("s_cmp_lt_u32", sW4, 2)
            e.raw(f"s_cbranch_scc1 L_k12_pre{ty}")
            e.salu("s_mov_b32", sTS[2], 448 * 2688)
            e.salu("s_mov_b32", sTS[0], S(KQ)); e.salu("s_mov_b32", sTS[1], S(KQ + 1))
            e.salu("s_lshl_b32", sT1, S(2), 1)
            e.salu("s_add_u32", sT1, sT1, sT0)
            e.salu("s_mul_i32", sT1, sT1, 2688)
            e.salu("s_add_u32", sT1, sT1, 1280)
            e.valu("v_min_u32", vX0, 3, lane)
            e.valu("v_lshlrev_b32", vX2, 7, vX0)
            e.label(f"L_k12_pre{ty}")
        elif stage == 1:
            e.salu("s_lshl_b32", sT1, S(2), 1)
            e.salu("s_lshr_b32", sT0, sW4, 1)
            e.salu("s_add_u32", sT1, sT1, sT0)
            e.salu("s_mul_i32", sT1, sT1, 14)
            e.valu("v_min_u32", vX0, 13, lane)
            e.valu("v_add_u32", vX0, sT1, vX0)
            e.valu("v_lshrrev_b32", vX1, 4, vX0)
            e.valu("v_and_b32", vX0, 15, vX0)
            e.valu("v_mul_u32_u24", vX2, 3584, vX1)
            e.valu("v_lshl_add_u32", vX2, vX0, 7, vX2)
            e.salu("s_mov_b32", sT1, 12 * 128)
        else:
            e.salu("s_mov_b32", sTS[0], S(KD)); e.salu("s_mov_b32", sTS[1], S(KD + 1))
            e.salu("s_mul_i32", sT0, S(2), 49 * 128)
            e.salu("s_mul_i32", sT1, sW4, 13 * 128)
            e.salu("s_add_u32", sT1, sT0, sT1)
            e.valu("v_min_u32", vX0, 12, lane)
            e.valu("v_lshlrev_b32", vX2, 7, vX0)
        e.buf_load(V(243 + stage), vX2, sTS, sT1, offset=0)

    e.stamp(0); e.stamp(12, True)
    for st_, at in enumerate(PRES):
        if at < 0: pre(st_)
    e.barrier()
    e.stamp(1)
    for f in rd(0) + rd(1): f()
    epi, stq = [], []
    for n, (p, ks) in enumerate(steps):
        if ks == 0 and n > 0:
            e.stamp(1 + n // 28)
            prev = steps[n - 1][0]
            if prev == 0: epi = [(6, lambda: None)] + epi_qk() + epi
            else: epi += [(6, lambda: None)] + (epi_v() if typeY else epi_h(1))
        for st_, at in enumerate(PRES):
            if at == n: stq.append(lambda st_=st_: pre(st_))
        nr = 1 if p == 0 else 2
        nm = 2 * nr
        plan = [[] for _ in range(nm)]
        tgt = n + 2
        if tgt < len(steps):
            r_ = rd(tgt)
            bt = bchunk(*steps[tgt])[0]
            if bt != bchunk(*steps[tgt - 1])[0]:
                def bar(tgt=tgt, bt=bt):
                    e.wait_lg_tag(("t", tgt - 1))
                    if bt == (N1 if ff else N1X):
                        assert not any(getattr(f, "qkv", False) for _, f in epi) and not any(getattr(f, "qkv", False) for f in stq)
                        e.wait_vm_tag("qkv")
                    if bt == N1B:
                        assert not epi and not stq, (len(epi), len(stq))
                        e.raw("s_waitcnt vmcnt(0)")
                        e.vm = []
                    e.barrier()
                if tgt < 28 and nm == 2:
                    plan[1] = [bar] + r_
                elif tgt < 28:
                    plan[1] = [bar, r_[0]]; plan[2] = r_[1:4]; plan[3] = r_[4:]
                elif nm == 4:
                    plan[0] = r_[0:2]; plan[2] = [bar] + r_[2:4]; plan[3] = r_[4:]
                else:
                    plan[0] = r_[0:2]; plan[1] = [bar] + r_[2:]
            else:
                for g in range(nm):
                    k = -(-len(r_) // (nm - g))
                    plan[g] = r_[:k]; r_ = r_[k:]
        e.wait_lg_tag(("t", n))
        gi = 0
        for i in range(nr):
            for t in range(2):
                swap = typeY and p == 1
                a_, b_ = (fA(n, t), fB(n, i)) if swap else (fB(n, i), fA(n, t))
                e.mfma(ACC(p, i, t), a_, b_, 0 if ks == 0 else None)
                slots = 6 - (1 if gi == nm - 1 else 0)
                for f in plan[gi]:
                    f(); slots -= 1
                slots = min(slots, EB1 if p == 1 else 4 if p == 2 else 6)
                safe = (ks % 4 == 1 or (ks % 4 == 0 and gi >= 2)) if p != 0 else (n < 28 or ks % 8 in (2, 3, 4, 5))
                if stq and (safe or (QANY and p == 2 and getattr(stq[0], "qkv", False))):
                    stq.pop(0)(); slots -= 2
                while epi and (slots >= epi[0][0] or epi[0][0] == 6):
                    cost, f = epi.pop(0)
                    if cost < 0:
                        if getattr(f, "qkv", False):
                            k_ = sum(1 for x in stq if getattr(x, "qkv", False))
                            stq.sort(key=lambda x: not getattr(x, "qkv", False))
                            stq.insert(k_, f)
                        else:
                            stq.append(f)
                        continue
                    f(); slots -= cost
                    if cost == 6: break
                gi += 1
    e.stamp(4)
    e.valu("v_mov_b32", V(228), sNL2E)
    e.valu("v_mov_b32", V(229), sNL2E)
    e.valu("v_mov_b32", V(230), 1.0)
    e.valu("v_mov_b32", V(231), 1.0)
    for _, f in epi_h(2, pk=True):
        f()
    e.stamp(5)


def gen_attn(e):
    lane = vLane
    Q = [[V(8, 4), V(12, 4)], [V(16, 4), V(20, 4)]]
    K = [V(24, 4), V(28, 4)]
    Vf = [[V(32, 4), V(36, 4)], [V(40, 4), V(44, 4)]]
    Sb = [V(128, 16), V(144, 16)]
    P = [V(48, 8), V(56, 8)]
    O = [V(160, 16), V(176, 16)]
    X = V(192, 16)
    vKV, vRed, vQl = V(1), V(2), V(3)
    vT0, vT1, vT2, vT3 = V(4), V(5), V(6), V(7)
    sQg, sKg, sHead, sQblk, sOo, sKV, sCnt = S(29), S(30), S(34), S(35), S(36), S(37), S(38)
    sSave = S(40, 2)
    e.salu("s_and_b32", sQg, sW4, 1)
    e.salu("s_lshr_b32", sKg, sW4, 1)
    e.salu("s_lshr_b32", sT0, sIdx, 4)
    e.salu("s_lshl_b32", sHead, sXcd, 1)
    e.salu("s_add_u32", sHead, sHead, sT0)
    e.salu("s_and_b32", sQblk, sIdx, 15)
    e.salu("s_lshl_b32", sKV, sHead, 18)
    e.salu("s_add_u32", sKV, sKV, KVF)
    e.salu("s_lshl_b32", sT1, sQblk, 2)
    e.salu("s_lshl_b32", sT0, sQg, 1)
    e.salu("s_add_u32", sT1, sT1, sT0)
    e.salu("s_add_u32", sT1, sT1, sKg)
    e.salu("s_lshl_b32", sOo, sT1, 4)
    e.salu("s_add_u32", sOo, sOo, sHead)
    e.salu("s_lshl_b32", sOo, sOo, 11)
    e.salu("s_add_u32", sOo, sOo, OF)
    e.salu("s_lshl_b32", sT2, sKg, 13)
    e.valu("v_add_u32", vKV, sT2, vLane16)
    e.salu("s_lshl_b32", sT2, sQg, 12)
    e.salu("s_add_u32", sT2, sT2, QL)
    e.valu("v_add_u32", vQl, sT2, vLane16)
    e.salu("s_lshl_b32", sT2, sQg, 13)
    e.salu("s_add_u32", sT2, sT2, ARED)
    e.valu("v_add_u32", vRed, sT2, vLane16)
    for r in range(16):
        e.valu("v_mov_b32", O[0][r], 0)
        e.valu("v_mov_b32", O[1][r], 0)
    for r in range(4):
        e.valu("v_mov_b32", P[1][r], 0)
        e.valu("v_mov_b32", P[1][4 + r], 0)
        e.valu("v_mov_b32", Vf[1][0][r], 0)
        e.valu("v_mov_b32", Vf[1][1][r], 0)
    e.salu("s_mov_b32", sCnt, 0)

    def toff(i): return ((i >> 1) % 4) * 16384 + (i & 1) * 4096

    e.barrier()
    e.stamp(6)
    for q in range(2):
        for s_ in range(2):
            e.ds_read("ds_read_b128", Q[q][s_], vQl, offset=q * 2048 + s_ * 1024)
    e.ds_read("ds_read_b128", K[0], vKV, offset=0)
    e.ds_read("ds_read_b128", K[1], vKV, offset=1024)
    e.ds_read("ds_read_b128", Vf[0][1], vKV, offset=3072)
    e.ds_read("ds_read_b128", Vf[0][0], vKV, offset=2048)
    e.mfma(Sb[0], K[0], Q[0][0], 0)
    e.mfma(Sb[0], K[1], Q[0][1])
    e.wait_lg_all()
    e.flush_hazards()

    def unit(i, q):
        Sc, Sn = Sb[q], Sb[1 - q]
        nq = 1 - q
        def ex(a, b):
            for r in range(a, b): e.valu("v_exp_f32", Sc[r], Sc[r])
        def cv(a, b):
            for j in range(a, b): e.valu("v_cvt_pk_bf16_f32", P[q][j], Sc[2 * j], Sc[2 * j + 1])
        pi = i if q == 1 else i - 1
        if q == 0:
            rd = [(K[0], toff(i + 1)), (K[1], toff(i + 1) + 1024)]
        else:
            rd = [(Vf[(i + 1) % 2][1], toff(i + 1) + 3072), (Vf[(i + 1) % 2][0], toff(i + 1) + 2048)]
        e.mfma(Sn, K[0], Q[nq][0], 0)
        ex(0, 3)
        e.mfma(Sn, K[1], Q[nq][1])
        e.ds_read("ds_read_b128", rd[0][0], vKV, offset=rd[0][1])
        ex(3, 5); cv(0, 1)
        e.mfma(O[nq], Vf[pi % 2][0], P[nq][0:4])
        e.ds_read("ds_read_b128", rd[1][0], vKV, offset=rd[1][1])
        ex(5, 7); cv(1, 2)
        e.mfma(O[nq], Vf[pi % 2][1], P[nq][4:8])
        ex(7, 16); cv(2, 8)

    mark = len(e.lines)
    for i in (6, 7):
        for q in range(2): unit(i, q)
    del e.lines[mark:]
    e.label("L_k12_aloop")
    for i in range(8):
        for q in range(2):
            unit(i, q)
        if i % 2 == 1:
            if i == 3:
                e.raw("s_waitcnt vmcnt(0)")
            if i == 7:
                e.salu("s_add_u32", sCnt, sCnt, 1)
                e.salu("s_cmp_lt_u32", sCnt, 4)
            e.barrier()
    e.raw("s_cbranch_scc1 L_k12_aloop")
    e.mfma(O[1], Vf[1][0], P[1][0:4])
    e.mfma(O[1], Vf[1][1], P[1][4:8])
    e.stamp(7)
    e.wait_lg_all()
    e.salu("s_cmp_eq_u32", sKg, 0)
    e.raw("s_cbranch_scc1 L_k12_kg0")
    for j in range(4):
        e.ds_write("ds_write_b128", vRed, O[0][4 * j:4 * j + 4], offset=j * 1024)
    for r in range(16):
        e.valu("v_mov_b32", O[0][r], O[1][r])
    for s_ in range(2):
        for r in range(4):
            e.valu("v_mov_b32", Q[0][s_][r], Q[1][s_][r])
    e.valu("v_add_u32", vRed, 4096, vRed)
    e.raw("s_branch L_k12_kgj")
    e.label("L_k12_kg0")
    e.lg = []
    e.last = {}
    e.nop(10)
    for j in range(4):
        e.ds_write("ds_write_b128", vRed, O[1][4 * j:4 * j + 4], offset=4096 + j * 1024)
    e.label("L_k12_kgj")
    e.raw("s_waitcnt lgkmcnt(0)")
    e.lg = []
    e.last = {}
    e.barrier()
    Of, Pf, Qf = O[0], P[0], Q[0]
    for j in range(4):
        e.ds_read("ds_read_b128", X[4 * j:4 * j + 4], vRed, offset=j * 1024)
    Z = V(208, 2)
    e.valu("v_mov_b32", Z[0], 0)
    e.valu("v_mov_b32", Z[1], 0)
    e.valu("v_mov_b32", V(210), 0)
    e.valu("v_mov_b32", V(211), 0)
    for r in range(0, 16, 2):
        e.valu("v_pk_add_f32", Of[r:r + 2], Of[r:r + 2], X[r:r + 2])
    e.valu("v_mov_b32", vT0, Of[12])
    e.valu("v_mov_b32", vT1, Of[12])
    for r in range(0, 16, 2):
        e.valu("v_pk_fma_f32", Z, Of[r:r + 2], V(210, 2), Z)
        if r == 2:
            e.valu("v_permlane32_swap_b32", vT0, vT1)
    e.valu("v_add_f32", vT2, Z[0], Z[1])
    e.salu("s_mov_b32", sT0, hex(f2u(L_LO)))
    e.salu("s_mov_b32", sT1, hex(f2u(L_HI)))
    e.valu("v_add_f32", vT2, vT2, vT1)
    e.valu("v_cmp_le_f32", "vcc", sT0, vT2)
    e.valu("v_cmp_ge_f32", sSave, sT1, vT2)
    e.nop(1)
    e.salu("s_and_b64", "vcc", "vcc", sSave)
    e.raw("s_cmp_eq_u64 vcc, -1")
    e.raw("s_cbranch_scc0 L_k12_slow")
    e.label("L_k12_store")
    e.last = {}
    e.nop(2)
    e.valu("v_rcp_f32", vT0, vT1)
    e.valu("v_cmp_gt_u32", "vcc", 32, lane)
    e.valu("v_mov_b32", vT2, 0)
    e.valu("v_mov_b32", vT1, vT0)
    e.valu("v_cndmask_b32", vT2, vT2, vT0)
    e.valu("v_mov_b32", vT3, vT2)
    for r in range(0, 16, 2):
        e.valu("v_pk_mul_f32", Of[r:r + 2], Of[r:r + 2], V(4, 2) if r < 12 else V(6, 2))
    for j in range(8):
        e.valu("v_cvt_pk_bf16_f32", Pf[j], Of[2 * j], Of[2 * j + 1])
    e.buf_store(Pf[0:4], vLane16, sWS, sOo, offset=0, flags=STF)
    e.buf_store(Pf[4:8], vLane16, sWS, sOo, offset=1024, flags=STF)
    e.stamp(8)
    if FUSE3:
        gen_phase3_heavy(e)
    if Emitter.STAMPS:
        e.raw("s_waitcnt vmcnt(0)")
    e.stamp(9); e.stamp(13, True)
    e.dump_stamps(sWS, 0, sWave)
    e.raw("s_endpgm")
    e.label("L_k12_slow")
    e.lg, e.vm, e.last = [], [], {}
    vM = vT3
    Sc = Sb[0]
    e.valu("v_mov_b32", vM, "0xff800000")
    for r in range(16):
        e.valu("v_mov_b32", Of[r], 0)
    e.salu("s_mov_b32", sCnt, 0)
    e.salu("s_mov_b32", sT2, sKV)
    e.label("L_k12_slow_loop")
    e.buf_load(K[0], vLane16, sWS, sT2, offset=0, flags=LDF)
    e.buf_load(K[1], vLane16, sWS, sT2, offset=1024, flags=LDF)
    e.buf_load(Vf[0][0], vLane16, sWS, sT2, offset=2048, flags=LDF)
    e.buf_load(Vf[0][1], vLane16, sWS, sT2, offset=3072, flags=LDF)
    e.mfma(Sc, K[0], Qf[0], 0)
    e.mfma(Sc, K[1], Qf[1])
    e.valu("v_max_f32", vT0, Sc[0], Sc[1])
    for r in range(2, 16, 2):
        e.valu("v_max3_f32", vT0, vT0, Sc[r], Sc[r + 1])
    e.valu("v_mov_b32", vT1, vT0)
    e.valu("v_permlane32_swap_b32", vT0, vT1)
    e.valu("v_max3_f32", vT0, vT0, vT1, vM)
    e.valu("v_sub_f32", vT1, vM, vT0)
    e.valu("v_exp_f32", vT1, vT1)
    e.valu("v_mov_b32", vM, vT0)
    for r in range(16):
        e.valu("v_sub_f32", Sc[r], Sc[r], vM)
    for r in range(16):
        e.valu("v_exp_f32", Sc[r], Sc[r])
    for r in range(16):
        e.valu("v_mul_f32", Of[r], Of[r], vT1)
    for j in range(8):
        e.valu("v_cvt_pk_bf16_f32", Pf[j], Sc[2 * j], Sc[2 * j + 1])
    e.mfma(Of, Vf[0][0], Pf[0:4])
    e.mfma(Of, Vf[0][1], Pf[4:8])
    e.salu("s_add_u32", sT2, sT2, 4096)
    e.salu("s_add_u32", sCnt, sCnt, 1)
    e.flush_hazards()
    e.salu("s_cmp_lt_u32", sCnt, 64)
    e.raw("s_cbranch_scc1 L_k12_slow_loop")
    e.valu("v_mov_b32", vT0, Of[12])
    e.valu("v_mov_b32", vT1, Of[12])
    e.valu("v_permlane32_swap_b32", vT0, vT1)
    e.raw("s_branch L_k12_store")


def gen_phase3_heavy(e):
    lane = vLane
    sU, sTt, sMt64, sNt, sSt = S(29), S(30), S(34), S(35), S(36)
    vRr, vTr, vOr, vSt = V(1), V(2), V(3), V(4)
    vG = V(6, 2)
    Bx = [V(64 + 16 * w, 16) for w in range(4)]
    ACC = V(128, 16)
    NB = 4
    def OFr(k): return V(8 + (k % NB) * 4, 4)
    def WFr(k): return V(24 + (k % NB) * 4, 4)
    e.salu("s_cmp_ge_u32", sIdx, 28)
    e.raw("s_cbranch_scc0 L_k12_h3")
    e.raw("s_waitcnt vmcnt(0)")
    e.barrier()
    e.raw("s_branch L_k12_h3end")
    e.label("L_k12_h3")
    e.salu("s_lshl_b32", sT0, sW4, 12)
    e.salu("s_add_u32", sT0, sT0, WR)
    e.valu("v_add_u32", vRr, sT0, vLane16)
    def rdB():
        for w in range(4):
            for j in range(4):
                e.ds_read("ds_read_b128", Bx[w][4 * j:4 * j + 4], vRr, offset=w * 16384 + j * 1024)
    if not DEFER: rdB()
    e.salu("s_mul_i32", sT0, sIdx, 37)
    e.salu("s_lshr_b32", sT0, sT0, 8)
    e.salu("s_mul_i32", sT1, sT0, 7)
    e.salu("s_sub_u32", sNt, sIdx, sT1)
    e.salu("s_lshl_b32", sMt64, sXcd, 2)
    e.salu("s_add_u32", sMt64, sMt64, sT0)
    e.salu("s_and_b32", sU, sW4, 1)
    e.salu("s_lshr_b32", sTt, sW4, 1)
    srd(e, sOut, KOUT, 2048 * 896)
    e.salu("s_lshl_b32", sT0, sMt64, 1)
    e.salu("s_add_u32", sT0, sT0, sTt)
    e.salu("s_mul_i32", sSt, sT0, 32 * 896)
    e.salu("s_lshl_b32", sT2, sNt, 1)
    e.salu("s_add_u32", sT2, sT2, sU)
    e.salu("s_lshl_b32", sT2, sT2, 6)
    e.salu("s_add_u32", sSt, sSt, sT2)
    e.salu("s_lshl_b32", S(37), sT0, 8)
    e.salu("s_add_u32", S(37), S(37), GF)
    e.valu("v_and_b32", vX0, 31, lane)
    e.valu("v_lshlrev_b32", V(5), 3, vX0)
    e.valu("v_mul_u32_u24", vSt, 896, vX0)
    e.valu("v_lshrrev_b32", vX1, 5, lane)
    e.valu("v_lshl_add_u32", vSt, vX1, 4, vSt)
    e.valu("v_bfe_u32", vX0, lane, 2, 2)
    e.valu("v_lshl_add_u32", vX0, vX1, 2, vX0)
    e.valu("v_bfe_u32", vX2, lane, 4, 1)
    e.valu("v_lshlrev_b32", vX2, 5, vX2)
    e.valu("v_and_b32", vX1, 3, lane)
    e.valu("v_lshl_add_u32", vX2, vX1, 3, vX2)
    e.valu("v_lshl_add_u32", vX2, vX0, 7, vX2)
    e.valu("v_bfe_u32", vX1, lane, 3, 1)
    e.valu("v_xor_b32", vX1, sU, vX1)
    e.valu("v_lshl_add_u32", vTr, vX1, 6, vX2)
    e.salu("s_lshl_b32", sT0, sTt, 15)
    e.salu("s_add_u32", sT0, sT0, WR)
    e.valu("v_add_u32", vOr, sT0, vLane16)
    def rd(k):
        e.ds_read("ds_read_b128", OFr(k), vOr, offset=k * 1024, tag=("k", k))

    def rdw(k):
        hd, s_ = k // 2, k % 2
        for j in range(2):
            e.ds_read("ds_read_b64_tr_b16", WA(k)[2 * j:2 * j + 2], vTr, offset=(28 * hd + 16 * s_ + 8 * j) * 128, tag=("w", k))

    def WA(k): return V(144 + 4 * k, 4) if k < 26 else V(40 + 4 * (k - 26), 4)
    def OFr(k): return V(8 + (k % 8) * 4, 4)
    if not DEFER: e.wait_lg_all()
    e.raw("s_waitcnt vmcnt(0)")
    e.vm = []
    e.barrier()
    e.buf_load(vG, V(5), sWS, S(37), offset=0, flags=LDF)
    for k in range(32):
        rdw(k)
    if DEFER:
        e.barrier()
        rdB()
        e.wait_lg_all()
        e.barrier()
    for r in range(0, 16, 2):
        e.valu("v_pk_add_f32", Bx[0][r:r + 2], Bx[0][r:r + 2], Bx[1][r:r + 2])
        e.valu("v_pk_add_f32", Bx[2][r:r + 2], Bx[2][r:r + 2], Bx[3][r:r + 2])
    for r in range(0, 16, 2):
        e.valu("v_pk_add_f32", Bx[0][r:r + 2], Bx[0][r:r + 2], Bx[2][r:r + 2])
    for j in range(8):
        e.valu("v_cvt_pk_bf16_f32", Bx[1][j], Bx[0][2 * j], Bx[0][2 * j + 1])
    for j in range(8):
        e.valu("v_lshlrev_b32", Bx[0][2 * j], 16, Bx[1][j])
        e.valu("v_and_b32", Bx[0][2 * j + 1], "0xffff0000", Bx[1][j])
    for r in range(16):
        e.valu("v_mul_f32", Bx[0][r], Bx[0][r], vG[1])
    e.wait_lg_all()
    for c in range(4):
        e.barrier()
        if c == 0: e.stamp(10)
        ks = list(range(8 * c, 8 * c + 8))
        for k in ks:
            rd(k)
        for k in ks:
            e.mfma(ACC, WA(k), OFr(k), 0 if k == 0 else None)
    e.stamp(11)
    for r in range(16):
        e.valu("v_fmac_f32", Bx[0][r], ACC[r], vG[0], dst_is_read=True)
    Bv = Bx[3]
    for j in range(8):
        e.valu("v_cvt_pk_bf16_f32", Bv[j], Bx[0][2 * j], Bx[0][2 * j + 1])
    for kk in range(2):
        e.valu("v_permlane32_swap_b32", Bv[4 * kk], Bv[4 * kk + 2])
        e.valu("v_permlane32_swap_b32", Bv[4 * kk + 1], Bv[4 * kk + 3])
        e.buf_store(Bv[4 * kk:4 * kk + 4], vSt, sOut, sSt, offset=kk * 32, flags=os.environ.get('OUTF', ''))
    e.label("L_k12_h3end")
    e.last = {}


def gen_helper2(e):
    lane = vLane
    sHead, sQblk, sKV, sLdsKV = S(29), S(30), S(34), S(35)
    sMt64, sNt, sLdsW, sWoff, sHoff, sHoff1 = S(36), S(37), S(38), S(39), S(40), S(41)
    vFl = V(14)
    e.salu("s_lshr_b32", sT0, sIdx, 4)
    e.salu("s_lshl_b32", sHead, sXcd, 1)
    e.salu("s_add_u32", sHead, sHead, sT0)
    e.salu("s_and_b32", sQblk, sIdx, 15)
    e.salu("s_lshl_b32", sLdsKV, sW4, 12)
    e.salu("s_lshl_b32", sKV, sHead, 18)
    e.salu("s_add_u32", sKV, sKV, KVF)
    e.salu("s_add_u32", sKV, sKV, sLdsKV)
    e.salu("s_mul_i32", sT0, sIdx, 37)
    e.salu("s_lshr_b32", sT0, sT0, 8)
    e.salu("s_mul_i32", sT1, sT0, 7)
    e.salu("s_sub_u32", sNt, sIdx, sT1)
    e.salu("s_lshl_b32", sMt64, sXcd, 2)
    e.salu("s_add_u32", sMt64, sMt64, sT0)
    e.salu("s_min_u32", sMt64, sMt64, 31)
    def dma_KV(s):
        e.salu("s_add_u32", "m0", sLdsKV, (s % 4) * 16384)
        e.salu("s_add_u32", sT0, sKV, s * 16384)
        for i in range(4):
            e.buf_load_lds(vLane16, sWS, sT0, offset=i * 1024, tag=("KV", s), flags=LDF)

    def first_loads():
        dma_KV(0)
        e.salu("s_lshl_b32", sT0, sHead, 6)
        e.salu("s_lshl_b32", sT1, sQblk, 2)
        e.salu("s_add_u32", sT0, sT0, sT1)
        e.salu("s_add_u32", sT0, sT0, sW4)
        e.salu("s_lshl_b32", sT0, sT0, 11)
        e.salu("s_lshl_b32", sT1, sW4, 11)
        e.salu("s_add_u32", "m0", sT1, QL)
        if QF: e.salu("s_add_u32", sT0, sT0, QF)
        else: e.nop(1)
        for i in range(2):
            e.buf_load_lds(vLane16, sWS, sT0, offset=i * 1024, tag=("KV", 0), flags=LDF)
        dma_KV(1); dma_KV(2)

    if EARLYP:
        e.salu("s_cmp_eq_u32", sW4, 1)
        e.salu("s_mov_b32", sT1, "0x40000000")
        e.salu("s_cselect_b32", sT0, F1, sT1)
        e.raw(f"buffer_load_dword v15, {vFl}, {sWS}, {sT0} offen sc1")
    gemm_setup(e, sMt64, sNt, sLdsW, sWoff, sHoff)
    e.raw(f"v_mov_b32 v8, {SIG1}")
    e.raw(f"v_not_b32 v9, {sNonce}")
    e.raw("ds_write_b32 v8, v9")
    e.raw(f"s_waitcnt vmcnt({1 if EARLYP else 0}) lgkmcnt(0)")
    e.barrier()
    if TPRIO < 3: e.raw(f"s_setprio {TPRIO}")
    e.stamp(0)
    e.salu("s_cmp_eq_u32", sW4, 1)
    e.raw("s_cbranch_scc1 L_k12_pl")
    e.salu("s_cmp_lg_u32", sW4, 0)
    e.raw("s_cbranch_scc1 L_k12_wl")
    flag_store(e, F1B)
    e.label("L_k12_wl")
    e.salu("s_mov_b32", sT2, 0)
    e.label("L_k12_wl2")
    e.raw("ds_read_b32 v9, v8")
    e.salu("s_add_u32", sT2, sT2, 1)
    e.raw("s_waitcnt lgkmcnt(0)")
    e.raw("v_readfirstlane_b32 s33, v9")
    e.salu("s_cmp_gt_u32", sT2, SPIN * 16)
    e.raw("s_cbranch_scc1 L_k12_p1ok")
    e.raw(f"s_cmp_eq_u32 s33, {sNonce}")
    e.raw("s_cbranch_scc1 L_k12_p1ok")
    e.raw(f"s_sleep {WSL}")
    e.raw("s_branch L_k12_wl2")
    e.label("L_k12_pl")
    if EARLYP:
        e.raw("s_waitcnt vmcnt(0)")
        e.raw(f"v_cmp_ne_u32 vcc, {sNonce}, v15")
        e.nop(1)
        e.raw("s_and_b32 s33, vcc_hi, 1")
        e.raw("s_or_b32 s33, s33, vcc_lo")
        e.raw("s_cbranch_scc0 L_k12_p1sig")
    e.salu("s_mov_b32", sT0, F1)
    poll(e, "L_k12_p1", vFl, sWS, sT0, 33, V(15), sNonce)
    e.label("L_k12_p1sig")
    e.raw(f"v_mov_b32 v9, {sNonce}")
    e.raw("ds_write_b32 v8, v9")
    e.label("L_k12_p1ok")
    e.vm, e.last = [], {}
    e.stamp(1)
    if S1ST: e.stamp(7, True)
    first_loads()
    st0 = list(e.vm)
    e.raw(f"s_setprio {HPRIO}")
    e.salu("s_cmp_ge_u32", sIdx, 28)
    e.raw("s_cbranch_scc1 L_k12_nogemm")
    helper_loop(e, True, dma_KV, sMt64, sNt, sLdsW, sWoff, sHoff, sHoff1)
    e.raw("s_endpgm")
    e.label("L_k12_nogemm")
    e.lg, e.vm, e.last = [], list(st0), {}
    helper_loop(e, False, dma_KV, sMt64, sNt, sLdsW, sWoff, sHoff, sHoff1)
    e.raw("s_endpgm")


def gemm_setup(e, sMt64, sNt, sLdsW, sWoff, sHoff):
    lane = vLane
    vW = [V(2), V(3), V(4), V(5)]
    vTr = [V(6), V(7)]
    vRw, vRr, vF2 = V(11), V(12), V(13)
    sWl, sHl = S(42), S(43)
    srd(e, sWd, KD, 1792 * 896)
    e.valu("v_lshrrev_b32", vX0, 3, lane)
    e.valu("v_bfe_u32", vX1, lane, 2, 1)
    e.valu("v_bfe_u32", vX2, lane, 4, 1)
    e.valu("v_xor_b32", vX1, vX1, vX2)
    e.valu("v_mul_u32_u24", vW[0], 896, vX0)
    e.valu("v_lshl_add_u32", vW[0], vX1, 6, vW[0])
    e.valu("v_and_b32", vX1, 3, lane)
    e.valu("v_lshl_add_u32", vW[0], vX1, 4, vW[0])
    for i in range(1, 4):
        e.valu("v_add_u32", vW[i], i * (8 * 896 - 1024), vW[0])
    e.salu("s_lshl_b32", sLdsW, sW4, 14)
    e.salu("s_add_u32", sLdsW, sLdsW, WR)
    e.salu("s_mul_i32", sWoff, sW4, 6 * 32 * 896)
    e.salu("s_lshl_b32", sT0, sNt, 7)
    e.salu("s_add_u32", sWoff, sWoff, sT0)
    e.salu("s_lshl_b32", sT0, sW4, 1)
    e.salu("s_add_u32", sT0, sT0, 18)
    e.salu("s_mul_i32", sWl, sT0, 32 * 896)
    e.salu("s_add_u32", sWl, sWl, sWoff)
    e.salu("s_lshl_b32", sHl, sT0, 11)
    e.salu("s_mul_i32", sHoff, sMt64, 2 * H_MT_STRIDE)
    e.salu("s_mul_i32", sT0, sW4, 6 * 2048)
    e.salu("s_add_u32", sHoff, sHoff, sT0)
    e.salu("s_add_u32", sHoff, sHoff, HF)
    e.salu("s_add_u32", sHl, sHl, sHoff)
    e.valu("v_lshrrev_b32", vX1, 5, lane)
    e.valu("v_bfe_u32", vX0, lane, 2, 2)
    e.valu("v_lshl_add_u32", vX0, vX1, 2, vX0)
    e.valu("v_bfe_u32", vX2, lane, 4, 1)
    e.valu("v_lshlrev_b32", vX2, 5, vX2)
    e.valu("v_and_b32", vX1, 3, lane)
    e.valu("v_lshl_add_u32", vX2, vX1, 3, vX2)
    e.valu("v_lshl_add_u32", vX2, vX0, 7, vX2)
    e.valu("v_bfe_u32", vX1, lane, 3, 1)
    e.valu("v_lshl_add_u32", vTr[0], vX1, 6, vX2)
    e.valu("v_xor_b32", vTr[1], 64, vTr[0])
    e.valu("v_add_u32", vTr[0], sLdsW, vTr[0])
    e.valu("v_add_u32", vTr[1], sLdsW, vTr[1])
    e.valu("v_add_u32", vRw, sLdsW, vLane16)
    e.salu("s_lshl_b32", sT0, sW4, 12)
    e.salu("s_add_u32", sT0, sT0, WR)
    e.valu("v_add_u32", vRr, sT0, vLane16)
    e.salu("s_lshr_b32", sT0, sMt64, 1)
    e.valu("v_and_b32", vX0, 15, lane)
    e.valu("v_lshl_add_u32", vF2, vX0, 4, sT0)
    e.valu("v_lshlrev_b32", vF2, 7, vF2)


def helper_loop(e, gemm, dma_KV, sMt64, sNt, sLdsW, sWoff, sHoff, sHoff1):
    lane = vLane
    g = int(gemm)
    ND = 4
    ACC = [[V(80, 16), V(96, 16)], [V(112, 16), V(128, 16)]]
    def HF_(s, st, t): return V(16 + ((s % ND) * 4 + st * 2 + t) * 4, 4)
    def WF(st, u): return V(144 + (st * 2 + u) * 4, 4)
    vW = [V(2), V(3), V(4), V(5)]
    vTr = [V(6), V(7)]
    vRw, vRr, vF2 = V(11), V(12), V(13)
    sWl, sHl = S(42), S(43)
    def dma_Wo(q):
        if q == 0:
            srd(e, sWo, KO, 448 * 896)
        e.salu("s_mul_i32", sT1, sW4, 32 * 896)
        e.salu("s_lshl_b32", sT0, sNt, 7)
        e.salu("s_add_u32", sT1, sT1, sT0)
        e.salu("s_lshl_b32", sT2, sW4, 12)
        e.salu("s_add_u32", "m0", sT2, q * 16384)
        e.salu("s_add_u32", sT0, sT1, q * 128 * 896)
        for i in range(4):
            e.buf_load_lds(vW[i], sWo, sT0, offset=i * 1024, tag="Wo")

    def W_ops(s):
        def w(i):
            if i == 0:
                e.salu("s_add_u32", "m0", sLdsW, (s % ND) * 4096)
                e.salu("s_add_u32", sT2, sWoff if s < 6 else sWl, s * 32 * 896)
            e.buf_load_lds(vW[i], sWd, sT2, offset=i * 1024, tag=("W", s))
        return [lambda i=i: w(i) for i in range(4)]

    def H_ops(s):
        def h(st, t):
            e.salu("s_add_u32", sT1, sHoff if s < 6 else sHl, s * 2048 + t * H_MT_STRIDE)
            e.buf_load(HF_(s, st, t), vLane16, sWS, sT1, offset=st * 1024, flags=LDF)
        return [lambda st=st, t=t: h(st, t) for st in range(2) for t in range(2)]

    def compute(s, side):
        e.wait_vm_tag(("W", s))
        for st in range(2):
            for u in range(2):
                for j in range(2):
                    e.ds_read("ds_read_b64_tr_b16", WF(st, u)[2 * j:2 * j + 2], vTr[u],
                              offset=(s % ND) * 4096 + st * 2048 + j * 1024)
        if side: side.pop(0)()
        for st in range(2):
            for u in range(2):
                for t in range(2):
                    e.mfma(ACC[u][t], WF(st, u), HF_(s, st, t), 0 if (s == 0 and st == 0) else None)
                    if side: side.pop(0)()

    P2 = POLL2
    comp = {C0 + s: [s] for s in range(6)}
    late = list(range(6, 14 - DEFER))
    i0 = max(P2 + 2, C0 + 6)
    LASTI = 15 if FUSE3 else 14
    for i in range(i0, LASTI):
        left = LASTI - i
        k = -(-len(late) // left) if len(late) > left and i >= 12 else 1
        comp.setdefault(i, [])
        comp[i] += late[:k]; late = late[k:]
    assert not late, late
    done_at = {s: i for i, l in comp.items() for s in l}
    todo = [(s, k) for s in range(14) for k in ("H", "W")]

    def check(name, base, nl):
        e.valu("v_cmp_ne_u32", "vcc", sNonce, V(8))
        e.nop(1)
        e.raw(f"s_and_b32 s33, vcc_lo, {hex((1 << nl) - 1)}")
        e.raw(f"s_cbranch_scc0 {name}ok")
        keep = list(e.vm)
        e.salu("s_mov_b32", sT0, base)
        poll(e, name, vF2, sWS, sT0, nl, V(8), sNonce)
        e.label(name + "ok")
        e.vm = keep
        e.last = {}

    e.wait_vm_tag(("KV", 1))
    e.stamp(2)
    e.barrier()
    for i in range(16):
        if i in (4, 8, 12): e.stamp(2 + i // 4)
        if i + 3 <= 15:
            dma_KV(i + 3)
        if i == 2:
            flag_store(e, F2)
        if i == 3 and gemm:
            e.valu("v_mov_b32", V(248), SIG + 64)
            e.valu("v_not_b32", V(247), sNonce)
            e.ds_write("ds_write_b32", V(248), V(247))
        if gemm:
            if i in (C0 - 2, P2 - 1):
                e.salu("s_mov_b32", sT0, F1B if i == C0 - 2 else F2)
                e.buf_load(V(8), vF2, sWS, sT0, offset=0, flags=" sc1")
            if i == C0 - 1:
                check("L_k12_p1b", F1B, 12)
            if i == P2:
                e.stamp(10)
                check("L_k12_p2", F2, 16)
                e.stamp(11)
            side = []
            budget = (3 if i < 13 else 4) if not DEFER else BUD
            for (s, k) in list(todo):
                if budget == 0: break
                ok = (s < ND or done_at[s - ND] < i) and not (k == "H" and (i < C0 - 1 or (s >= 6 and i < P2))) and not (k == "W" and s >= 2 and i < 1)
                if ok:
                    side += H_ops(s) if k == "H" else W_ops(s)
                    todo.remove((s, k)); budget -= 1
            for s in comp.get(i, []):
                compute(s, side)
            while side: side.pop(0)()
            if i == LASTI and not DEFER:
                assert not todo
                for u in range(2):
                    for t in range(2):
                        for j in range(4):
                            e.ds_write("ds_write_b128", vRw, ACC[u][t][4 * j:4 * j + 4],
                                       offset=(t * 2 + u) * 4096 + j * 1024)
                e.wait_lg_all()
                if not FUSE3: e.raw("s_setprio 2")
            if i == 15 and not FUSE3:
                X = [V(16 + 16 * w, 16) for w in range(4)]
                for w in range(4):
                    for j in range(4):
                        e.ds_read("ds_read_b128", X[w][4 * j:4 * j + 4], vRr, offset=w * 16384 + j * 1024)
                for r in range(16):
                    e.valu("v_add_f32", X[0][r], X[0][r], X[1][r])
                    e.valu("v_add_f32", X[2][r], X[2][r], X[3][r])
                for r in range(16):
                    e.valu("v_add_f32", X[0][r], X[0][r], X[2][r])
                for j in range(8):
                    e.valu("v_cvt_pk_bf16_f32", X[1][j], X[0][2 * j], X[0][2 * j + 1])
                e.salu("s_lshr_b32", sT0, sW4, 1)
                e.salu("s_lshl_b32", sT1, sMt64, 1)
                e.salu("s_add_u32", sT0, sT0, sT1)
                e.salu("s_mul_i32", sT0, sT0, 14)
                e.salu("s_and_b32", sT1, sW4, 1)
                e.salu("s_add_u32", sT0, sT0, sT1)
                e.salu("s_lshl_b32", sT1, sNt, 1)
                e.salu("s_add_u32", sT0, sT0, sT1)
                e.salu("s_lshl_b32", sT0, sT0, 11)
                e.salu("s_add_u32", sT0, sT0, BF)
                e.buf_store(X[1][0:4], vLane16, sWS, sT0, offset=0, flags=STF)
                e.buf_store(X[1][4:8], vLane16, sWS, sT0, offset=1024, flags=STF)
        if i + 2 <= 15:
            e.wait_vm_tag(("KV", i + 2))
        if i == 13 and not FUSE3:
            srd(e, sWo, KO, 448 * 896)
            e.salu("s_lshl_b32", sT0, sIdx, 2)
            e.salu("s_add_u32", sT0, sT0, sW4)
            e.salu("s_mul_i32", sT0, sT0, 25 * 128)
            e.valu("v_min_u32", vX0, 24, lane)
            e.valu("v_lshlrev_b32", vX0, 7, vX0)
            e.buf_load(V(10), vX0, sWo, sT0, offset=0)
        if FUSE3 and gemm and i >= 13:
            dma_Wo(i - 13)
        if i < 15 or FUSE3:
            e.barrier()
    if FUSE3:
        sHead, sQblk = S(29), S(30)
        e.barrier()
        if gemm:
            assert not todo
            dma_Wo(3)
            dl = list(range(14 - DEFER, 14))
            for s_ in dl[:DSPLIT]:
                compute(s_, [])
            e.wait_vm_all()
        e.raw("s_setprio 3")
        e.barrier()
        flag_store(e, F3, sQblk, sHead)
        if gemm and DEFER:
            for s_ in dl[DSPLIT:]:
                compute(s_, [])
            for u in range(2):
                for t in range(2):
                    for j in range(4):
                        e.ds_write("ds_write_b128", vRw, ACC[u][t][4 * j:4 * j + 4],
                                   offset=(t * 2 + u) * 4096 + j * 1024)
            e.wait_lg_all()
            e.barrier()
            e.barrier()
        if not gemm:
            e.salu("s_sub_u32", sT0, S(2), sW4)
            e.salu("s_cmp_lg_u32", sT0, 255)
            e.raw("s_cbranch_scc1 L_k12_nadv")
            e.valu("v_lshlrev_b32", vF2, 7, lane)
            for j in range(4):
                e.salu("s_mov_b32", sT0, F2 + j * 8192)
                poll(e, f"L_k12_pc{j}", vF2, sWS, sT0, 64, V(15), sNonce)
            e.salu("s_mov_b32", sT0, NONCE)
            e.raw("s_mov_b64 exec, 1")
            e.buf_store(V(9), V(249), sWS, sT0, offset=0, flags=" sc1")
            e.raw("s_mov_b64 exec, -1")
            e.label("L_k12_nadv")
        if gemm:
            if not S1ST: e.stamp(6, True)
            e.salu("s_lshr_b32", sT0, sMt64, 1)
            e.salu("s_lshl_b32", sT0, sT0, 11)
            e.salu("s_add_u32", sT0, sT0, F3)
            e.valu("v_lshlrev_b32", vF2, 7, lane)
            e.raw(f"v_mov_b32 v8, {SIG + 64}")
            e.salu("s_cmp_lg_u32", sW4, 1)
            e.raw("s_cbranch_scc1 L_k12_w3")
            poll(e, "L_k12_p3", vF2, sWS, sT0, 16, V(15), sNonce)
            e.raw(f"v_mov_b32 v9, {sNonce}")
            e.raw("ds_write_b32 v8, v9")
            e.raw("s_branch L_k12_p3ok")
            e.label("L_k12_w3")
            e.salu("s_mov_b32", sT2, 0)
            e.label("L_k12_w3b")
            e.raw("ds_read_b32 v9, v8")
            e.salu("s_add_u32", sT2, sT2, 1)
            e.raw("s_waitcnt lgkmcnt(0)")
            e.raw("v_readfirstlane_b32 s33, v9")
            e.salu("s_cmp_gt_u32", sT2, SPIN * 16)
            e.raw("s_cbranch_scc1 L_k12_p3ok")
            e.raw(f"s_cmp_eq_u32 s33, {sNonce}")
            e.raw("s_cbranch_scc1 L_k12_p3ok")
            e.raw("s_sleep 1")
            e.raw("s_branch L_k12_w3b")
            e.label("L_k12_p3ok")
            e.vm, e.last = [], {}
            if not S1ST: e.stamp(7, True)
            e.salu("s_lshr_b32", sT0, sW4, 1)
            e.salu("s_lshl_b32", sT0, sT0, 15)
            e.salu("s_and_b32", sT1, sW4, 1)
            e.salu("s_lshl_b32", sT1, sT1, 12)
            e.salu("s_add_u32", sT2, sT0, sT1)
            e.salu("s_lshl_b32", sT1, sMt64, 16)
            e.salu("s_add_u32", sT1, sT1, sT2)
            e.salu("s_add_u32", sT1, sT1, OF)
            for c in range(4):
                e.salu("s_add_u32", "m0", sT2, WR + c * 8192)
                e.salu("s_add_u32", sT0, sT1, c * 8192)
                for i in range(4):
                    e.buf_load_lds(vLane16, sWS, sT0, offset=i * 1024, tag=("O", c), flags=LDF)
                if c >= OLEAD:
                    e.wait_vm_tag(("O", c - OLEAD))
                    e.barrier()
            for c in range(4 - OLEAD, 4):
                e.wait_vm_tag(("O", c))
                e.barrier()
    e.stamp(9); e.stamp(13, True)
    e.dump_stamps(sWS, 0, sWave)


K12_DESC = dict(name=KNAME, vgpr=256, acc=256, sgpr=96, grid=256, block=512, lds=LDS)
```

```python
from emit import *
from layout import *
import os
import struct

ROT1 = int(os.environ.get('ROT1', '1'))
STF = ' sc1'
LDF = ' sc1'
EB1 = int(os.environ.get('EB1', '3'))
N1 = int(os.environ.get('N1', '13'))
N1B = int(os.environ.get('N1B', '17'))
N1X = int(os.environ.get('N1X', '9'))
PRE = int(os.environ.get('PRE', '1'))
QANY = int(os.environ.get('QANY', '1'))
PRES = eval(os.environ.get('PRES', '(4, 24, 44)'))
C0 = int(os.environ.get('C0', '2'))
POLL2 = int(os.environ.get('POLL2', '6'))
SPIN = 1 << 17
CODEPF = int(os.environ.get('CODEPF', '0'))
XORD = int(os.environ.get('XORD', '0'))
EARLYP = int(os.environ.get('EARLYP', '1'))
MAP = int(os.environ.get('MAP', '0'))
DSPLIT = int(os.environ.get('DSPLIT', '0'))
BUD = int(os.environ.get('BUD', '2'))
DEFER = int(os.environ.get('DEFER', '4'))
S1ST = int(os.environ.get('S1ST', '0'))
TPRIO = int(os.environ.get('TPRIO', '0'))
WSL = int(os.environ.get('WSL', '2'))
LP0 = int(os.environ.get('LP0', '99'))
OLEAD = int(os.environ.get('OLEAD', '3'))
FUSE3 = int(os.environ.get('FUSE3', '1'))
KOUT = 92
KNAME = "gated_mix__softmax_full_mha__swiglu_ffn__prompt_kernel" if FUSE3 else "k12_kernel"
sOut = S(12, 4)
SLEEP = int(os.environ.get('SLEEP', '4'))
HPRIO = int(os.environ.get('HPRIO', '0'))

LOG2E = 1.4426950408889634
QSCALE = (28 ** -0.5) * LOG2E
L_LO = 2.0 ** -50
L_HI = 2.0 ** 60


def f2u(x):
    return struct.unpack("<I", struct.pack("<f", x))[0]


sX, sWg, sWu, sWq, sWS = S(4, 4), S(8, 4), S(12, 4), S(16, 4), S(20, 4)
sWd, sGw, sDbg, sWo = S(64, 4), S(60, 4), S(44, 4), S(8, 4)
sWave, sMblk, sCg, sW4 = S(24), S(25), S(26), S(28)
sT0, sT1, sT2 = S(32), S(33), S(31)
sRot = S(3)
sXcd, sIdx = S(68), S(69)
KX, KQ, KO, KG, KU, KD, KGW, KDBG, KWS = 72, 74, 76, 80, 82, 84, 86, 88, 90

BR = 114688
WR = 65536
QL = 65536 + 8192
SIG = 131072
SIG1 = 49152
ARED = 147456
LDS = 163840
vX0, vX1, vX2, vLane, vLane16 = V(250), V(251), V(252), V(253), V(254)


def srd(e, s, lo, size):
    e.salu("s_mov_b32", s[0], S(lo))
    e.salu("s_mov_b32", s[1], S(lo + 1))
    e.salu("s_mov_b32", s[2], size)
    e.salu("s_mov_b32", s[3], "0x20000")


def gen_k12(e):
    e.label(KNAME)
    e.salu("s_cmp_ge_u32", S(2), 256)
    e.raw("s_cbranch_scc1 L_k12_end")
    e.s_load(S(72, 4), S(0, 2), 0)
    e.s_load(S(76, 2), S(0, 2), 16)
    e.s_load(S(80, 8), S(0, 2), 32)
    e.s_load(S(88, 4), S(0, 2), 72)
    e.s_load(S(92, 2), S(0, 2), 64)
    if CODEPF == 2:
        e.raw("s_getpc_b64 s[52:53]")
        e.label("L_k12_pc")
        e.salu("s_lshl_b32", sT0, S(2), 11)
        e.salu("s_and_b32", sT0, sT0, "0xc000")
        e.valu("v_lshlrev_b32", vX0, 5, V(0))
        e.valu("v_add_u32", vX0, sT0, vX0)
        e.raw(f"v_min_u32 {vX0}, L_code_end-L_k12_pc-4, {vX0}")
        e.raw(f"v_mov_b32 {vX2}, s53")
        e.raw(f"v_add_co_u32 {vX0}, vcc, s52, {vX0}")
        e.raw("s_nop 1")
        e.raw(f"v_addc_co_u32 {vX1}, vcc, 0, {vX2}, vcc")
        e.raw(f"global_load_dword v246, v[{vX0.lo}:{vX1.lo}], off")
    e.salu("s_and_b32", sXcd, S(2), 7)
    e.salu("s_lshr_b32", sIdx, S(2), 3)
    if MAP == 0:
        e.salu("s_and_b32", sMblk, sXcd, 1)
        e.salu("s_lshl_b32", sMblk, sMblk, 3)
        e.salu("s_and_b32", sRot, sIdx, 7)
        e.salu("s_add_u32", sMblk, sMblk, sRot)
        e.salu("s_lshr_b32", sT0, sXcd, 1)
        e.salu("s_lshr_b32", sT1, sIdx, 3)
        e.salu("s_mul_i32", sCg, sT0, 3)
        e.salu("s_add_u32", sCg, sCg, sT1)
        e.salu("s_add_u32", sT0, sT0, 12)
        e.salu("s_cmp_eq_u32", sT1, 3)
        e.salu("s_cselect_b32", sCg, sT0, sCg)
        if ROT1:
            e.salu("s_lshl_b32", sT1, sT1, 1)
            e.salu("s_add_u32", sRot, sRot, sT1)
            e.salu("s_sub_u32", sT0, sRot, 7)
            e.salu("s_cmp_ge_u32", sRot, 7)
            e.salu("s_cselect_b32", sRot, sT0, sRot)
    else:
        e.salu("s_and_b32", sMblk, sXcd, 3)
        e.salu("s_lshl_b32", sMblk, sMblk, 2)
        e.salu("s_and_b32", sRot, sIdx, 3)
        e.salu("s_add_u32", sMblk, sMblk, sRot)
        e.salu("s_lshr_b32", sT0, sXcd, 2)
        e.salu("s_lshr_b32", sT1, sIdx, 2)
        e.salu("s_mul_i32", sCg, sT0, 6)
        e.salu("s_add_u32", sCg, sCg, sT1)
        e.salu("s_lshl_b32", sT0, sT0, 1)
        e.salu("s_add_u32", sT0, sT0, sT1)
        e.salu("s_add_u32", sT0, sT0, 6)
        e.salu("s_cmp_ge_u32", sT1, 6)
        e.salu("s_cselect_b32", sCg, sT0, sCg)
        e.salu("s_lshl_b32", sRot, sRot, 1)
        e.salu("s_add_u32", sRot, sRot, sT1)
        e.salu("s_sub_u32", sT0, sRot, 7)
        e.salu("s_cmp_ge_u32", sRot, 7)
        e.salu("s_cselect_b32", sRot, sT0, sRot)
    if ROT1:
        pass
    else:
        e.salu("s_mov_b32", sRot, 0)
    e.valu("v_lshrrev_b32", vX0, 6, V(0))
    e.valu("v_and_b32", vLane, 63, V(0))
    e.valu("v_readfirstlane_b32", sWave, vX0)
    e.valu("v_lshlrev_b32", vLane16, 4, vLane)
    e.salu("s_and_b32", sW4, sWave, 3)
    e.salu("s_cmp_lt_u32", sWave, 4)
    e.raw("s_cbranch_scc1 L_k12_heavy")
    saved = list(e.lg)

    def reset():
        e.lg, e.vm, e.last, e.smem_pending = list(saved), [], {}, True
    e.raw("s_setprio 3")
    e.stamp(12, True)
    e.salu("s_cmp_ge_u32", sCg, 12)
    e.raw("s_cbranch_scc1 L_k12_loadY")
    e.flush_hazards()
    gen_loader1(e, False)
    e.raw("s_branch L_k12_help2")
    e.label("L_k12_loadY")
    reset()
    gen_loader1(e, True)
    e.label("L_k12_help2")
    e.lg, e.vm, e.last = [], [], {}
    gen_helper2(e)
    e.label("L_k12_heavy")
    reset()
    if CODEPF == 1:
        e.raw("s_getpc_b64 s[52:53]")
        e.label("L_k12_pc")
        e.salu("s_lshl_b32", sT0, sIdx, 2)
        e.salu("s_add_u32", sT0, sT0, sW4)
        e.salu("s_mul_i32", sT0, sT0, 3 * 128)
        e.raw(f"s_sub_u32 s52, s52, L_k12_pc-{KNAME}")
        e.raw("s_subb_u32 s53, s53, 0")
        e.valu("v_min_u32", vX0, 2, vLane)
        e.valu("v_lshlrev_b32", vX0, 7, vX0)
        e.valu("v_add_u32", vX0, sT0, vX0)
        e.raw(f"v_min_u32 {vX0}, L_code_end-{KNAME}-4, {vX0}")
        e.raw(f"v_mov_b32 {vX2}, s53")
        e.raw(f"v_add_co_u32 {vX0}, vcc, s52, {vX0}")
        e.raw("s_nop 1")
        e.raw(f"v_addc_co_u32 {vX1}, vcc, 0, {vX2}, vcc")
        e.raw(f"global_load_dword v246, v[{vX0.lo}:{vX1.lo}], off")
    e.salu("s_cmp_ge_u32", sCg, 12)
    e.raw("s_cbranch_scc1 L_k12_compY")
    gen_compute1(e, False)
    e.raw("s_branch L_k12_attn")
    e.label("L_k12_compY")
    reset()
    gen_compute1(e, True)
    e.label("L_k12_attn")
    e.lg, e.vm, e.last = [], [], {}
    e.nop(2)
    gen_attn(e)
    e.label("L_k12_end")
    e.raw("s_endpgm")


sNonce = S(27)


def poll(e, name, vaddr, srd_, soff, nlanes, vtmp, cmp_s):
    mask = (1 << nlanes) - 1
    e.wait_lg_all()
    e.raw(f"s_mov_b32 exec_lo, {hex(mask & 0xffffffff)}")
    e.raw(f"s_mov_b32 exec_hi, {hex(mask >> 32)}")
    e.salu("s_mov_b32", sT2, 0)
    e.label(name)
    e.raw(f"buffer_load_dword {vtmp}, {vaddr}, {srd_}, {soff} offen sc1")
    e.salu("s_add_u32", sT2, sT2, 1)
    e.raw("s_waitcnt vmcnt(0)")
    e.raw(f"v_cmp_ne_u32 vcc, {cmp_s}, {vtmp}")
    e.salu("s_cmp_gt_u32", sT2, SPIN)
    e.raw(f"s_cbranch_scc1 {name}_out")
    e.raw("s_and_b64 exec, exec, vcc")
    e.raw(f"s_cbranch_scc0 {name}_out")
    if SLEEP: e.raw(f"s_sleep {SLEEP}")
    e.raw(f"s_branch {name}")
    e.label(name + "_out")
    e.raw("s_mov_b64 exec, -1")
    e.vm = []
    e.last = {}


def flag_store(e, base, hi=None, lo=None):
    e.salu("s_lshl_b32", sT0, hi or sCg, 4)
    e.salu("s_add_u32", sT0, sT0, lo or sMblk)
    e.salu("s_lshl_b32", sT0, sT0, 7)
    e.salu("s_add_u32", sT0, sT0, base)
    e.salu("s_min_u32", sT1, sW4, 1)
    e.salu("s_lshl_b32", sT1, sT1, 19)
    e.salu("s_add_u32", sT0, sT0, sT1)
    e.valu("v_mov_b32", V(9), sNonce)
    e.valu("v_mov_b32", V(249), 0)
    e.raw("s_mov_b64 exec, 1")
    e.buf_store(V(9), V(249), sWS, sT0, offset=0, flags=" sc1")
    e.raw("s_mov_b64 exec, -1")


def gen_loader1(e, typeY):
    ty = int(typeY)
    lane = vLane
    vA = [V(1), V(2), V(3), V(4)]
    vB = [V(5), V(6)]
    vB2 = [V(7), V(8)]
    vGa = V(13)
    vG = V(16, 7)
    sAoff, sB0, sQo, sVo = S(29), S(30), S(34), S(48)
    sLA, sLB = S(35), S(36)
    sCh = [S(37 + i) for i in range(7)]
    e.valu("v_lshrrev_b32", vX0, 3, lane)
    e.valu("v_and_b32", vX1, 7, lane)
    e.valu("v_lshrrev_b32", vX2, 1, vX0)
    e.valu("v_xor_b32", vX2, vX2, vX1)
    e.valu("v_mul_u32_u24", vA[0], 896, vX0)
    e.valu("v_lshl_add_u32", vA[0], vX2, 4, vA[0])
    e.valu("v_xor_b32", vA[1], 64, vA[0])
    e.valu("v_add_u32", vA[2], 2 * 6144, vA[0])
    e.valu("v_add_u32", vA[3], 3 * 6144, vA[1])
    e.valu("v_add_u32", vA[1], 6144, vA[1])
    e.valu("v_bfe_u32", vX1, lane, 2, 1)
    e.valu("v_bfe_u32", vX2, lane, 4, 1)
    e.valu("v_xor_b32", vX1, vX1, vX2)
    e.valu("v_and_b32", vX2, 3, lane)
    for vv, l_, us in ((vB, 3584, 64), (vB2, 2688, 56)):
        e.valu("v_mul_u32_u24", vv[0], l_, vX0)
        e.valu("v_mul_u32_u24", vv[1], us, vX1)
        e.valu("v_add_u32", vv[0], vv[0], vv[1])
        e.valu("v_lshl_add_u32", vv[0], vX2, 4, vv[0])
        e.valu("v_add_u32", vv[1], 8 * l_ - 1024, vv[0])
    e.salu("s_lshl_b32", sT0, sMblk, 2)
    e.salu("s_add_u32", sT0, sT0, sW4)
    e.salu("s_mul_i32", sAoff, sT0, 32 * 896)
    e.salu("s_mul_i32", sT0, sW4, 16 * 3584)
    e.salu("s_lshl_b32", sB0, sCg, 7)
    e.salu("s_add_u32", sB0, sB0, sT0)
    e.salu("s_mul_i32", sT0, sW4, 16 * 2688)
    e.salu("s_mul_i32", sQo, sCg, 112)
    e.salu("s_add_u32", sQo, sQo, sT0)
    if typeY:
        e.salu("s_mul_i32", sVo, sCg, 224)
        e.salu("s_add_u32", sVo, sVo, sT0)
        e.salu("s_sub_u32", sVo, sVo, 12 * 224 - 1792)
    e.salu("s_lshl_b32", sLA, sW4, 12)
    e.salu("s_lshl_b32", sLB, sW4, 11)
    e.salu("s_add_u32", sLB, sLB, BR)
    e.salu("s_mov_b32", sCh[0], sRot)
    for c in range(1, 7):
        e.salu("s_add_u32", sCh[c], sCh[c - 1], 1)
        e.salu("s_cmp_eq_u32", sCh[c], 7)
        e.salu("s_cselect_b32", sCh[c], 0, sCh[c])
    e.wait_lg_all()
    srd(e, sX, KX, 2048 * 896)
    srd(e, sWg, KG, 448 * 3584)
    srd(e, sWu, KU, 448 * 3584)
    srd(e, sWq, KQ, 448 * 2688)

    ff = typeY or XORD
    pair0 = 7 if ff else 0

    def dmaA(c, n):
        e.salu("s_lshl_b32", sT0, sCh[c], 7)
        e.salu("s_add_u32", "m0", sLA, c * 16384)
        e.salu("s_add_u32", sT0, sT0, sAoff)
        for i in range(4):
            e.buf_load_lds(vA[i], sX, sT0, offset=i * 1024, tag=("C", n))

    def dmaB(n):
        sl = (n % 3) * 16384
        if pair0 <= n < pair0 + 4:
            for r in range(2):
                c = 2 * (n - pair0) + r
                if c < 7:
                    if not ff: dmaA(c, n)
                    e.salu("s_mul_i32", sT1, sCh[c], 64 * 2688)
                    e.salu("s_add_u32", "m0", sLB, sl + r * 8192)
                    e.salu("s_add_u32", sT0, sQo, sT1)
                    for i in range(2):
                        e.buf_load_lds(vB2[i], sWq, sT0, offset=i * 1024, tag=("C", n))
        elif n < 7 and typeY:
            dmaA(n, n)
            e.salu("s_mul_i32", sT1, sCh[n], 64 * 2688)
            for r in range(2):
                e.salu("s_add_u32", "m0", sLB, sl + r * 8192)
                e.salu("s_add_u32", sT1, sT1, sVo if r == 0 else 112)
                for i in range(2):
                    e.buf_load_lds(vB2[i], sWq, sT1, offset=i * 1024, tag=("C", n))
        else:
            c = (n if ff else n - 4) if n < 11 else n - 11
            if ff and n < 7: dmaA(n, n)
            e.salu("s_mul_i32", sT1, sCh[c], 64 * 3584)
            e.salu("s_add_u32", sT1, sT1, sB0)
            if n >= 11: e.salu("s_add_u32", sT1, sT1, 12 * 128)
            for r in range(2):
                e.salu("s_add_u32", "m0", sLB, sl + r * 8192)
                e.nop(1)
                for i in range(2):
                    e.buf_load_lds(vB[i], (sWg, sWu)[r], sT1, offset=i * 1024, tag=("C", n))

    def land(n):
        e.wait_vm_tag(("C", n))
        if not typeY and pair0 <= n < pair0 + 4:
            e.raw("s_mov_b64 exec, 0xffff")
            for r in range(2):
                c = 2 * (n - pair0) + r
                if c < 7:
                    e.ds_write("ds_write_b16", vGa, vG[c], offset=(n % 3) * 16384 + r * 8192)
            e.raw("s_mov_b64 exec, -1")
            e.wait_lg_all()

    dmaB(0)
    if not typeY:
        srd(e, sGw, KGW, 896)
        e.valu("v_and_b32", vX0, 15, lane)
        e.valu("v_lshlrev_b32", vX1, 1, vX0)
        e.salu("s_lshl_b32", sT0, sW4, 5)
        e.salu("s_lshl_b32", sT2, sCg, 12)
        e.salu("s_add_u32", sT0, sT0, sT2)
        for c in range(7):
            e.salu("s_lshl_b32", sT2, sCh[c], 7)
            e.salu("s_add_u32", sT2, sT2, sT0)
            e._issue(f"buffer_load_ushort {vG[c]}, {vX1}, {sGw}, {sT2} offen", "vmem", vX1.regs() + sGw.regs() + sT2.regs(), vG[c].regs())
            e.vm.append((-1, set(vG[c].regs()), "gw"))
        e.valu("v_lshlrev_b32", vGa, 7, vX0)
        e.valu("v_bfe_u32", vX1, lane, 1, 1)
        e.valu("v_lshl_add_u32", vGa, vX1, 6, vGa)
        e.valu("v_add_u32", vGa, sLB, vGa)
        e.valu("v_add_u32", vGa, 56, vGa)
    dmaB(1)
    srd(e, sWS, KWS, WS_USED)
    e.valu("v_mov_b32", V(12), 0)
    e.salu("s_mov_b32", sT0, NONCE)
    e.buf_load(V(11), V(12), sWS, sT0, offset=0, flags=" sc1")
    land(0)
    e.barrier()
    for n in range(16):
        if n == LP0: e.raw('s_setprio 0')
        if n + 2 < 18:
            dmaB(n + 2)
        if n == (N1 if ff else N1X):
            flag_store(e, F1)
            if S1ST: e.stamp(6, True)
        if n == 2:
            e.valu("v_readfirstlane_b32", sNonce, V(11))
            e.nop(1)
            e.salu("s_add_u32", sNonce, sNonce, "0x9e3779b9")
        if n == 15:
            vFl = V(14)
            e.salu("s_lshl_b32", sT0, sXcd, 4)
            e.salu("s_add_u32", sT1, sT0, 128)
            e.valu("v_add_u32", vFl, sT1, lane)
            e.salu("s_lshr_b32", sT1, sXcd, 1)
            e.salu("s_lshl_b32", sT1, sT1, 4)
            e.salu("s_add_u32", sT1, sT1, 192 - 16)
            e.valu("v_add_u32", vX0, sT1, lane)
            e.valu("v_cmp_le_u32", "vcc", 16, lane)
            e.valu("v_cndmask_b32", vFl, vFl, vX0)
            e.salu("s_and_b32", sT1, sIdx, 15)
            e.salu("s_add_u32", sT0, sT0, sT1)
            e.valu("v_mov_b32", vX0, sT0)
            e.valu("v_cmp_le_u32", "vcc", 32, lane)
            e.valu("v_cndmask_b32", vFl, vFl, vX0)
            e.valu("v_lshlrev_b32", vFl, 7, vFl)
        land(n + 1)
        e.barrier()


def gen_compute1(e, typeY):
    ty = int(typeY)
    lane = vLane
    sWm, sWn, sMt = S(29), S(30), S(34)
    sOutH, sOutV, sOutQK, sQKstr, sQKmul, sNL2E = S(35), S(48), S(36), S(37), S(38), S(39)
    sMask = S(40, 2)
    vAr = [[V(232 + i) for i in range(4)], [V(236 + i) for i in range(4)]]
    vTr = V(240)
    vMulHi, vVconst = V(241), V(242)
    TT = 220
    def ACC(p, r, t):
        if p == 0: return V(128 + 16 * t, 16)
        return V(64 * (p - 1) + 32 * r + 16 * t, 16)
    NBUF = 3
    def fA(n, t): return V(160 + (n % NBUF) * 16 + t * 4, 4)
    def fB(n, i): return V(160 + (n % NBUF) * 16 + 8 + i * 4, 4)
    e.salu("s_lshr_b32", sWm, sW4, 1)
    e.salu("s_and_b32", sWn, sW4, 1)
    e.salu("s_lshl_b32", sMt, sMblk, 1)
    e.salu("s_add_u32", sMt, sMt, sWm)
    e.salu("s_lshl_b32", sMt, sMt, 1)
    e.valu("v_and_b32", vX0, 31, lane)
    e.valu("v_lshrrev_b32", vX1, 5, lane)
    e.valu("v_bfe_u32", vX2, lane, 1, 3)
    e.valu("v_xor_b32", vX2, vX2, vX1)
    e.valu("v_lshlrev_b32", vX0, 7, vX0)
    e.salu("s_lshl_b32", sT0, sWm, 13)
    e.valu("v_add_u32", vX0, sT0, vX0)
    for k in range(4):
        e.valu("v_xor_b32", vAr[0][k], 2 * k, vX2)
        e.valu("v_lshl_add_u32", vAr[0][k], vAr[0][k], 4, vX0)
        e.valu("v_add_u32", vAr[1][k], 65536, vAr[0][k])
    e.valu("v_bfe_u32", vX0, lane, 2, 2)
    e.valu("v_lshl_add_u32", vX0, vX1, 3, vX0)
    e.valu("v_bfe_u32", vX2, lane, 4, 1)
    e.valu("v_lshlrev_b32", vX2, 5, vX2)
    e.valu("v_and_b32", vX1, 3, lane)
    e.valu("v_lshl_add_u32", vX2, vX1, 3, vX2)
    e.valu("v_lshl_add_u32", vX2, vX0, 7, vX2)
    e.valu("v_bfe_u32", vX1, lane, 3, 1)
    e.valu("v_xor_b32", vX1, sWn, vX1)
    e.valu("v_lshl_add_u32", vTr, vX1, 6, vX2)
    e.valu("v_add_u32", vTr, BR, vTr)
    e.salu("s_mov_b32", sNL2E, hex(f2u(-LOG2E)))
    e.salu("s_lshl_b32", sT2, sCg, 1)
    e.salu("s_add_u32", sT2, sT2, sWn)
    e.salu("s_mul_i32", sOutH, sMt, H_MT_STRIDE)
    e.salu("s_lshl_b32", sT1, sT2, 11)
    e.salu("s_add_u32", sOutH, sOutH, sT1)
    e.salu("s_add_u32", sOutH, sOutH, HF)
    if typeY:
        e.salu("s_sub_u32", sT1, sCg, 12)
        e.salu("s_lshl_b32", sT0, sT1, 2)
        e.salu("s_add_u32", sT0, sT0, sWn)
        e.salu("s_lshl_b32", sT0, sT0, 6)
        e.salu("s_add_u32", sT0, sT0, sMt)
        e.salu("s_lshl_b32", sOutV, sT0, 12)
        e.salu("s_add_u32", sOutV, sOutV, KVF + 2048)
    e.salu("s_and_b32", sT1, sT2, 15)
    e.salu("s_lshl_b32", sT1, sT1, 6)
    e.salu("s_add_u32", sT1, sT1, sMt)
    e.salu("s_cmp_lt_u32", sT2, 16)
    e.salu("s_cselect_b32", sQKstr, 11, 12)
    e.salu("s_cselect_b32", sOutQK, QF, KVF)
    e.salu("s_cselect_b32", sQKmul, hex(f2u(QSCALE)), 1.0)
    e.salu("s_lshl_b32", sQKstr, 1, sQKstr)
    e.salu("s_mul_i32", sT1, sT1, sQKstr)
    e.salu("s_add_u32", sOutQK, sOutQK, sT1)
    e.valu("v_cmp_gt_u32", "vcc", 32, lane)
    e.valu("v_mov_b32", vX0, sQKmul)
    e.valu("v_mov_b32", vX1, 0)
    e.valu("v_cndmask_b32", vMulHi, vX1, vX0)
    if typeY:
        e.valu("v_and_b32", vX0, 31, lane)
        e.valu("v_cmp_eq_u32", "vcc", 28, vX0)
        e.valu("v_mov_b32", vX2, "0x3f803f80")
        e.valu("v_cndmask_b32", vVconst, vX1, vX2)
        e.valu("v_cmp_le_u32", sMask, 28, vX0)
    e.wait_lg_all()
    srd(e, sWS, KWS, WS_USED)
    srd(e, sWd, KD, 1792 * 896)

    def epi_h(p, pk=False):
        ops = []
        for t in range(2):
            G, U = ACC(p, 0, t), ACC(p, 1, t)
            for hgrp in range(2):
                rs = list(range(8 * hgrp, 8 * hgrp + 8))
                T = V(TT, 8)
                if not pk:
                    for r in rs: ops.append((1, lambda r=r, G=G, T=T: e.valu("v_mul_f32", T[r % 8], sNL2E, G[r])))
                    for r in rs:
                        ops.append((2, lambda r=r, T=T: e.valu("v_exp_f32", T[r % 8], T[r % 8])))
                        ops.append((1, lambda r=r, G=G, U=U: e.valu("v_mul_f32", G[r], G[r], U[r])))
                    for r in rs: ops.append((1, lambda r=r, T=T: e.valu("v_add_f32", T[r % 8], 1.0, T[r % 8])))
                    for r in rs: ops.append((2, lambda r=r, T=T: e.valu("v_rcp_f32", T[r % 8], T[r % 8])))
                    for r in rs: ops.append((1, lambda r=r, G=G, T=T: e.valu("v_mul_f32", G[r], G[r], T[r % 8])))
                else:
                    C = V(228, 4)
                    for r in rs[::2]: ops.append((1, lambda r=r, G=G, T=T: e.valu("v_pk_mul_f32", T[r % 8:r % 8 + 2], G[r:r + 2], C[0:2])))
                    for r in rs:
                        ops.append((2, lambda r=r, T=T: e.valu("v_exp_f32", T[r % 8], T[r % 8])))
                        if r % 2: ops.append((1, lambda r=r, G=G, U=U: e.valu("v_pk_mul_f32", G[r - 1:r + 1], G[r - 1:r + 1], U[r - 1:r + 1])))
                    for r in rs[::2]: ops.append((1, lambda r=r, T=T: e.valu("v_pk_add_f32", T[r % 8:r % 8 + 2], T[r % 8:r % 8 + 2], C[2:4])))
                    for r in rs: ops.append((2, lambda r=r, T=T: e.valu("v_rcp_f32", T[r % 8], T[r % 8])))
                    for r in rs[::2]: ops.append((1, lambda r=r, G=G, T=T: e.valu("v_pk_mul_f32", G[r:r + 2], G[r:r + 2], T[r % 8:r % 8 + 2])))
                for i in range(4 * hgrp, 4 * hgrp + 4):
                    ops.append((1, lambda i=i, G=G, U=U: e.valu("v_cvt_pk_bf16_f32", U[i], G[2 * i], G[2 * i + 1])))
                def st(hgrp=hgrp, t=t, U=U):
                    e.salu("s_add_u32", sT1, sOutH, t * H_MT_STRIDE + (24 * 2048 if p == 2 else 0))
                    e.buf_store(U[4 * hgrp:4 * hgrp + 4], vLane16, sWS, sT1, offset=hgrp * 1024, flags=STF)
                ops.append((-2, st))
        return ops

    def epi_v():
        ops = []
        for r in range(2):
            for t in range(2):
                X = ACC(1, r, t)
                for hgrp in range(2):
                    for i in range(4 * hgrp, 4 * hgrp + 4):
                        ops.append((1, lambda i=i, X=X: e.valu("v_cvt_pk_bf16_f32", X[i], X[2 * i], X[2 * i + 1])))
                    for i in range(4 * hgrp, 4 * hgrp + 4):
                        ops.append((1, lambda i=i, X=X: e.valu("v_cndmask_b32", X[i], X[i], vVconst, sMask)))
                    def st(t=t, X=X, r=r, hgrp=hgrp):
                        e.salu("s_add_u32", sT1, sOutV, 2 * r * 64 * 4096 + t * 4096)
                        e.buf_store(X[4 * hgrp:4 * hgrp + 4], vLane16, sWS, sT1, offset=hgrp * 1024, flags=STF, tag="qkv")
                    st.qkv = True
                    ops.append((-2, st))
        return ops

    def epi_qk():
        ops = []
        for t in range(2):
            X = ACC(0, 0, t)
            if not typeY:
                ops.append((1, lambda t=t, X=X: e.valu("v_cvt_pk_bf16_f32", V(208 + t), X[12], X[12])))
            for r in range(16):
                if typeY and r < 12:
                    continue
                ops.append((1, lambda r=r, X=X: e.valu("v_mul_f32", X[r], sQKmul if r < 12 else vMulHi, X[r])))
            for hgrp in range(2):
                for i in range(4 * hgrp, 4 * hgrp + 4):
                    ops.append((1, lambda i=i, X=X: e.valu("v_cvt_pk_bf16_f32", X[i], X[2 * i], X[2 * i + 1])))
                def st(t=t, X=X, hgrp=hgrp):
                    if t == 1 and hgrp == 0:
                        e.salu("s_add_u32", sOutQK, sOutQK, sQKstr)
                    e.buf_store(X[4 * hgrp:4 * hgrp + 4], vLane16, sWS, sOutQK, offset=hgrp * 1024, flags=STF, tag="qkv")
                st.qkv = True
                ops.append((-2, st))
        if not typeY:
            for t in range(2):
                D = V(208 + t)
                Gv = V(210 + 2 * t, 2)
                for f in (("v_and_b32", D, "0xffff0000", D), ("v_mul_f32", D, sNL2E, D), ("v_exp_f32", D, D),
                          ("v_mov_b32", Gv[0], 0), ("v_add_f32", D, 1.0, D), ("v_rcp_f32", D, D), ("v_mov_b32", Gv[0], 0),
                          ("v_cvt_pk_bf16_f32", D, D, D),
                          ("v_and_b32", Gv[0], "0xffff0000", D), ("v_sub_f32", Gv[1], 1.0, Gv[0]),
                          ("v_cvt_pk_bf16_f32", Gv[1], Gv[1], Gv[1]), ("v_and_b32", Gv[1], "0xffff0000", Gv[1])):
                    ops.append((2 if f[0] in TRANS else 1, lambda f=f: e.valu(*f)))
            def stg():
                e.valu("v_lshlrev_b32", vX0, 3, lane)
                e.salu("s_lshl_b32", sT1, sMt, 8)
                e.salu("s_add_u32", sT1, sT1, GF - 256)
                e.salu("s_add_u32", sT0, sWn, sCg)
                e.salu("s_min_u32", sT0, sT0, 1)
                e.salu("s_lshl_b32", sT0, sT0, 15)
                e.salu("s_add_u32", sT1, sT1, sT0)
                e.raw("s_mov_b32 exec_lo, 0")
                e.buf_store(V(210, 2), vX0, sWS, sT1, offset=0, flags=STF, tag="qkv")
                e.buf_store(V(212, 2), vX0, sWS, sT1, offset=256, flags=STF, tag="qkv")
                e.raw("s_mov_b32 exec_lo, -1")
            stg.qkv = True
            ops.append((-2, stg))
        return ops

    ff = typeY or XORD
    order = (1, 0, 2) if ff else (0, 1, 2)
    steps = [(p, ks) for p in order for ks in range(28)]
    def bchunk(p, ks):
        c, kk = ks // 4, ks % 4
        if p == 1: return (0 if ff else 4) + c, kk * 2048
        if p == 2: return 11 + c, kk * 2048
        return (7 if ff else 0) + c // 2, (c % 2) * 8192 + kk * 2048
    def rd(n):
        p, ks = steps[n]
        c, kk = ks // 4, ks % 4
        bn, boff = bchunk(p, ks)
        ops = []
        for t in range(2):
            ops.append(lambda t=t: e.ds_read("ds_read_b128", fA(n, t), vAr[c >> 2][kk], offset=(c & 3) * 16384 + t * 4096, tag=("t", n)))
        for i in range(1 if p == 0 else 2):
            for j in range(2):
                ops.append(lambda i=i, j=j: e.ds_read("ds_read_b64_tr_b16", fB(n, i)[2 * j:2 * j + 2], vTr,
                                                      offset=(bn % 3) * 16384 + boff + i * 8192 + j * 512, tag=("t", n)))
        return ops

    def pre(stage):
        sTS = S(52, 4)
        e.salu("s_mov_b32", sTS[3], "0x20000")
        e.salu("s_mov_b32", sTS[2], 448 * 3584)
        if stage < 2:
            e.salu("s_and_b32", sT0, sW4, 1)
            e.salu("s_cmp_eq_u32", sT0, 0)
            e.salu("s_cselect_b32", sTS[0], S(KG), S(KU))
            e.salu("s_cselect_b32", sTS[1], S(KG + 1), S(KU + 1))
        if stage == 0 and XORD:
            e.salu("s_mov_b32", sTS[2], 448 * 2688)
            e.salu("s_mov_b32", sTS[0], S(KQ)); e.salu("s_mov_b32", sTS[1], S(KQ + 1))
            e.salu("s_lshl_b32", sT1, S(2), 1)
            e.salu("s_add_u32", sT1, sT1, sT0)
            e.salu("s_mul_i32", sT1, sT1, 2688)
            e.salu("s_lshr_b32", sT0, sW4, 1)
            e.salu("s_mul_i32", sT0, sT0, 896)
            e.salu("s_add_u32", sT1, sT1, sT0)
            e.valu("v_min_u32", vX0, 6, lane)
            e.valu("v_lshlrev_b32", vX2, 7, vX0)
        elif stage == 0:
            e.salu("s_mul_i32", sT1, S(2), 21)
            e.valu("v_min_u32", vX0, 20, lane)
            e.valu("v_add_u32", vX0, sT1, vX0)
            e.salu("s_mov_b32", sT1, 43691)
            e.valu("v_mul_u32_u24", vX1, sT1, vX0)
            e.valu("v_lshrrev_b32", vX1, 19, vX1)
            e.valu("v_mul_u32_u24", vX2, 3584 - 12 * 128, vX1)
            e.valu("v_lshl_add_u32", vX2, vX0, 7, vX2)
            e.salu("s_mov_b32", sT1, 0)
            e.salu("s_cmp_lt_u32", sW4, 2)
            e.raw(f"s_cbranch_scc1 L_k12_pre{ty}")
            e.salu("s_mov_b32", sTS[2], 448 * 2688)
            e.salu("s_mov_b32", sTS[0], S(KQ)); e.salu("s_mov_b32", sTS[1], S(KQ + 1))
            e.salu("s_lshl_b32", sT1, S(2), 1)
            e.salu("s_add_u32", sT1, sT1, sT0)
            e.salu("s_mul_i32", sT1, sT1, 2688)
            e.salu("s_add_u32", sT1, sT1, 1280)
            e.valu("v_min_u32", vX0, 3, lane)
            e.valu("v_lshlrev_b32", vX2, 7, vX0)
            e.label(f"L_k12_pre{ty}")
        elif stage == 1:
            e.salu("s_lshl_b32", sT1, S(2), 1)
            e.salu("s_lshr_b32", sT0, sW4, 1)
            e.salu("s_add_u32", sT1, sT1, sT0)
            e.salu("s_mul_i32", sT1, sT1, 14)
            e.valu("v_min_u32", vX0, 13, lane)
            e.valu("v_add_u32", vX0, sT1, vX0)
            e.valu("v_lshrrev_b32", vX1, 4, vX0)
            e.valu("v_and_b32", vX0, 15, vX0)
            e.valu("v_mul_u32_u24", vX2, 3584, vX1)
            e.valu("v_lshl_add_u32", vX2, vX0, 7, vX2)
            e.salu("s_mov_b32", sT1, 12 * 128)
        else:
            e.salu("s_mov_b32", sTS[0], S(KD)); e.salu("s_mov_b32", sTS[1], S(KD + 1))
            e.salu("s_mul_i32", sT0, S(2), 49 * 128)
            e.salu("s_mul_i32", sT1, sW4, 13 * 128)
            e.salu("s_add_u32", sT1, sT0, sT1)
            e.valu("v_min_u32", vX0, 12, lane)
            e.valu("v_lshlrev_b32", vX2, 7, vX0)
        e.buf_load(V(243 + stage), vX2, sTS, sT1, offset=0)

    e.stamp(0); e.stamp(12, True)
    for st_, at in enumerate(PRES):
        if at < 0: pre(st_)
    e.barrier()
    e.stamp(1)
    for f in rd(0) + rd(1): f()
    epi, stq = [], []
    for n, (p, ks) in enumerate(steps):
        if ks == 0 and n > 0:
            e.stamp(1 + n // 28)
            prev = steps[n - 1][0]
            if prev == 0: epi = [(6, lambda: None)] + epi_qk() + epi
            else: epi += [(6, lambda: None)] + (epi_v() if typeY else epi_h(1))
        for st_, at in enumerate(PRES):
            if at == n: stq.append(lambda st_=st_: pre(st_))
        nr = 1 if p == 0 else 2
        nm = 2 * nr
        plan = [[] for _ in range(nm)]
        tgt = n + 2
        if tgt < len(steps):
            r_ = rd(tgt)
            bt = bchunk(*steps[tgt])[0]
            if bt != bchunk(*steps[tgt - 1])[0]:
                def bar(tgt=tgt, bt=bt):
                    e.wait_lg_tag(("t", tgt - 1))
                    if bt == (N1 if ff else N1X):
                        assert not any(getattr(f, "qkv", False) for _, f in epi) and not any(getattr(f, "qkv", False) for f in stq)
                        e.wait_vm_tag("qkv")
                    if bt == N1B:
                        assert not epi and not stq, (len(epi), len(stq))
                        e.raw("s_waitcnt vmcnt(0)")
                        e.vm = []
                    e.barrier()
                if tgt < 28 and nm == 2:
                    plan[1] = [bar] + r_
                elif tgt < 28:
                    plan[1] = [bar, r_[0]]; plan[2] = r_[1:4]; plan[3] = r_[4:]
                elif nm == 4:
                    plan[0] = r_[0:2]; plan[2] = [bar] + r_[2:4]; plan[3] = r_[4:]
                else:
                    plan[0] = r_[0:2]; plan[1] = [bar] + r_[2:]
            else:
                for g in range(nm):
                    k = -(-len(r_) // (nm - g))
                    plan[g] = r_[:k]; r_ = r_[k:]
        e.wait_lg_tag(("t", n))
        gi = 0
        for i in range(nr):
            for t in range(2):
                swap = typeY and p == 1
                a_, b_ = (fA(n, t), fB(n, i)) if swap else (fB(n, i), fA(n, t))
                e.mfma(ACC(p, i, t), a_, b_, 0 if ks == 0 else None)
                slots = 6 - (1 if gi == nm - 1 else 0)
                for f in plan[gi]:
                    f(); slots -= 1
                slots = min(slots, EB1 if p == 1 else 4 if p == 2 else 6)
                safe = (ks % 4 == 1 or (ks % 4 == 0 and gi >= 2)) if p != 0 else (n < 28 or ks % 8 in (2, 3, 4, 5))
                if stq and (safe or (QANY and p == 2 and getattr(stq[0], "qkv", False))):
                    stq.pop(0)(); slots -= 2
                while epi and (slots >= epi[0][0] or epi[0][0] == 6):
                    cost, f = epi.pop(0)
                    if cost < 0:
                        if getattr(f, "qkv", False):
                            k_ = sum(1 for x in stq if getattr(x, "qkv", False))
                            stq.sort(key=lambda x: not getattr(x, "qkv", False))
                            stq.insert(k_, f)
                        else:
                            stq.append(f)
                        continue
                    f(); slots -= cost
                    if cost == 6: break
                gi += 1
    e.stamp(4)
    e.valu("v_mov_b32", V(228), sNL2E)
    e.valu("v_mov_b32", V(229), sNL2E)
    e.valu("v_mov_b32", V(230), 1.0)
    e.valu("v_mov_b32", V(231), 1.0)
    for _, f in epi_h(2, pk=True):
        f()
    e.stamp(5)


def gen_attn(e):
    lane = vLane
    Q = [[V(8, 4), V(12, 4)], [V(16, 4), V(20, 4)]]
    K = [V(24, 4), V(28, 4)]
    Vf = [[V(32, 4), V(36, 4)], [V(40, 4), V(44, 4)]]
    Sb = [V(128, 16), V(144, 16)]
    P = [V(48, 8), V(56, 8)]
    O = [V(160, 16), V(176, 16)]
    X = V(192, 16)
    vKV, vRed, vQl = V(1), V(2), V(3)
    vT0, vT1, vT2, vT3 = V(4), V(5), V(6), V(7)
    sQg, sKg, sHead, sQblk, sOo, sKV, sCnt = S(29), S(30), S(34), S(35), S(36), S(37), S(38)
    sSave = S(40, 2)
    e.salu("s_and_b32", sQg, sW4, 1)
    e.salu("s_lshr_b32", sKg, sW4, 1)
    e.salu("s_lshr_b32", sT0, sIdx, 4)
    e.salu("s_lshl_b32", sHead, sXcd, 1)
    e.salu("s_add_u32", sHead, sHead, sT0)
    e.salu("s_and_b32", sQblk, sIdx, 15)
    e.salu("s_lshl_b32", sKV, sHead, 18)
    e.salu("s_add_u32", sKV, sKV, KVF)
    e.salu("s_lshl_b32", sT1, sQblk, 2)
    e.salu("s_lshl_b32", sT0, sQg, 1)
    e.salu("s_add_u32", sT1, sT1, sT0)
    e.salu("s_add_u32", sT1, sT1, sKg)
    e.salu("s_lshl_b32", sOo, sT1, 4)
    e.salu("s_add_u32", sOo, sOo, sHead)
    e.salu("s_lshl_b32", sOo, sOo, 11)
    e.salu("s_add_u32", sOo, sOo, OF)
    e.salu("s_lshl_b32", sT2, sKg, 13)
    e.valu("v_add_u32", vKV, sT2, vLane16)
    e.salu("s_lshl_b32", sT2, sQg, 12)
    e.salu("s_add_u32", sT2, sT2, QL)
    e.valu("v_add_u32", vQl, sT2, vLane16)
    e.salu("s_lshl_b32", sT2, sQg, 13)
    e.salu("s_add_u32", sT2, sT2, ARED)
    e.valu("v_add_u32", vRed, sT2, vLane16)
    for r in range(16):
        e.valu("v_mov_b32", O[0][r], 0)
        e.valu("v_mov_b32", O[1][r], 0)
    for r in range(4):
        e.valu("v_mov_b32", P[1][r], 0)
        e.valu("v_mov_b32", P[1][4 + r], 0)
        e.valu("v_mov_b32", Vf[1][0][r], 0)
        e.valu("v_mov_b32", Vf[1][1][r], 0)
    e.salu("s_mov_b32", sCnt, 0)

    def toff(i): return ((i >> 1) % 4) * 16384 + (i & 1) * 4096

    e.barrier()
    e.stamp(6)
    for q in range(2):
        for s_ in range(2):
            e.ds_read("ds_read_b128", Q[q][s_], vQl, offset=q * 2048 + s_ * 1024)
    e.ds_read("ds_read_b128", K[0], vKV, offset=0)
    e.ds_read("ds_read_b128", K[1], vKV, offset=1024)
    e.ds_read("ds_read_b128", Vf[0][1], vKV, offset=3072)
    e.ds_read("ds_read_b128", Vf[0][0], vKV, offset=2048)
    e.mfma(Sb[0], K[0], Q[0][0], 0)
    e.mfma(Sb[0], K[1], Q[0][1])
    e.wait_lg_all()
    e.flush_hazards()

    def unit(i, q):
        Sc, Sn = Sb[q], Sb[1 - q]
        nq = 1 - q
        def ex(a, b):
            for r in range(a, b): e.valu("v_exp_f32", Sc[r], Sc[r])
        def cv(a, b):
            for j in range(a, b): e.valu("v_cvt_pk_bf16_f32", P[q][j], Sc[2 * j], Sc[2 * j + 1])
        pi = i if q == 1 else i - 1
        if q == 0:
            rd = [(K[0], toff(i + 1)), (K[1], toff(i + 1) + 1024)]
        else:
            rd = [(Vf[(i + 1) % 2][1], toff(i + 1) + 3072), (Vf[(i + 1) % 2][0], toff(i + 1) + 2048)]
        e.mfma(Sn, K[0], Q[nq][0], 0)
        ex(0, 3)
        e.mfma(Sn, K[1], Q[nq][1])
        e.ds_read("ds_read_b128", rd[0][0], vKV, offset=rd[0][1])
        ex(3, 5); cv(0, 1)
        e.mfma(O[nq], Vf[pi % 2][0], P[nq][0:4])
        e.ds_read("ds_read_b128", rd[1][0], vKV, offset=rd[1][1])
        ex(5, 7); cv(1, 2)
        e.mfma(O[nq], Vf[pi % 2][1], P[nq][4:8])
        ex(7, 16); cv(2, 8)

    mark = len(e.lines)
    for i in (6, 7):
        for q in range(2): unit(i, q)
    del e.lines[mark:]
    e.label("L_k12_aloop")
    for i in range(8):
        for q in range(2):
            unit(i, q)
        if i % 2 == 1:
            if i == 3:
                e.raw("s_waitcnt vmcnt(0)")
            if i == 7:
                e.salu("s_add_u32", sCnt, sCnt, 1)
                e.salu("s_cmp_lt_u32", sCnt, 4)
            e.barrier()
    e.raw("s_cbranch_scc1 L_k12_aloop")
    e.mfma(O[1], Vf[1][0], P[1][0:4])
    e.mfma(O[1], Vf[1][1], P[1][4:8])
    e.stamp(7)
    e.wait_lg_all()
    e.salu("s_cmp_eq_u32", sKg, 0)
    e.raw("s_cbranch_scc1 L_k12_kg0")
    for j in range(4):
        e.ds_write("ds_write_b128", vRed, O[0][4 * j:4 * j + 4], offset=j * 1024)
    for r in range(16):
        e.valu("v_mov_b32", O[0][r], O[1][r])
    for s_ in range(2):
        for r in range(4):
            e.valu("v_mov_b32", Q[0][s_][r], Q[1][s_][r])
    e.valu("v_add_u32", vRed, 4096, vRed)
    e.raw("s_branch L_k12_kgj")
    e.label("L_k12_kg0")
    e.lg = []
    e.last = {}
    e.nop(10)
    for j in range(4):
        e.ds_write("ds_write_b128", vRed, O[1][4 * j:4 * j + 4], offset=4096 + j * 1024)
    e.label("L_k12_kgj")
    e.raw("s_waitcnt lgkmcnt(0)")
    e.lg = []
    e.last = {}
    e.barrier()
    Of, Pf, Qf = O[0], P[0], Q[0]
    for j in range(4):
        e.ds_read("ds_read_b128", X[4 * j:4 * j + 4], vRed, offset=j * 1024)
    Z = V(208, 2)
    e.valu("v_mov_b32", Z[0], 0)
    e.valu("v_mov_b32", Z[1], 0)
    e.valu("v_mov_b32", V(210), 0)
    e.valu("v_mov_b32", V(211), 0)
    for r in range(0, 16, 2):
        e.valu("v_pk_add_f32", Of[r:r + 2], Of[r:r + 2], X[r:r + 2])
    e.valu("v_mov_b32", vT0, Of[12])
    e.valu("v_mov_b32", vT1, Of[12])
    for r in range(0, 16, 2):
        e.valu("v_pk_fma_f32", Z, Of[r:r + 2], V(210, 2), Z)
        if r == 2:
            e.valu("v_permlane32_swap_b32", vT0, vT1)
    e.valu("v_add_f32", vT2, Z[0], Z[1])
    e.salu("s_mov_b32", sT0, hex(f2u(L_LO)))
    e.salu("s_mov_b32", sT1, hex(f2u(L_HI)))
    e.valu("v_add_f32", vT2, vT2, vT1)
    e.valu("v_cmp_le_f32", "vcc", sT0, vT2)
    e.valu("v_cmp_ge_f32", sSave, sT1, vT2)
    e.nop(1)
    e.salu("s_and_b64", "vcc", "vcc", sSave)
    e.raw("s_cmp_eq_u64 vcc, -1")
    e.raw("s_cbranch_scc0 L_k12_slow")
    e.label("L_k12_store")
    e.last = {}
    e.nop(2)
    e.valu("v_rcp_f32", vT0, vT1)
    e.valu("v_cmp_gt_u32", "vcc", 32, lane)
    e.valu("v_mov_b32", vT2, 0)
    e.valu("v_mov_b32", vT1, vT0)
    e.valu("v_cndmask_b32", vT2, vT2, vT0)
    e.valu("v_mov_b32", vT3, vT2)
    for r in range(0, 16, 2):
        e.valu("v_pk_mul_f32", Of[r:r + 2], Of[r:r + 2], V(4, 2) if r < 12 else V(6, 2))
    for j in range(8):
        e.valu("v_cvt_pk_bf16_f32", Pf[j], Of[2 * j], Of[2 * j + 1])
    e.buf_store(Pf[0:4], vLane16, sWS, sOo, offset=0, flags=STF)
    e.buf_store(Pf[4:8], vLane16, sWS, sOo, offset=1024, flags=STF)
    e.stamp(8)
    if FUSE3:
        gen_phase3_heavy(e)
    if Emitter.STAMPS:
        e.raw("s_waitcnt vmcnt(0)")
    e.stamp(9); e.stamp(13, True)
    e.dump_stamps(sWS, 0, sWave)
    e.raw("s_endpgm")
    e.label("L_k12_slow")
    e.lg, e.vm, e.last = [], [], {}
    vM = vT3
    Sc = Sb[0]
    e.valu("v_mov_b32", vM, "0xff800000")
    for r in range(16):
        e.valu("v_mov_b32", Of[r], 0)
    e.salu("s_mov_b32", sCnt, 0)
    e.salu("s_mov_b32", sT2, sKV)
    e.label("L_k12_slow_loop")
    e.buf_load(K[0], vLane16, sWS, sT2, offset=0, flags=LDF)
    e.buf_load(K[1], vLane16, sWS, sT2, offset=1024, flags=LDF)
    e.buf_load(Vf[0][0], vLane16, sWS, sT2, offset=2048, flags=LDF)
    e.buf_load(Vf[0][1], vLane16, sWS, sT2, offset=3072, flags=LDF)
    e.mfma(Sc, K[0], Qf[0], 0)
    e.mfma(Sc, K[1], Qf[1])
    e.valu("v_max_f32", vT0, Sc[0], Sc[1])
    for r in range(2, 16, 2):
        e.valu("v_max3_f32", vT0, vT0, Sc[r], Sc[r + 1])
    e.valu("v_mov_b32", vT1, vT0)
    e.valu("v_permlane32_swap_b32", vT0, vT1)
    e.valu("v_max3_f32", vT0, vT0, vT1, vM)
    e.valu("v_sub_f32", vT1, vM, vT0)
    e.valu("v_exp_f32", vT1, vT1)
    e.valu("v_mov_b32", vM, vT0)
    for r in range(16):
        e.valu("v_sub_f32", Sc[r], Sc[r], vM)
    for r in range(16):
        e.valu("v_exp_f32", Sc[r], Sc[r])
    for r in range(16):
        e.valu("v_mul_f32", Of[r], Of[r], vT1)
    for j in range(8):
        e.valu("v_cvt_pk_bf16_f32", Pf[j], Sc[2 * j], Sc[2 * j + 1])
    e.mfma(Of, Vf[0][0], Pf[0:4])
    e.mfma(Of, Vf[0][1], Pf[4:8])
    e.salu("s_add_u32", sT2, sT2, 4096)
    e.salu("s_add_u32", sCnt, sCnt, 1)
    e.flush_hazards()
    e.salu("s_cmp_lt_u32", sCnt, 64)
    e.raw("s_cbranch_scc1 L_k12_slow_loop")
    e.valu("v_mov_b32", vT0, Of[12])
    e.valu("v_mov_b32", vT1, Of[12])
    e.valu("v_permlane32_swap_b32", vT0, vT1)
    e.raw("s_branch L_k12_store")


def gen_phase3_heavy(e):
    lane = vLane
    sU, sTt, sMt64, sNt, sSt = S(29), S(30), S(34), S(35), S(36)
    vRr, vTr, vOr, vSt = V(1), V(2), V(3), V(4)
    vG = V(6, 2)
    Bx = [V(64 + 16 * w, 16) for w in range(4)]
    ACC = V(128, 16)
    NB = 4
    def OFr(k): return V(8 + (k % NB) * 4, 4)
    def WFr(k): return V(24 + (k % NB) * 4, 4)
    e.salu("s_cmp_ge_u32", sIdx, 28)
    e.raw("s_cbranch_scc0 L_k12_h3")
    e.raw("s_waitcnt vmcnt(0)")
    e.barrier()
    e.raw("s_branch L_k12_h3end")
    e.label("L_k12_h3")
    e.salu("s_lshl_b32", sT0, sW4, 12)
    e.salu("s_add_u32", sT0, sT0, WR)
    e.valu("v_add_u32", vRr, sT0, vLane16)
    def rdB():
        for w in range(4):
            for j in range(4):
                e.ds_read("ds_read_b128", Bx[w][4 * j:4 * j + 4], vRr, offset=w * 16384 + j * 1024)
    if not DEFER: rdB()
    e.salu("s_mul_i32", sT0, sIdx, 37)
    e.salu("s_lshr_b32", sT0, sT0, 8)
    e.salu("s_mul_i32", sT1, sT0, 7)
    e.salu("s_sub_u32", sNt, sIdx, sT1)
    e.salu("s_lshl_b32", sMt64, sXcd, 2)
    e.salu("s_add_u32", sMt64, sMt64, sT0)
    e.salu("s_and_b32", sU, sW4, 1)
    e.salu("s_lshr_b32", sTt, sW4, 1)
    srd(e, sOut, KOUT, 2048 * 896)
    e.salu("s_lshl_b32", sT0, sMt64, 1)
    e.salu("s_add_u32", sT0, sT0, sTt)
    e.salu("s_mul_i32", sSt, sT0, 32 * 896)
    e.salu("s_lshl_b32", sT2, sNt, 1)
    e.salu("s_add_u32", sT2, sT2, sU)
    e.salu("s_lshl_b32", sT2, sT2, 6)
    e.salu("s_add_u32", sSt, sSt, sT2)
    e.salu("s_lshl_b32", S(37), sT0, 8)
    e.salu("s_add_u32", S(37), S(37), GF)
    e.valu("v_and_b32", vX0, 31, lane)
    e.valu("v_lshlrev_b32", V(5), 3, vX0)
    e.valu("v_mul_u32_u24", vSt, 896, vX0)
    e.valu("v_lshrrev_b32", vX1, 5, lane)
    e.valu("v_lshl_add_u32", vSt, vX1, 4, vSt)
    e.valu("v_bfe_u32", vX0, lane, 2, 2)
    e.valu("v_lshl_add_u32", vX0, vX1, 2, vX0)
    e.valu("v_bfe_u32", vX2, lane, 4, 1)
    e.valu("v_lshlrev_b32", vX2, 5, vX2)
    e.valu("v_and_b32", vX1, 3, lane)
    e.valu("v_lshl_add_u32", vX2, vX1, 3, vX2)
    e.valu("v_lshl_add_u32", vX2, vX0, 7, vX2)
    e.valu("v_bfe_u32", vX1, lane, 3, 1)
    e.valu("v_xor_b32", vX1, sU, vX1)
    e.valu("v_lshl_add_u32", vTr, vX1, 6, vX2)
    e.salu("s_lshl_b32", sT0, sTt, 15)
    e.salu("s_add_u32", sT0, sT0, WR)
    e.valu("v_add_u32", vOr, sT0, vLane16)
    def rd(k):
        e.ds_read("ds_read_b128", OFr(k), vOr, offset=k * 1024, tag=("k", k))

    def rdw(k):
        hd, s_ = k // 2, k % 2
        for j in range(2):
            e.ds_read("ds_read_b64_tr_b16", WA(k)[2 * j:2 * j + 2], vTr, offset=(28 * hd + 16 * s_ + 8 * j) * 128, tag=("w", k))

    def WA(k): return V(144 + 4 * k, 4) if k < 26 else V(40 + 4 * (k - 26), 4)
    def OFr(k): return V(8 + (k % 8) * 4, 4)
    if not DEFER: e.wait_lg_all()
    e.raw("s_waitcnt vmcnt(0)")
    e.vm = []
    e.barrier()
    e.buf_load(vG, V(5), sWS, S(37), offset=0, flags=LDF)
    for k in range(32):
        rdw(k)
    if DEFER:
        e.barrier()
        rdB()
        e.wait_lg_all()
        e.barrier()
    for r in range(0, 16, 2):
        e.valu("v_pk_add_f32", Bx[0][r:r + 2], Bx[0][r:r + 2], Bx[1][r:r + 2])
        e.valu("v_pk_add_f32", Bx[2][r:r + 2], Bx[2][r:r + 2], Bx[3][r:r + 2])
    for r in range(0, 16, 2):
        e.valu("v_pk_add_f32", Bx[0][r:r + 2], Bx[0][r:r + 2], Bx[2][r:r + 2])
    for j in range(8):
        e.valu("v_cvt_pk_bf16_f32", Bx[1][j], Bx[0][2 * j], Bx[0][2 * j + 1])
    for j in range(8):
        e.valu("v_lshlrev_b32", Bx[0][2 * j], 16, Bx[1][j])
        e.valu("v_and_b32", Bx[0][2 * j + 1], "0xffff0000", Bx[1][j])
    for r in range(16):
        e.valu("v_mul_f32", Bx[0][r], Bx[0][r], vG[1])
    e.wait_lg_all()
    for c in range(4):
        e.barrier()
        if c == 0: e.stamp(10)
        ks = list(range(8 * c, 8 * c + 8))
        for k in ks:
            rd(k)
        for k in ks:
            e.mfma(ACC, WA(k), OFr(k), 0 if k == 0 else None)
    e.stamp(11)
    for r in range(16):
        e.valu("v_fmac_f32", Bx[0][r], ACC[r], vG[0], dst_is_read=True)
    Bv = Bx[3]
    for j in range(8):
        e.valu("v_cvt_pk_bf16_f32", Bv[j], Bx[0][2 * j], Bx[0][2 * j + 1])
    for kk in range(2):
        e.valu("v_permlane32_swap_b32", Bv[4 * kk], Bv[4 * kk + 2])
        e.valu("v_permlane32_swap_b32", Bv[4 * kk + 1], Bv[4 * kk + 3])
        e.buf_store(Bv[4 * kk:4 * kk + 4], vSt, sOut, sSt, offset=kk * 32, flags=os.environ.get('OUTF', ''))
    e.label("L_k12_h3end")
    e.last = {}


def gen_helper2(e):
    lane = vLane
    sHead, sQblk, sKV, sLdsKV = S(29), S(30), S(34), S(35)
    sMt64, sNt, sLdsW, sWoff, sHoff, sHoff1 = S(36), S(37), S(38), S(39), S(40), S(41)
    vFl = V(14)
    e.salu("s_lshr_b32", sT0, sIdx, 4)
    e.salu("s_lshl_b32", sHead, sXcd, 1)
    e.salu("s_add_u32", sHead, sHead, sT0)
    e.salu("s_and_b32", sQblk, sIdx, 15)
    e.salu("s_lshl_b32", sLdsKV, sW4, 12)
    e.salu("s_lshl_b32", sKV, sHead, 18)
    e.salu("s_add_u32", sKV, sKV, KVF)
    e.salu("s_add_u32", sKV, sKV, sLdsKV)
    e.salu("s_mul_i32", sT0, sIdx, 37)
    e.salu("s_lshr_b32", sT0, sT0, 8)
    e.salu("s_mul_i32", sT1, sT0, 7)
    e.salu("s_sub_u32", sNt, sIdx, sT1)
    e.salu("s_lshl_b32", sMt64, sXcd, 2)
    e.salu("s_add_u32", sMt64, sMt64, sT0)
    e.salu("s_min_u32", sMt64, sMt64, 31)
    def dma_KV(s):
        e.salu("s_add_u32", "m0", sLdsKV, (s % 4) * 16384)
        e.salu("s_add_u32", sT0, sKV, s * 16384)
        for i in range(4):
            e.buf_load_lds(vLane16, sWS, sT0, offset=i * 1024, tag=("KV", s), flags=LDF)

    def first_loads():
        dma_KV(0)
        e.salu("s_lshl_b32", sT0, sHead, 6)
        e.salu("s_lshl_b32", sT1, sQblk, 2)
        e.salu("s_add_u32", sT0, sT0, sT1)
        e.salu("s_add_u32", sT0, sT0, sW4)
        e.salu("s_lshl_b32", sT0, sT0, 11)
        e.salu("s_lshl_b32", sT1, sW4, 11)
        e.salu("s_add_u32", "m0", sT1, QL)
        if QF: e.salu("s_add_u32", sT0, sT0, QF)
        else: e.nop(1)
        for i in range(2):
            e.buf_load_lds(vLane16, sWS, sT0, offset=i * 1024, tag=("KV", 0), flags=LDF)
        dma_KV(1); dma_KV(2)

    if EARLYP:
        e.salu("s_cmp_eq_u32", sW4, 1)
        e.salu("s_mov_b32", sT1, "0x40000000")
        e.salu("s_cselect_b32", sT0, F1, sT1)
        e.raw(f"buffer_load_dword v15, {vFl}, {sWS}, {sT0} offen sc1")
    gemm_setup(e, sMt64, sNt, sLdsW, sWoff, sHoff)
    e.raw(f"v_mov_b32 v8, {SIG1}")
    e.raw(f"v_not_b32 v9, {sNonce}")
    e.raw("ds_write_b32 v8, v9")
    e.raw(f"s_waitcnt vmcnt({1 if EARLYP else 0}) lgkmcnt(0)")
    e.barrier()
    if TPRIO < 3: e.raw(f"s_setprio {TPRIO}")
    e.stamp(0)
    e.salu("s_cmp_eq_u32", sW4, 1)
    e.raw("s_cbranch_scc1 L_k12_pl")
    e.salu("s_cmp_lg_u32", sW4, 0)
    e.raw("s_cbranch_scc1 L_k12_wl")
    flag_store(e, F1B)
    e.label("L_k12_wl")
    e.salu("s_mov_b32", sT2, 0)
    e.label("L_k12_wl2")
    e.raw("ds_read_b32 v9, v8")
    e.salu("s_add_u32", sT2, sT2, 1)
    e.raw("s_waitcnt lgkmcnt(0)")
    e.raw("v_readfirstlane_b32 s33, v9")
    e.salu("s_cmp_gt_u32", sT2, SPIN * 16)
    e.raw("s_cbranch_scc1 L_k12_p1ok")
    e.raw(f"s_cmp_eq_u32 s33, {sNonce}")
    e.raw("s_cbranch_scc1 L_k12_p1ok")
    e.raw(f"s_sleep {WSL}")
    e.raw("s_branch L_k12_wl2")
    e.label("L_k12_pl")
    if EARLYP:
        e.raw("s_waitcnt vmcnt(0)")
        e.raw(f"v_cmp_ne_u32 vcc, {sNonce}, v15")
        e.nop(1)
        e.raw("s_and_b32 s33, vcc_hi, 1")
        e.raw("s_or_b32 s33, s33, vcc_lo")
        e.raw("s_cbranch_scc0 L_k12_p1sig")
    e.salu("s_mov_b32", sT0, F1)
    poll(e, "L_k12_p1", vFl, sWS, sT0, 33, V(15), sNonce)
    e.label("L_k12_p1sig")
    e.raw(f"v_mov_b32 v9, {sNonce}")
    e.raw("ds_write_b32 v8, v9")
    e.label("L_k12_p1ok")
    e.vm, e.last = [], {}
    e.stamp(1)
    if S1ST: e.stamp(7, True)
    first_loads()
    st0 = list(e.vm)
    e.raw(f"s_setprio {HPRIO}")
    e.salu("s_cmp_ge_u32", sIdx, 28)
    e.raw("s_cbranch_scc1 L_k12_nogemm")
    helper_loop(e, True, dma_KV, sMt64, sNt, sLdsW, sWoff, sHoff, sHoff1)
    e.raw("s_endpgm")
    e.label("L_k12_nogemm")
    e.lg, e.vm, e.last = [], list(st0), {}
    helper_loop(e, False, dma_KV, sMt64, sNt, sLdsW, sWoff, sHoff, sHoff1)
    e.raw("s_endpgm")


def gemm_setup(e, sMt64, sNt, sLdsW, sWoff, sHoff):
    lane = vLane
    vW = [V(2), V(3), V(4), V(5)]
    vTr = [V(6), V(7)]
    vRw, vRr, vF2 = V(11), V(12), V(13)
    sWl, sHl = S(42), S(43)
    srd(e, sWd, KD, 1792 * 896)
    e.valu("v_lshrrev_b32", vX0, 3, lane)
    e.valu("v_bfe_u32", vX1, lane, 2, 1)
    e.valu("v_bfe_u32", vX2, lane, 4, 1)
    e.valu("v_xor_b32", vX1, vX1, vX2)
    e.valu("v_mul_u32_u24", vW[0], 896, vX0)
    e.valu("v_lshl_add_u32", vW[0], vX1, 6, vW[0])
    e.valu("v_and_b32", vX1, 3, lane)
    e.valu("v_lshl_add_u32", vW[0], vX1, 4, vW[0])
    for i in range(1, 4):
        e.valu("v_add_u32", vW[i], i * (8 * 896 - 1024), vW[0])
    e.salu("s_lshl_b32", sLdsW, sW4, 14)
    e.salu("s_add_u32", sLdsW, sLdsW, WR)
    e.salu("s_mul_i32", sWoff, sW4, 6 * 32 * 896)
    e.salu("s_lshl_b32", sT0, sNt, 7)
    e.salu("s_add_u32", sWoff, sWoff, sT0)
    e.salu("s_lshl_b32", sT0, sW4, 1)
    e.salu("s_add_u32", sT0, sT0, 18)
    e.salu("s_mul_i32", sWl, sT0, 32 * 896)
    e.salu("s_add_u32", sWl, sWl, sWoff)
    e.salu("s_lshl_b32", sHl, sT0, 11)
    e.salu("s_mul_i32", sHoff, sMt64, 2 * H_MT_STRIDE)
    e.salu("s_mul_i32", sT0, sW4, 6 * 2048)
    e.salu("s_add_u32", sHoff, sHoff, sT0)
    e.salu("s_add_u32", sHoff, sHoff, HF)
    e.salu("s_add_u32", sHl, sHl, sHoff)
    e.valu("v_lshrrev_b32", vX1, 5, lane)
    e.valu("v_bfe_u32", vX0, lane, 2, 2)
    e.valu("v_lshl_add_u32", vX0, vX1, 2, vX0)
    e.valu("v_bfe_u32", vX2, lane, 4, 1)
    e.valu("v_lshlrev_b32", vX2, 5, vX2)
    e.valu("v_and_b32", vX1, 3, lane)
    e.valu("v_lshl_add_u32", vX2, vX1, 3, vX2)
    e.valu("v_lshl_add_u32", vX2, vX0, 7, vX2)
    e.valu("v_bfe_u32", vX1, lane, 3, 1)
    e.valu("v_lshl_add_u32", vTr[0], vX1, 6, vX2)
    e.valu("v_xor_b32", vTr[1], 64, vTr[0])
    e.valu("v_add_u32", vTr[0], sLdsW, vTr[0])
    e.valu("v_add_u32", vTr[1], sLdsW, vTr[1])
    e.valu("v_add_u32", vRw, sLdsW, vLane16)
    e.salu("s_lshl_b32", sT0, sW4, 12)
    e.salu("s_add_u32", sT0, sT0, WR)
    e.valu("v_add_u32", vRr, sT0, vLane16)
    e.salu("s_lshr_b32", sT0, sMt64, 1)
    e.valu("v_and_b32", vX0, 15, lane)
    e.valu("v_lshl_add_u32", vF2, vX0, 4, sT0)
    e.valu("v_lshlrev_b32", vF2, 7, vF2)


def helper_loop(e, gemm, dma_KV, sMt64, sNt, sLdsW, sWoff, sHoff, sHoff1):
    lane = vLane
    g = int(gemm)
    ND = 4
    ACC = [[V(80, 16), V(96, 16)], [V(112, 16), V(128, 16)]]
    def HF_(s, st, t): return V(16 + ((s % ND) * 4 + st * 2 + t) * 4, 4)
    def WF(st, u): return V(144 + (st * 2 + u) * 4, 4)
    vW = [V(2), V(3), V(4), V(5)]
    vTr = [V(6), V(7)]
    vRw, vRr, vF2 = V(11), V(12), V(13)
    sWl, sHl = S(42), S(43)
    def dma_Wo(q):
        if q == 0:
            srd(e, sWo, KO, 448 * 896)
        e.salu("s_mul_i32", sT1, sW4, 32 * 896)
        e.salu("s_lshl_b32", sT0, sNt, 7)
        e.salu("s_add_u32", sT1, sT1, sT0)
        e.salu("s_lshl_b32", sT2, sW4, 12)
        e.salu("s_add_u32", "m0", sT2, q * 16384)
        e.salu("s_add_u32", sT0, sT1, q * 128 * 896)
        for i in range(4):
            e.buf_load_lds(vW[i], sWo, sT0, offset=i * 1024, tag="Wo")

    def W_ops(s):
        def w(i):
            if i == 0:
                e.salu("s_add_u32", "m0", sLdsW, (s % ND) * 4096)
                e.salu("s_add_u32", sT2, sWoff if s < 6 else sWl, s * 32 * 896)
            e.buf_load_lds(vW[i], sWd, sT2, offset=i * 1024, tag=("W", s))
        return [lambda i=i: w(i) for i in range(4)]

    def H_ops(s):
        def h(st, t):
            e.salu("s_add_u32", sT1, sHoff if s < 6 else sHl, s * 2048 + t * H_MT_STRIDE)
            e.buf_load(HF_(s, st, t), vLane16, sWS, sT1, offset=st * 1024, flags=LDF)
        return [lambda st=st, t=t: h(st, t) for st in range(2) for t in range(2)]

    def compute(s, side):
        e.wait_vm_tag(("W", s))
        for st in range(2):
            for u in range(2):
                for j in range(2):
                    e.ds_read("ds_read_b64_tr_b16", WF(st, u)[2 * j:2 * j + 2], vTr[u],
                              offset=(s % ND) * 4096 + st * 2048 + j * 1024)
        if side: side.pop(0)()
        for st in range(2):
            for u in range(2):
                for t in range(2):
                    e.mfma(ACC[u][t], WF(st, u), HF_(s, st, t), 0 if (s == 0 and st == 0) else None)
                    if side: side.pop(0)()

    P2 = POLL2
    comp = {C0 + s: [s] for s in range(6)}
    late = list(range(6, 14 - DEFER))
    i0 = max(P2 + 2, C0 + 6)
    LASTI = 15 if FUSE3 else 14
    for i in range(i0, LASTI):
        left = LASTI - i
        k = -(-len(late) // left) if len(late) > left and i >= 12 else 1
        comp.setdefault(i, [])
        comp[i] += late[:k]; late = late[k:]
    assert not late, late
    done_at = {s: i for i, l in comp.items() for s in l}
    todo = [(s, k) for s in range(14) for k in ("H", "W")]

    def check(name, base, nl):
        e.valu("v_cmp_ne_u32", "vcc", sNonce, V(8))
        e.nop(1)
        e.raw(f"s_and_b32 s33, vcc_lo, {hex((1 << nl) - 1)}")
        e.raw(f"s_cbranch_scc0 {name}ok")
        keep = list(e.vm)
        e.salu("s_mov_b32", sT0, base)
        poll(e, name, vF2, sWS, sT0, nl, V(8), sNonce)
        e.label(name + "ok")
        e.vm = keep
        e.last = {}

    e.wait_vm_tag(("KV", 1))
    e.stamp(2)
    e.barrier()
    for i in range(16):
        if i in (4, 8, 12): e.stamp(2 + i // 4)
        if i + 3 <= 15:
            dma_KV(i + 3)
        if i == 2:
            flag_store(e, F2)
        if i == 3 and gemm:
            e.valu("v_mov_b32", V(248), SIG + 64)
            e.valu("v_not_b32", V(247), sNonce)
            e.ds_write("ds_write_b32", V(248), V(247))
        if gemm:
            if i in (C0 - 2, P2 - 1):
                e.salu("s_mov_b32", sT0, F1B if i == C0 - 2 else F2)
                e.buf_load(V(8), vF2, sWS, sT0, offset=0, flags=" sc1")
            if i == C0 - 1:
                check("L_k12_p1b", F1B, 12)
            if i == P2:
                e.stamp(10)
                check("L_k12_p2", F2, 16)
                e.stamp(11)
            side = []
            budget = (3 if i < 13 else 4) if not DEFER else BUD
            for (s, k) in list(todo):
                if budget == 0: break
                ok = (s < ND or done_at[s - ND] < i) and not (k == "H" and (i < C0 - 1 or (s >= 6 and i < P2))) and not (k == "W" and s >= 2 and i < 1)
                if ok:
                    side += H_ops(s) if k == "H" else W_ops(s)
                    todo.remove((s, k)); budget -= 1
            for s in comp.get(i, []):
                compute(s, side)
            while side: side.pop(0)()
            if i == LASTI and not DEFER:
                assert not todo
                for u in range(2):
                    for t in range(2):
                        for j in range(4):
                            e.ds_write("ds_write_b128", vRw, ACC[u][t][4 * j:4 * j + 4],
                                       offset=(t * 2 + u) * 4096 + j * 1024)
                e.wait_lg_all()
                if not FUSE3: e.raw("s_setprio 2")
            if i == 15 and not FUSE3:
                X = [V(16 + 16 * w, 16) for w in range(4)]
                for w in range(4):
                    for j in range(4):
                        e.ds_read("ds_read_b128", X[w][4 * j:4 * j + 4], vRr, offset=w * 16384 + j * 1024)
                for r in range(16):
                    e.valu("v_add_f32", X[0][r], X[0][r], X[1][r])
                    e.valu("v_add_f32", X[2][r], X[2][r], X[3][r])
                for r in range(16):
                    e.valu("v_add_f32", X[0][r], X[0][r], X[2][r])
                for j in range(8):
                    e.valu("v_cvt_pk_bf16_f32", X[1][j], X[0][2 * j], X[0][2 * j + 1])
                e.salu("s_lshr_b32", sT0, sW4, 1)
                e.salu("s_lshl_b32", sT1, sMt64, 1)
                e.salu("s_add_u32", sT0, sT0, sT1)
                e.salu("s_mul_i32", sT0, sT0, 14)
                e.salu("s_and_b32", sT1, sW4, 1)
                e.salu("s_add_u32", sT0, sT0, sT1)
                e.salu("s_lshl_b32", sT1, sNt, 1)
                e.salu("s_add_u32", sT0, sT0, sT1)
                e.salu("s_lshl_b32", sT0, sT0, 11)
                e.salu("s_add_u32", sT0, sT0, BF)
                e.buf_store(X[1][0:4], vLane16, sWS, sT0, offset=0, flags=STF)
                e.buf_store(X[1][4:8], vLane16, sWS, sT0, offset=1024, flags=STF)
        if i + 2 <= 15:
            e.wait_vm_tag(("KV", i + 2))
        if i == 13 and not FUSE3:
            srd(e, sWo, KO, 448 * 896)
            e.salu("s_lshl_b32", sT0, sIdx, 2)
            e.salu("s_add_u32", sT0, sT0, sW4)
            e.salu("s_mul_i32", sT0, sT0, 25 * 128)
            e.valu("v_min_u32", vX0, 24, lane)
            e.valu("v_lshlrev_b32", vX0, 7, vX0)
            e.buf_load(V(10), vX0, sWo, sT0, offset=0)
        if FUSE3 and gemm and i >= 13:
            dma_Wo(i - 13)
        if i < 15 or FUSE3:
            e.barrier()
    if FUSE3:
        sHead, sQblk = S(29), S(30)
        e.barrier()
        if gemm:
            assert not todo
            dma_Wo(3)
            dl = list(range(14 - DEFER, 14))
            for s_ in dl[:DSPLIT]:
                compute(s_, [])
            e.wait_vm_all()
        e.raw("s_setprio 3")
        e.barrier()
        flag_store(e, F3, sQblk, sHead)
        if gemm and DEFER:
            for s_ in dl[DSPLIT:]:
                compute(s_, [])
            for u in range(2):
                for t in range(2):
                    for j in range(4):
                        e.ds_write("ds_write_b128", vRw, ACC[u][t][4 * j:4 * j + 4],
                                   offset=(t * 2 + u) * 4096 + j * 1024)
            e.wait_lg_all()
            e.barrier()
            e.barrier()
        if not gemm:
            e.salu("s_sub_u32", sT0, S(2), sW4)
            e.salu("s_cmp_lg_u32", sT0, 255)
            e.raw("s_cbranch_scc1 L_k12_nadv")
            e.valu("v_lshlrev_b32", vF2, 7, lane)
            for j in range(4):
                e.salu("s_mov_b32", sT0, F2 + j * 8192)
                poll(e, f"L_k12_pc{j}", vF2, sWS, sT0, 64, V(15), sNonce)
            e.salu("s_mov_b32", sT0, NONCE)
            e.raw("s_mov_b64 exec, 1")
            e.buf_store(V(9), V(249), sWS, sT0, offset=0, flags=" sc1")
            e.raw("s_mov_b64 exec, -1")
            e.label("L_k12_nadv")
        if gemm:
            if not S1ST: e.stamp(6, True)
            e.salu("s_lshr_b32", sT0, sMt64, 1)
            e.salu("s_lshl_b32", sT0, sT0, 11)
            e.salu("s_add_u32", sT0, sT0, F3)
            e.valu("v_lshlrev_b32", vF2, 7, lane)
            e.raw(f"v_mov_b32 v8, {SIG + 64}")
            e.salu("s_cmp_lg_u32", sW4, 1)
            e.raw("s_cbranch_scc1 L_k12_w3")
            poll(e, "L_k12_p3", vF2, sWS, sT0, 16, V(15), sNonce)
            e.raw(f"v_mov_b32 v9, {sNonce}")
            e.raw("ds_write_b32 v8, v9")
            e.raw("s_branch L_k12_p3ok")
            e.label("L_k12_w3")
            e.salu("s_mov_b32", sT2, 0)
            e.label("L_k12_w3b")
            e.raw("ds_read_b32 v9, v8")
            e.salu("s_add_u32", sT2, sT2, 1)
            e.raw("s_waitcnt lgkmcnt(0)")
            e.raw("v_readfirstlane_b32 s33, v9")
            e.salu("s_cmp_gt_u32", sT2, SPIN * 16)
            e.raw("s_cbranch_scc1 L_k12_p3ok")
            e.raw(f"s_cmp_eq_u32 s33, {sNonce}")
            e.raw("s_cbranch_scc1 L_k12_p3ok")
            e.raw("s_sleep 1")
            e.raw("s_branch L_k12_w3b")
            e.label("L_k12_p3ok")
            e.vm, e.last = [], {}
            if not S1ST: e.stamp(7, True)
            e.salu("s_lshr_b32", sT0, sW4, 1)
            e.salu("s_lshl_b32", sT0, sT0, 15)
            e.salu("s_and_b32", sT1, sW4, 1)
            e.salu("s_lshl_b32", sT1, sT1, 12)
            e.salu("s_add_u32", sT2, sT0, sT1)
            e.salu("s_lshl_b32", sT1, sMt64, 16)
            e.salu("s_add_u32", sT1, sT1, sT2)
            e.salu("s_add_u32", sT1, sT1, OF)
            for c in range(4):
                e.salu("s_add_u32", "m0", sT2, WR + c * 8192)
                e.salu("s_add_u32", sT0, sT1, c * 8192)
                for i in range(4):
                    e.buf_load_lds(vLane16, sWS, sT0, offset=i * 1024, tag=("O", c), flags=LDF)
                if c >= OLEAD:
                    e.wait_vm_tag(("O", c - OLEAD))
                    e.barrier()
            for c in range(4 - OLEAD, 4):
                e.wait_vm_tag(("O", c))
                e.barrier()
    e.stamp(9); e.stamp(13, True)
    e.dump_stamps(sWS, 0, sWave)


K12_DESC = dict(name=KNAME, vgpr=256, acc=256, sgpr=96, grid=256, block=512, lds=LDS)
```

```python
import sys, os
from emit import Emitter
NAME = "gated_mix__softmax_full_mha__swiglu_ffn__prompt"

DOC = """;
;"""

def header():
    ref = open(f"cdna_kernels/{NAME}.s.ref").read().splitlines()
    out = []
    for l in ref:
        if l.startswith(";") and "@launch" not in l and "Override launch" not in l and "grid=ceil" not in l:
            out.append(l)
        elif not l.startswith(";"):
            break
    return out

def build(kernels, path):
    lines = header() + DOC.split("\n")
    for _, d in kernels:
        lines.append(f"; @launch {('kernel=' + d['name'] + ' ') if (len(kernels) > 1 or os.environ.get('LIST')) else ''}grid=({d['grid']},1,1) block=({d['block']},1,1) lds={d['lds']}")
    lines.append('.amdgcn_target "amdgcn-amd-amdhsa--gfx950"')
    lines.append(".text")
    body = "\n".join(lines) + "\n"
    seen = set()
    for g, d in kernels:
        if d["name"] in seen: continue
        seen.add(d["name"])
        e = Emitter()
        g(e)
        body += f".globl {d['name']}\n.p2align 8\n.type {d['name']},@function\n" + e.text()
    body += 'L_code_end:\n.section .rodata,"a"\n'
    seen = set()
    for g, d in kernels:
        if d["name"] in seen: continue
        seen.add(d["name"])
        body += f""".p2align 6
.amdhsa_kernel {d['name']}
  .amdhsa_next_free_vgpr {d['vgpr']}
  .amdhsa_next_free_sgpr {102 if Emitter.STAMPS else d['sgpr']}
  .amdhsa_accum_offset {d['acc']}
  .amdhsa_group_segment_fixed_size 0
  .amdhsa_kernarg_size 88
  .amdhsa_user_sgpr_count 2
  .amdhsa_user_sgpr_kernarg_segment_ptr 1
  .amdhsa_system_sgpr_workgroup_id_x 1
.end_amdhsa_kernel
"""
    open(path, "w").write(body)

if __name__ == "__main__":
    import os
    if os.environ.get("STAMPS"):
        Emitter.STAMPS = True
    import k12, k3
    ks = [(k12.gen_k12, k12.K12_DESC)] + ([] if k12.FUSE3 else [(k3.gen_k3, k3.K3_DESC)])
    out = sys.argv[1] if len(sys.argv) > 1 else "cur.s"
    build(ks, out)
    print("wrote", out)
```

```python
from emit import *
from layout import *
import os
import struct

ROT1 = int(os.environ.get('ROT1', '1'))
STF = ' sc1'
LDF = ' sc1'
EB1 = int(os.environ.get('EB1', '3'))
N1 = int(os.environ.get('N1', '13'))
N1B = int(os.environ.get('N1B', '17'))
N1X = int(os.environ.get('N1X', '9'))
PRE = int(os.environ.get('PRE', '1'))
QANY = int(os.environ.get('QANY', '1'))
PRES = eval(os.environ.get('PRES', '(4, 24, 44)'))
C0 = int(os.environ.get('C0', '2'))
POLL2 = int(os.environ.get('POLL2', '6'))
SPIN = 1 << 17
L2PF = int(os.environ.get('L2PF', '0'))
CODEPF = int(os.environ.get('CODEPF', '0'))
XORD = int(os.environ.get('XORD', '0'))
EARLYP = int(os.environ.get('EARLYP', '1'))
MAP = int(os.environ.get('MAP', '0'))
DSPLIT = int(os.environ.get('DSPLIT', '0'))
BUD = int(os.environ.get('BUD', '2'))
DEFER = int(os.environ.get('DEFER', '4'))
S1ST = int(os.environ.get('S1ST', '0'))
TPRIO = int(os.environ.get('TPRIO', '0'))
WSL = int(os.environ.get('WSL', '2'))
LP0 = int(os.environ.get('LP0', '99'))
OLEAD = int(os.environ.get('OLEAD', '3'))
FUSE3 = int(os.environ.get('FUSE3', '1'))
KOUT = 92
KNAME = "gated_mix__softmax_full_mha__swiglu_ffn__prompt_kernel" if FUSE3 else "k12_kernel"
sOut = S(12, 4)
SLEEP = int(os.environ.get('SLEEP', '4'))
HPRIO = int(os.environ.get('HPRIO', '0'))

LOG2E = 1.4426950408889634
QSCALE = (28 ** -0.5) * LOG2E
L_LO = 2.0 ** -50
L_HI = 2.0 ** 60


def f2u(x):
    return struct.unpack("<I", struct.pack("<f", x))[0]


sX, sWg, sWu, sWq, sWS = S(4, 4), S(8, 4), S(12, 4), S(16, 4), S(20, 4)
sWd, sGw, sDbg, sWo = S(64, 4), S(60, 4), S(44, 4), S(8, 4)
sWave, sMblk, sCg, sW4 = S(24), S(25), S(26), S(28)
sT0, sT1, sT2 = S(32), S(33), S(31)
sRot = S(3)
sXcd, sIdx = S(68), S(69)
KX, KQ, KO, KG, KU, KD, KGW, KDBG, KWS = 72, 74, 76, 80, 82, 84, 86, 88, 90

BR = 114688
WR = 65536
QL = 65536 + 8192
SIG = 131072
SIG1 = 49152
ARED = 147456
LDS = 163840
vX0, vX1, vX2, vLane, vLane16 = V(250), V(251), V(252), V(253), V(254)


def srd(e, s, lo, size):
    e.salu("s_mov_b32", s[0], S(lo))
    e.salu("s_mov_b32", s[1], S(lo + 1))
    e.salu("s_mov_b32", s[2], size)
    e.salu("s_mov_b32", s[3], "0x20000")


def gen_k12(e):
    e.label(KNAME)
    e.salu("s_cmp_ge_u32", S(2), 256)
    e.raw("s_cbranch_scc1 L_k12_end")
    e.s_load(S(72, 4), S(0, 2), 0)
    e.s_load(S(76, 2), S(0, 2), 16)
    e.s_load(S(80, 8), S(0, 2), 32)
    e.s_load(S(88, 4), S(0, 2), 72)
    e.s_load(S(92, 2), S(0, 2), 64)
    if CODEPF == 2:
        e.raw("s_getpc_b64 s[52:53]")
        e.label("L_k12_pc")
        e.salu("s_lshl_b32", sT0, S(2), 11)
        e.salu("s_and_b32", sT0, sT0, "0xc000")
        e.valu("v_lshlrev_b32", vX0, 5, V(0))
        e.valu("v_add_u32", vX0, sT0, vX0)
        e.raw(f"v_min_u32 {vX0}, L_code_end-L_k12_pc-4, {vX0}")
        e.raw(f"v_mov_b32 {vX2}, s53")
        e.raw(f"v_add_co_u32 {vX0}, vcc, s52, {vX0}")
        e.raw("s_nop 1")
        e.raw(f"v_addc_co_u32 {vX1}, vcc, 0, {vX2}, vcc")
        e.raw(f"global_load_dword v246, v[{vX0.lo}:{vX1.lo}], off")
    e.salu("s_and_b32", sXcd, S(2), 7)
    e.salu("s_lshr_b32", sIdx, S(2), 3)
    if MAP == 0:
        e.salu("s_and_b32", sMblk, sXcd, 1)
        e.salu("s_lshl_b32", sMblk, sMblk, 3)
        e.salu("s_and_b32", sRot, sIdx, 7)
        e.salu("s_add_u32", sMblk, sMblk, sRot)
        e.salu("s_lshr_b32", sT0, sXcd, 1)
        e.salu("s_lshr_b32", sT1, sIdx, 3)
        e.salu("s_mul_i32", sCg, sT0, 3)
        e.salu("s_add_u32", sCg, sCg, sT1)
        e.salu("s_add_u32", sT0, sT0, 12)
        e.salu("s_cmp_eq_u32", sT1, 3)
        e.salu("s_cselect_b32", sCg, sT0, sCg)
        if ROT1:
            e.salu("s_lshl_b32", sT1, sT1, 1)
            e.salu("s_add_u32", sRot, sRot, sT1)
            e.salu("s_sub_u32", sT0, sRot, 7)
            e.salu("s_cmp_ge_u32", sRot, 7)
            e.salu("s_cselect_b32", sRot, sT0, sRot)
    else:
        e.salu("s_and_b32", sMblk, sXcd, 3)
        e.salu("s_lshl_b32", sMblk, sMblk, 2)
        e.salu("s_and_b32", sRot, sIdx, 3)
        e.salu("s_add_u32", sMblk, sMblk, sRot)
        e.salu("s_lshr_b32", sT0, sXcd, 2)
        e.salu("s_lshr_b32", sT1, sIdx, 2)
        e.salu("s_mul_i32", sCg, sT0, 6)
        e.salu("s_add_u32", sCg, sCg, sT1)
        e.salu("s_lshl_b32", sT0, sT0, 1)
        e.salu("s_add_u32", sT0, sT0, sT1)
        e.salu("s_add_u32", sT0, sT0, 6)
        e.salu("s_cmp_ge_u32", sT1, 6)
        e.salu("s_cselect_b32", sCg, sT0, sCg)
        e.salu("s_lshl_b32", sRot, sRot, 1)
        e.salu("s_add_u32", sRot, sRot, sT1)
        e.salu("s_sub_u32", sT0, sRot, 7)
        e.salu("s_cmp_ge_u32", sRot, 7)
        e.salu("s_cselect_b32", sRot, sT0, sRot)
    if ROT1:
        pass
    else:
        e.salu("s_mov_b32", sRot, 0)
    e.valu("v_lshrrev_b32", vX0, 6, V(0))
    e.valu("v_and_b32", vLane, 63, V(0))
    e.valu("v_readfirstlane_b32", sWave, vX0)
    e.valu("v_lshlrev_b32", vLane16, 4, vLane)
    e.salu("s_and_b32", sW4, sWave, 3)
    e.salu("s_cmp_lt_u32", sWave, 4)
    e.raw("s_cbranch_scc1 L_k12_heavy")
    saved = list(e.lg)

    def reset():
        e.lg, e.vm, e.last, e.smem_pending = list(saved), [], {}, True
    e.raw("s_setprio 3")
    e.stamp(12, True)
    e.salu("s_cmp_ge_u32", sCg, 12)
    e.raw("s_cbranch_scc1 L_k12_loadY")
    e.flush_hazards()
    gen_loader1(e, False)
    e.raw("s_branch L_k12_help2")
    e.label("L_k12_loadY")
    reset()
    gen_loader1(e, True)
    e.label("L_k12_help2")
    e.lg, e.vm, e.last = [], [], {}
    gen_helper2(e)
    e.label("L_k12_heavy")
    reset()
    if CODEPF == 1:
        e.raw("s_getpc_b64 s[52:53]")
        e.label("L_k12_pc")
        e.salu("s_lshl_b32", sT0, sIdx, 2)
        e.salu("s_add_u32", sT0, sT0, sW4)
        e.salu("s_mul_i32", sT0, sT0, 3 * 128)
        e.raw(f"s_sub_u32 s52, s52, L_k12_pc-{KNAME}")
        e.raw("s_subb_u32 s53, s53, 0")
        e.valu("v_min_u32", vX0, 2, vLane)
        e.valu("v_lshlrev_b32", vX0, 7, vX0)
        e.valu("v_add_u32", vX0, sT0, vX0)
        e.raw(f"v_min_u32 {vX0}, L_code_end-{KNAME}-4, {vX0}")
        e.raw(f"v_mov_b32 {vX2}, s53")
        e.raw(f"v_add_co_u32 {vX0}, vcc, s52, {vX0}")
        e.raw("s_nop 1")
        e.raw(f"v_addc_co_u32 {vX1}, vcc, 0, {vX2}, vcc")
        e.raw(f"global_load_dword v246, v[{vX0.lo}:{vX1.lo}], off")
    e.salu("s_cmp_ge_u32", sCg, 12)
    e.raw("s_cbranch_scc1 L_k12_compY")
    gen_compute1(e, False)
    e.raw("s_branch L_k12_attn")
    e.label("L_k12_compY")
    reset()
    gen_compute1(e, True)
    e.label("L_k12_attn")
    e.lg, e.vm, e.last = [], [], {}
    e.nop(2)
    gen_attn(e)
    e.label("L_k12_end")
    e.raw("s_endpgm")


sNonce = S(27)


def poll(e, name, vaddr, srd_, soff, nlanes, vtmp, cmp_s):
    mask = (1 << nlanes) - 1
    e.wait_lg_all()
    e.raw(f"s_mov_b32 exec_lo, {hex(mask & 0xffffffff)}")
    e.raw(f"s_mov_b32 exec_hi, {hex(mask >> 32)}")
    e.salu("s_mov_b32", sT2, 0)
    e.label(name)
    e.raw(f"buffer_load_dword {vtmp}, {vaddr}, {srd_}, {soff} offen sc1")
    e.salu("s_add_u32", sT2, sT2, 1)
    e.raw("s_waitcnt vmcnt(0)")
    e.raw(f"v_cmp_ne_u32 vcc, {cmp_s}, {vtmp}")
    e.salu("s_cmp_gt_u32", sT2, SPIN)
    e.raw(f"s_cbranch_scc1 {name}_out")
    e.raw("s_and_b64 exec, exec, vcc")
    e.raw(f"s_cbranch_scc0 {name}_out")
    if SLEEP: e.raw(f"s_sleep {SLEEP}")
    e.raw(f"s_branch {name}")
    e.label(name + "_out")
    e.raw("s_mov_b64 exec, -1")
    e.vm = []
    e.last = {}


def flag_store(e, base, hi=None, lo=None):
    e.salu("s_lshl_b32", sT0, hi or sCg, 4)
    e.salu("s_add_u32", sT0, sT0, lo or sMblk)
    e.salu("s_lshl_b32", sT0, sT0, 7)
    e.salu("s_add_u32", sT0, sT0, base)
    e.salu("s_min_u32", sT1, sW4, 1)
    e.salu("s_lshl_b32", sT1, sT1, 19)
    e.salu("s_add_u32", sT0, sT0, sT1)
    e.valu("v_mov_b32", V(9), sNonce)
    e.valu("v_mov_b32", V(249), 0)
    e.raw("s_mov_b64 exec, 1")
    e.buf_store(V(9), V(249), sWS, sT0, offset=0, flags=" sc1")
    e.raw("s_mov_b64 exec, -1")


def gen_loader1(e, typeY):
    ty = int(typeY)
    lane = vLane
    vA = [V(1), V(2), V(3), V(4)]
    vB = [V(5), V(6)]
    vB2 = [V(7), V(8)]
    vGa = V(13)
    vG = V(16, 7)
    sAoff, sB0, sQo, sVo = S(29), S(30), S(34), S(48)
    sLA, sLB = S(35), S(36)
    sCh = [S(37 + i) for i in range(7)]
    e.valu("v_lshrrev_b32", vX0, 3, lane)
    e.valu("v_and_b32", vX1, 7, lane)
    e.valu("v_lshrrev_b32", vX2, 1, vX0)
    e.valu("v_xor_b32", vX2, vX2, vX1)
    e.valu("v_mul_u32_u24", vA[0], 896, vX0)
    e.valu("v_lshl_add_u32", vA[0], vX2, 4, vA[0])
    e.valu("v_xor_b32", vA[1], 64, vA[0])
    e.valu("v_add_u32", vA[2], 2 * 6144, vA[0])
    e.valu("v_add_u32", vA[3], 3 * 6144, vA[1])
    e.valu("v_add_u32", vA[1], 6144, vA[1])
    e.valu("v_bfe_u32", vX1, lane, 2, 1)
    e.valu("v_bfe_u32", vX2, lane, 4, 1)
    e.valu("v_xor_b32", vX1, vX1, vX2)
    e.valu("v_and_b32", vX2, 3, lane)
    for vv, l_, us in ((vB, 3584, 64), (vB2, 2688, 56)):
        e.valu("v_mul_u32_u24", vv[0], l_, vX0)
        e.valu("v_mul_u32_u24", vv[1], us, vX1)
        e.valu("v_add_u32", vv[0], vv[0], vv[1])
        e.valu("v_lshl_add_u32", vv[0], vX2, 4, vv[0])
        e.valu("v_add_u32", vv[1], 8 * l_ - 1024, vv[0])
    e.salu("s_lshl_b32", sT0, sMblk, 2)
    e.salu("s_add_u32", sT0, sT0, sW4)
    e.salu("s_mul_i32", sAoff, sT0, 32 * 896)
    e.salu("s_mul_i32", sT0, sW4, 16 * 3584)
    e.salu("s_lshl_b32", sB0, sCg, 7)
    e.salu("s_add_u32", sB0, sB0, sT0)
    e.salu("s_mul_i32", sT0, sW4, 16 * 2688)
    e.salu("s_mul_i32", sQo, sCg, 112)
    e.salu("s_add_u32", sQo, sQo, sT0)
    if typeY:
        e.salu("s_mul_i32", sVo, sCg, 224)
        e.salu("s_add_u32", sVo, sVo, sT0)
        e.salu("s_sub_u32", sVo, sVo, 12 * 224 - 1792)
    e.salu("s_lshl_b32", sLA, sW4, 12)
    e.salu("s_lshl_b32", sLB, sW4, 11)
    e.salu("s_add_u32", sLB, sLB, BR)
    e.salu("s_mov_b32", sCh[0], sRot)
    for c in range(1, 7):
        e.salu("s_add_u32", sCh[c], sCh[c - 1], 1)
        e.salu("s_cmp_eq_u32", sCh[c], 7)
        e.salu("s_cselect_b32", sCh[c], 0, sCh[c])
    e.wait_lg_all()
    srd(e, sX, KX, 2048 * 896)
    srd(e, sWg, KG, 448 * 3584)
    srd(e, sWu, KU, 448 * 3584)
    srd(e, sWq, KQ, 448 * 2688)

    ff = typeY or XORD
    pair0 = 7 if ff else 0

    def dmaA(c, n):
        e.salu("s_lshl_b32", sT0, sCh[c], 7)
        e.salu("s_add_u32", "m0", sLA, c * 16384)
        e.salu("s_add_u32", sT0, sT0, sAoff)
        for i in range(4):
            e.buf_load_lds(vA[i], sX, sT0, offset=i * 1024, tag=("C", n))

    def dmaB(n):
        sl = (n % 3) * 16384
        if pair0 <= n < pair0 + 4:
            for r in range(2):
                c = 2 * (n - pair0) + r
                if c < 7:
                    if not ff: dmaA(c, n)
                    e.salu("s_mul_i32", sT1, sCh[c], 64 * 2688)
                    e.salu("s_add_u32", "m0", sLB, sl + r * 8192)
                    e.salu("s_add_u32", sT0, sQo, sT1)
                    for i in range(2):
                        e.buf_load_lds(vB2[i], sWq, sT0, offset=i * 1024, tag=("C", n))
        elif n < 7 and typeY:
            dmaA(n, n)
            e.salu("s_mul_i32", sT1, sCh[n], 64 * 2688)
            for r in range(2):
                e.salu("s_add_u32", "m0", sLB, sl + r * 8192)
                e.salu("s_add_u32", sT1, sT1, sVo if r == 0 else 112)
                for i in range(2):
                    e.buf_load_lds(vB2[i], sWq, sT1, offset=i * 1024, tag=("C", n))
        else:
            c = (n if ff else n - 4) if n < 11 else n - 11
            if ff and n < 7: dmaA(n, n)
            e.salu("s_mul_i32", sT1, sCh[c], 64 * 3584)
            e.salu("s_add_u32", sT1, sT1, sB0)
            if n >= 11: e.salu("s_add_u32", sT1, sT1, 12 * 128)
            for r in range(2):
                e.salu("s_add_u32", "m0", sLB, sl + r * 8192)
                e.nop(1)
                for i in range(2):
                    e.buf_load_lds(vB[i], (sWg, sWu)[r], sT1, offset=i * 1024, tag=("C", n))

    def land(n):
        e.wait_vm_tag(("C", n))
        if not typeY and pair0 <= n < pair0 + 4:
            e.raw("s_mov_b64 exec, 0xffff")
            for r in range(2):
                c = 2 * (n - pair0) + r
                if c < 7:
                    e.ds_write("ds_write_b16", vGa, vG[c], offset=(n % 3) * 16384 + r * 8192)
            e.raw("s_mov_b64 exec, -1")
            e.wait_lg_all()

    dmaB(0)
    if not typeY:
        srd(e, sGw, KGW, 896)
        e.valu("v_and_b32", vX0, 15, lane)
        e.valu("v_lshlrev_b32", vX1, 1, vX0)
        e.salu("s_lshl_b32", sT0, sW4, 5)
        e.salu("s_lshl_b32", sT2, sCg, 12)
        e.salu("s_add_u32", sT0, sT0, sT2)
        for c in range(7):
            e.salu("s_lshl_b32", sT2, sCh[c], 7)
            e.salu("s_add_u32", sT2, sT2, sT0)
            e._issue(f"buffer_load_ushort {vG[c]}, {vX1}, {sGw}, {sT2} offen", "vmem", vX1.regs() + sGw.regs() + sT2.regs(), vG[c].regs())
            e.vm.append((-1, set(vG[c].regs()), "gw"))
        e.valu("v_lshlrev_b32", vGa, 7, vX0)
        e.valu("v_bfe_u32", vX1, lane, 1, 1)
        e.valu("v_lshl_add_u32", vGa, vX1, 6, vGa)
        e.valu("v_add_u32", vGa, sLB, vGa)
        e.valu("v_add_u32", vGa, 56, vGa)
    dmaB(1)
    srd(e, sWS, KWS, WS_USED)
    e.valu("v_mov_b32", V(12), 0)
    e.salu("s_mov_b32", sT0, NONCE)
    e.buf_load(V(11), V(12), sWS, sT0, offset=0, flags=" sc1")
    land(0)
    e.barrier()
    for n in range(16):
        if n == LP0: e.raw('s_setprio 0')
        if n + 2 < 18:
            dmaB(n + 2)
        if n == (N1 if ff else N1X):
            flag_store(e, F1)
            if S1ST: e.stamp(6, True)
        if n == 2:
            e.valu("v_readfirstlane_b32", sNonce, V(11))
            e.nop(1)
            e.salu("s_add_u32", sNonce, sNonce, "0x9e3779b9")
        if n == 15:
            vFl = V(14)
            e.salu("s_lshl_b32", sT0, sXcd, 4)
            e.salu("s_add_u32", sT1, sT0, 128)
            e.valu("v_add_u32", vFl, sT1, lane)
            e.salu("s_lshr_b32", sT1, sXcd, 1)
            e.salu("s_lshl_b32", sT1, sT1, 4)
            e.salu("s_add_u32", sT1, sT1, 192 - 16)
            e.valu("v_add_u32", vX0, sT1, lane)
            e.valu("v_cmp_le_u32", "vcc", 16, lane)
            e.valu("v_cndmask_b32", vFl, vFl, vX0)
            e.salu("s_and_b32", sT1, sIdx, 15)
            e.salu("s_add_u32", sT0, sT0, sT1)
            e.valu("v_mov_b32", vX0, sT0)
            e.valu("v_cmp_le_u32", "vcc", 32, lane)
            e.valu("v_cndmask_b32", vFl, vFl, vX0)
            e.valu("v_lshlrev_b32", vFl, 7, vFl)
        land(n + 1)
        e.barrier()


def gen_compute1(e, typeY):
    ty = int(typeY)
    lane = vLane
    sWm, sWn, sMt = S(29), S(30), S(34)
    sOutH, sOutV, sOutQK, sQKstr, sQKmul, sNL2E = S(35), S(48), S(36), S(37), S(38), S(39)
    sMask = S(40, 2)
    vAr = [[V(232 + i) for i in range(4)], [V(236 + i) for i in range(4)]]
    vTr = V(240)
    vMulHi, vVconst = V(241), V(242)
    TT = 220
    def ACC(p, r, t):
        if p == 0: return V(128 + 16 * t, 16)
        return V(64 * (p - 1) + 32 * r + 16 * t, 16)
    NBUF = 3
    def fA(n, t): return V(160 + (n % NBUF) * 16 + t * 4, 4)
    def fB(n, i): return V(160 + (n % NBUF) * 16 + 8 + i * 4, 4)
    e.salu("s_lshr_b32", sWm, sW4, 1)
    e.salu("s_and_b32", sWn, sW4, 1)
    e.salu("s_lshl_b32", sMt, sMblk, 1)
    e.salu("s_add_u32", sMt, sMt, sWm)
    e.salu("s_lshl_b32", sMt, sMt, 1)
    e.valu("v_and_b32", vX0, 31, lane)
    e.valu("v_lshrrev_b32", vX1, 5, lane)
    e.valu("v_bfe_u32", vX2, lane, 1, 3)
    e.valu("v_xor_b32", vX2, vX2, vX1)
    e.valu("v_lshlrev_b32", vX0, 7, vX0)
    e.salu("s_lshl_b32", sT0, sWm, 13)
    e.valu("v_add_u32", vX0, sT0, vX0)
    for k in range(4):
        e.valu("v_xor_b32", vAr[0][k], 2 * k, vX2)
        e.valu("v_lshl_add_u32", vAr[0][k], vAr[0][k], 4, vX0)
        e.valu("v_add_u32", vAr[1][k], 65536, vAr[0][k])
    e.valu("v_bfe_u32", vX0, lane, 2, 2)
    e.valu("v_lshl_add_u32", vX0, vX1, 3, vX0)
    e.valu("v_bfe_u32", vX2, lane, 4, 1)
    e.valu("v_lshlrev_b32", vX2, 5, vX2)
    e.valu("v_and_b32", vX1, 3, lane)
    e.valu("v_lshl_add_u32", vX2, vX1, 3, vX2)
    e.valu("v_lshl_add_u32", vX2, vX0, 7, vX2)
    e.valu("v_bfe_u32", vX1, lane, 3, 1)
    e.valu("v_xor_b32", vX1, sWn, vX1)
    e.valu("v_lshl_add_u32", vTr, vX1, 6, vX2)
    e.valu("v_add_u32", vTr, BR, vTr)
    e.salu("s_mov_b32", sNL2E, hex(f2u(-LOG2E)))
    e.salu("s_lshl_b32", sT2, sCg, 1)
    e.salu("s_add_u32", sT2, sT2, sWn)
    e.salu("s_mul_i32", sOutH, sMt, H_MT_STRIDE)
    e.salu("s_lshl_b32", sT1, sT2, 11)
    e.salu("s_add_u32", sOutH, sOutH, sT1)
    e.salu("s_add_u32", sOutH, sOutH, HF)
    if typeY:
        e.salu("s_sub_u32", sT1, sCg, 12)
        e.salu("s_lshl_b32", sT0, sT1, 2)
        e.salu("s_add_u32", sT0, sT0, sWn)
        e.salu("s_lshl_b32", sT0, sT0, 6)
        e.salu("s_add_u32", sT0, sT0, sMt)
        e.salu("s_lshl_b32", sOutV, sT0, 12)
        e.salu("s_add_u32", sOutV, sOutV, KVF + 2048)
    e.salu("s_and_b32", sT1, sT2, 15)
    e.salu("s_lshl_b32", sT1, sT1, 6)
    e.salu("s_add_u32", sT1, sT1, sMt)
    e.salu("s_cmp_lt_u32", sT2, 16)
    e.salu("s_cselect_b32", sQKstr, 11, 12)
    e.salu("s_cselect_b32", sOutQK, QF, KVF)
    e.salu("s_cselect_b32", sQKmul, hex(f2u(QSCALE)), 1.0)
    e.salu("s_lshl_b32", sQKstr, 1, sQKstr)
    e.salu("s_mul_i32", sT1, sT1, sQKstr)
    e.salu("s_add_u32", sOutQK, sOutQK, sT1)
    e.valu("v_cmp_gt_u32", "vcc", 32, lane)
    e.valu("v_mov_b32", vX0, sQKmul)
    e.valu("v_mov_b32", vX1, 0)
    e.valu("v_cndmask_b32", vMulHi, vX1, vX0)
    if typeY:
        e.valu("v_and_b32", vX0, 31, lane)
        e.valu("v_cmp_eq_u32", "vcc", 28, vX0)
        e.valu("v_mov_b32", vX2, "0x3f803f80")
        e.valu("v_cndmask_b32", vVconst, vX1, vX2)
        e.valu("v_cmp_le_u32", sMask, 28, vX0)
    e.wait_lg_all()
    srd(e, sWS, KWS, WS_USED)
    srd(e, sWd, KD, 1792 * 896)

    def epi_h(p, pk=False):
        ops = []
        for t in range(2):
            G, U = ACC(p, 0, t), ACC(p, 1, t)
            for hgrp in range(2):
                rs = list(range(8 * hgrp, 8 * hgrp + 8))
                T = V(TT, 8)
                if not pk:
                    for r in rs: ops.append((1, lambda r=r, G=G, T=T: e.valu("v_mul_f32", T[r % 8], sNL2E, G[r])))
                    for r in rs:
                        ops.append((2, lambda r=r, T=T: e.valu("v_exp_f32", T[r % 8], T[r % 8])))
                        ops.append((1, lambda r=r, G=G, U=U: e.valu("v_mul_f32", G[r], G[r], U[r])))
                    for r in rs: ops.append((1, lambda r=r, T=T: e.valu("v_add_f32", T[r % 8], 1.0, T[r % 8])))
                    for r in rs: ops.append((2, lambda r=r, T=T: e.valu("v_rcp_f32", T[r % 8], T[r % 8])))
                    for r in rs: ops.append((1, lambda r=r, G=G, T=T: e.valu("v_mul_f32", G[r], G[r], T[r % 8])))
                else:
                    C = V(228, 4)
                    for r in rs[::2]: ops.append((1, lambda r=r, G=G, T=T: e.valu("v_pk_mul_f32", T[r % 8:r % 8 + 2], G[r:r + 2], C[0:2])))
                    for r in rs:
                        ops.append((2, lambda r=r, T=T: e.valu("v_exp_f32", T[r % 8], T[r % 8])))
                        if r % 2: ops.append((1, lambda r=r, G=G, U=U: e.valu("v_pk_mul_f32", G[r - 1:r + 1], G[r - 1:r + 1], U[r - 1:r + 1])))
                    for r in rs[::2]: ops.append((1, lambda r=r, T=T: e.valu("v_pk_add_f32", T[r % 8:r % 8 + 2], T[r % 8:r % 8 + 2], C[2:4])))
                    for r in rs: ops.append((2, lambda r=r, T=T: e.valu("v_rcp_f32", T[r % 8], T[r % 8])))
                    for r in rs[::2]: ops.append((1, lambda r=r, G=G, T=T: e.valu("v_pk_mul_f32", G[r:r + 2], G[r:r + 2], T[r % 8:r % 8 + 2])))
                for i in range(4 * hgrp, 4 * hgrp + 4):
                    ops.append((1, lambda i=i, G=G, U=U: e.valu("v_cvt_pk_bf16_f32", U[i], G[2 * i], G[2 * i + 1])))
                def st(hgrp=hgrp, t=t, U=U):
                    e.salu("s_add_u32", sT1, sOutH, t * H_MT_STRIDE + (24 * 2048 if p == 2 else 0))
                    e.buf_store(U[4 * hgrp:4 * hgrp + 4], vLane16, sWS, sT1, offset=hgrp * 1024, flags=STF)
                ops.append((-2, st))
        return ops

    def epi_v():
        ops = []
        for r in range(2):
            for t in range(2):
                X = ACC(1, r, t)
                for hgrp in range(2):
                    for i in range(4 * hgrp, 4 * hgrp + 4):
                        ops.append((1, lambda i=i, X=X: e.valu("v_cvt_pk_bf16_f32", X[i], X[2 * i], X[2 * i + 1])))
                    for i in range(4 * hgrp, 4 * hgrp + 4):
                        ops.append((1, lambda i=i, X=X: e.valu("v_cndmask_b32", X[i], X[i], vVconst, sMask)))
                    def st(t=t, X=X, r=r, hgrp=hgrp):
                        e.salu("s_add_u32", sT1, sOutV, 2 * r * 64 * 4096 + t * 4096)
                        e.buf_store(X[4 * hgrp:4 * hgrp + 4], vLane16, sWS, sT1, offset=hgrp * 1024, flags=STF, tag="qkv")
                    st.qkv = True
                    ops.append((-2, st))
        return ops

    def epi_qk():
        ops = []
        for t in range(2):
            X = ACC(0, 0, t)
            if not typeY:
                ops.append((1, lambda t=t, X=X: e.valu("v_cvt_pk_bf16_f32", V(208 + t), X[12], X[12])))
            for r in range(16):
                if typeY and r < 12:
                    continue
                ops.append((1, lambda r=r, X=X: e.valu("v_mul_f32", X[r], sQKmul if r < 12 else vMulHi, X[r])))
            for hgrp in range(2):
                for i in range(4 * hgrp, 4 * hgrp + 4):
                    ops.append((1, lambda i=i, X=X: e.valu("v_cvt_pk_bf16_f32", X[i], X[2 * i], X[2 * i + 1])))
                def st(t=t, X=X, hgrp=hgrp):
                    if t == 1 and hgrp == 0:
                        e.salu("s_add_u32", sOutQK, sOutQK, sQKstr)
                    e.buf_store(X[4 * hgrp:4 * hgrp + 4], vLane16, sWS, sOutQK, offset=hgrp * 1024, flags=STF, tag="qkv")
                st.qkv = True
                ops.append((-2, st))
        if not typeY:
            for t in range(2):
                D = V(208 + t)
                Gv = V(210 + 2 * t, 2)
                for f in (("v_and_b32", D, "0xffff0000", D), ("v_mul_f32", D, sNL2E, D), ("v_exp_f32", D, D),
                          ("v_mov_b32", Gv[0], 0), ("v_add_f32", D, 1.0, D), ("v_rcp_f32", D, D), ("v_mov_b32", Gv[0], 0),
                          ("v_cvt_pk_bf16_f32", D, D, D),
                          ("v_and_b32", Gv[0], "0xffff0000", D), ("v_sub_f32", Gv[1], 1.0, Gv[0]),
                          ("v_cvt_pk_bf16_f32", Gv[1], Gv[1], Gv[1]), ("v_and_b32", Gv[1], "0xffff0000", Gv[1])):
                    ops.append((2 if f[0] in TRANS else 1, lambda f=f: e.valu(*f)))
            def stg():
                e.valu("v_lshlrev_b32", vX0, 3, lane)
                e.salu("s_lshl_b32", sT1, sMt, 8)
                e.salu("s_add_u32", sT1, sT1, GF - 256)
                e.salu("s_add_u32", sT0, sWn, sCg)
                e.salu("s_min_u32", sT0, sT0, 1)
                e.salu("s_lshl_b32", sT0, sT0, 15)
                e.salu("s_add_u32", sT1, sT1, sT0)
                e.raw("s_mov_b32 exec_lo, 0")
                e.buf_store(V(210, 2), vX0, sWS, sT1, offset=0, flags=STF, tag="qkv")
                e.buf_store(V(212, 2), vX0, sWS, sT1, offset=256, flags=STF, tag="qkv")
                e.raw("s_mov_b32 exec_lo, -1")
            stg.qkv = True
            ops.append((-2, stg))
        return ops

    ff = typeY or XORD
    order = (1, 0, 2) if ff else (0, 1, 2)
    steps = [(p, ks) for p in order for ks in range(28)]
    def bchunk(p, ks):
        c, kk = ks // 4, ks % 4
        if p == 1: return (0 if ff else 4) + c, kk * 2048
        if p == 2: return 11 + c, kk * 2048
        return (7 if ff else 0) + c // 2, (c % 2) * 8192 + kk * 2048
    def rd(n):
        p, ks = steps[n]
        c, kk = ks // 4, ks % 4
        bn, boff = bchunk(p, ks)
        ops = []
        for t in range(2):
            ops.append(lambda t=t: e.ds_read("ds_read_b128", fA(n, t), vAr[c >> 2][kk], offset=(c & 3) * 16384 + t * 4096, tag=("t", n)))
        for i in range(1 if p == 0 else 2):
            for j in range(2):
                ops.append(lambda i=i, j=j: e.ds_read("ds_read_b64_tr_b16", fB(n, i)[2 * j:2 * j + 2], vTr,
                                                      offset=(bn % 3) * 16384 + boff + i * 8192 + j * 512, tag=("t", n)))
        return ops

    def pre(stage):
        sTS = S(52, 4)
        e.salu("s_mov_b32", sTS[3], "0x20000")
        e.salu("s_mov_b32", sTS[2], 448 * 3584)
        if stage < 2:
            e.salu("s_and_b32", sT0, sW4, 1)
            e.salu("s_cmp_eq_u32", sT0, 0)
            e.salu("s_cselect_b32", sTS[0], S(KG), S(KU))
            e.salu("s_cselect_b32", sTS[1], S(KG + 1), S(KU + 1))
        if stage < 2 and L2PF:
            e.salu("s_and_b32", sT1, sMblk, 7)
            e.salu("s_lshl_b32", sT1, sT1, 1)
            e.salu("s_lshr_b32", sT2, sW4, 1)
            e.salu("s_add_u32", sT1, sT1, sT2)
            e.valu("v_min_u32", vX0, 27, lane)
            if stage == 0 and ff:
                e.salu("s_mov_b32", sTS[2], 448 * 2688)
                e.salu("s_mov_b32", sTS[0], S(KQ)); e.salu("s_mov_b32", sTS[1], S(KQ + 1))
                e.salu("s_mul_i32", sT1, sT1, 28 * 2688)
                e.salu("s_mul_i32", sT0, sT0, 116)
                e.salu("s_add_u32", sT1, sT1, sT0)
                e.salu("s_mul_i32", sT0, sCg, 112)
                e.valu("v_mul_u32_u24", vX2, 2688, vX0)
            else:
                e.salu("s_mul_i32", sT1, sT1, 28 * 3584)
                e.salu("s_lshl_b32", sT0, sCg, 7)
                if stage == 1: e.salu("s_add_u32", sT0, sT0, 12 * 128)
                e.valu("v_mul_u32_u24", vX2, 3584, vX0)
            e.salu("s_add_u32", sT1, sT1, sT0)
        elif stage == 0 and XORD:
            e.salu("s_mov_b32", sTS[2], 448 * 2688)
            e.salu("s_mov_b32", sTS[0], S(KQ)); e.salu("s_mov_b32", sTS[1], S(KQ + 1))
            e.salu("s_lshl_b32", sT1, S(2), 1)
            e.salu("s_add_u32", sT1, sT1, sT0)
            e.salu("s_mul_i32", sT1, sT1, 2688)
            e.salu("s_lshr_b32", sT0, sW4, 1)
            e.salu("s_mul_i32", sT0, sT0, 896)
            e.salu("s_add_u32", sT1, sT1, sT0)
            e.valu("v_min_u32", vX0, 6, lane)
            e.valu("v_lshlrev_b32", vX2, 7, vX0)
        elif stage == 0:
            e.salu("s_mul_i32", sT1, S(2), 21)
            e.valu("v_min_u32", vX0, 20, lane)
            e.valu("v_add_u32", vX0, sT1, vX0)
            e.salu("s_mov_b32", sT1, 43691)
            e.valu("v_mul_u32_u24", vX1, sT1, vX0)
            e.valu("v_lshrrev_b32", vX1, 19, vX1)
            e.valu("v_mul_u32_u24", vX2, 3584 - 12 * 128, vX1)
            e.valu("v_lshl_add_u32", vX2, vX0, 7, vX2)
            e.salu("s_mov_b32", sT1, 0)
            e.salu("s_cmp_lt_u32", sW4, 2)
            e.raw(f"s_cbranch_scc1 L_k12_pre{ty}")
            e.salu("s_mov_b32", sTS[2], 448 * 2688)
            e.salu("s_mov_b32", sTS[0], S(KQ)); e.salu("s_mov_b32", sTS[1], S(KQ + 1))
            e.salu("s_lshl_b32", sT1, S(2), 1)
            e.salu("s_add_u32", sT1, sT1, sT0)
            e.salu("s_mul_i32", sT1, sT1, 2688)
            e.salu("s_add_u32", sT1, sT1, 1280)
            e.valu("v_min_u32", vX0, 3, lane)
            e.valu("v_lshlrev_b32", vX2, 7, vX0)
            e.label(f"L_k12_pre{ty}")
        elif stage == 1:
            e.salu("s_lshl_b32", sT1, S(2), 1)
            e.salu("s_lshr_b32", sT0, sW4, 1)
            e.salu("s_add_u32", sT1, sT1, sT0)
            e.salu("s_mul_i32", sT1, sT1, 14)
            e.valu("v_min_u32", vX0, 13, lane)
            e.valu("v_add_u32", vX0, sT1, vX0)
            e.valu("v_lshrrev_b32", vX1, 4, vX0)
            e.valu("v_and_b32", vX0, 15, vX0)
            e.valu("v_mul_u32_u24", vX2, 3584, vX1)
            e.valu("v_lshl_add_u32", vX2, vX0, 7, vX2)
            e.salu("s_mov_b32", sT1, 12 * 128)
        else:
            e.salu("s_mov_b32", sTS[0], S(KD)); e.salu("s_mov_b32", sTS[1], S(KD + 1))
            e.salu("s_mul_i32", sT0, S(2), 49 * 128)
            e.salu("s_mul_i32", sT1, sW4, 13 * 128)
            e.salu("s_add_u32", sT1, sT0, sT1)
            e.valu("v_min_u32", vX0, 12, lane)
            e.valu("v_lshlrev_b32", vX2, 7, vX0)
        e.buf_load(V(243 + stage), vX2, sTS, sT1, offset=0)

    e.stamp(0); e.stamp(12, True)
    for st_, at in enumerate(PRES):
        if at < 0: pre(st_)
    e.barrier()
    e.stamp(1)
    for f in rd(0) + rd(1): f()
    epi, stq = [], []
    for n, (p, ks) in enumerate(steps):
        if ks == 0 and n > 0:
            e.stamp(1 + n // 28)
            prev = steps[n - 1][0]
            if prev == 0: epi = [(6, lambda: None)] + epi_qk() + epi
            else: epi += [(6, lambda: None)] + (epi_v() if typeY else epi_h(1))
        for st_, at in enumerate(PRES):
            if at == n: stq.append(lambda st_=st_: pre(st_))
        nr = 1 if p == 0 else 2
        nm = 2 * nr
        plan = [[] for _ in range(nm)]
        tgt = n + 2
        if tgt < len(steps):
            r_ = rd(tgt)
            bt = bchunk(*steps[tgt])[0]
            if bt != bchunk(*steps[tgt - 1])[0]:
                def bar(tgt=tgt, bt=bt):
                    e.wait_lg_tag(("t", tgt - 1))
                    if bt == (N1 if ff else N1X):
                        assert not any(getattr(f, "qkv", False) for _, f in epi) and not any(getattr(f, "qkv", False) for f in stq)
                        e.wait_vm_tag("qkv")
                    if bt == N1B:
                        assert not epi and not stq, (len(epi), len(stq))
                        e.raw("s_waitcnt vmcnt(0)")
                        e.vm = []
                    e.barrier()
                if tgt < 28 and nm == 2:
                    plan[1] = [bar] + r_
                elif tgt < 28:
                    plan[1] = [bar, r_[0]]; plan[2] = r_[1:4]; plan[3] = r_[4:]
                elif nm == 4:
                    plan[0] = r_[0:2]; plan[2] = [bar] + r_[2:4]; plan[3] = r_[4:]
                else:
                    plan[0] = r_[0:2]; plan[1] = [bar] + r_[2:]
            else:
                for g in range(nm):
                    k = -(-len(r_) // (nm - g))
                    plan[g] = r_[:k]; r_ = r_[k:]
        e.wait_lg_tag(("t", n))
        gi = 0
        for i in range(nr):
            for t in range(2):
                swap = typeY and p == 1
                a_, b_ = (fA(n, t), fB(n, i)) if swap else (fB(n, i), fA(n, t))
                e.mfma(ACC(p, i, t), a_, b_, 0 if ks == 0 else None)
                slots = 6 - (1 if gi == nm - 1 else 0)
                for f in plan[gi]:
                    f(); slots -= 1
                slots = min(slots, EB1 if p == 1 else 4 if p == 2 else 6)
                safe = (ks % 4 == 1 or (ks % 4 == 0 and gi >= 2)) if p != 0 else (n < 28 or ks % 8 in (2, 3, 4, 5))
                if stq and (safe or (QANY and p == 2 and getattr(stq[0], "qkv", False))):
                    stq.pop(0)(); slots -= 2
                while epi and (slots >= epi[0][0] or epi[0][0] == 6):
                    cost, f = epi.pop(0)
                    if cost < 0:
                        if getattr(f, "qkv", False):
                            k_ = sum(1 for x in stq if getattr(x, "qkv", False))
                            stq.sort(key=lambda x: not getattr(x, "qkv", False))
                            stq.insert(k_, f)
                        else:
                            stq.append(f)
                        continue
                    f(); slots -= cost
                    if cost == 6: break
                gi += 1
    e.stamp(4)
    e.valu("v_mov_b32", V(228), sNL2E)
    e.valu("v_mov_b32", V(229), sNL2E)
    e.valu("v_mov_b32", V(230), 1.0)
    e.valu("v_mov_b32", V(231), 1.0)
    for _, f in epi_h(2, pk=True):
        f()
    e.stamp(5)


def gen_attn(e):
    lane = vLane
    Q = [[V(8, 4), V(12, 4)], [V(16, 4), V(20, 4)]]
    K = [V(24, 4), V(28, 4)]
    Vf = [[V(32, 4), V(36, 4)], [V(40, 4), V(44, 4)]]
    Sb = [V(128, 16), V(144, 16)]
    P = [V(48, 8), V(56, 8)]
    O = [V(160, 16), V(176, 16)]
    X = V(192, 16)
    vKV, vRed, vQl = V(1), V(2), V(3)
    vT0, vT1, vT2, vT3 = V(4), V(5), V(6), V(7)
    sQg, sKg, sHead, sQblk, sOo, sKV, sCnt = S(29), S(30), S(34), S(35), S(36), S(37), S(38)
    sSave = S(40, 2)
    e.salu("s_and_b32", sQg, sW4, 1)
    e.salu("s_lshr_b32", sKg, sW4, 1)
    e.salu("s_lshr_b32", sT0, sIdx, 4)
    e.salu("s_lshl_b32", sHead, sXcd, 1)
    e.salu("s_add_u32", sHead, sHead, sT0)
    e.salu("s_and_b32", sQblk, sIdx, 15)
    e.salu("s_lshl_b32", sKV, sHead, 18)
    e.salu("s_add_u32", sKV, sKV, KVF)
    e.salu("s_lshl_b32", sT1, sQblk, 2)
    e.salu("s_lshl_b32", sT0, sQg, 1)
    e.salu("s_add_u32", sT1, sT1, sT0)
    e.salu("s_add_u32", sT1, sT1, sKg)
    e.salu("s_lshl_b32", sOo, sT1, 4)
    e.salu("s_add_u32", sOo, sOo, sHead)
    e.salu("s_lshl_b32", sOo, sOo, 11)
    e.salu("s_add_u32", sOo, sOo, OF)
    e.salu("s_lshl_b32", sT2, sKg, 13)
    e.valu("v_add_u32", vKV, sT2, vLane16)
    e.salu("s_lshl_b32", sT2, sQg, 12)
    e.salu("s_add_u32", sT2, sT2, QL)
    e.valu("v_add_u32", vQl, sT2, vLane16)
    e.salu("s_lshl_b32", sT2, sQg, 13)
    e.salu("s_add_u32", sT2, sT2, ARED)
    e.valu("v_add_u32", vRed, sT2, vLane16)
    for r in range(16):
        e.valu("v_mov_b32", O[0][r], 0)
        e.valu("v_mov_b32", O[1][r], 0)
    for r in range(4):
        e.valu("v_mov_b32", P[1][r], 0)
        e.valu("v_mov_b32", P[1][4 + r], 0)
        e.valu("v_mov_b32", Vf[1][0][r], 0)
        e.valu("v_mov_b32", Vf[1][1][r], 0)
    e.salu("s_mov_b32", sCnt, 0)

    def toff(i): return ((i >> 1) % 4) * 16384 + (i & 1) * 4096

    e.barrier()
    e.stamp(6)
    for q in range(2):
        for s_ in range(2):
            e.ds_read("ds_read_b128", Q[q][s_], vQl, offset=q * 2048 + s_ * 1024)
    e.ds_read("ds_read_b128", K[0], vKV, offset=0)
    e.ds_read("ds_read_b128", K[1], vKV, offset=1024)
    e.ds_read("ds_read_b128", Vf[0][1], vKV, offset=3072)
    e.ds_read("ds_read_b128", Vf[0][0], vKV, offset=2048)
    e.mfma(Sb[0], K[0], Q[0][0], 0)
    e.mfma(Sb[0], K[1], Q[0][1])
    e.wait_lg_all()
    e.flush_hazards()

    def unit(i, q):
        Sc, Sn = Sb[q], Sb[1 - q]
        nq = 1 - q
        def ex(a, b):
            for r in range(a, b): e.valu("v_exp_f32", Sc[r], Sc[r])
        def cv(a, b):
            for j in range(a, b): e.valu("v_cvt_pk_bf16_f32", P[q][j], Sc[2 * j], Sc[2 * j + 1])
        pi = i if q == 1 else i - 1
        if q == 0:
            rd = [(K[0], toff(i + 1)), (K[1], toff(i + 1) + 1024)]
        else:
            rd = [(Vf[(i + 1) % 2][1], toff(i + 1) + 3072), (Vf[(i + 1) % 2][0], toff(i + 1) + 2048)]
        e.mfma(Sn, K[0], Q[nq][0], 0)
        ex(0, 3)
        e.mfma(Sn, K[1], Q[nq][1])
        e.ds_read("ds_read_b128", rd[0][0], vKV, offset=rd[0][1])
        ex(3, 5); cv(0, 1)
        e.mfma(O[nq], Vf[pi % 2][0], P[nq][0:4])
        e.ds_read("ds_read_b128", rd[1][0], vKV, offset=rd[1][1])
        ex(5, 7); cv(1, 2)
        e.mfma(O[nq], Vf[pi % 2][1], P[nq][4:8])
        ex(7, 16); cv(2, 8)

    mark = len(e.lines)
    for i in (6, 7):
        for q in range(2): unit(i, q)
    del e.lines[mark:]
    e.label("L_k12_aloop")
    for i in range(8):
        for q in range(2):
            unit(i, q)
        if i % 2 == 1:
            if i == 3:
                e.raw("s_waitcnt vmcnt(0)")
            if i == 7:
                e.salu("s_add_u32", sCnt, sCnt, 1)
                e.salu("s_cmp_lt_u32", sCnt, 4)
            e.barrier()
    e.raw("s_cbranch_scc1 L_k12_aloop")
    e.mfma(O[1], Vf[1][0], P[1][0:4])
    e.mfma(O[1], Vf[1][1], P[1][4:8])
    e.stamp(7)
    e.wait_lg_all()
    e.salu("s_cmp_eq_u32", sKg, 0)
    e.raw("s_cbranch_scc1 L_k12_kg0")
    for j in range(4):
        e.ds_write("ds_write_b128", vRed, O[0][4 * j:4 * j + 4], offset=j * 1024)
    for r in range(16):
        e.valu("v_mov_b32", O[0][r], O[1][r])
    for s_ in range(2):
        for r in range(4):
            e.valu("v_mov_b32", Q[0][s_][r], Q[1][s_][r])
    e.valu("v_add_u32", vRed, 4096, vRed)
    e.raw("s_branch L_k12_kgj")
    e.label("L_k12_kg0")
    e.lg = []
    e.last = {}
    e.nop(10)
    for j in range(4):
        e.ds_write("ds_write_b128", vRed, O[1][4 * j:4 * j + 4], offset=4096 + j * 1024)
    e.label("L_k12_kgj")
    e.raw("s_waitcnt lgkmcnt(0)")
    e.lg = []
    e.last = {}
    e.barrier()
    Of, Pf, Qf = O[0], P[0], Q[0]
    for j in range(4):
        e.ds_read("ds_read_b128", X[4 * j:4 * j + 4], vRed, offset=j * 1024)
    Z = V(208, 2)
    e.valu("v_mov_b32", Z[0], 0)
    e.valu("v_mov_b32", Z[1], 0)
    e.valu("v_mov_b32", V(210), 0)
    e.valu("v_mov_b32", V(211), 0)
    for r in range(0, 16, 2):
        e.valu("v_pk_add_f32", Of[r:r + 2], Of[r:r + 2], X[r:r + 2])
    e.valu("v_mov_b32", vT0, Of[12])
    e.valu("v_mov_b32", vT1, Of[12])
    for r in range(0, 16, 2):
        e.valu("v_pk_fma_f32", Z, Of[r:r + 2], V(210, 2), Z)
        if r == 2:
            e.valu("v_permlane32_swap_b32", vT0, vT1)
    e.valu("v_add_f32", vT2, Z[0], Z[1])
    e.salu("s_mov_b32", sT0, hex(f2u(L_LO)))
    e.salu("s_mov_b32", sT1, hex(f2u(L_HI)))
    e.valu("v_add_f32", vT2, vT2, vT1)
    e.valu("v_cmp_le_f32", "vcc", sT0, vT2)
    e.valu("v_cmp_ge_f32", sSave, sT1, vT2)
    e.nop(1)
    e.salu("s_and_b64", "vcc", "vcc", sSave)
    e.raw("s_cmp_eq_u64 vcc, -1")
    e.raw("s_cbranch_scc0 L_k12_slow")
    e.label("L_k12_store")
    e.last = {}
    e.nop(2)
    e.valu("v_rcp_f32", vT0, vT1)
    e.valu("v_cmp_gt_u32", "vcc", 32, lane)
    e.valu("v_mov_b32", vT2, 0)
    e.valu("v_mov_b32", vT1, vT0)
    e.valu("v_cndmask_b32", vT2, vT2, vT0)
    e.valu("v_mov_b32", vT3, vT2)
    for r in range(0, 16, 2):
        e.valu("v_pk_mul_f32", Of[r:r + 2], Of[r:r + 2], V(4, 2) if r < 12 else V(6, 2))
    for j in range(8):
        e.valu("v_cvt_pk_bf16_f32", Pf[j], Of[2 * j], Of[2 * j + 1])
    e.buf_store(Pf[0:4], vLane16, sWS, sOo, offset=0, flags=STF)
    e.buf_store(Pf[4:8], vLane16, sWS, sOo, offset=1024, flags=STF)
    e.stamp(8)
    if FUSE3:
        gen_phase3_heavy(e)
    if Emitter.STAMPS:
        e.raw("s_waitcnt vmcnt(0)")
    e.stamp(9); e.stamp(13, True)
    e.dump_stamps(sWS, 0, sWave)
    e.raw("s_endpgm")
    e.label("L_k12_slow")
    e.lg, e.vm, e.last = [], [], {}
    vM = vT3
    Sc = Sb[0]
    e.valu("v_mov_b32", vM, "0xff800000")
    for r in range(16):
        e.valu("v_mov_b32", Of[r], 0)
    e.salu("s_mov_b32", sCnt, 0)
    e.salu("s_mov_b32", sT2, sKV)
    e.label("L_k12_slow_loop")
    e.buf_load(K[0], vLane16, sWS, sT2, offset=0, flags=LDF)
    e.buf_load(K[1], vLane16, sWS, sT2, offset=1024, flags=LDF)
    e.buf_load(Vf[0][0], vLane16, sWS, sT2, offset=2048, flags=LDF)
    e.buf_load(Vf[0][1], vLane16, sWS, sT2, offset=3072, flags=LDF)
    e.mfma(Sc, K[0], Qf[0], 0)
    e.mfma(Sc, K[1], Qf[1])
    e.valu("v_max_f32", vT0, Sc[0], Sc[1])
    for r in range(2, 16, 2):
        e.valu("v_max3_f32", vT0, vT0, Sc[r], Sc[r + 1])
    e.valu("v_mov_b32", vT1, vT0)
    e.valu("v_permlane32_swap_b32", vT0, vT1)
    e.valu("v_max3_f32", vT0, vT0, vT1, vM)
    e.valu("v_sub_f32", vT1, vM, vT0)
    e.valu("v_exp_f32", vT1, vT1)
    e.valu("v_mov_b32", vM, vT0)
    for r in range(16):
        e.valu("v_sub_f32", Sc[r], Sc[r], vM)
    for r in range(16):
        e.valu("v_exp_f32", Sc[r], Sc[r])
    for r in range(16):
        e.valu("v_mul_f32", Of[r], Of[r], vT1)
    for j in range(8):
        e.valu("v_cvt_pk_bf16_f32", Pf[j], Sc[2 * j], Sc[2 * j + 1])
    e.mfma(Of, Vf[0][0], Pf[0:4])
    e.mfma(Of, Vf[0][1], Pf[4:8])
    e.salu("s_add_u32", sT2, sT2, 4096)
    e.salu("s_add_u32", sCnt, sCnt, 1)
    e.flush_hazards()
    e.salu("s_cmp_lt_u32", sCnt, 64)
    e.raw("s_cbranch_scc1 L_k12_slow_loop")
    e.valu("v_mov_b32", vT0, Of[12])
    e.valu("v_mov_b32", vT1, Of[12])
    e.valu("v_permlane32_swap_b32", vT0, vT1)
    e.raw("s_branch L_k12_store")


def gen_phase3_heavy(e):
    lane = vLane
    sU, sTt, sMt64, sNt, sSt = S(29), S(30), S(34), S(35), S(36)
    vRr, vTr, vOr, vSt = V(1), V(2), V(3), V(4)
    vG = V(6, 2)
    Bx = [V(64 + 16 * w, 16) for w in range(4)]
    ACC = V(128, 16)
    NB = 4
    def OFr(k): return V(8 + (k % NB) * 4, 4)
    def WFr(k): return V(24 + (k % NB) * 4, 4)
    e.salu("s_cmp_ge_u32", sIdx, 28)
    e.raw("s_cbranch_scc0 L_k12_h3")
    e.raw("s_waitcnt vmcnt(0)")
    e.barrier()
    e.raw("s_branch L_k12_h3end")
    e.label("L_k12_h3")
    e.salu("s_lshl_b32", sT0, sW4, 12)
    e.salu("s_add_u32", sT0, sT0, WR)
    e.valu("v_add_u32", vRr, sT0, vLane16)
    def rdB():
        for w in range(4):
            for j in range(4):
                e.ds_read("ds_read_b128", Bx[w][4 * j:4 * j + 4], vRr, offset=w * 16384 + j * 1024)
    if not DEFER: rdB()
    e.salu("s_mul_i32", sT0, sIdx, 37)
    e.salu("s_lshr_b32", sT0, sT0, 8)
    e.salu("s_mul_i32", sT1, sT0, 7)
    e.salu("s_sub_u32", sNt, sIdx, sT1)
    e.salu("s_lshl_b32", sMt64, sXcd, 2)
    e.salu("s_add_u32", sMt64, sMt64, sT0)
    e.salu("s_and_b32", sU, sW4, 1)
    e.salu("s_lshr_b32", sTt, sW4, 1)
    srd(e, sOut, KOUT, 2048 * 896)
    e.salu("s_lshl_b32", sT0, sMt64, 1)
    e.salu("s_add_u32", sT0, sT0, sTt)
    e.salu("s_mul_i32", sSt, sT0, 32 * 896)
    e.salu("s_lshl_b32", sT2, sNt, 1)
    e.salu("s_add_u32", sT2, sT2, sU)
    e.salu("s_lshl_b32", sT2, sT2, 6)
    e.salu("s_add_u32", sSt, sSt, sT2)
    e.salu("s_lshl_b32", S(37), sT0, 8)
    e.salu("s_add_u32", S(37), S(37), GF)
    e.valu("v_and_b32", vX0, 31, lane)
    e.valu("v_lshlrev_b32", V(5), 3, vX0)
    e.valu("v_mul_u32_u24", vSt, 896, vX0)
    e.valu("v_lshrrev_b32", vX1, 5, lane)
    e.valu("v_lshl_add_u32", vSt, vX1, 4, vSt)
    e.valu("v_bfe_u32", vX0, lane, 2, 2)
    e.valu("v_lshl_add_u32", vX0, vX1, 2, vX0)
    e.valu("v_bfe_u32", vX2, lane, 4, 1)
    e.valu("v_lshlrev_b32", vX2, 5, vX2)
    e.valu("v_and_b32", vX1, 3, lane)
    e.valu("v_lshl_add_u32", vX2, vX1, 3, vX2)
    e.valu("v_lshl_add_u32", vX2, vX0, 7, vX2)
    e.valu("v_bfe_u32", vX1, lane, 3, 1)
    e.valu("v_xor_b32", vX1, sU, vX1)
    e.valu("v_lshl_add_u32", vTr, vX1, 6, vX2)
    e.salu("s_lshl_b32", sT0, sTt, 15)
    e.salu("s_add_u32", sT0, sT0, WR)
    e.valu("v_add_u32", vOr, sT0, vLane16)
    def rd(k):
        e.ds_read("ds_read_b128", OFr(k), vOr, offset=k * 1024, tag=("k", k))

    def rdw(k):
        hd, s_ = k // 2, k % 2
        for j in range(2):
            e.ds_read("ds_read_b64_tr_b16", WA(k)[2 * j:2 * j + 2], vTr, offset=(28 * hd + 16 * s_ + 8 * j) * 128, tag=("w", k))

    def WA(k): return V(144 + 4 * k, 4) if k < 26 else V(40 + 4 * (k - 26), 4)
    def OFr(k): return V(8 + (k % 8) * 4, 4)
    if not DEFER: e.wait_lg_all()
    e.raw("s_waitcnt vmcnt(0)")
    e.vm = []
    e.barrier()
    e.buf_load(vG, V(5), sWS, S(37), offset=0, flags=LDF)
    for k in range(32):
        rdw(k)
    if DEFER:
        e.barrier()
        rdB()
        e.wait_lg_all()
        e.barrier()
    for r in range(0, 16, 2):
        e.valu("v_pk_add_f32", Bx[0][r:r + 2], Bx[0][r:r + 2], Bx[1][r:r + 2])
        e.valu("v_pk_add_f32", Bx[2][r:r + 2], Bx[2][r:r + 2], Bx[3][r:r + 2])
    for r in range(0, 16, 2):
        e.valu("v_pk_add_f32", Bx[0][r:r + 2], Bx[0][r:r + 2], Bx[2][r:r + 2])
    for j in range(8):
        e.valu("v_cvt_pk_bf16_f32", Bx[1][j], Bx[0][2 * j], Bx[0][2 * j + 1])
    for j in range(8):
        e.valu("v_lshlrev_b32", Bx[0][2 * j], 16, Bx[1][j])
        e.valu("v_and_b32", Bx[0][2 * j + 1], "0xffff0000", Bx[1][j])
    for r in range(16):
        e.valu("v_mul_f32", Bx[0][r], Bx[0][r], vG[1])
    e.wait_lg_all()
    for c in range(4):
        e.barrier()
        if c == 0: e.stamp(10)
        ks = list(range(8 * c, 8 * c + 8))
        for k in ks:
            rd(k)
        for k in ks:
            e.mfma(ACC, WA(k), OFr(k), 0 if k == 0 else None)
    e.stamp(11)
    for r in range(16):
        e.valu("v_fmac_f32", Bx[0][r], ACC[r], vG[0], dst_is_read=True)
    Bv = Bx[3]
    for j in range(8):
        e.valu("v_cvt_pk_bf16_f32", Bv[j], Bx[0][2 * j], Bx[0][2 * j + 1])
    for kk in range(2):
        e.valu("v_permlane32_swap_b32", Bv[4 * kk], Bv[4 * kk + 2])
        e.valu("v_permlane32_swap_b32", Bv[4 * kk + 1], Bv[4 * kk + 3])
        e.buf_store(Bv[4 * kk:4 * kk + 4], vSt, sOut, sSt, offset=kk * 32, flags=os.environ.get('OUTF', ''))
    e.label("L_k12_h3end")
    e.last = {}


def gen_helper2(e):
    lane = vLane
    sHead, sQblk, sKV, sLdsKV = S(29), S(30), S(34), S(35)
    sMt64, sNt, sLdsW, sWoff, sHoff, sHoff1 = S(36), S(37), S(38), S(39), S(40), S(41)
    vFl = V(14)
    e.salu("s_lshr_b32", sT0, sIdx, 4)
    e.salu("s_lshl_b32", sHead, sXcd, 1)
    e.salu("s_add_u32", sHead, sHead, sT0)
    e.salu("s_and_b32", sQblk, sIdx, 15)
    e.salu("s_lshl_b32", sLdsKV, sW4, 12)
    e.salu("s_lshl_b32", sKV, sHead, 18)
    e.salu("s_add_u32", sKV, sKV, KVF)
    e.salu("s_add_u32", sKV, sKV, sLdsKV)
    e.salu("s_mul_i32", sT0, sIdx, 37)
    e.salu("s_lshr_b32", sT0, sT0, 8)
    e.salu("s_mul_i32", sT1, sT0, 7)
    e.salu("s_sub_u32", sNt, sIdx, sT1)
    e.salu("s_lshl_b32", sMt64, sXcd, 2)
    e.salu("s_add_u32", sMt64, sMt64, sT0)
    e.salu("s_min_u32", sMt64, sMt64, 31)
    def dma_KV(s):
        e.salu("s_add_u32", "m0", sLdsKV, (s % 4) * 16384)
        e.salu("s_add_u32", sT0, sKV, s * 16384)
        for i in range(4):
            e.buf_load_lds(vLane16, sWS, sT0, offset=i * 1024, tag=("KV", s), flags=LDF)

    def first_loads():
        dma_KV(0)
        e.salu("s_lshl_b32", sT0, sHead, 6)
        e.salu("s_lshl_b32", sT1, sQblk, 2)
        e.salu("s_add_u32", sT0, sT0, sT1)
        e.salu("s_add_u32", sT0, sT0, sW4)
        e.salu("s_lshl_b32", sT0, sT0, 11)
        e.salu("s_lshl_b32", sT1, sW4, 11)
        e.salu("s_add_u32", "m0", sT1, QL)
        if QF: e.salu("s_add_u32", sT0, sT0, QF)
        else: e.nop(1)
        for i in range(2):
            e.buf_load_lds(vLane16, sWS, sT0, offset=i * 1024, tag=("KV", 0), flags=LDF)
        dma_KV(1); dma_KV(2)

    if EARLYP:
        e.salu("s_cmp_eq_u32", sW4, 1)
        e.salu("s_mov_b32", sT1, "0x40000000")
        e.salu("s_cselect_b32", sT0, F1, sT1)
        e.raw(f"buffer_load_dword v15, {vFl}, {sWS}, {sT0} offen sc1")
    gemm_setup(e, sMt64, sNt, sLdsW, sWoff, sHoff)
    e.raw(f"v_mov_b32 v8, {SIG1}")
    e.raw(f"v_not_b32 v9, {sNonce}")
    e.raw("ds_write_b32 v8, v9")
    e.raw(f"s_waitcnt vmcnt({1 if EARLYP else 0}) lgkmcnt(0)")
    e.barrier()
    if TPRIO < 3: e.raw(f"s_setprio {TPRIO}")
    e.stamp(0)
    e.salu("s_cmp_eq_u32", sW4, 1)
    e.raw("s_cbranch_scc1 L_k12_pl")
    e.salu("s_cmp_lg_u32", sW4, 0)
    e.raw("s_cbranch_scc1 L_k12_wl")
    flag_store(e, F1B)
    e.label("L_k12_wl")
    e.salu("s_mov_b32", sT2, 0)
    e.label("L_k12_wl2")
    e.raw("ds_read_b32 v9, v8")
    e.salu("s_add_u32", sT2, sT2, 1)
    e.raw("s_waitcnt lgkmcnt(0)")
    e.raw("v_readfirstlane_b32 s33, v9")
    e.salu("s_cmp_gt_u32", sT2, SPIN * 16)
    e.raw("s_cbranch_scc1 L_k12_p1ok")
    e.raw(f"s_cmp_eq_u32 s33, {sNonce}")
    e.raw("s_cbranch_scc1 L_k12_p1ok")
    e.raw(f"s_sleep {WSL}")
    e.raw("s_branch L_k12_wl2")
    e.label("L_k12_pl")
    if EARLYP:
        e.raw("s_waitcnt vmcnt(0)")
        e.raw(f"v_cmp_ne_u32 vcc, {sNonce}, v15")
        e.nop(1)
        e.raw("s_and_b32 s33, vcc_hi, 1")
        e.raw("s_or_b32 s33, s33, vcc_lo")
        e.raw("s_cbranch_scc0 L_k12_p1sig")
    e.salu("s_mov_b32", sT0, F1)
    poll(e, "L_k12_p1", vFl, sWS, sT0, 33, V(15), sNonce)
    e.label("L_k12_p1sig")
    e.raw(f"v_mov_b32 v9, {sNonce}")
    e.raw("ds_write_b32 v8, v9")
    e.label("L_k12_p1ok")
    e.vm, e.last = [], {}
    e.stamp(1)
    if S1ST: e.stamp(7, True)
    first_loads()
    st0 = list(e.vm)
    e.raw(f"s_setprio {HPRIO}")
    e.salu("s_cmp_ge_u32", sIdx, 28)
    e.raw("s_cbranch_scc1 L_k12_nogemm")
    helper_loop(e, True, dma_KV, sMt64, sNt, sLdsW, sWoff, sHoff, sHoff1)
    e.raw("s_endpgm")
    e.label("L_k12_nogemm")
    e.lg, e.vm, e.last = [], list(st0), {}
    helper_loop(e, False, dma_KV, sMt64, sNt, sLdsW, sWoff, sHoff, sHoff1)
    e.raw("s_endpgm")


def gemm_setup(e, sMt64, sNt, sLdsW, sWoff, sHoff):
    lane = vLane
    vW = [V(2), V(3), V(4), V(5)]
    vTr = [V(6), V(7)]
    vRw, vRr, vF2 = V(11), V(12), V(13)
    sWl, sHl = S(42), S(43)
    srd(e, sWd, KD, 1792 * 896)
    e.valu("v_lshrrev_b32", vX0, 3, lane)
    e.valu("v_bfe_u32", vX1, lane, 2, 1)
    e.valu("v_bfe_u32", vX2, lane, 4, 1)
    e.valu("v_xor_b32", vX1, vX1, vX2)
    e.valu("v_mul_u32_u24", vW[0], 896, vX0)
    e.valu("v_lshl_add_u32", vW[0], vX1, 6, vW[0])
    e.valu("v_and_b32", vX1, 3, lane)
    e.valu("v_lshl_add_u32", vW[0], vX1, 4, vW[0])
    for i in range(1, 4):
        e.valu("v_add_u32", vW[i], i * (8 * 896 - 1024), vW[0])
    e.salu("s_lshl_b32", sLdsW, sW4, 14)
    e.salu("s_add_u32", sLdsW, sLdsW, WR)
    e.salu("s_mul_i32", sWoff, sW4, 6 * 32 * 896)
    e.salu("s_lshl_b32", sT0, sNt, 7)
    e.salu("s_add_u32", sWoff, sWoff, sT0)
    e.salu("s_lshl_b32", sT0, sW4, 1)
    e.salu("s_add_u32", sT0, sT0, 18)
    e.salu("s_mul_i32", sWl, sT0, 32 * 896)
    e.salu("s_add_u32", sWl, sWl, sWoff)
    e.salu("s_lshl_b32", sHl, sT0, 11)
    e.salu("s_mul_i32", sHoff, sMt64, 2 * H_MT_STRIDE)
    e.salu("s_mul_i32", sT0, sW4, 6 * 2048)
    e.salu("s_add_u32", sHoff, sHoff, sT0)
    e.salu("s_add_u32", sHoff, sHoff, HF)
    e.salu("s_add_u32", sHl, sHl, sHoff)
    e.valu("v_lshrrev_b32", vX1, 5, lane)
    e.valu("v_bfe_u32", vX0, lane, 2, 2)
    e.valu("v_lshl_add_u32", vX0, vX1, 2, vX0)
    e.valu("v_bfe_u32", vX2, lane, 4, 1)
    e.valu("v_lshlrev_b32", vX2, 5, vX2)
    e.valu("v_and_b32", vX1, 3, lane)
    e.valu("v_lshl_add_u32", vX2, vX1, 3, vX2)
    e.valu("v_lshl_add_u32", vX2, vX0, 7, vX2)
    e.valu("v_bfe_u32", vX1, lane, 3, 1)
    e.valu("v_lshl_add_u32", vTr[0], vX1, 6, vX2)
    e.valu("v_xor_b32", vTr[1], 64, vTr[0])
    e.valu("v_add_u32", vTr[0], sLdsW, vTr[0])
    e.valu("v_add_u32", vTr[1], sLdsW, vTr[1])
    e.valu("v_add_u32", vRw, sLdsW, vLane16)
    e.salu("s_lshl_b32", sT0, sW4, 12)
    e.salu("s_add_u32", sT0, sT0, WR)
    e.valu("v_add_u32", vRr, sT0, vLane16)
    e.salu("s_lshr_b32", sT0, sMt64, 1)
    e.valu("v_and_b32", vX0, 15, lane)
    e.valu("v_lshl_add_u32", vF2, vX0, 4, sT0)
    e.valu("v_lshlrev_b32", vF2, 7, vF2)


def helper_loop(e, gemm, dma_KV, sMt64, sNt, sLdsW, sWoff, sHoff, sHoff1):
    lane = vLane
    g = int(gemm)
    ND = 4
    ACC = [[V(80, 16), V(96, 16)], [V(112, 16), V(128, 16)]]
    def HF_(s, st, t): return V(16 + ((s % ND) * 4 + st * 2 + t) * 4, 4)
    def WF(st, u): return V(144 + (st * 2 + u) * 4, 4)
    vW = [V(2), V(3), V(4), V(5)]
    vTr = [V(6), V(7)]
    vRw, vRr, vF2 = V(11), V(12), V(13)
    sWl, sHl = S(42), S(43)
    def dma_Wo(q):
        if q == 0:
            srd(e, sWo, KO, 448 * 896)
        e.salu("s_mul_i32", sT1, sW4, 32 * 896)
        e.salu("s_lshl_b32", sT0, sNt, 7)
        e.salu("s_add_u32", sT1, sT1, sT0)
        e.salu("s_lshl_b32", sT2, sW4, 12)
        e.salu("s_add_u32", "m0", sT2, q * 16384)
        e.salu("s_add_u32", sT0, sT1, q * 128 * 896)
        for i in range(4):
            e.buf_load_lds(vW[i], sWo, sT0, offset=i * 1024, tag="Wo")

    def W_ops(s):
        def w(i):
            if i == 0:
                e.salu("s_add_u32", "m0", sLdsW, (s % ND) * 4096)
                e.salu("s_add_u32", sT2, sWoff if s < 6 else sWl, s * 32 * 896)
            e.buf_load_lds(vW[i], sWd, sT2, offset=i * 1024, tag=("W", s))
        return [lambda i=i: w(i) for i in range(4)]

    def H_ops(s):
        def h(st, t):
            e.salu("s_add_u32", sT1, sHoff if s < 6 else sHl, s * 2048 + t * H_MT_STRIDE)
            e.buf_load(HF_(s, st, t), vLane16, sWS, sT1, offset=st * 1024, flags=LDF)
        return [lambda st=st, t=t: h(st, t) for st in range(2) for t in range(2)]

    def compute(s, side):
        e.wait_vm_tag(("W", s))
        for st in range(2):
            for u in range(2):
                for j in range(2):
                    e.ds_read("ds_read_b64_tr_b16", WF(st, u)[2 * j:2 * j + 2], vTr[u],
                              offset=(s % ND) * 4096 + st * 2048 + j * 1024)
        if side: side.pop(0)()
        for st in range(2):
            for u in range(2):
                for t in range(2):
                    e.mfma(ACC[u][t], WF(st, u), HF_(s, st, t), 0 if (s == 0 and st == 0) else None)
                    if side: side.pop(0)()

    P2 = POLL2
    comp = {C0 + s: [s] for s in range(6)}
    late = list(range(6, 14 - DEFER))
    i0 = max(P2 + 2, C0 + 6)
    LASTI = 15 if FUSE3 else 14
    for i in range(i0, LASTI):
        left = LASTI - i
        k = -(-len(late) // left) if len(late) > left and i >= 12 else 1
        comp.setdefault(i, [])
        comp[i] += late[:k]; late = late[k:]
    assert not late, late
    done_at = {s: i for i, l in comp.items() for s in l}
    todo = [(s, k) for s in range(14) for k in ("H", "W")]

    def check(name, base, nl):
        e.valu("v_cmp_ne_u32", "vcc", sNonce, V(8))
        e.nop(1)
        e.raw(f"s_and_b32 s33, vcc_lo, {hex((1 << nl) - 1)}")
        e.raw(f"s_cbranch_scc0 {name}ok")
        keep = list(e.vm)
        e.salu("s_mov_b32", sT0, base)
        poll(e, name, vF2, sWS, sT0, nl, V(8), sNonce)
        e.label(name + "ok")
        e.vm = keep
        e.last = {}

    e.wait_vm_tag(("KV", 1))
    e.stamp(2)
    e.barrier()
    for i in range(16):
        if i in (4, 8, 12): e.stamp(2 + i // 4)
        if i + 3 <= 15:
            dma_KV(i + 3)
        if i == 2:
            flag_store(e, F2)
        if i == 3 and gemm:
            e.valu("v_mov_b32", V(248), SIG + 64)
            e.valu("v_not_b32", V(247), sNonce)
            e.ds_write("ds_write_b32", V(248), V(247))
        if gemm:
            if i in (C0 - 2, P2 - 1):
                e.salu("s_mov_b32", sT0, F1B if i == C0 - 2 else F2)
                e.buf_load(V(8), vF2, sWS, sT0, offset=0, flags=" sc1")
            if i == C0 - 1:
                check("L_k12_p1b", F1B, 12)
            if i == P2:
                e.stamp(10)
                check("L_k12_p2", F2, 16)
                e.stamp(11)
            side = []
            budget = (3 if i < 13 else 4) if not DEFER else BUD
            for (s, k) in list(todo):
                if budget == 0: break
                ok = (s < ND or done_at[s - ND] < i) and not (k == "H" and (i < C0 - 1 or (s >= 6 and i < P2))) and not (k == "W" and s >= 2 and i < 1)
                if ok:
                    side += H_ops(s) if k == "H" else W_ops(s)
                    todo.remove((s, k)); budget -= 1
            for s in comp.get(i, []):
                compute(s, side)
            while side: side.pop(0)()
            if i == LASTI and not DEFER:
                assert not todo
                for u in range(2):
                    for t in range(2):
                        for j in range(4):
                            e.ds_write("ds_write_b128", vRw, ACC[u][t][4 * j:4 * j + 4],
                                       offset=(t * 2 + u) * 4096 + j * 1024)
                e.wait_lg_all()
                if not FUSE3: e.raw("s_setprio 2")
            if i == 15 and not FUSE3:
                X = [V(16 + 16 * w, 16) for w in range(4)]
                for w in range(4):
                    for j in range(4):
                        e.ds_read("ds_read_b128", X[w][4 * j:4 * j + 4], vRr, offset=w * 16384 + j * 1024)
                for r in range(16):
                    e.valu("v_add_f32", X[0][r], X[0][r], X[1][r])
                    e.valu("v_add_f32", X[2][r], X[2][r], X[3][r])
                for r in range(16):
                    e.valu("v_add_f32", X[0][r], X[0][r], X[2][r])
                for j in range(8):
                    e.valu("v_cvt_pk_bf16_f32", X[1][j], X[0][2 * j], X[0][2 * j + 1])
                e.salu("s_lshr_b32", sT0, sW4, 1)
                e.salu("s_lshl_b32", sT1, sMt64, 1)
                e.salu("s_add_u32", sT0, sT0, sT1)
                e.salu("s_mul_i32", sT0, sT0, 14)
                e.salu("s_and_b32", sT1, sW4, 1)
                e.salu("s_add_u32", sT0, sT0, sT1)
                e.salu("s_lshl_b32", sT1, sNt, 1)
                e.salu("s_add_u32", sT0, sT0, sT1)
                e.salu("s_lshl_b32", sT0, sT0, 11)
                e.salu("s_add_u32", sT0, sT0, BF)
                e.buf_store(X[1][0:4], vLane16, sWS, sT0, offset=0, flags=STF)
                e.buf_store(X[1][4:8], vLane16, sWS, sT0, offset=1024, flags=STF)
        if i + 2 <= 15:
            e.wait_vm_tag(("KV", i + 2))
        if i == 13 and not FUSE3:
            srd(e, sWo, KO, 448 * 896)
            e.salu("s_lshl_b32", sT0, sIdx, 2)
            e.salu("s_add_u32", sT0, sT0, sW4)
            e.salu("s_mul_i32", sT0, sT0, 25 * 128)
            e.valu("v_min_u32", vX0, 24, lane)
            e.valu("v_lshlrev_b32", vX0, 7, vX0)
            e.buf_load(V(10), vX0, sWo, sT0, offset=0)
        if FUSE3 and gemm and i >= 13:
            dma_Wo(i - 13)
        if i < 15 or FUSE3:
            e.barrier()
    if FUSE3:
        sHead, sQblk = S(29), S(30)
        e.barrier()
        if gemm:
            assert not todo
            dma_Wo(3)
            dl = list(range(14 - DEFER, 14))
            for s_ in dl[:DSPLIT]:
                compute(s_, [])
            e.wait_vm_all()
        e.raw("s_setprio 3")
        e.barrier()
        flag_store(e, F3, sQblk, sHead)
        if gemm and DEFER:
            for s_ in dl[DSPLIT:]:
                compute(s_, [])
            for u in range(2):
                for t in range(2):
                    for j in range(4):
                        e.ds_write("ds_write_b128", vRw, ACC[u][t][4 * j:4 * j + 4],
                                   offset=(t * 2 + u) * 4096 + j * 1024)
            e.wait_lg_all()
            e.barrier()
            e.barrier()
        if not gemm:
            e.salu("s_sub_u32", sT0, S(2), sW4)
            e.salu("s_cmp_lg_u32", sT0, 255)
            e.raw("s_cbranch_scc1 L_k12_nadv")
            e.valu("v_lshlrev_b32", vF2, 7, lane)
            for j in range(4):
                e.salu("s_mov_b32", sT0, F2 + j * 8192)
                poll(e, f"L_k12_pc{j}", vF2, sWS, sT0, 64, V(15), sNonce)
            e.salu("s_mov_b32", sT0, NONCE)
            e.raw("s_mov_b64 exec, 1")
            e.buf_store(V(9), V(249), sWS, sT0, offset=0, flags=" sc1")
            e.raw("s_mov_b64 exec, -1")
            e.label("L_k12_nadv")
        if gemm:
            if not S1ST: e.stamp(6, True)
            e.salu("s_lshr_b32", sT0, sMt64, 1)
            e.salu("s_lshl_b32", sT0, sT0, 11)
            e.salu("s_add_u32", sT0, sT0, F3)
            e.valu("v_lshlrev_b32", vF2, 7, lane)
            e.raw(f"v_mov_b32 v8, {SIG + 64}")
            e.salu("s_cmp_lg_u32", sW4, 1)
            e.raw("s_cbranch_scc1 L_k12_w3")
            poll(e, "L_k12_p3", vF2, sWS, sT0, 16, V(15), sNonce)
            e.raw(f"v_mov_b32 v9, {sNonce}")
            e.raw("ds_write_b32 v8, v9")
            e.raw("s_branch L_k12_p3ok")
            e.label("L_k12_w3")
            e.salu("s_mov_b32", sT2, 0)
            e.label("L_k12_w3b")
            e.raw("ds_read_b32 v9, v8")
            e.salu("s_add_u32", sT2, sT2, 1)
            e.raw("s_waitcnt lgkmcnt(0)")
            e.raw("v_readfirstlane_b32 s33, v9")
            e.salu("s_cmp_gt_u32", sT2, SPIN * 16)
            e.raw("s_cbranch_scc1 L_k12_p3ok")
            e.raw(f"s_cmp_eq_u32 s33, {sNonce}")
            e.raw("s_cbranch_scc1 L_k12_p3ok")
            e.raw("s_sleep 1")
            e.raw("s_branch L_k12_w3b")
            e.label("L_k12_p3ok")
            e.vm, e.last = [], {}
            if not S1ST: e.stamp(7, True)
            e.salu("s_lshr_b32", sT0, sW4, 1)
            e.salu("s_lshl_b32", sT0, sT0, 15)
            e.salu("s_and_b32", sT1, sW4, 1)
            e.salu("s_lshl_b32", sT1, sT1, 12)
            e.salu("s_add_u32", sT2, sT0, sT1)
            e.salu("s_lshl_b32", sT1, sMt64, 16)
            e.salu("s_add_u32", sT1, sT1, sT2)
            e.salu("s_add_u32", sT1, sT1, OF)
            for c in range(4):
                e.salu("s_add_u32", "m0", sT2, WR + c * 8192)
                e.salu("s_add_u32", sT0, sT1, c * 8192)
                for i in range(4):
                    e.buf_load_lds(vLane16, sWS, sT0, offset=i * 1024, tag=("O", c), flags=LDF)
                if c >= OLEAD:
                    e.wait_vm_tag(("O", c - OLEAD))
                    e.barrier()
            for c in range(4 - OLEAD, 4):
                e.wait_vm_tag(("O", c))
                e.barrier()
    e.stamp(9); e.stamp(13, True)
    e.dump_stamps(sWS, 0, sWave)


K12_DESC = dict(name=KNAME, vgpr=256, acc=256, sgpr=96, grid=256, block=512, lds=LDS)
```

```python
from emit import *
from layout import *
import os
import struct

ROT1 = int(os.environ.get('ROT1', '1'))
STF = ' sc1'
LDF = ' sc1'
EB1 = int(os.environ.get('EB1', '3'))
N1 = int(os.environ.get('N1', '13'))
N1B = int(os.environ.get('N1B', '17'))
N1X = int(os.environ.get('N1X', '9'))
PRE = int(os.environ.get('PRE', '1'))
QANY = int(os.environ.get('QANY', '1'))
PRES = eval(os.environ.get('PRES', '(4, 24, 44)'))
C0 = int(os.environ.get('C0', '2'))
POLL2 = int(os.environ.get('POLL2', '6'))
SPIN = 1 << 17
R1B = int(os.environ.get('R1B', '1'))
L2PF = int(os.environ.get('L2PF', '1'))
CODEPF = int(os.environ.get('CODEPF', '0'))
XORD = int(os.environ.get('XORD', '0'))
EARLYP = int(os.environ.get('EARLYP', '1'))
MAP = int(os.environ.get('MAP', '0'))
DSPLIT = int(os.environ.get('DSPLIT', '2'))
BUD = int(os.environ.get('BUD', '2'))
DEFER = int(os.environ.get('DEFER', '4'))
S1ST = int(os.environ.get('S1ST', '0'))
TPRIO = int(os.environ.get('TPRIO', '0'))
WSL = int(os.environ.get('WSL', '2'))
LP0 = int(os.environ.get('LP0', '99'))
OLEAD = int(os.environ.get('OLEAD', '3'))
FUSE3 = int(os.environ.get('FUSE3', '1'))
KOUT = 92
KNAME = "gated_mix__softmax_full_mha__swiglu_ffn__prompt_kernel" if FUSE3 else "k12_kernel"
sOut = S(12, 4)
SLEEP = int(os.environ.get('SLEEP', '4'))
HPRIO = int(os.environ.get('HPRIO', '0'))

LOG2E = 1.4426950408889634
QSCALE = (28 ** -0.5) * LOG2E
L_LO = 2.0 ** -50
L_HI = 2.0 ** 60


def f2u(x):
    return struct.unpack("<I", struct.pack("<f", x))[0]


sX, sWg, sWu, sWq, sWS = S(4, 4), S(8, 4), S(12, 4), S(16, 4), S(20, 4)
sWd, sGw, sDbg, sWo = S(64, 4), S(60, 4), S(44, 4), S(8, 4)
sWave, sMblk, sCg, sW4 = S(24), S(25), S(26), S(28)
sT0, sT1, sT2 = S(32), S(33), S(31)
sRot = S(3)
sXcd, sIdx = S(68), S(69)
KX, KQ, KO, KG, KU, KD, KGW, KDBG, KWS = 72, 74, 76, 80, 82, 84, 86, 88, 90

BR = 114688
OREG = 0 if DEFER else 65536
PLOOK = eval(os.environ.get('PLOOK', '(0, 0)'))
WR = 65536
QL = 65536 + 8192
SIG = 131072
SIG1 = 49152
ARED = 147456
LDS = 163840
vX0, vX1, vX2, vLane, vLane16 = V(250), V(251), V(252), V(253), V(254)


def srd(e, s, lo, size):
    e.salu("s_mov_b32", s[0], S(lo))
    e.salu("s_mov_b32", s[1], S(lo + 1))
    e.salu("s_mov_b32", s[2], size)
    e.salu("s_mov_b32", s[3], "0x20000")


def gen_k12(e):
    e.label(KNAME)
    e.salu("s_cmp_ge_u32", S(2), 256)
    e.raw("s_cbranch_scc1 L_k12_end")
    e.s_load(S(72, 4), S(0, 2), 0)
    e.s_load(S(76, 2), S(0, 2), 16)
    e.s_load(S(80, 8), S(0, 2), 32)
    e.s_load(S(88, 4), S(0, 2), 72)
    e.s_load(S(92, 2), S(0, 2), 64)
    if CODEPF == 2:
        e.raw("s_getpc_b64 s[52:53]")
        e.label("L_k12_pc")
        e.salu("s_lshl_b32", sT0, S(2), 11)
        e.salu("s_and_b32", sT0, sT0, "0xc000")
        e.valu("v_lshlrev_b32", vX0, 5, V(0))
        e.valu("v_add_u32", vX0, sT0, vX0)
        e.raw(f"v_min_u32 {vX0}, L_code_end-L_k12_pc-4, {vX0}")
        e.raw(f"v_mov_b32 {vX2}, s53")
        e.raw(f"v_add_co_u32 {vX0}, vcc, s52, {vX0}")
        e.raw("s_nop 1")
        e.raw(f"v_addc_co_u32 {vX1}, vcc, 0, {vX2}, vcc")
        e.raw(f"global_load_dword v246, v[{vX0.lo}:{vX1.lo}], off")
    e.salu("s_and_b32", sXcd, S(2), 7)
    e.salu("s_lshr_b32", sIdx, S(2), 3)
    if MAP == 0:
        e.salu("s_and_b32", sMblk, sXcd, 1)
        e.salu("s_lshl_b32", sMblk, sMblk, 3)
        e.salu("s_and_b32", sRot, sIdx, 7)
        e.salu("s_add_u32", sMblk, sMblk, sRot)
        e.salu("s_lshr_b32", sT0, sXcd, 1)
        e.salu("s_lshr_b32", sT1, sIdx, 3)
        e.salu("s_mul_i32", sCg, sT0, 3)
        e.salu("s_add_u32", sCg, sCg, sT1)
        e.salu("s_add_u32", sT0, sT0, 12)
        e.salu("s_cmp_eq_u32", sT1, 3)
        e.salu("s_cselect_b32", sCg, sT0, sCg)
        if ROT1:
            e.salu("s_lshl_b32", sT1, sT1, 1)
            e.salu("s_add_u32", sRot, sRot, sT1)
            e.salu("s_sub_u32", sT0, sRot, 7)
            e.salu("s_cmp_ge_u32", sRot, 7)
            e.salu("s_cselect_b32", sRot, sT0, sRot)
    else:
        e.salu("s_and_b32", sMblk, sXcd, 3)
        e.salu("s_lshl_b32", sMblk, sMblk, 2)
        e.salu("s_and_b32", sRot, sIdx, 3)
        e.salu("s_add_u32", sMblk, sMblk, sRot)
        e.salu("s_lshr_b32", sT0, sXcd, 2)
        e.salu("s_lshr_b32", sT1, sIdx, 2)
        e.salu("s_mul_i32", sCg, sT0, 6)
        e.salu("s_add_u32", sCg, sCg, sT1)
        e.salu("s_lshl_b32", sT0, sT0, 1)
        e.salu("s_add_u32", sT0, sT0, sT1)
        e.salu("s_add_u32", sT0, sT0, 6)
        e.salu("s_cmp_ge_u32", sT1, 6)
        e.salu("s_cselect_b32", sCg, sT0, sCg)
        e.salu("s_lshl_b32", sRot, sRot, 1)
        e.salu("s_add_u32", sRot, sRot, sT1)
        e.salu("s_sub_u32", sT0, sRot, 7)
        e.salu("s_cmp_ge_u32", sRot, 7)
        e.salu("s_cselect_b32", sRot, sT0, sRot)
    if ROT1:
        pass
    else:
        e.salu("s_mov_b32", sRot, 0)
    e.valu("v_lshrrev_b32", vX0, 6, V(0))
    e.valu("v_and_b32", vLane, 63, V(0))
    e.valu("v_readfirstlane_b32", sWave, vX0)
    e.valu("v_lshlrev_b32", vLane16, 4, vLane)
    e.salu("s_and_b32", sW4, sWave, 3)
    e.salu("s_cmp_lt_u32", sWave, 4)
    e.raw("s_cbranch_scc1 L_k12_heavy")
    saved = list(e.lg)

    def reset():
        e.lg, e.vm, e.last, e.smem_pending = list(saved), [], {}, True
    e.raw("s_setprio 3")
    e.stamp(12, True)
    e.salu("s_cmp_ge_u32", sCg, 12)
    e.raw("s_cbranch_scc1 L_k12_loadY")
    e.flush_hazards()
    gen_loader1(e, False)
    e.raw("s_branch L_k12_help2")
    e.label("L_k12_loadY")
    reset()
    gen_loader1(e, True)
    e.label("L_k12_help2")
    e.lg, e.vm, e.last = [], [], {}
    gen_helper2(e)
    e.label("L_k12_heavy")
    reset()
    if CODEPF == 1:
        e.raw("s_getpc_b64 s[52:53]")
        e.label("L_k12_pc")
        e.salu("s_lshl_b32", sT0, sIdx, 2)
        e.salu("s_add_u32", sT0, sT0, sW4)
        e.salu("s_mul_i32", sT0, sT0, 3 * 128)
        e.raw(f"s_sub_u32 s52, s52, L_k12_pc-{KNAME}")
        e.raw("s_subb_u32 s53, s53, 0")
        e.valu("v_min_u32", vX0, 2, vLane)
        e.valu("v_lshlrev_b32", vX0, 7, vX0)
        e.valu("v_add_u32", vX0, sT0, vX0)
        e.raw(f"v_min_u32 {vX0}, L_code_end-{KNAME}-4, {vX0}")
        e.raw(f"v_mov_b32 {vX2}, s53")
        e.raw(f"v_add_co_u32 {vX0}, vcc, s52, {vX0}")
        e.raw("s_nop 1")
        e.raw(f"v_addc_co_u32 {vX1}, vcc, 0, {vX2}, vcc")
        e.raw(f"global_load_dword v246, v[{vX0.lo}:{vX1.lo}], off")
    e.salu("s_cmp_ge_u32", sCg, 12)
    e.raw("s_cbranch_scc1 L_k12_compY")
    gen_compute1(e, False)
    e.raw("s_branch L_k12_attn")
    e.label("L_k12_compY")
    reset()
    gen_compute1(e, True)
    e.label("L_k12_attn")
    e.lg, e.vm, e.last = [], [], {}
    e.nop(2)
    gen_attn(e)
    e.label("L_k12_end")
    e.raw("s_endpgm")


sNonce = S(27)


def poll(e, name, vaddr, srd_, soff, nlanes, vtmp, cmp_s):
    mask = (1 << nlanes) - 1
    e.wait_lg_all()
    e.raw(f"s_mov_b32 exec_lo, {hex(mask & 0xffffffff)}")
    e.raw(f"s_mov_b32 exec_hi, {hex(mask >> 32)}")
    e.salu("s_mov_b32", sT2, 0)
    e.label(name)
    e.raw(f"buffer_load_dword {vtmp}, {vaddr}, {srd_}, {soff} offen sc1")
    e.salu("s_add_u32", sT2, sT2, 1)
    e.raw("s_waitcnt vmcnt(0)")
    e.raw(f"v_cmp_ne_u32 vcc, {cmp_s}, {vtmp}")
    e.salu("s_cmp_gt_u32", sT2, SPIN)
    e.raw(f"s_cbranch_scc1 {name}_out")
    e.raw("s_and_b64 exec, exec, vcc")
    e.raw(f"s_cbranch_scc0 {name}_out")
    if SLEEP: e.raw(f"s_sleep {SLEEP}")
    e.raw(f"s_branch {name}")
    e.label(name + "_out")
    e.raw("s_mov_b64 exec, -1")
    e.vm = []
    e.last = {}


def flag_store(e, base, hi=None, lo=None):
    e.salu("s_lshl_b32", sT0, hi or sCg, 4)
    e.salu("s_add_u32", sT0, sT0, lo or sMblk)
    e.salu("s_lshl_b32", sT0, sT0, 7)
    e.salu("s_add_u32", sT0, sT0, base)
    e.salu("s_min_u32", sT1, sW4, 1)
    e.salu("s_lshl_b32", sT1, sT1, 19)
    e.salu("s_add_u32", sT0, sT0, sT1)
    e.valu("v_mov_b32", V(9), sNonce)
    e.valu("v_mov_b32", V(249), 0)
    e.raw("s_mov_b64 exec, 1")
    e.buf_store(V(9), V(249), sWS, sT0, offset=0, flags=" sc1")
    e.raw("s_mov_b64 exec, -1")


def gen_loader1(e, typeY):
    ty = int(typeY)
    lane = vLane
    vA = [V(1), V(2), V(3), V(4)]
    vB = [V(5), V(6)]
    vB2 = [V(7), V(8)]
    vGa = V(13)
    vG = V(16, 7)
    sAoff, sB0, sQo, sVo = S(29), S(30), S(34), S(48)
    sLA, sLB = S(35), S(36)
    sCh = [S(37 + i) for i in range(7)]
    e.valu("v_lshrrev_b32", vX0, 3, lane)
    e.valu("v_and_b32", vX1, 7, lane)
    e.valu("v_lshrrev_b32", vX2, 1, vX0)
    e.valu("v_xor_b32", vX2, vX2, vX1)
    e.valu("v_mul_u32_u24", vA[0], 896, vX0)
    e.valu("v_lshl_add_u32", vA[0], vX2, 4, vA[0])
    e.valu("v_xor_b32", vA[1], 64, vA[0])
    e.valu("v_add_u32", vA[2], 2 * 6144, vA[0])
    e.valu("v_add_u32", vA[3], 3 * 6144, vA[1])
    e.valu("v_add_u32", vA[1], 6144, vA[1])
    e.valu("v_bfe_u32", vX1, lane, 2, 1)
    e.valu("v_bfe_u32", vX2, lane, 4, 1)
    e.valu("v_xor_b32", vX1, vX1, vX2)
    e.valu("v_and_b32", vX2, 3, lane)
    for vv, l_, us in ((vB, 3584, 64), (vB2, 2688, 56)):
        e.valu("v_mul_u32_u24", vv[0], l_, vX0)
        e.valu("v_mul_u32_u24", vv[1], us, vX1)
        e.valu("v_add_u32", vv[0], vv[0], vv[1])
        e.valu("v_lshl_add_u32", vv[0], vX2, 4, vv[0])
        e.valu("v_add_u32", vv[1], 8 * l_ - 1024, vv[0])
    e.salu("s_lshl_b32", sT0, sMblk, 2)
    e.salu("s_add_u32", sT0, sT0, sW4)
    e.salu("s_mul_i32", sAoff, sT0, 32 * 896)
    e.salu("s_mul_i32", sT0, sW4, 16 * 3584)
    e.salu("s_lshl_b32", sB0, sCg, 7)
    e.salu("s_add_u32", sB0, sB0, sT0)
    e.salu("s_mul_i32", sT0, sW4, 16 * 2688)
    e.salu("s_mul_i32", sQo, sCg, 112)
    e.salu("s_add_u32", sQo, sQo, sT0)
    if typeY:
        e.salu("s_mul_i32", sVo, sCg, 224)
        e.salu("s_add_u32", sVo, sVo, sT0)
        e.salu("s_sub_u32", sVo, sVo, 12 * 224 - 1792)
    e.salu("s_lshl_b32", sLA, sW4, 12)
    e.salu("s_lshl_b32", sLB, sW4, 11)
    e.salu("s_add_u32", sLB, sLB, BR)
    e.salu("s_mov_b32", sCh[0], sRot)
    for c in range(1, 7):
        e.salu("s_add_u32", sCh[c], sCh[c - 1], 1)
        e.salu("s_cmp_eq_u32", sCh[c], 7)
        e.salu("s_cselect_b32", sCh[c], 0, sCh[c])
    e.wait_lg_all()
    srd(e, sX, KX, 2048 * 896)
    srd(e, sWg, KG, 448 * 3584)
    srd(e, sWu, KU, 448 * 3584)
    srd(e, sWq, KQ, 448 * 2688)

    ff = typeY or XORD
    pair0 = 7 if ff else 0

    def dmaA(c, n):
        e.salu("s_lshl_b32", sT0, sCh[c], 7)
        e.salu("s_add_u32", "m0", sLA, c * 16384)
        e.salu("s_add_u32", sT0, sT0, sAoff)
        for i in range(4):
            e.buf_load_lds(vA[i], sX, sT0, offset=i * 1024, tag=("C", n))

    def dmaB(n):
        sl = (n % 3) * 16384
        if pair0 <= n < pair0 + 4:
            for r in range(2):
                c = 2 * (n - pair0) + r
                if c < 7:
                    if not ff: dmaA(c, n)
                    e.salu("s_mul_i32", sT1, sCh[c], 64 * 2688)
                    e.salu("s_add_u32", "m0", sLB, sl + r * 8192)
                    e.salu("s_add_u32", sT0, sQo, sT1)
                    for i in range(2):
                        e.buf_load_lds(vB2[i], sWq, sT0, offset=i * 1024, tag=("C", n))
        elif n < 7 and typeY:
            dmaA(n, n)
            e.salu("s_mul_i32", sT1, sCh[n], 64 * 2688)
            for r in range(2):
                e.salu("s_add_u32", "m0", sLB, sl + r * 8192)
                e.salu("s_add_u32", sT1, sT1, sVo if r == 0 else 112)
                for i in range(2):
                    e.buf_load_lds(vB2[i], sWq, sT1, offset=i * 1024, tag=("C", n))
        else:
            c = (n if ff else n - 4) if n < 11 else n - 11
            if ff and n < 7: dmaA(n, n)
            e.salu("s_mul_i32", sT1, sCh[c], 64 * 3584)
            e.salu("s_add_u32", sT1, sT1, sB0)
            if n >= 11: e.salu("s_add_u32", sT1, sT1, 12 * 128)
            for r in range(2):
                e.salu("s_add_u32", "m0", sLB, sl + r * 8192)
                e.nop(1)
                for i in range(2):
                    e.buf_load_lds(vB[i], (sWg, sWu)[r], sT1, offset=i * 1024, tag=("C", n))

    def land(n):
        e.wait_vm_tag(("C", n))
        if not typeY and pair0 <= n < pair0 + 4:
            e.raw("s_mov_b64 exec, 0xffff")
            for r in range(2):
                c = 2 * (n - pair0) + r
                if c < 7:
                    e.ds_write("ds_write_b16", vGa, vG[c], offset=(n % 3) * 16384 + r * 8192)
            e.raw("s_mov_b64 exec, -1")
            e.wait_lg_all()

    dmaB(0)
    if not typeY:
        srd(e, sGw, KGW, 896)
        e.valu("v_and_b32", vX0, 15, lane)
        e.valu("v_lshlrev_b32", vX1, 1, vX0)
        e.salu("s_lshl_b32", sT0, sW4, 5)
        e.salu("s_lshl_b32", sT2, sCg, 12)
        e.salu("s_add_u32", sT0, sT0, sT2)
        for c in range(7):
            e.salu("s_lshl_b32", sT2, sCh[c], 7)
            e.salu("s_add_u32", sT2, sT2, sT0)
            e._issue(f"buffer_load_ushort {vG[c]}, {vX1}, {sGw}, {sT2} offen", "vmem", vX1.regs() + sGw.regs() + sT2.regs(), vG[c].regs())
            e.vm.append((-1, set(vG[c].regs()), "gw"))
        e.valu("v_lshlrev_b32", vGa, 7, vX0)
        e.valu("v_bfe_u32", vX1, lane, 1, 1)
        e.valu("v_lshl_add_u32", vGa, vX1, 6, vGa)
        e.valu("v_add_u32", vGa, sLB, vGa)
        e.valu("v_add_u32", vGa, 56, vGa)
    dmaB(1)
    srd(e, sWS, KWS, WS_USED)
    e.valu("v_mov_b32", V(12), 0)
    e.salu("s_mov_b32", sT0, NONCE)
    e.buf_load(V(11), V(12), sWS, sT0, offset=0, flags=" sc1")
    land(0)
    e.barrier()
    for n in range(16):
        if n == LP0: e.raw('s_setprio 0')
        if n + 2 < 18:
            dmaB(n + 2)
        if n == (N1 if ff else N1X):
            flag_store(e, F1)
            if S1ST: e.stamp(6, True)
        if n == 2:
            e.valu("v_readfirstlane_b32", sNonce, V(11))
            e.nop(1)
            e.salu("s_add_u32", sNonce, sNonce, "0x9e3779b9")
        if n == 15:
            vFl = V(14)
            e.salu("s_lshl_b32", sT0, sXcd, 4)
            e.salu("s_add_u32", sT1, sT0, 128)
            e.valu("v_add_u32", vFl, sT1, lane)
            e.salu("s_lshr_b32", sT1, sXcd, 1)
            e.salu("s_lshl_b32", sT1, sT1, 4)
            e.salu("s_add_u32", sT1, sT1, 192 - 16)
            e.valu("v_add_u32", vX0, sT1, lane)
            e.valu("v_cmp_le_u32", "vcc", 16, lane)
            e.valu("v_cndmask_b32", vFl, vFl, vX0)
            e.salu("s_and_b32", sT1, sIdx, 15)
            e.salu("s_add_u32", sT0, sT0, sT1)
            e.valu("v_mov_b32", vX0, sT0)
            e.valu("v_cmp_le_u32", "vcc", 32, lane)
            e.valu("v_cndmask_b32", vFl, vFl, vX0)
            e.valu("v_lshlrev_b32", vFl, 7, vFl)
        land(n + 1)
        e.barrier()


def gen_compute1(e, typeY):
    ty = int(typeY)
    lane = vLane
    sWm, sWn, sMt = S(29), S(30), S(34)
    sOutH, sOutV, sOutQK, sQKstr, sQKmul, sNL2E = S(35), S(48), S(36), S(37), S(38), S(39)
    sMask = S(40, 2)
    vAr = [[V(232 + i) for i in range(4)], [V(236 + i) for i in range(4)]]
    vTr = V(240)
    vMulHi, vVconst = V(241), V(242)
    TT = 220
    def ACC(p, r, t):
        if p == 0: return V(128 + 16 * t, 16)
        return V(64 * (p - 1) + 32 * r + 16 * t, 16)
    NBUF = 3
    def fA(n, t): return V(160 + (n % NBUF) * 16 + t * 4, 4)
    def fB(n, i): return V(160 + (n % NBUF) * 16 + 8 + i * 4, 4)
    e.salu("s_lshr_b32", sWm, sW4, 1)
    e.salu("s_and_b32", sWn, sW4, 1)
    e.salu("s_lshl_b32", sMt, sMblk, 1)
    e.salu("s_add_u32", sMt, sMt, sWm)
    e.salu("s_lshl_b32", sMt, sMt, 1)
    e.valu("v_and_b32", vX0, 31, lane)
    e.valu("v_lshrrev_b32", vX1, 5, lane)
    e.valu("v_bfe_u32", vX2, lane, 1, 3)
    e.valu("v_xor_b32", vX2, vX2, vX1)
    e.valu("v_lshlrev_b32", vX0, 7, vX0)
    e.salu("s_lshl_b32", sT0, sWm, 13)
    e.valu("v_add_u32", vX0, sT0, vX0)
    for k in range(4):
        e.valu("v_xor_b32", vAr[0][k], 2 * k, vX2)
        e.valu("v_lshl_add_u32", vAr[0][k], vAr[0][k], 4, vX0)
        e.valu("v_add_u32", vAr[1][k], 65536, vAr[0][k])
    e.valu("v_bfe_u32", vX0, lane, 2, 2)
    e.valu("v_lshl_add_u32", vX0, vX1, 3, vX0)
    e.valu("v_bfe_u32", vX2, lane, 4, 1)
    e.valu("v_lshlrev_b32", vX2, 5, vX2)
    e.valu("v_and_b32", vX1, 3, lane)
    e.valu("v_lshl_add_u32", vX2, vX1, 3, vX2)
    e.valu("v_lshl_add_u32", vX2, vX0, 7, vX2)
    e.valu("v_bfe_u32", vX1, lane, 3, 1)
    e.valu("v_xor_b32", vX1, sWn, vX1)
    e.valu("v_lshl_add_u32", vTr, vX1, 6, vX2)
    e.valu("v_add_u32", vTr, BR, vTr)
    e.salu("s_mov_b32", sNL2E, hex(f2u(-LOG2E)))
    e.salu("s_lshl_b32", sT2, sCg, 1)
    e.salu("s_add_u32", sT2, sT2, sWn)
    e.salu("s_mul_i32", sOutH, sMt, H_MT_STRIDE)
    e.salu("s_lshl_b32", sT1, sT2, 11)
    e.salu("s_add_u32", sOutH, sOutH, sT1)
    e.salu("s_add_u32", sOutH, sOutH, HF)
    if typeY:
        e.salu("s_sub_u32", sT1, sCg, 12)
        e.salu("s_lshl_b32", sT0, sT1, 2)
        e.salu("s_add_u32", sT0, sT0, sWn)
        e.salu("s_lshl_b32", sT0, sT0, 6)
        e.salu("s_add_u32", sT0, sT0, sMt)
        e.salu("s_lshl_b32", sOutV, sT0, 12)
        e.salu("s_add_u32", sOutV, sOutV, KVF + 2048)
    e.salu("s_and_b32", sT1, sT2, 15)
    e.salu("s_lshl_b32", sT1, sT1, 6)
    e.salu("s_add_u32", sT1, sT1, sMt)
    e.salu("s_cmp_lt_u32", sT2, 16)
    e.salu("s_cselect_b32", sQKstr, 11, 12)
    e.salu("s_cselect_b32", sOutQK, QF, KVF)
    e.salu("s_cselect_b32", sQKmul, hex(f2u(QSCALE)), 1.0)
    e.salu("s_lshl_b32", sQKstr, 1, sQKstr)
    e.salu("s_mul_i32", sT1, sT1, sQKstr)
    e.salu("s_add_u32", sOutQK, sOutQK, sT1)
    e.valu("v_cmp_gt_u32", "vcc", 32, lane)
    e.valu("v_mov_b32", vX0, sQKmul)
    e.valu("v_mov_b32", vX1, 0)
    e.valu("v_cndmask_b32", vMulHi, vX1, vX0)
    if typeY:
        e.valu("v_and_b32", vX0, 31, lane)
        e.valu("v_cmp_eq_u32", "vcc", 28, vX0)
        e.valu("v_mov_b32", vX2, "0x3f803f80")
        e.valu("v_cndmask_b32", vVconst, vX1, vX2)
        e.valu("v_cmp_le_u32", sMask, 28, vX0)
    e.wait_lg_all()
    srd(e, sWS, KWS, WS_USED)
    srd(e, sWd, KD, 1792 * 896)

    def epi_h(p, pk=False):
        ops = []
        for t in range(2):
            G, U = ACC(p, 0, t), ACC(p, 1, t)
            for hgrp in range(2):
                rs = list(range(8 * hgrp, 8 * hgrp + 8))
                T = V(TT, 8)
                if not pk:
                    for r in rs: ops.append((1, lambda r=r, G=G, T=T: e.valu("v_mul_f32", T[r % 8], sNL2E, G[r])))
                    for r in rs:
                        ops.append((2, lambda r=r, T=T: e.valu("v_exp_f32", T[r % 8], T[r % 8])))
                        ops.append((1, lambda r=r, G=G, U=U: e.valu("v_mul_f32", G[r], G[r], U[r])))
                    for r in rs: ops.append((1, lambda r=r, T=T: e.valu("v_add_f32", T[r % 8], 1.0, T[r % 8])))
                    for r in rs: ops.append((2, lambda r=r, T=T: e.valu("v_rcp_f32", T[r % 8], T[r % 8])))
                    for r in rs: ops.append((1, lambda r=r, G=G, T=T: e.valu("v_mul_f32", G[r], G[r], T[r % 8])))
                else:
                    C = V(228, 4)
                    for r in rs[::2]: ops.append((1, lambda r=r, G=G, T=T: e.valu("v_pk_mul_f32", T[r % 8:r % 8 + 2], G[r:r + 2], C[0:2])))
                    for r in rs:
                        ops.append((2, lambda r=r, T=T: e.valu("v_exp_f32", T[r % 8], T[r % 8])))
                        if r % 2: ops.append((1, lambda r=r, G=G, U=U: e.valu("v_pk_mul_f32", G[r - 1:r + 1], G[r - 1:r + 1], U[r - 1:r + 1])))
                    for r in rs[::2]: ops.append((1, lambda r=r, T=T: e.valu("v_pk_add_f32", T[r % 8:r % 8 + 2], T[r % 8:r % 8 + 2], C[2:4])))
                    for r in rs: ops.append((2, lambda r=r, T=T: e.valu("v_rcp_f32", T[r % 8], T[r % 8])))
                    for r in rs[::2]: ops.append((1, lambda r=r, G=G, T=T: e.valu("v_pk_mul_f32", G[r:r + 2], G[r:r + 2], T[r % 8:r % 8 + 2])))
                for i in range(4 * hgrp, 4 * hgrp + 4):
                    ops.append((1, lambda i=i, G=G, U=U: e.valu("v_cvt_pk_bf16_f32", U[i], G[2 * i], G[2 * i + 1])))
                def st(hgrp=hgrp, t=t, U=U):
                    e.salu("s_add_u32", sT1, sOutH, t * H_MT_STRIDE + (24 * 2048 if p == 2 else 0))
                    e.buf_store(U[4 * hgrp:4 * hgrp + 4], vLane16, sWS, sT1, offset=hgrp * 1024, flags=STF)
                ops.append((-2, st))
        return ops

    def epi_v():
        ops = []
        for r in range(2):
            for t in range(2):
                X = ACC(1, r, t)
                for hgrp in range(2):
                    for i in range(4 * hgrp, 4 * hgrp + 4):
                        ops.append((1, lambda i=i, X=X: e.valu("v_cvt_pk_bf16_f32", X[i], X[2 * i], X[2 * i + 1])))
                    for i in range(4 * hgrp, 4 * hgrp + 4):
                        ops.append((1, lambda i=i, X=X: e.valu("v_cndmask_b32", X[i], X[i], vVconst, sMask)))
                    def st(t=t, X=X, r=r, hgrp=hgrp):
                        e.salu("s_add_u32", sT1, sOutV, 2 * r * 64 * 4096 + t * 4096)
                        e.buf_store(X[4 * hgrp:4 * hgrp + 4], vLane16, sWS, sT1, offset=hgrp * 1024, flags=STF, tag="qkv")
                    st.qkv = True
                    ops.append((-2, st))
        return ops

    def epi_qk():
        ops = []
        for t in range(2):
            X = ACC(0, 0, t)
            if not typeY:
                ops.append((1, lambda t=t, X=X: e.valu("v_cvt_pk_bf16_f32", V(208 + t), X[12], X[12])))
            for r in range(16):
                if typeY and r < 12:
                    continue
                ops.append((1, lambda r=r, X=X: e.valu("v_mul_f32", X[r], sQKmul if r < 12 else vMulHi, X[r])))
            for hgrp in range(2):
                for i in range(4 * hgrp, 4 * hgrp + 4):
                    ops.append((1, lambda i=i, X=X: e.valu("v_cvt_pk_bf16_f32", X[i], X[2 * i], X[2 * i + 1])))
                def st(t=t, X=X, hgrp=hgrp):
                    if t == 1 and hgrp == 0:
                        e.salu("s_add_u32", sOutQK, sOutQK, sQKstr)
                    e.buf_store(X[4 * hgrp:4 * hgrp + 4], vLane16, sWS, sOutQK, offset=hgrp * 1024, flags=STF, tag="qkv")
                st.qkv = True
                ops.append((-2, st))
        if not typeY:
            for t in range(2):
                D = V(208 + t)
                Gv = V(210 + 2 * t, 2)
                for f in (("v_and_b32", D, "0xffff0000", D), ("v_mul_f32", D, sNL2E, D), ("v_exp_f32", D, D),
                          ("v_mov_b32", Gv[0], 0), ("v_add_f32", D, 1.0, D), ("v_rcp_f32", D, D), ("v_mov_b32", Gv[0], 0),
                          ("v_cvt_pk_bf16_f32", D, D, D),
                          ("v_and_b32", Gv[0], "0xffff0000", D), ("v_sub_f32", Gv[1], 1.0, Gv[0]),
                          ("v_cvt_pk_bf16_f32", Gv[1], Gv[1], Gv[1]), ("v_and_b32", Gv[1], "0xffff0000", Gv[1])):
                    ops.append((2 if f[0] in TRANS else 1, lambda f=f: e.valu(*f)))
            def stg():
                e.valu("v_lshlrev_b32", vX0, 3, lane)
                e.salu("s_lshl_b32", sT1, sMt, 8)
                e.salu("s_add_u32", sT1, sT1, GF - 256)
                e.salu("s_add_u32", sT0, sWn, sCg)
                e.salu("s_min_u32", sT0, sT0, 1)
                e.salu("s_lshl_b32", sT0, sT0, 15)
                e.salu("s_add_u32", sT1, sT1, sT0)
                e.raw("s_mov_b32 exec_lo, 0")
                e.buf_store(V(210, 2), vX0, sWS, sT1, offset=0, flags=STF, tag="qkv")
                e.buf_store(V(212, 2), vX0, sWS, sT1, offset=256, flags=STF, tag="qkv")
                e.raw("s_mov_b32 exec_lo, -1")
            stg.qkv = True
            ops.append((-2, stg))
        return ops

    ff = typeY or XORD
    order = (1, 0, 2) if ff else (0, 1, 2)
    steps = [(p, ks) for p in order for ks in range(28)]
    def bchunk(p, ks):
        c, kk = ks // 4, ks % 4
        if p == 1: return (0 if ff else 4) + c, kk * 2048
        if p == 2: return 11 + c, kk * 2048
        return (7 if ff else 0) + c // 2, (c % 2) * 8192 + kk * 2048
    def rd(n):
        p, ks = steps[n]
        c, kk = ks // 4, ks % 4
        bn, boff = bchunk(p, ks)
        ops = []
        for t in range(2):
            ops.append(lambda t=t: e.ds_read("ds_read_b128", fA(n, t), vAr[c >> 2][kk], offset=(c & 3) * 16384 + t * 4096, tag=("t", n)))
        for i in range(1 if p == 0 else 2):
            for j in range(2):
                ops.append(lambda i=i, j=j: e.ds_read("ds_read_b64_tr_b16", fB(n, i)[2 * j:2 * j + 2], vTr,
                                                      offset=(bn % 3) * 16384 + boff + i * 8192 + j * 512, tag=("t", n)))
        return ops

    def pre(stage):
        sTS = S(52, 4)
        e.salu("s_mov_b32", sTS[3], "0x20000")
        e.salu("s_mov_b32", sTS[2], 448 * 3584)
        if stage < 2:
            e.salu("s_and_b32", sT0, sW4, 1)
            e.salu("s_cmp_eq_u32", sT0, 0)
            e.salu("s_cselect_b32", sTS[0], S(KG), S(KU))
            e.salu("s_cselect_b32", sTS[1], S(KG + 1), S(KU + 1))
        if stage < 2 and L2PF:
            e.salu("s_and_b32", sT1, sMblk, 7)
            e.salu("s_lshl_b32", sT1, sT1, 1)
            e.salu("s_lshr_b32", sT2, sW4, 1)
            e.salu("s_add_u32", sT1, sT1, sT2)
            e.valu("v_min_u32", vX0, 27, lane)
            if stage == 0 and ff:
                e.salu("s_mov_b32", sTS[2], 448 * 2688)
                e.salu("s_mov_b32", sTS[0], S(KQ)); e.salu("s_mov_b32", sTS[1], S(KQ + 1))
                e.salu("s_mul_i32", sT1, sT1, 28 * 2688)
                e.salu("s_mul_i32", sT0, sT0, 116)
                e.salu("s_add_u32", sT1, sT1, sT0)
                e.salu("s_mul_i32", sT0, sCg, 112)
                e.valu("v_mul_u32_u24", vX2, 2688, vX0)
            else:
                e.salu("s_mul_i32", sT1, sT1, 28 * 3584)
                e.salu("s_lshl_b32", sT0, sCg, 7)
                if stage == 1: e.salu("s_add_u32", sT0, sT0, 12 * 128)
                e.valu("v_mul_u32_u24", vX2, 3584, vX0)
            e.salu("s_add_u32", sT1, sT1, sT0)
        elif stage == 0 and XORD:
            e.salu("s_mov_b32", sTS[2], 448 * 2688)
            e.salu("s_mov_b32", sTS[0], S(KQ)); e.salu("s_mov_b32", sTS[1], S(KQ + 1))
            e.salu("s_lshl_b32", sT1, S(2), 1)
            e.salu("s_add_u32", sT1, sT1, sT0)
            e.salu("s_mul_i32", sT1, sT1, 2688)
            e.salu("s_lshr_b32", sT0, sW4, 1)
            e.salu("s_mul_i32", sT0, sT0, 896)
            e.salu("s_add_u32", sT1, sT1, sT0)
            e.valu("v_min_u32", vX0, 6, lane)
            e.valu("v_lshlrev_b32", vX2, 7, vX0)
        elif stage == 0:
            e.salu("s_mul_i32", sT1, S(2), 21)
            e.valu("v_min_u32", vX0, 20, lane)
            e.valu("v_add_u32", vX0, sT1, vX0)
            e.salu("s_mov_b32", sT1, 43691)
            e.valu("v_mul_u32_u24", vX1, sT1, vX0)
            e.valu("v_lshrrev_b32", vX1, 19, vX1)
            e.valu("v_mul_u32_u24", vX2, 3584 - 12 * 128, vX1)
            e.valu("v_lshl_add_u32", vX2, vX0, 7, vX2)
            e.salu("s_mov_b32", sT1, 0)
            e.salu("s_cmp_lt_u32", sW4, 2)
            e.raw(f"s_cbranch_scc1 L_k12_pre{ty}")
            e.salu("s_mov_b32", sTS[2], 448 * 2688)
            e.salu("s_mov_b32", sTS[0], S(KQ)); e.salu("s_mov_b32", sTS[1], S(KQ + 1))
            e.salu("s_lshl_b32", sT1, S(2), 1)
            e.salu("s_add_u32", sT1, sT1, sT0)
            e.salu("s_mul_i32", sT1, sT1, 2688)
            e.salu("s_add_u32", sT1, sT1, 1280)
            e.valu("v_min_u32", vX0, 3, lane)
            e.valu("v_lshlrev_b32", vX2, 7, vX0)
            e.label(f"L_k12_pre{ty}")
        elif stage == 1:
            e.salu("s_lshl_b32", sT1, S(2), 1)
            e.salu("s_lshr_b32", sT0, sW4, 1)
            e.salu("s_add_u32", sT1, sT1, sT0)
            e.salu("s_mul_i32", sT1, sT1, 14)
            e.valu("v_min_u32", vX0, 13, lane)
            e.valu("v_add_u32", vX0, sT1, vX0)
            e.valu("v_lshrrev_b32", vX1, 4, vX0)
            e.valu("v_and_b32", vX0, 15, vX0)
            e.valu("v_mul_u32_u24", vX2, 3584, vX1)
            e.valu("v_lshl_add_u32", vX2, vX0, 7, vX2)
            e.salu("s_mov_b32", sT1, 12 * 128)
        else:
            e.salu("s_mov_b32", sTS[0], S(KD)); e.salu("s_mov_b32", sTS[1], S(KD + 1))
            e.salu("s_mul_i32", sT0, S(2), 49 * 128)
            e.salu("s_mul_i32", sT1, sW4, 13 * 128)
            e.salu("s_add_u32", sT1, sT0, sT1)
            e.valu("v_min_u32", vX0, 12, lane)
            e.valu("v_lshlrev_b32", vX2, 7, vX0)
        e.buf_load(V(243 + stage), vX2, sTS, sT1, offset=0)

    e.stamp(0); e.stamp(12, True)
    for st_, at in enumerate(PRES):
        if at < 0: pre(st_)
    e.barrier()
    e.stamp(1)
    for f in rd(0) + rd(1): f()
    epi, stq = [], []
    for n, (p, ks) in enumerate(steps):
        if ks == 0 and n > 0:
            e.stamp(1 + n // 28)
            prev = steps[n - 1][0]
            if prev == 0: epi = [(6, lambda: None)] + epi_qk() + epi
            else: epi += [(6, lambda: None)] + (epi_v() if typeY else epi_h(1))
        for st_, at in enumerate(PRES):
            if at == n: stq.append(lambda st_=st_: pre(st_))
        nr = 1 if p == 0 else 2
        nm = 2 * nr
        plan = [[] for _ in range(nm)]
        tgt = n + 2
        if tgt < len(steps):
            r_ = rd(tgt)
            bt = bchunk(*steps[tgt])[0]
            if bt != bchunk(*steps[tgt - 1])[0]:
                def bar(tgt=tgt, bt=bt):
                    e.wait_lg_tag(("t", tgt - 1))
                    if bt == (N1 if ff else N1X):
                        assert not any(getattr(f, "qkv", False) for _, f in epi) and not any(getattr(f, "qkv", False) for f in stq)
                        e.wait_vm_tag("qkv")
                    if bt == N1B:
                        assert not epi and not stq, (len(epi), len(stq))
                        e.raw("s_waitcnt vmcnt(0)")
                        e.vm = []
                    e.barrier()
                if tgt < 28 and nm == 2:
                    plan[1] = [bar] + r_
                elif tgt < 28:
                    plan[1] = [bar, r_[0]]; plan[2] = r_[1:4]; plan[3] = r_[4:]
                elif nm == 4:
                    plan[0] = r_[0:2]; plan[2] = [bar] + r_[2:4]; plan[3] = r_[4:]
                else:
                    plan[0] = r_[0:2]; plan[1] = [bar] + r_[2:]
            else:
                for g in range(nm):
                    k = -(-len(r_) // (nm - g))
                    plan[g] = r_[:k]; r_ = r_[k:]
        e.wait_lg_tag(("t", n))
        gi = 0
        for i in range(nr):
            for t in range(2):
                swap = typeY and p == 1
                a_, b_ = (fA(n, t), fB(n, i)) if swap else (fB(n, i), fA(n, t))
                e.mfma(ACC(p, i, t), a_, b_, 0 if ks == 0 else None)
                slots = 6 - (1 if gi == nm - 1 else 0)
                for f in plan[gi]:
                    f(); slots -= 1
                slots = min(slots, EB1 if p == 1 else 4 if p == 2 else 6)
                safe = (ks % 4 == 1 or (ks % 4 == 0 and gi >= 2)) if p != 0 else (n < 28 or ks % 8 in (2, 3, 4, 5))
                if stq and (safe or (QANY and p == 2 and getattr(stq[0], "qkv", False))):
                    stq.pop(0)(); slots -= 2
                while epi and (slots >= epi[0][0] or epi[0][0] == 6):
                    cost, f = epi.pop(0)
                    if cost < 0:
                        if getattr(f, "qkv", False):
                            k_ = sum(1 for x in stq if getattr(x, "qkv", False))
                            stq.sort(key=lambda x: not getattr(x, "qkv", False))
                            stq.insert(k_, f)
                        else:
                            stq.append(f)
                        continue
                    f(); slots -= cost
                    if cost == 6: break
                gi += 1
    e.stamp(4)
    e.valu("v_mov_b32", V(228), sNL2E)
    e.valu("v_mov_b32", V(229), sNL2E)
    e.valu("v_mov_b32", V(230), 1.0)
    e.valu("v_mov_b32", V(231), 1.0)
    for _, f in epi_h(2, pk=True):
        f()
    e.stamp(5)


def gen_attn(e):
    lane = vLane
    Q = [[V(8, 4), V(12, 4)], [V(16, 4), V(20, 4)]]
    K = [V(24, 4), V(28, 4)]
    Vf = [[V(32, 4), V(36, 4)], [V(40, 4), V(44, 4)]]
    Sb = [V(128, 16), V(144, 16)]
    P = [V(48, 8), V(56, 8)]
    O = [V(160, 16), V(176, 16)]
    X = V(192, 16)
    vKV, vRed, vQl = V(1), V(2), V(3)
    vT0, vT1, vT2, vT3 = V(4), V(5), V(6), V(7)
    sQg, sKg, sHead, sQblk, sOo, sKV, sCnt = S(29), S(30), S(34), S(35), S(36), S(37), S(38)
    sSave = S(40, 2)
    e.salu("s_and_b32", sQg, sW4, 1)
    e.salu("s_lshr_b32", sKg, sW4, 1)
    e.salu("s_lshr_b32", sT0, sIdx, 4)
    e.salu("s_lshl_b32", sHead, sXcd, 1)
    e.salu("s_add_u32", sHead, sHead, sT0)
    e.salu("s_and_b32", sQblk, sIdx, 15)
    e.salu("s_lshl_b32", sKV, sHead, 18)
    e.salu("s_add_u32", sKV, sKV, KVF)
    e.salu("s_lshl_b32", sT1, sQblk, 2)
    e.salu("s_lshl_b32", sT0, sQg, 1)
    e.salu("s_add_u32", sT1, sT1, sT0)
    e.salu("s_add_u32", sT1, sT1, sKg)
    e.salu("s_lshl_b32", sOo, sT1, 4)
    e.salu("s_add_u32", sOo, sOo, sHead)
    e.salu("s_lshl_b32", sOo, sOo, 11)
    e.salu("s_add_u32", sOo, sOo, OF)
    e.salu("s_lshl_b32", sT2, sKg, 13)
    e.valu("v_add_u32", vKV, sT2, vLane16)
    e.salu("s_lshl_b32", sT2, sQg, 12)
    e.salu("s_add_u32", sT2, sT2, QL)
    e.valu("v_add_u32", vQl, sT2, vLane16)
    e.salu("s_lshl_b32", sT2, sQg, 13)
    e.salu("s_add_u32", sT2, sT2, ARED)
    e.valu("v_add_u32", vRed, sT2, vLane16)
    for r in range(16):
        e.valu("v_mov_b32", O[0][r], 0)
        e.valu("v_mov_b32", O[1][r], 0)
    for r in range(4):
        e.valu("v_mov_b32", P[1][r], 0)
        e.valu("v_mov_b32", P[1][4 + r], 0)
        e.valu("v_mov_b32", Vf[1][0][r], 0)
        e.valu("v_mov_b32", Vf[1][1][r], 0)
    e.salu("s_mov_b32", sCnt, 0)

    def toff(i): return ((i >> 1) % 4) * 16384 + (i & 1) * 4096

    e.barrier()
    e.stamp(6)
    for q in range(2):
        for s_ in range(2):
            e.ds_read("ds_read_b128", Q[q][s_], vQl, offset=q * 2048 + s_ * 1024)
    e.ds_read("ds_read_b128", K[0], vKV, offset=0)
    e.ds_read("ds_read_b128", K[1], vKV, offset=1024)
    e.ds_read("ds_read_b128", Vf[0][1], vKV, offset=3072)
    e.ds_read("ds_read_b128", Vf[0][0], vKV, offset=2048)
    e.mfma(Sb[0], K[0], Q[0][0], 0)
    e.mfma(Sb[0], K[1], Q[0][1])
    e.wait_lg_all()
    e.flush_hazards()

    def unit(i, q):
        Sc, Sn = Sb[q], Sb[1 - q]
        nq = 1 - q
        def ex(a, b):
            for r in range(a, b): e.valu("v_exp_f32", Sc[r], Sc[r])
        def cv(a, b):
            for j in range(a, b): e.valu("v_cvt_pk_bf16_f32", P[q][j], Sc[2 * j], Sc[2 * j + 1])
        pi = i if q == 1 else i - 1
        if q == 0:
            rd = [(K[0], toff(i + 1)), (K[1], toff(i + 1) + 1024)]
        else:
            rd = [(Vf[(i + 1) % 2][1], toff(i + 1) + 3072), (Vf[(i + 1) % 2][0], toff(i + 1) + 2048)]
        e.mfma(Sn, K[0], Q[nq][0], 0)
        ex(0, 3)
        e.mfma(Sn, K[1], Q[nq][1])
        e.ds_read("ds_read_b128", rd[0][0], vKV, offset=rd[0][1])
        ex(3, 5); cv(0, 1)
        e.mfma(O[nq], Vf[pi % 2][0], P[nq][0:4])
        e.ds_read("ds_read_b128", rd[1][0], vKV, offset=rd[1][1])
        ex(5, 7); cv(1, 2)
        e.mfma(O[nq], Vf[pi % 2][1], P[nq][4:8])
        ex(7, 16); cv(2, 8)

    mark = len(e.lines)
    for i in (6, 7):
        for q in range(2): unit(i, q)
    del e.lines[mark:]
    e.label("L_k12_aloop")
    for i in range(8):
        for q in range(2):
            unit(i, q)
        if i % 2 == 1:
            if i == 3:
                e.raw("s_waitcnt vmcnt(0)")
            if i == 7:
                e.salu("s_add_u32", sCnt, sCnt, 1)
                e.salu("s_cmp_lt_u32", sCnt, 4)
            e.barrier()
    e.raw("s_cbranch_scc1 L_k12_aloop")
    e.mfma(O[1], Vf[1][0], P[1][0:4])
    e.mfma(O[1], Vf[1][1], P[1][4:8])
    e.stamp(7)
    e.wait_lg_all()
    e.salu("s_cmp_eq_u32", sKg, 0)
    e.raw("s_cbranch_scc1 L_k12_kg0")
    for j in range(4):
        e.ds_write("ds_write_b128", vRed, O[0][4 * j:4 * j + 4], offset=j * 1024)
    for r in range(16):
        e.valu("v_mov_b32", O[0][r], O[1][r])
    for s_ in range(2):
        for r in range(4):
            e.valu("v_mov_b32", Q[0][s_][r], Q[1][s_][r])
    e.valu("v_add_u32", vRed, 4096, vRed)
    e.raw("s_branch L_k12_kgj")
    e.label("L_k12_kg0")
    e.lg = []
    e.last = {}
    e.nop(10)
    for j in range(4):
        e.ds_write("ds_write_b128", vRed, O[1][4 * j:4 * j + 4], offset=4096 + j * 1024)
    e.label("L_k12_kgj")
    e.raw("s_waitcnt lgkmcnt(0)")
    e.lg = []
    e.last = {}
    e.barrier()
    Of, Pf, Qf = O[0], P[0], Q[0]
    for j in range(4):
        e.ds_read("ds_read_b128", X[4 * j:4 * j + 4], vRed, offset=j * 1024)
    Z = V(208, 2)
    e.valu("v_mov_b32", Z[0], 0)
    e.valu("v_mov_b32", Z[1], 0)
    e.valu("v_mov_b32", V(210), 0)
    e.valu("v_mov_b32", V(211), 0)
    for r in range(0, 16, 2):
        e.valu("v_pk_add_f32", Of[r:r + 2], Of[r:r + 2], X[r:r + 2])
    e.valu("v_mov_b32", vT0, Of[12])
    e.valu("v_mov_b32", vT1, Of[12])
    for r in range(0, 16, 2):
        e.valu("v_pk_fma_f32", Z, Of[r:r + 2], V(210, 2), Z)
        if r == 2:
            e.valu("v_permlane32_swap_b32", vT0, vT1)
    e.valu("v_add_f32", vT2, Z[0], Z[1])
    e.salu("s_mov_b32", sT0, hex(f2u(L_LO)))
    e.salu("s_mov_b32", sT1, hex(f2u(L_HI)))
    e.valu("v_add_f32", vT2, vT2, vT1)
    e.valu("v_cmp_le_f32", "vcc", sT0, vT2)
    e.valu("v_cmp_ge_f32", sSave, sT1, vT2)
    e.nop(1)
    e.salu("s_and_b64", "vcc", "vcc", sSave)
    e.raw("s_cmp_eq_u64 vcc, -1")
    e.raw("s_cbranch_scc0 L_k12_slow")
    e.label("L_k12_store")
    e.last = {}
    e.nop(2)
    e.valu("v_rcp_f32", vT0, vT1)
    e.valu("v_cmp_gt_u32", "vcc", 32, lane)
    e.valu("v_mov_b32", vT2, 0)
    e.valu("v_mov_b32", vT1, vT0)
    e.valu("v_cndmask_b32", vT2, vT2, vT0)
    e.valu("v_mov_b32", vT3, vT2)
    for r in range(0, 16, 2):
        e.valu("v_pk_mul_f32", Of[r:r + 2], Of[r:r + 2], V(4, 2) if r < 12 else V(6, 2))
    for j in range(8):
        e.valu("v_cvt_pk_bf16_f32", Pf[j], Of[2 * j], Of[2 * j + 1])
    e.buf_store(Pf[0:4], vLane16, sWS, sOo, offset=0, flags=STF)
    e.buf_store(Pf[4:8], vLane16, sWS, sOo, offset=1024, flags=STF)
    e.stamp(8)
    if FUSE3:
        if R1B: e.barrier()
        gen_phase3_heavy(e)
    if Emitter.STAMPS:
        e.raw("s_waitcnt vmcnt(0)")
    e.stamp(9); e.stamp(13, True)
    e.dump_stamps(sWS, 0, sWave)
    e.raw("s_endpgm")
    e.label("L_k12_slow")
    e.lg, e.vm, e.last = [], [], {}
    vM = vT3
    Sc = Sb[0]
    e.valu("v_mov_b32", vM, "0xff800000")
    for r in range(16):
        e.valu("v_mov_b32", Of[r], 0)
    e.salu("s_mov_b32", sCnt, 0)
    e.salu("s_mov_b32", sT2, sKV)
    e.label("L_k12_slow_loop")
    e.buf_load(K[0], vLane16, sWS, sT2, offset=0, flags=LDF)
    e.buf_load(K[1], vLane16, sWS, sT2, offset=1024, flags=LDF)
    e.buf_load(Vf[0][0], vLane16, sWS, sT2, offset=2048, flags=LDF)
    e.buf_load(Vf[0][1], vLane16, sWS, sT2, offset=3072, flags=LDF)
    e.mfma(Sc, K[0], Qf[0], 0)
    e.mfma(Sc, K[1], Qf[1])
    e.valu("v_max_f32", vT0, Sc[0], Sc[1])
    for r in range(2, 16, 2):
        e.valu("v_max3_f32", vT0, vT0, Sc[r], Sc[r + 1])
    e.valu("v_mov_b32", vT1, vT0)
    e.valu("v_permlane32_swap_b32", vT0, vT1)
    e.valu("v_max3_f32", vT0, vT0, vT1, vM)
    e.valu("v_sub_f32", vT1, vM, vT0)
    e.valu("v_exp_f32", vT1, vT1)
    e.valu("v_mov_b32", vM, vT0)
    for r in range(16):
        e.valu("v_sub_f32", Sc[r], Sc[r], vM)
    for r in range(16):
        e.valu("v_exp_f32", Sc[r], Sc[r])
    for r in range(16):
        e.valu("v_mul_f32", Of[r], Of[r], vT1)
    for j in range(8):
        e.valu("v_cvt_pk_bf16_f32", Pf[j], Sc[2 * j], Sc[2 * j + 1])
    e.mfma(Of, Vf[0][0], Pf[0:4])
    e.mfma(Of, Vf[0][1], Pf[4:8])
    e.salu("s_add_u32", sT2, sT2, 4096)
    e.salu("s_add_u32", sCnt, sCnt, 1)
    e.flush_hazards()
    e.salu("s_cmp_lt_u32", sCnt, 64)
    e.raw("s_cbranch_scc1 L_k12_slow_loop")
    e.valu("v_mov_b32", vT0, Of[12])
    e.valu("v_mov_b32", vT1, Of[12])
    e.valu("v_permlane32_swap_b32", vT0, vT1)
    e.raw("s_branch L_k12_store")


def gen_phase3_heavy(e):
    lane = vLane
    sU, sTt, sMt64, sNt, sSt = S(29), S(30), S(34), S(35), S(36)
    vRr, vTr, vOr, vSt = V(1), V(2), V(3), V(4)
    vG = V(6, 2)
    Bx = [V(64 + 16 * w, 16) for w in range(4)]
    ACC = V(128, 16)
    NB = 4
    def OFr(k): return V(8 + (k % NB) * 4, 4)
    def WFr(k): return V(24 + (k % NB) * 4, 4)
    e.salu("s_cmp_ge_u32", sIdx, 28)
    e.raw("s_cbranch_scc0 L_k12_h3")
    e.raw("s_waitcnt vmcnt(0)")
    e.barrier()
    e.raw("s_branch L_k12_h3end")
    e.label("L_k12_h3")
    e.salu("s_lshl_b32", sT0, sW4, 12)
    e.salu("s_add_u32", sT0, sT0, WR)
    e.valu("v_add_u32", vRr, sT0, vLane16)
    def rdB():
        for w in range(4):
            for j in range(4):
                e.ds_read("ds_read_b128", Bx[w][4 * j:4 * j + 4], vRr, offset=w * 16384 + j * 1024)
    if not DEFER: rdB()
    e.salu("s_mul_i32", sT0, sIdx, 37)
    e.salu("s_lshr_b32", sT0, sT0, 8)
    e.salu("s_mul_i32", sT1, sT0, 7)
    e.salu("s_sub_u32", sNt, sIdx, sT1)
    e.salu("s_lshl_b32", sMt64, sXcd, 2)
    e.salu("s_add_u32", sMt64, sMt64, sT0)
    e.salu("s_and_b32", sU, sW4, 1)
    e.salu("s_lshr_b32", sTt, sW4, 1)
    srd(e, sOut, KOUT, 2048 * 896)
    e.salu("s_lshl_b32", sT0, sMt64, 1)
    e.salu("s_add_u32", sT0, sT0, sTt)
    e.salu("s_mul_i32", sSt, sT0, 32 * 896)
    e.salu("s_lshl_b32", sT2, sNt, 1)
    e.salu("s_add_u32", sT2, sT2, sU)
    e.salu("s_lshl_b32", sT2, sT2, 6)
    e.salu("s_add_u32", sSt, sSt, sT2)
    e.salu("s_lshl_b32", S(37), sT0, 8)
    e.salu("s_add_u32", S(37), S(37), GF)
    e.valu("v_and_b32", vX0, 31, lane)
    e.valu("v_lshlrev_b32", V(5), 3, vX0)
    e.valu("v_mul_u32_u24", vSt, 896, vX0)
    e.valu("v_lshrrev_b32", vX1, 5, lane)
    e.valu("v_lshl_add_u32", vSt, vX1, 4, vSt)
    e.valu("v_bfe_u32", vX0, lane, 2, 2)
    e.valu("v_lshl_add_u32", vX0, vX1, 2, vX0)
    e.valu("v_bfe_u32", vX2, lane, 4, 1)
    e.valu("v_lshlrev_b32", vX2, 5, vX2)
    e.valu("v_and_b32", vX1, 3, lane)
    e.valu("v_lshl_add_u32", vX2, vX1, 3, vX2)
    e.valu("v_lshl_add_u32", vX2, vX0, 7, vX2)
    e.valu("v_bfe_u32", vX1, lane, 3, 1)
    e.valu("v_xor_b32", vX1, sU, vX1)
    e.valu("v_lshl_add_u32", vTr, vX1, 6, vX2)
    e.salu("s_lshl_b32", sT0, sTt, 15)
    e.salu("s_add_u32", sT0, sT0, OREG)
    e.valu("v_add_u32", vOr, sT0, vLane16)
    def rd(k):
        e.ds_read("ds_read_b128", OFr(k), vOr, offset=k * 1024, tag=("k", k))

    def rdw(k):
        hd, s_ = k // 2, k % 2
        for j in range(2):
            e.ds_read("ds_read_b64_tr_b16", WA(k)[2 * j:2 * j + 2], vTr, offset=(28 * hd + 16 * s_ + 8 * j) * 128, tag=("w", k))

    def WA(k): return V(144 + 4 * k, 4) if k < 26 else V(40 + 4 * (k - 26), 4)
    def OFr(k): return V(8 + (k % 8) * 4, 4)
    if not DEFER: e.wait_lg_all()
    e.raw("s_waitcnt vmcnt(0)")
    e.vm = []
    e.barrier()
    e.buf_load(vG, V(5), sWS, S(37), offset=0, flags=LDF)
    for k in range(32):
        rdw(k)
    if DEFER:
        e.wait_lg_all()
        e.barrier()
        rdB()
    for r in range(0, 16, 2):
        e.valu("v_pk_add_f32", Bx[0][r:r + 2], Bx[0][r:r + 2], Bx[1][r:r + 2])
        e.valu("v_pk_add_f32", Bx[2][r:r + 2], Bx[2][r:r + 2], Bx[3][r:r + 2])
    for r in range(0, 16, 2):
        e.valu("v_pk_add_f32", Bx[0][r:r + 2], Bx[0][r:r + 2], Bx[2][r:r + 2])
    for j in range(8):
        e.valu("v_cvt_pk_bf16_f32", Bx[1][j], Bx[0][2 * j], Bx[0][2 * j + 1])
    for j in range(8):
        e.valu("v_lshlrev_b32", Bx[0][2 * j], 16, Bx[1][j])
        e.valu("v_and_b32", Bx[0][2 * j + 1], "0xffff0000", Bx[1][j])
    for r in range(16):
        e.valu("v_mul_f32", Bx[0][r], Bx[0][r], vG[1])
    e.wait_lg_all()
    for c in range(4):
        e.barrier()
        if c == 0: e.stamp(10)
        ks = list(range(8 * c, 8 * c + 8))
        for k in ks:
            rd(k)
        for k in ks:
            e.mfma(ACC, WA(k), OFr(k), 0 if k == 0 else None)
    e.stamp(11)
    for r in range(16):
        e.valu("v_fmac_f32", Bx[0][r], ACC[r], vG[0], dst_is_read=True)
    Bv = Bx[3]
    for j in range(8):
        e.valu("v_cvt_pk_bf16_f32", Bv[j], Bx[0][2 * j], Bx[0][2 * j + 1])
    for kk in range(2):
        e.valu("v_permlane32_swap_b32", Bv[4 * kk], Bv[4 * kk + 2])
        e.valu("v_permlane32_swap_b32", Bv[4 * kk + 1], Bv[4 * kk + 3])
        e.buf_store(Bv[4 * kk:4 * kk + 4], vSt, sOut, sSt, offset=kk * 32, flags=os.environ.get('OUTF', ''))
    e.label("L_k12_h3end")
    e.last = {}


def gen_helper2(e):
    lane = vLane
    sHead, sQblk, sKV, sLdsKV = S(29), S(30), S(34), S(35)
    sMt64, sNt, sLdsW, sWoff, sHoff, sHoff1 = S(36), S(37), S(38), S(39), S(40), S(41)
    vFl = V(14)
    e.salu("s_lshr_b32", sT0, sIdx, 4)
    e.salu("s_lshl_b32", sHead, sXcd, 1)
    e.salu("s_add_u32", sHead, sHead, sT0)
    e.salu("s_and_b32", sQblk, sIdx, 15)
    e.salu("s_lshl_b32", sLdsKV, sW4, 12)
    e.salu("s_lshl_b32", sKV, sHead, 18)
    e.salu("s_add_u32", sKV, sKV, KVF)
    e.salu("s_add_u32", sKV, sKV, sLdsKV)
    e.salu("s_mul_i32", sT0, sIdx, 37)
    e.salu("s_lshr_b32", sT0, sT0, 8)
    e.salu("s_mul_i32", sT1, sT0, 7)
    e.salu("s_sub_u32", sNt, sIdx, sT1)
    e.salu("s_lshl_b32", sMt64, sXcd, 2)
    e.salu("s_add_u32", sMt64, sMt64, sT0)
    e.salu("s_min_u32", sMt64, sMt64, 31)
    def dma_KV(s):
        e.salu("s_add_u32", "m0", sLdsKV, (s % 4) * 16384)
        e.salu("s_add_u32", sT0, sKV, s * 16384)
        for i in range(4):
            e.buf_load_lds(vLane16, sWS, sT0, offset=i * 1024, tag=("KV", s), flags=LDF)

    def first_loads():
        dma_KV(0)
        e.salu("s_lshl_b32", sT0, sHead, 6)
        e.salu("s_lshl_b32", sT1, sQblk, 2)
        e.salu("s_add_u32", sT0, sT0, sT1)
        e.salu("s_add_u32", sT0, sT0, sW4)
        e.salu("s_lshl_b32", sT0, sT0, 11)
        e.salu("s_lshl_b32", sT1, sW4, 11)
        e.salu("s_add_u32", "m0", sT1, QL)
        if QF: e.salu("s_add_u32", sT0, sT0, QF)
        else: e.nop(1)
        for i in range(2):
            e.buf_load_lds(vLane16, sWS, sT0, offset=i * 1024, tag=("KV", 0), flags=LDF)
        dma_KV(1); dma_KV(2)

    if EARLYP:
        e.salu("s_cmp_eq_u32", sW4, 1)
        e.salu("s_mov_b32", sT1, "0x40000000")
        e.salu("s_cselect_b32", sT0, F1, sT1)
        e.raw(f"buffer_load_dword v15, {vFl}, {sWS}, {sT0} offen sc1")
    gemm_setup(e, sMt64, sNt, sLdsW, sWoff, sHoff)
    e.raw(f"v_mov_b32 v8, {SIG1}")
    e.raw(f"v_not_b32 v9, {sNonce}")
    e.raw("ds_write_b32 v8, v9")
    e.raw(f"s_waitcnt vmcnt({1 if EARLYP else 0}) lgkmcnt(0)")
    e.barrier()
    if TPRIO < 3: e.raw(f"s_setprio {TPRIO}")
    e.stamp(0)
    e.salu("s_cmp_eq_u32", sW4, 1)
    e.raw("s_cbranch_scc1 L_k12_pl")
    e.salu("s_cmp_lg_u32", sW4, 0)
    e.raw("s_cbranch_scc1 L_k12_wl")
    flag_store(e, F1B)
    e.label("L_k12_wl")
    e.salu("s_mov_b32", sT2, 0)
    e.label("L_k12_wl2")
    e.raw("ds_read_b32 v9, v8")
    e.salu("s_add_u32", sT2, sT2, 1)
    e.raw("s_waitcnt lgkmcnt(0)")
    e.raw("v_readfirstlane_b32 s33, v9")
    e.salu("s_cmp_gt_u32", sT2, SPIN * 16)
    e.raw("s_cbranch_scc1 L_k12_p1ok")
    e.raw(f"s_cmp_eq_u32 s33, {sNonce}")
    e.raw("s_cbranch_scc1 L_k12_p1ok")
    e.raw(f"s_sleep {WSL}")
    e.raw("s_branch L_k12_wl2")
    e.label("L_k12_pl")
    if EARLYP:
        e.raw("s_waitcnt vmcnt(0)")
        e.raw(f"v_cmp_ne_u32 vcc, {sNonce}, v15")
        e.nop(1)
        e.raw("s_and_b32 s33, vcc_hi, 1")
        e.raw("s_or_b32 s33, s33, vcc_lo")
        e.raw("s_cbranch_scc0 L_k12_p1sig")
    e.salu("s_mov_b32", sT0, F1)
    poll(e, "L_k12_p1", vFl, sWS, sT0, 33, V(15), sNonce)
    e.label("L_k12_p1sig")
    e.raw(f"v_mov_b32 v9, {sNonce}")
    e.raw("ds_write_b32 v8, v9")
    e.label("L_k12_p1ok")
    e.vm, e.last = [], {}
    e.stamp(1)
    if S1ST: e.stamp(7, True)
    first_loads()
    st0 = list(e.vm)
    e.raw(f"s_setprio {HPRIO}")
    e.salu("s_cmp_ge_u32", sIdx, 28)
    e.raw("s_cbranch_scc1 L_k12_nogemm")
    helper_loop(e, True, dma_KV, sMt64, sNt, sLdsW, sWoff, sHoff, sHoff1)
    e.raw("s_endpgm")
    e.label("L_k12_nogemm")
    e.lg, e.vm, e.last = [], list(st0), {}
    helper_loop(e, False, dma_KV, sMt64, sNt, sLdsW, sWoff, sHoff, sHoff1)
    e.raw("s_endpgm")


def gemm_setup(e, sMt64, sNt, sLdsW, sWoff, sHoff):
    lane = vLane
    vW = [V(2), V(3), V(4), V(5)]
    vTr = [V(6), V(7)]
    vRw, vRr, vF2 = V(11), V(12), V(13)
    sWl, sHl = S(42), S(43)
    srd(e, sWd, KD, 1792 * 896)
    e.valu("v_lshrrev_b32", vX0, 3, lane)
    e.valu("v_bfe_u32", vX1, lane, 2, 1)
    e.valu("v_bfe_u32", vX2, lane, 4, 1)
    e.valu("v_xor_b32", vX1, vX1, vX2)
    e.valu("v_mul_u32_u24", vW[0], 896, vX0)
    e.valu("v_lshl_add_u32", vW[0], vX1, 6, vW[0])
    e.valu("v_and_b32", vX1, 3, lane)
    e.valu("v_lshl_add_u32", vW[0], vX1, 4, vW[0])
    for i in range(1, 4):
        e.valu("v_add_u32", vW[i], i * (8 * 896 - 1024), vW[0])
    e.salu("s_lshl_b32", sLdsW, sW4, 14)
    e.salu("s_add_u32", sLdsW, sLdsW, WR)
    e.salu("s_mul_i32", sWoff, sW4, 6 * 32 * 896)
    e.salu("s_lshl_b32", sT0, sNt, 7)
    e.salu("s_add_u32", sWoff, sWoff, sT0)
    e.salu("s_lshl_b32", sT0, sW4, 1)
    e.salu("s_add_u32", sT0, sT0, 18)
    e.salu("s_mul_i32", sWl, sT0, 32 * 896)
    e.salu("s_add_u32", sWl, sWl, sWoff)
    e.salu("s_lshl_b32", sHl, sT0, 11)
    e.salu("s_mul_i32", sHoff, sMt64, 2 * H_MT_STRIDE)
    e.salu("s_mul_i32", sT0, sW4, 6 * 2048)
    e.salu("s_add_u32", sHoff, sHoff, sT0)
    e.salu("s_add_u32", sHoff, sHoff, HF)
    e.salu("s_add_u32", sHl, sHl, sHoff)
    e.valu("v_lshrrev_b32", vX1, 5, lane)
    e.valu("v_bfe_u32", vX0, lane, 2, 2)
    e.valu("v_lshl_add_u32", vX0, vX1, 2, vX0)
    e.valu("v_bfe_u32", vX2, lane, 4, 1)
    e.valu("v_lshlrev_b32", vX2, 5, vX2)
    e.valu("v_and_b32", vX1, 3, lane)
    e.valu("v_lshl_add_u32", vX2, vX1, 3, vX2)
    e.valu("v_lshl_add_u32", vX2, vX0, 7, vX2)
    e.valu("v_bfe_u32", vX1, lane, 3, 1)
    e.valu("v_lshl_add_u32", vTr[0], vX1, 6, vX2)
    e.valu("v_xor_b32", vTr[1], 64, vTr[0])
    e.valu("v_add_u32", vTr[0], sLdsW, vTr[0])
    e.valu("v_add_u32", vTr[1], sLdsW, vTr[1])
    e.valu("v_add_u32", vRw, sLdsW, vLane16)
    e.salu("s_lshl_b32", sT0, sW4, 12)
    e.salu("s_add_u32", sT0, sT0, WR)
    e.valu("v_add_u32", vRr, sT0, vLane16)
    e.salu("s_lshr_b32", sT0, sMt64, 1)
    e.valu("v_and_b32", vX0, 15, lane)
    e.valu("v_lshl_add_u32", vF2, vX0, 4, sT0)
    e.valu("v_lshlrev_b32", vF2, 7, vF2)


def helper_loop(e, gemm, dma_KV, sMt64, sNt, sLdsW, sWoff, sHoff, sHoff1):
    lane = vLane
    g = int(gemm)
    ND = 4
    ACC = [[V(80, 16), V(96, 16)], [V(112, 16), V(128, 16)]]
    def HF_(s, st, t): return V(16 + ((s % ND) * 4 + st * 2 + t) * 4, 4)
    def WF(st, u): return V(144 + (st * 2 + u) * 4, 4)
    vW = [V(2), V(3), V(4), V(5)]
    vTr = [V(6), V(7)]
    vRw, vRr, vF2 = V(11), V(12), V(13)
    sWl, sHl = S(42), S(43)
    def dma_Wo(q):
        if q == 0:
            srd(e, sWo, KO, 448 * 896)
        e.salu("s_mul_i32", sT1, sW4, 32 * 896)
        e.salu("s_lshl_b32", sT0, sNt, 7)
        e.salu("s_add_u32", sT1, sT1, sT0)
        e.salu("s_lshl_b32", sT2, sW4, 12)
        e.salu("s_add_u32", "m0", sT2, q * 16384)
        e.salu("s_add_u32", sT0, sT1, q * 128 * 896)
        for i in range(4):
            e.buf_load_lds(vW[i], sWo, sT0, offset=i * 1024, tag="Wo")

    def W_ops(s):
        def w(i):
            if i == 0:
                e.salu("s_add_u32", "m0", sLdsW, (s % ND) * 4096)
                e.salu("s_add_u32", sT2, sWoff if s < 6 else sWl, s * 32 * 896)
            e.buf_load_lds(vW[i], sWd, sT2, offset=i * 1024, tag=("W", s))
        return [lambda i=i: w(i) for i in range(4)]

    def H_ops(s):
        def h(st, t):
            e.salu("s_add_u32", sT1, sHoff if s < 6 else sHl, s * 2048 + t * H_MT_STRIDE)
            e.buf_load(HF_(s, st, t), vLane16, sWS, sT1, offset=st * 1024, flags=LDF)
        return [lambda st=st, t=t: h(st, t) for st in range(2) for t in range(2)]

    def compute(s, side):
        e.wait_vm_tag(("W", s))
        for st in range(2):
            for u in range(2):
                for j in range(2):
                    e.ds_read("ds_read_b64_tr_b16", WF(st, u)[2 * j:2 * j + 2], vTr[u],
                              offset=(s % ND) * 4096 + st * 2048 + j * 1024)
        if side: side.pop(0)()
        for st in range(2):
            for u in range(2):
                for t in range(2):
                    e.mfma(ACC[u][t], WF(st, u), HF_(s, st, t), 0 if (s == 0 and st == 0) else None)
                    if side: side.pop(0)()

    P2 = POLL2
    comp = {C0 + s: [s] for s in range(6)}
    late = list(range(6, 14 - DEFER))
    i0 = max(P2 + 2, C0 + 6)
    LASTI = 15 if FUSE3 else 14
    for i in range(i0, LASTI):
        left = LASTI - i
        k = -(-len(late) // left) if len(late) > left and i >= 12 else 1
        comp.setdefault(i, [])
        comp[i] += late[:k]; late = late[k:]
    assert not late, late
    done_at = {s: i for i, l in comp.items() for s in l}
    todo = [(s, k) for s in range(14) for k in ("H", "W")]

    def check(name, base, nl):
        e.valu("v_cmp_ne_u32", "vcc", sNonce, V(8))
        e.nop(1)
        e.raw(f"s_and_b32 s33, vcc_lo, {hex((1 << nl) - 1)}")
        e.raw(f"s_cbranch_scc0 {name}ok")
        keep = list(e.vm)
        e.salu("s_mov_b32", sT0, base)
        poll(e, name, vF2, sWS, sT0, nl, V(8), sNonce)
        e.label(name + "ok")
        e.vm = keep
        e.last = {}

    e.wait_vm_tag(("KV", 1))
    e.stamp(2)
    e.barrier()
    for i in range(16):
        if i in (4, 8, 12): e.stamp(2 + i // 4)
        if i + 3 <= 15:
            dma_KV(i + 3)
        if i == 2:
            flag_store(e, F2)
        if i == 3 and gemm:
            e.valu("v_mov_b32", V(248), SIG + 64)
            e.valu("v_not_b32", V(247), sNonce)
            e.ds_write("ds_write_b32", V(248), V(247))
        if gemm:
            if i in (C0 - 2, P2 - 1):
                e.salu("s_mov_b32", sT0, F1B if i == C0 - 2 else F2)
                e.buf_load(V(8), vF2, sWS, sT0, offset=0, flags=" sc1")
            if i == C0 - 1:
                check("L_k12_p1b", F1B, 12)
            if i == P2:
                e.stamp(10)
                check("L_k12_p2", F2, 16)
                e.stamp(11)
            side = []
            budget = (3 if i < 13 else 4) if not DEFER else BUD
            for (s, k) in list(todo):
                if budget == 0: break
                ok = (s < ND or done_at[s - ND] < i) and not (k == "H" and (i < C0 - 1 or (s >= 6 and i < P2))) and not (k == "W" and s >= 2 and i < 1)
                if ok:
                    side += H_ops(s) if k == "H" else W_ops(s)
                    todo.remove((s, k)); budget -= 1
            for s in comp.get(i, []):
                compute(s, side)
            while side: side.pop(0)()
            if i == LASTI and not DEFER:
                assert not todo
                for u in range(2):
                    for t in range(2):
                        for j in range(4):
                            e.ds_write("ds_write_b128", vRw, ACC[u][t][4 * j:4 * j + 4],
                                       offset=(t * 2 + u) * 4096 + j * 1024)
                e.wait_lg_all()
                if not FUSE3: e.raw("s_setprio 2")
            if i == 15 and not FUSE3:
                X = [V(16 + 16 * w, 16) for w in range(4)]
                for w in range(4):
                    for j in range(4):
                        e.ds_read("ds_read_b128", X[w][4 * j:4 * j + 4], vRr, offset=w * 16384 + j * 1024)
                for r in range(16):
                    e.valu("v_add_f32", X[0][r], X[0][r], X[1][r])
                    e.valu("v_add_f32", X[2][r], X[2][r], X[3][r])
                for r in range(16):
                    e.valu("v_add_f32", X[0][r], X[0][r], X[2][r])
                for j in range(8):
                    e.valu("v_cvt_pk_bf16_f32", X[1][j], X[0][2 * j], X[0][2 * j + 1])
                e.salu("s_lshr_b32", sT0, sW4, 1)
                e.salu("s_lshl_b32", sT1, sMt64, 1)
                e.salu("s_add_u32", sT0, sT0, sT1)
                e.salu("s_mul_i32", sT0, sT0, 14)
                e.salu("s_and_b32", sT1, sW4, 1)
                e.salu("s_add_u32", sT0, sT0, sT1)
                e.salu("s_lshl_b32", sT1, sNt, 1)
                e.salu("s_add_u32", sT0, sT0, sT1)
                e.salu("s_lshl_b32", sT0, sT0, 11)
                e.salu("s_add_u32", sT0, sT0, BF)
                e.buf_store(X[1][0:4], vLane16, sWS, sT0, offset=0, flags=STF)
                e.buf_store(X[1][4:8], vLane16, sWS, sT0, offset=1024, flags=STF)
        if i + 2 <= 15:
            e.wait_vm_tag(("KV", i + 2))
        if i == 13 and not FUSE3:
            srd(e, sWo, KO, 448 * 896)
            e.salu("s_lshl_b32", sT0, sIdx, 2)
            e.salu("s_add_u32", sT0, sT0, sW4)
            e.salu("s_mul_i32", sT0, sT0, 25 * 128)
            e.valu("v_min_u32", vX0, 24, lane)
            e.valu("v_lshlrev_b32", vX0, 7, vX0)
            e.buf_load(V(10), vX0, sWo, sT0, offset=0)
        if FUSE3 and gemm and i >= 13:
            dma_Wo(i - 13)
        if i < 15 or FUSE3:
            e.barrier()
    if FUSE3:
        sHead, sQblk = S(29), S(30)
        e.barrier()
        if gemm:
            assert not todo
            dma_Wo(3)
        if R1B: e.barrier()
        if gemm:
            dl = list(range(14 - DEFER, 14))
            for s_ in dl[:DSPLIT]:
                compute(s_, [])
            e.wait_vm_all()
        e.raw("s_setprio 3")
        e.barrier()
        flag_store(e, F3, sQblk, sHead)
        if gemm and DEFER:
            for s_ in dl[DSPLIT:]:
                compute(s_, [])
            e.salu("s_lshr_b32", sT0, sMt64, 1)
            e.salu("s_lshl_b32", sT0, sT0, 11)
            e.salu("s_add_u32", sT0, sT0, F3)
            e.valu("v_and_b32", vF2, 15, lane)
            e.valu("v_lshlrev_b32", vF2, 7, vF2)
            e.salu("s_mov_b32", sT1, "0x40000000")
            e.salu("s_cmp_eq_u32", sW4, 1)
            e.salu("s_cselect_b32", sT0, sT0, sT1)
            for u in range(2):
                for t in range(2):
                    if (u, t) == PLOOK:
                        e.buf_load(V(15), vF2, sWS, sT0, offset=0, flags=" sc1")
                    for j in range(4):
                        e.ds_write("ds_write_b128", vRw, ACC[u][t][4 * j:4 * j + 4],
                                   offset=(t * 2 + u) * 4096 + j * 1024)
            e.wait_lg_all()
            e.barrier()
        if not gemm:
            e.salu("s_sub_u32", sT0, S(2), sW4)
            e.salu("s_cmp_lg_u32", sT0, 255)
            e.raw("s_cbranch_scc1 L_k12_nadv")
            e.valu("v_lshlrev_b32", vF2, 7, lane)
            for j in range(4):
                e.salu("s_mov_b32", sT0, F2 + j * 8192)
                poll(e, f"L_k12_pc{j}", vF2, sWS, sT0, 64, V(15), sNonce)
            e.salu("s_mov_b32", sT0, NONCE)
            e.raw("s_mov_b64 exec, 1")
            e.buf_store(V(9), V(249), sWS, sT0, offset=0, flags=" sc1")
            e.raw("s_mov_b64 exec, -1")
            e.label("L_k12_nadv")
        if gemm:
            if not S1ST: e.stamp(6, True)
            e.salu("s_lshr_b32", sT0, sMt64, 1)
            e.salu("s_lshl_b32", sT0, sT0, 11)
            e.salu("s_add_u32", sT0, sT0, F3)
            e.valu("v_lshlrev_b32", vF2, 7, lane)
            e.raw(f"v_mov_b32 v8, {SIG + 64}")
            e.salu("s_cmp_lg_u32", sW4, 1)
            e.raw("s_cbranch_scc1 L_k12_w3")
            if DEFER:
                e.raw("s_waitcnt vmcnt(0)")
                e.raw(f"v_cmp_ne_u32 vcc, {sNonce}, v15")
                e.nop(1)
                e.raw("s_and_b32 s33, vcc_lo, 0xffff")
                e.raw("s_cbranch_scc0 L_k12_p3sig")
            poll(e, "L_k12_p3", vF2, sWS, sT0, 16, V(15), sNonce)
            e.label("L_k12_p3sig")
            e.raw(f"v_mov_b32 v9, {sNonce}")
            e.raw("ds_write_b32 v8, v9")
            e.raw("s_branch L_k12_p3ok")
            e.label("L_k12_w3")
            e.salu("s_mov_b32", sT2, 0)
            e.label("L_k12_w3b")
            e.raw("ds_read_b32 v9, v8")
            e.salu("s_add_u32", sT2, sT2, 1)
            e.raw("s_waitcnt lgkmcnt(0)")
            e.raw("v_readfirstlane_b32 s33, v9")
            e.salu("s_cmp_gt_u32", sT2, SPIN * 16)
            e.raw("s_cbranch_scc1 L_k12_p3ok")
            e.raw(f"s_cmp_eq_u32 s33, {sNonce}")
            e.raw("s_cbranch_scc1 L_k12_p3ok")
            e.raw("s_sleep 1")
            e.raw("s_branch L_k12_w3b")
            e.label("L_k12_p3ok")
            e.vm, e.last = [], {}
            if not S1ST: e.stamp(7, True)
            e.salu("s_lshr_b32", sT0, sW4, 1)
            e.salu("s_lshl_b32", sT0, sT0, 15)
            e.salu("s_and_b32", sT1, sW4, 1)
            e.salu("s_lshl_b32", sT1, sT1, 12)
            e.salu("s_add_u32", sT2, sT0, sT1)
            e.salu("s_lshl_b32", sT1, sMt64, 16)
            e.salu("s_add_u32", sT1, sT1, sT2)
            e.salu("s_add_u32", sT1, sT1, OF)
            for c in range(4):
                e.salu("s_add_u32", "m0", sT2, OREG + c * 8192)
                e.salu("s_add_u32", sT0, sT1, c * 8192)
                for i in range(4):
                    e.buf_load_lds(vLane16, sWS, sT0, offset=i * 1024, tag=("O", c), flags=LDF)
                if c >= OLEAD:
                    e.wait_vm_tag(("O", c - OLEAD))
                    e.barrier()
            for c in range(4 - OLEAD, 4):
                e.wait_vm_tag(("O", c))
                e.barrier()
    e.stamp(9); e.stamp(13, True)
    e.dump_stamps(sWS, 0, sWave)


K12_DESC = dict(name=KNAME, vgpr=256, acc=256, sgpr=96, grid=256, block=512, lds=LDS)
```

```python
from emit import *
from layout import *
import os
import struct

ROT1 = int(os.environ.get('ROT1', '1'))
STF = ' sc1'
LDF = ' sc1'
EB1 = int(os.environ.get('EB1', '3'))
N1 = int(os.environ.get('N1', '13'))
N1B = int(os.environ.get('N1B', '17'))
N1X = int(os.environ.get('N1X', '9'))
PRE = int(os.environ.get('PRE', '1'))
QANY = int(os.environ.get('QANY', '1'))
PRES = eval(os.environ.get('PRES', '(4, 24, 44)'))
C0 = int(os.environ.get('C0', '2'))
POLL2 = int(os.environ.get('POLL2', '6'))
SPIN = 1 << 17
EAGER = int(os.environ.get('EAGER', '0'))
R1B = int(os.environ.get('R1B', '0'))
L2PF = int(os.environ.get('L2PF', '1'))
CODEPF = int(os.environ.get('CODEPF', '2'))
XORD = int(os.environ.get('XORD', '0'))
EARLYP = int(os.environ.get('EARLYP', '1'))
MAP = int(os.environ.get('MAP', '0'))
DSPLIT = int(os.environ.get('DSPLIT', '0'))
BUD = int(os.environ.get('BUD', '2'))
DEFER = int(os.environ.get('DEFER', '4'))
S1ST = int(os.environ.get('S1ST', '0'))
TPRIO = int(os.environ.get('TPRIO', '0'))
WSL = int(os.environ.get('WSL', '2'))
LP0 = int(os.environ.get('LP0', '99'))
OLEAD = int(os.environ.get('OLEAD', '3'))
FUSE3 = int(os.environ.get('FUSE3', '1'))
KOUT = 92
KNAME = "gated_mix__softmax_full_mha__swiglu_ffn__prompt_kernel" if FUSE3 else "k12_kernel"
sOut = S(12, 4)
SLEEP = int(os.environ.get('SLEEP', '4'))
HPRIO = int(os.environ.get('HPRIO', '0'))

LOG2E = 1.4426950408889634
QSCALE = (28 ** -0.5) * LOG2E
L_LO = 2.0 ** -50
L_HI = 2.0 ** 60


def f2u(x):
    return struct.unpack("<I", struct.pack("<f", x))[0]


sX, sWg, sWu, sWq, sWS = S(4, 4), S(8, 4), S(12, 4), S(16, 4), S(20, 4)
sWd, sGw, sDbg, sWo = S(64, 4), S(60, 4), S(44, 4), S(8, 4)
sWave, sMblk, sCg, sW4 = S(24), S(25), S(26), S(28)
sT0, sT1, sT2 = S(32), S(33), S(31)
sRot = S(3)
sXcd, sIdx = S(68), S(69)
KX, KQ, KO, KG, KU, KD, KGW, KDBG, KWS = 72, 74, 76, 80, 82, 84, 86, 88, 90

BR = 114688
OREG = 0 if DEFER else 65536
PLOOK = eval(os.environ.get('PLOOK', '(0, 0)'))
WR = 65536
QL = 65536 + 8192
SIG = 131072
SIG1 = 49152
ARED = 147456
LDS = 163840
vX0, vX1, vX2, vLane, vLane16 = V(250), V(251), V(252), V(253), V(254)


def chunk_seq(typeY):
    if XORD == 2:
        seq = eval(os.environ.get('SEQ', '[(1, 0), (1, 1), (0, 0), (1, 2), (1, 3), (0, 1), (1, 4), (1, 5), (1, 6), (0, 2), (0, 3)]'))
    elif typeY or XORD:
        seq = [(1, c) for c in range(7)] + [(0, j) for j in range(4)]
    else:
        seq = [(0, j) for j in range(4)] + [(1, c) for c in range(7)]
    return seq + [(2, c) for c in range(7)]


def srd(e, s, lo, size):
    e.salu("s_mov_b32", s[0], S(lo))
    e.salu("s_mov_b32", s[1], S(lo + 1))
    e.salu("s_mov_b32", s[2], size)
    e.salu("s_mov_b32", s[3], "0x20000")


def gen_k12(e):
    e.label(KNAME)
    e.salu("s_cmp_ge_u32", S(2), 256)
    e.raw("s_cbranch_scc1 L_k12_end")
    e.s_load(S(72, 4), S(0, 2), 0)
    e.s_load(S(76, 2), S(0, 2), 16)
    e.s_load(S(80, 8), S(0, 2), 32)
    e.s_load(S(88, 4), S(0, 2), 72)
    e.s_load(S(92, 2), S(0, 2), 64)
    if CODEPF == 2:
        e.raw("s_getpc_b64 s[52:53]")
        e.label("L_k12_pc")
        e.salu("s_lshl_b32", sT0, S(2), 11)
        e.salu("s_and_b32", sT0, sT0, "0xc000")
        e.valu("v_lshlrev_b32", vX0, 5, V(0))
        e.valu("v_add_u32", vX0, sT0, vX0)
        e.raw(f"v_min_u32 {vX0}, L_code_end-L_k12_pc-4, {vX0}")
        e.raw(f"v_mov_b32 {vX2}, s53")
        e.raw(f"v_add_co_u32 {vX0}, vcc, s52, {vX0}")
        e.raw("s_nop 1")
        e.raw(f"v_addc_co_u32 {vX1}, vcc, 0, {vX2}, vcc")
        e.raw(f"global_load_dword v246, v[{vX0.lo}:{vX1.lo}], off")
    e.salu("s_and_b32", sXcd, S(2), 7)
    e.salu("s_lshr_b32", sIdx, S(2), 3)
    if MAP == 0:
        e.salu("s_and_b32", sMblk, sXcd, 1)
        e.salu("s_lshl_b32", sMblk, sMblk, 3)
        e.salu("s_and_b32", sRot, sIdx, 7)
        e.salu("s_add_u32", sMblk, sMblk, sRot)
        e.salu("s_lshr_b32", sT0, sXcd, 1)
        e.salu("s_lshr_b32", sT1, sIdx, 3)
        e.salu("s_mul_i32", sCg, sT0, 3)
        e.salu("s_add_u32", sCg, sCg, sT1)
        e.salu("s_add_u32", sT0, sT0, 12)
        e.salu("s_cmp_eq_u32", sT1, 3)
        e.salu("s_cselect_b32", sCg, sT0, sCg)
        if ROT1:
            e.salu("s_lshl_b32", sT1, sT1, 1)
            e.salu("s_add_u32", sRot, sRot, sT1)
            e.salu("s_sub_u32", sT0, sRot, 7)
            e.salu("s_cmp_ge_u32", sRot, 7)
            e.salu("s_cselect_b32", sRot, sT0, sRot)
    else:
        e.salu("s_and_b32", sMblk, sXcd, 3)
        e.salu("s_lshl_b32", sMblk, sMblk, 2)
        e.salu("s_and_b32", sRot, sIdx, 3)
        e.salu("s_add_u32", sMblk, sMblk, sRot)
        e.salu("s_lshr_b32", sT0, sXcd, 2)
        e.salu("s_lshr_b32", sT1, sIdx, 2)
        e.salu("s_mul_i32", sCg, sT0, 6)
        e.salu("s_add_u32", sCg, sCg, sT1)
        e.salu("s_lshl_b32", sT0, sT0, 1)
        e.salu("s_add_u32", sT0, sT0, sT1)
        e.salu("s_add_u32", sT0, sT0, 6)
        e.salu("s_cmp_ge_u32", sT1, 6)
        e.salu("s_cselect_b32", sCg, sT0, sCg)
        e.salu("s_lshl_b32", sRot, sRot, 1)
        e.salu("s_add_u32", sRot, sRot, sT1)
        e.salu("s_sub_u32", sT0, sRot, 7)
        e.salu("s_cmp_ge_u32", sRot, 7)
        e.salu("s_cselect_b32", sRot, sT0, sRot)
    if ROT1:
        pass
    else:
        e.salu("s_mov_b32", sRot, 0)
    e.valu("v_lshrrev_b32", vX0, 6, V(0))
    e.valu("v_and_b32", vLane, 63, V(0))
    e.valu("v_readfirstlane_b32", sWave, vX0)
    e.valu("v_lshlrev_b32", vLane16, 4, vLane)
    e.salu("s_and_b32", sW4, sWave, 3)
    e.salu("s_cmp_lt_u32", sWave, 4)
    e.raw("s_cbranch_scc1 L_k12_heavy")
    saved = list(e.lg)

    def reset():
        e.lg, e.vm, e.last, e.smem_pending = list(saved), [], {}, True
    e.raw("s_setprio 3")
    e.stamp(12, True)
    e.salu("s_cmp_ge_u32", sCg, 12)
    e.raw("s_cbranch_scc1 L_k12_loadY")
    e.flush_hazards()
    gen_loader1(e, False)
    e.raw("s_branch L_k12_help2")
    e.label("L_k12_loadY")
    reset()
    gen_loader1(e, True)
    e.label("L_k12_help2")
    e.lg, e.vm, e.last = [], [], {}
    gen_helper2(e)
    e.label("L_k12_heavy")
    reset()
    if CODEPF == 1:
        e.raw("s_getpc_b64 s[52:53]")
        e.label("L_k12_pc")
        e.salu("s_lshl_b32", sT0, sIdx, 2)
        e.salu("s_add_u32", sT0, sT0, sW4)
        e.salu("s_mul_i32", sT0, sT0, 3 * 128)
        e.raw(f"s_sub_u32 s52, s52, L_k12_pc-{KNAME}")
        e.raw("s_subb_u32 s53, s53, 0")
        e.valu("v_min_u32", vX0, 2, vLane)
        e.valu("v_lshlrev_b32", vX0, 7, vX0)
        e.valu("v_add_u32", vX0, sT0, vX0)
        e.raw(f"v_min_u32 {vX0}, L_code_end-{KNAME}-4, {vX0}")
        e.raw(f"v_mov_b32 {vX2}, s53")
        e.raw(f"v_add_co_u32 {vX0}, vcc, s52, {vX0}")
        e.raw("s_nop 1")
        e.raw(f"v_addc_co_u32 {vX1}, vcc, 0, {vX2}, vcc")
        e.raw(f"global_load_dword v246, v[{vX0.lo}:{vX1.lo}], off")
    e.salu("s_cmp_ge_u32", sCg, 12)
    e.raw("s_cbranch_scc1 L_k12_compY")
    gen_compute1(e, False)
    e.raw("s_branch L_k12_attn")
    e.label("L_k12_compY")
    reset()
    gen_compute1(e, True)
    e.label("L_k12_attn")
    e.lg, e.vm, e.last = [], [], {}
    e.nop(2)
    gen_attn(e)
    e.label("L_k12_end")
    e.raw("s_endpgm")


sNonce = S(27)


def poll(e, name, vaddr, srd_, soff, nlanes, vtmp, cmp_s):
    mask = (1 << nlanes) - 1
    e.wait_lg_all()
    e.raw(f"s_mov_b32 exec_lo, {hex(mask & 0xffffffff)}")
    e.raw(f"s_mov_b32 exec_hi, {hex(mask >> 32)}")
    e.salu("s_mov_b32", sT2, 0)
    e.label(name)
    e.raw(f"buffer_load_dword {vtmp}, {vaddr}, {srd_}, {soff} offen sc1")
    e.salu("s_add_u32", sT2, sT2, 1)
    e.raw("s_waitcnt vmcnt(0)")
    e.raw(f"v_cmp_ne_u32 vcc, {cmp_s}, {vtmp}")
    e.salu("s_cmp_gt_u32", sT2, SPIN)
    e.raw(f"s_cbranch_scc1 {name}_out")
    e.raw("s_and_b64 exec, exec, vcc")
    e.raw(f"s_cbranch_scc0 {name}_out")
    if SLEEP: e.raw(f"s_sleep {SLEEP}")
    e.raw(f"s_branch {name}")
    e.label(name + "_out")
    e.raw("s_mov_b64 exec, -1")
    e.vm = []
    e.last = {}


def flag_store(e, base, hi=None, lo=None):
    e.salu("s_lshl_b32", sT0, hi or sCg, 4)
    e.salu("s_add_u32", sT0, sT0, lo or sMblk)
    e.salu("s_lshl_b32", sT0, sT0, 7)
    e.salu("s_add_u32", sT0, sT0, base)
    e.salu("s_min_u32", sT1, sW4, 1)
    e.salu("s_lshl_b32", sT1, sT1, 19)
    e.salu("s_add_u32", sT0, sT0, sT1)
    e.valu("v_mov_b32", V(9), sNonce)
    e.valu("v_mov_b32", V(249), 0)
    e.raw("s_mov_b64 exec, 1")
    e.buf_store(V(9), V(249), sWS, sT0, offset=0, flags=" sc1")
    e.raw("s_mov_b64 exec, -1")


def gen_loader1(e, typeY):
    ty = int(typeY)
    lane = vLane
    vA = [V(1), V(2), V(3), V(4)]
    vB = [V(5), V(6)]
    vB2 = [V(7), V(8)]
    vGa = V(13)
    vG = V(16, 7)
    sAoff, sB0, sQo, sVo = S(29), S(30), S(34), S(48)
    sLA, sLB = S(35), S(36)
    sCh = [S(37 + i) for i in range(7)]
    e.valu("v_lshrrev_b32", vX0, 3, lane)
    e.valu("v_and_b32", vX1, 7, lane)
    e.valu("v_lshrrev_b32", vX2, 1, vX0)
    e.valu("v_xor_b32", vX2, vX2, vX1)
    e.valu("v_mul_u32_u24", vA[0], 896, vX0)
    e.valu("v_lshl_add_u32", vA[0], vX2, 4, vA[0])
    e.valu("v_xor_b32", vA[1], 64, vA[0])
    e.valu("v_add_u32", vA[2], 2 * 6144, vA[0])
    e.valu("v_add_u32", vA[3], 3 * 6144, vA[1])
    e.valu("v_add_u32", vA[1], 6144, vA[1])
    e.valu("v_bfe_u32", vX1, lane, 2, 1)
    e.valu("v_bfe_u32", vX2, lane, 4, 1)
    e.valu("v_xor_b32", vX1, vX1, vX2)
    e.valu("v_and_b32", vX2, 3, lane)
    for vv, l_, us in ((vB, 3584, 64), (vB2, 2688, 56)):
        e.valu("v_mul_u32_u24", vv[0], l_, vX0)
        e.valu("v_mul_u32_u24", vv[1], us, vX1)
        e.valu("v_add_u32", vv[0], vv[0], vv[1])
        e.valu("v_lshl_add_u32", vv[0], vX2, 4, vv[0])
        e.valu("v_add_u32", vv[1], 8 * l_ - 1024, vv[0])
    e.salu("s_lshl_b32", sT0, sMblk, 2)
    e.salu("s_add_u32", sT0, sT0, sW4)
    e.salu("s_mul_i32", sAoff, sT0, 32 * 896)
    e.salu("s_mul_i32", sT0, sW4, 16 * 3584)
    e.salu("s_lshl_b32", sB0, sCg, 7)
    e.salu("s_add_u32", sB0, sB0, sT0)
    e.salu("s_mul_i32", sT0, sW4, 16 * 2688)
    e.salu("s_mul_i32", sQo, sCg, 112)
    e.salu("s_add_u32", sQo, sQo, sT0)
    if typeY:
        e.salu("s_mul_i32", sVo, sCg, 224)
        e.salu("s_add_u32", sVo, sVo, sT0)
        e.salu("s_sub_u32", sVo, sVo, 12 * 224 - 1792)
    e.salu("s_lshl_b32", sLA, sW4, 12)
    e.salu("s_lshl_b32", sLB, sW4, 11)
    e.salu("s_add_u32", sLB, sLB, BR)
    e.salu("s_mov_b32", sCh[0], sRot)
    for c in range(1, 7):
        e.salu("s_add_u32", sCh[c], sCh[c - 1], 1)
        e.salu("s_cmp_eq_u32", sCh[c], 7)
        e.salu("s_cselect_b32", sCh[c], 0, sCh[c])
    e.wait_lg_all()
    srd(e, sX, KX, 2048 * 896)
    srd(e, sWg, KG, 448 * 3584)
    srd(e, sWu, KU, 448 * 3584)
    srd(e, sWq, KQ, 448 * 2688)

    ff = typeY or XORD
    pair0 = 7 if ff else 0

    adone = set()

    def dmaA(c, n):
        if c in adone or c > 6:
            return
        adone.add(c)
        e.salu("s_lshl_b32", sT0, sCh[c], 7)
        e.salu("s_add_u32", "m0", sLA, c * 16384)
        e.salu("s_add_u32", sT0, sT0, sAoff)
        for i in range(4):
            e.buf_load_lds(vA[i], sX, sT0, offset=i * 1024, tag=("C", n))

    seq = chunk_seq(typeY)

    def dmaB(n):
        sl = (n % 3) * 16384
        kind, ix = seq[n]
        if kind == 0:
            for r in range(2):
                c = 2 * ix + r
                if c < 7:
                    if not ff: dmaA(c, n)
                    e.salu("s_mul_i32", sT1, sCh[c], 64 * 2688)
                    e.salu("s_add_u32", "m0", sLB, sl + r * 8192)
                    e.salu("s_add_u32", sT0, sQo, sT1)
                    for i in range(2):
                        e.buf_load_lds(vB2[i], sWq, sT0, offset=i * 1024, tag=("C", n))
        elif kind == 1 and typeY:
            dmaA(ix, n)
            e.salu("s_mul_i32", sT1, sCh[ix], 64 * 2688)
            for r in range(2):
                e.salu("s_add_u32", "m0", sLB, sl + r * 8192)
                e.salu("s_add_u32", sT1, sT1, sVo if r == 0 else 112)
                for i in range(2):
                    e.buf_load_lds(vB2[i], sWq, sT1, offset=i * 1024, tag=("C", n))
        else:
            if ff and kind == 1: dmaA(ix, n)
            e.salu("s_mul_i32", sT1, sCh[ix], 64 * 3584)
            e.salu("s_add_u32", sT1, sT1, sB0)
            if kind == 2: e.salu("s_add_u32", sT1, sT1, 12 * 128)
            for r in range(2):
                e.salu("s_add_u32", "m0", sLB, sl + r * 8192)
                e.nop(1)
                for i in range(2):
                    e.buf_load_lds(vB[i], (sWg, sWu)[r], sT1, offset=i * 1024, tag=("C", n))

    def land(n):
        e.wait_vm_tag(("C", n))
        kind, ix = seq[n]
        if not typeY and kind == 0:
            e.raw("s_mov_b64 exec, 0xffff")
            for r in range(2):
                c = 2 * ix + r
                if c < 7:
                    e.ds_write("ds_write_b16", vGa, vG[c], offset=(n % 3) * 16384 + r * 8192)
            e.raw("s_mov_b64 exec, -1")
            e.wait_lg_all()

    dmaB(0)
    if not typeY:
        srd(e, sGw, KGW, 896)
        e.valu("v_and_b32", vX0, 15, lane)
        e.valu("v_lshlrev_b32", vX1, 1, vX0)
        e.salu("s_lshl_b32", sT0, sW4, 5)
        e.salu("s_lshl_b32", sT2, sCg, 12)
        e.salu("s_add_u32", sT0, sT0, sT2)
        for c in range(7):
            e.salu("s_lshl_b32", sT2, sCh[c], 7)
            e.salu("s_add_u32", sT2, sT2, sT0)
            e._issue(f"buffer_load_ushort {vG[c]}, {vX1}, {sGw}, {sT2} offen", "vmem", vX1.regs() + sGw.regs() + sT2.regs(), vG[c].regs())
            e.vm.append((-1, set(vG[c].regs()), "gw"))
        e.valu("v_lshlrev_b32", vGa, 7, vX0)
        e.valu("v_bfe_u32", vX1, lane, 1, 1)
        e.valu("v_lshl_add_u32", vGa, vX1, 6, vGa)
        e.valu("v_add_u32", vGa, sLB, vGa)
        e.valu("v_add_u32", vGa, 56, vGa)
    dmaB(1)
    srd(e, sWS, KWS, WS_USED)
    e.valu("v_mov_b32", V(12), 0)
    e.salu("s_mov_b32", sT0, NONCE)
    e.buf_load(V(11), V(12), sWS, sT0, offset=0, flags=" sc1")
    if EAGER:
        dmaB(2)
        for _ in range(EAGER - 1):
            dmaA(len(adone), "early")
    land(0)
    e.barrier()
    for n in range(16):
        if n == LP0: e.raw('s_setprio 0')
        if n + 2 < 18 and not (EAGER and n == 0):
            dmaB(n + 2)
        if EAGER:
            dmaA(len(adone), "early")
        if n == (N1 if ff else N1X):
            flag_store(e, F1)
            if S1ST: e.stamp(6, True)
        if n == 2:
            e.valu("v_readfirstlane_b32", sNonce, V(11))
            e.nop(1)
            e.salu("s_add_u32", sNonce, sNonce, "0x9e3779b9")
        if n == 15:
            vFl = V(14)
            e.salu("s_lshl_b32", sT0, sXcd, 4)
            e.salu("s_add_u32", sT1, sT0, 128)
            e.valu("v_add_u32", vFl, sT1, lane)
            e.salu("s_lshr_b32", sT1, sXcd, 1)
            e.salu("s_lshl_b32", sT1, sT1, 4)
            e.salu("s_add_u32", sT1, sT1, 192 - 16)
            e.valu("v_add_u32", vX0, sT1, lane)
            e.valu("v_cmp_le_u32", "vcc", 16, lane)
            e.valu("v_cndmask_b32", vFl, vFl, vX0)
            e.salu("s_and_b32", sT1, sIdx, 15)
            e.salu("s_add_u32", sT0, sT0, sT1)
            e.valu("v_mov_b32", vX0, sT0)
            e.valu("v_cmp_le_u32", "vcc", 32, lane)
            e.valu("v_cndmask_b32", vFl, vFl, vX0)
            e.valu("v_lshlrev_b32", vFl, 7, vFl)
        land(n + 1)
        e.barrier()


def gen_compute1(e, typeY):
    ty = int(typeY)
    lane = vLane
    sWm, sWn, sMt = S(29), S(30), S(34)
    sOutH, sOutV, sOutQK, sQKstr, sQKmul, sNL2E = S(35), S(48), S(36), S(37), S(38), S(39)
    sMask = S(40, 2)
    vAr = [[V(232 + i) for i in range(4)], [V(236 + i) for i in range(4)]]
    vTr = V(240)
    vMulHi, vVconst = V(241), V(242)
    TT = 220
    def ACC(p, r, t):
        if p == 0: return V(128 + 16 * t, 16)
        return V(64 * (p - 1) + 32 * r + 16 * t, 16)
    NBUF = 3
    def fA(n, t): return V(160 + (n % NBUF) * 16 + t * 4, 4)
    def fB(n, i): return V(160 + (n % NBUF) * 16 + 8 + i * 4, 4)
    e.salu("s_lshr_b32", sWm, sW4, 1)
    e.salu("s_and_b32", sWn, sW4, 1)
    e.salu("s_lshl_b32", sMt, sMblk, 1)
    e.salu("s_add_u32", sMt, sMt, sWm)
    e.salu("s_lshl_b32", sMt, sMt, 1)
    e.valu("v_and_b32", vX0, 31, lane)
    e.valu("v_lshrrev_b32", vX1, 5, lane)
    e.valu("v_bfe_u32", vX2, lane, 1, 3)
    e.valu("v_xor_b32", vX2, vX2, vX1)
    e.valu("v_lshlrev_b32", vX0, 7, vX0)
    e.salu("s_lshl_b32", sT0, sWm, 13)
    e.valu("v_add_u32", vX0, sT0, vX0)
    for k in range(4):
        e.valu("v_xor_b32", vAr[0][k], 2 * k, vX2)
        e.valu("v_lshl_add_u32", vAr[0][k], vAr[0][k], 4, vX0)
        e.valu("v_add_u32", vAr[1][k], 65536, vAr[0][k])
    e.valu("v_bfe_u32", vX0, lane, 2, 2)
    e.valu("v_lshl_add_u32", vX0, vX1, 3, vX0)
    e.valu("v_bfe_u32", vX2, lane, 4, 1)
    e.valu("v_lshlrev_b32", vX2, 5, vX2)
    e.valu("v_and_b32", vX1, 3, lane)
    e.valu("v_lshl_add_u32", vX2, vX1, 3, vX2)
    e.valu("v_lshl_add_u32", vX2, vX0, 7, vX2)
    e.valu("v_bfe_u32", vX1, lane, 3, 1)
    e.valu("v_xor_b32", vX1, sWn, vX1)
    e.valu("v_lshl_add_u32", vTr, vX1, 6, vX2)
    e.valu("v_add_u32", vTr, BR, vTr)
    e.salu("s_mov_b32", sNL2E, hex(f2u(-LOG2E)))
    e.salu("s_lshl_b32", sT2, sCg, 1)
    e.salu("s_add_u32", sT2, sT2, sWn)
    e.salu("s_mul_i32", sOutH, sMt, H_MT_STRIDE)
    e.salu("s_lshl_b32", sT1, sT2, 11)
    e.salu("s_add_u32", sOutH, sOutH, sT1)
    e.salu("s_add_u32", sOutH, sOutH, HF)
    if typeY:
        e.salu("s_sub_u32", sT1, sCg, 12)
        e.salu("s_lshl_b32", sT0, sT1, 2)
        e.salu("s_add_u32", sT0, sT0, sWn)
        e.salu("s_lshl_b32", sT0, sT0, 6)
        e.salu("s_add_u32", sT0, sT0, sMt)
        e.salu("s_lshl_b32", sOutV, sT0, 12)
        e.salu("s_add_u32", sOutV, sOutV, KVF + 2048)
    e.salu("s_and_b32", sT1, sT2, 15)
    e.salu("s_lshl_b32", sT1, sT1, 6)
    e.salu("s_add_u32", sT1, sT1, sMt)
    e.salu("s_cmp_lt_u32", sT2, 16)
    e.salu("s_cselect_b32", sQKstr, 11, 12)
    e.salu("s_cselect_b32", sOutQK, QF, KVF)
    e.salu("s_cselect_b32", sQKmul, hex(f2u(QSCALE)), 1.0)
    e.salu("s_lshl_b32", sQKstr, 1, sQKstr)
    e.salu("s_mul_i32", sT1, sT1, sQKstr)
    e.salu("s_add_u32", sOutQK, sOutQK, sT1)
    e.valu("v_cmp_gt_u32", "vcc", 32, lane)
    e.valu("v_mov_b32", vX0, sQKmul)
    e.valu("v_mov_b32", vX1, 0)
    e.valu("v_cndmask_b32", vMulHi, vX1, vX0)
    if typeY:
        e.valu("v_and_b32", vX0, 31, lane)
        e.valu("v_cmp_eq_u32", "vcc", 28, vX0)
        e.valu("v_mov_b32", vX2, "0x3f803f80")
        e.valu("v_cndmask_b32", vVconst, vX1, vX2)
        e.valu("v_cmp_le_u32", sMask, 28, vX0)
    e.wait_lg_all()
    srd(e, sWS, KWS, WS_USED)
    srd(e, sWd, KD, 1792 * 896)

    def epi_h(p, pk=False):
        ops = []
        for t in range(2):
            G, U = ACC(p, 0, t), ACC(p, 1, t)
            for hgrp in range(2):
                rs = list(range(8 * hgrp, 8 * hgrp + 8))
                T = V(TT, 8)
                if not pk:
                    for r in rs: ops.append((1, lambda r=r, G=G, T=T: e.valu("v_mul_f32", T[r % 8], sNL2E, G[r])))
                    for r in rs:
                        ops.append((2, lambda r=r, T=T: e.valu("v_exp_f32", T[r % 8], T[r % 8])))
                        ops.append((1, lambda r=r, G=G, U=U: e.valu("v_mul_f32", G[r], G[r], U[r])))
                    for r in rs: ops.append((1, lambda r=r, T=T: e.valu("v_add_f32", T[r % 8], 1.0, T[r % 8])))
                    for r in rs: ops.append((2, lambda r=r, T=T: e.valu("v_rcp_f32", T[r % 8], T[r % 8])))
                    for r in rs: ops.append((1, lambda r=r, G=G, T=T: e.valu("v_mul_f32", G[r], G[r], T[r % 8])))
                else:
                    C = V(228, 4)
                    for r in rs[::2]: ops.append((1, lambda r=r, G=G, T=T: e.valu("v_pk_mul_f32", T[r % 8:r % 8 + 2], G[r:r + 2], C[0:2])))
                    for r in rs:
                        ops.append((2, lambda r=r, T=T: e.valu("v_exp_f32", T[r % 8], T[r % 8])))
                        if r % 2: ops.append((1, lambda r=r, G=G, U=U: e.valu("v_pk_mul_f32", G[r - 1:r + 1], G[r - 1:r + 1], U[r - 1:r + 1])))
                    for r in rs[::2]: ops.append((1, lambda r=r, T=T: e.valu("v_pk_add_f32", T[r % 8:r % 8 + 2], T[r % 8:r % 8 + 2], C[2:4])))
                    for r in rs: ops.append((2, lambda r=r, T=T: e.valu("v_rcp_f32", T[r % 8], T[r % 8])))
                    for r in rs[::2]: ops.append((1, lambda r=r, G=G, T=T: e.valu("v_pk_mul_f32", G[r:r + 2], G[r:r + 2], T[r % 8:r % 8 + 2])))
                for i in range(4 * hgrp, 4 * hgrp + 4):
                    ops.append((1, lambda i=i, G=G, U=U: e.valu("v_cvt_pk_bf16_f32", U[i], G[2 * i], G[2 * i + 1])))
                def st(hgrp=hgrp, t=t, U=U):
                    e.salu("s_add_u32", sT1, sOutH, t * H_MT_STRIDE + (24 * 2048 if p == 2 else 0))
                    e.buf_store(U[4 * hgrp:4 * hgrp + 4], vLane16, sWS, sT1, offset=hgrp * 1024, flags=STF)
                ops.append((-2, st))
        return ops

    def epi_v():
        ops = []
        for r in range(2):
            for t in range(2):
                X = ACC(1, r, t)
                for hgrp in range(2):
                    for i in range(4 * hgrp, 4 * hgrp + 4):
                        ops.append((1, lambda i=i, X=X: e.valu("v_cvt_pk_bf16_f32", X[i], X[2 * i], X[2 * i + 1])))
                    for i in range(4 * hgrp, 4 * hgrp + 4):
                        ops.append((1, lambda i=i, X=X: e.valu("v_cndmask_b32", X[i], X[i], vVconst, sMask)))
                    def st(t=t, X=X, r=r, hgrp=hgrp):
                        e.salu("s_add_u32", sT1, sOutV, 2 * r * 64 * 4096 + t * 4096)
                        e.buf_store(X[4 * hgrp:4 * hgrp + 4], vLane16, sWS, sT1, offset=hgrp * 1024, flags=STF, tag="qkv")
                    st.qkv = True
                    ops.append((-2, st))
        return ops

    def epi_qk():
        ops = []
        for t in range(2):
            X = ACC(0, 0, t)
            if not typeY:
                ops.append((1, lambda t=t, X=X: e.valu("v_cvt_pk_bf16_f32", V(208 + t), X[12], X[12])))
            for r in range(16):
                if typeY and r < 12:
                    continue
                ops.append((1, lambda r=r, X=X: e.valu("v_mul_f32", X[r], sQKmul if r < 12 else vMulHi, X[r])))
            for hgrp in range(2):
                for i in range(4 * hgrp, 4 * hgrp + 4):
                    ops.append((1, lambda i=i, X=X: e.valu("v_cvt_pk_bf16_f32", X[i], X[2 * i], X[2 * i + 1])))
                def st(t=t, X=X, hgrp=hgrp):
                    if t == 1 and hgrp == 0:
                        e.salu("s_add_u32", sOutQK, sOutQK, sQKstr)
                    e.buf_store(X[4 * hgrp:4 * hgrp + 4], vLane16, sWS, sOutQK, offset=hgrp * 1024, flags=STF, tag="qkv")
                st.qkv = True
                ops.append((-2, st))
        if not typeY:
            for t in range(2):
                D = V(208 + t)
                Gv = V(210 + 2 * t, 2)
                for f in (("v_and_b32", D, "0xffff0000", D), ("v_mul_f32", D, sNL2E, D), ("v_exp_f32", D, D),
                          ("v_mov_b32", Gv[0], 0), ("v_add_f32", D, 1.0, D), ("v_rcp_f32", D, D), ("v_mov_b32", Gv[0], 0),
                          ("v_cvt_pk_bf16_f32", D, D, D),
                          ("v_and_b32", Gv[0], "0xffff0000", D), ("v_sub_f32", Gv[1], 1.0, Gv[0]),
                          ("v_cvt_pk_bf16_f32", Gv[1], Gv[1], Gv[1]), ("v_and_b32", Gv[1], "0xffff0000", Gv[1])):
                    ops.append((2 if f[0] in TRANS else 1, lambda f=f: e.valu(*f)))
            def stg():
                e.valu("v_lshlrev_b32", vX0, 3, lane)
                e.salu("s_lshl_b32", sT1, sMt, 8)
                e.salu("s_add_u32", sT1, sT1, GF - 256)
                e.salu("s_add_u32", sT0, sWn, sCg)
                e.salu("s_min_u32", sT0, sT0, 1)
                e.salu("s_lshl_b32", sT0, sT0, 15)
                e.salu("s_add_u32", sT1, sT1, sT0)
                e.raw("s_mov_b32 exec_lo, 0")
                e.buf_store(V(210, 2), vX0, sWS, sT1, offset=0, flags=STF, tag="qkv")
                e.buf_store(V(212, 2), vX0, sWS, sT1, offset=256, flags=STF, tag="qkv")
                e.raw("s_mov_b32 exec_lo, -1")
            stg.qkv = True
            ops.append((-2, stg))
        return ops

    ff = typeY or XORD
    seq = chunk_seq(typeY)
    steps = []
    for kind, ix in seq:
        if kind == 0: steps += [(0, ks) for ks in range(8 * ix, min(8 * ix + 8, 28))]
        else: steps += [(kind, ks) for ks in range(4 * ix, 4 * ix + 4)]
    def bchunk(p, ks):
        c, kk = ks // 4, ks % 4
        if p == 0: return seq.index((0, c // 2)), (c % 2) * 8192 + kk * 2048
        return seq.index((p, c)), kk * 2048
    first_kind = seq[0][0]
    def rd(n):
        p, ks = steps[n]
        c, kk = ks // 4, ks % 4
        bn, boff = bchunk(p, ks)
        ops = []
        for t in range(2):
            ops.append(lambda t=t: e.ds_read("ds_read_b128", fA(n, t), vAr[c >> 2][kk], offset=(c & 3) * 16384 + t * 4096, tag=("t", n)))
        for i in range(1 if p == 0 else 2):
            for j in range(2):
                ops.append(lambda i=i, j=j: e.ds_read("ds_read_b64_tr_b16", fB(n, i)[2 * j:2 * j + 2], vTr,
                                                      offset=(bn % 3) * 16384 + boff + i * 8192 + j * 512, tag=("t", n)))
        return ops

    def pre(stage):
        sTS = S(52, 4)
        e.salu("s_mov_b32", sTS[3], "0x20000")
        e.salu("s_mov_b32", sTS[2], 448 * 3584)
        if stage < 2:
            e.salu("s_and_b32", sT0, sW4, 1)
            e.salu("s_cmp_eq_u32", sT0, 0)
            e.salu("s_cselect_b32", sTS[0], S(KG), S(KU))
            e.salu("s_cselect_b32", sTS[1], S(KG + 1), S(KU + 1))
        if stage < 2 and L2PF:
            NR = 56 if MAP else 28
            e.salu("s_and_b32", sT1, sMblk, 3 if MAP else 7)
            e.salu("s_lshl_b32", sT1, sT1, 1)
            e.salu("s_lshr_b32", sT2, sW4, 1)
            e.salu("s_add_u32", sT1, sT1, sT2)
            e.valu("v_min_u32", vX0, NR - 1, lane)
            if stage == 0 and ff:
                e.salu("s_mov_b32", sTS[2], 448 * 2688)
                e.salu("s_mov_b32", sTS[0], S(KQ)); e.salu("s_mov_b32", sTS[1], S(KQ + 1))
                e.salu("s_mul_i32", sT1, sT1, NR * 2688)
                e.salu("s_mul_i32", sT0, sT0, 116)
                e.salu("s_add_u32", sT1, sT1, sT0)
                e.salu("s_mul_i32", sT0, sCg, 112)
                e.valu("v_mul_u32_u24", vX2, 2688, vX0)
            else:
                e.salu("s_mul_i32", sT1, sT1, NR * 3584)
                e.salu("s_lshl_b32", sT0, sCg, 7)
                if stage == 1: e.salu("s_add_u32", sT0, sT0, 12 * 128)
                e.valu("v_mul_u32_u24", vX2, 3584, vX0)
            e.salu("s_add_u32", sT1, sT1, sT0)
        elif stage == 0 and XORD:
            e.salu("s_mov_b32", sTS[2], 448 * 2688)
            e.salu("s_mov_b32", sTS[0], S(KQ)); e.salu("s_mov_b32", sTS[1], S(KQ + 1))
            e.salu("s_lshl_b32", sT1, S(2), 1)
            e.salu("s_add_u32", sT1, sT1, sT0)
            e.salu("s_mul_i32", sT1, sT1, 2688)
            e.salu("s_lshr_b32", sT0, sW4, 1)
            e.salu("s_mul_i32", sT0, sT0, 896)
            e.salu("s_add_u32", sT1, sT1, sT0)
            e.valu("v_min_u32", vX0, 6, lane)
            e.valu("v_lshlrev_b32", vX2, 7, vX0)
        elif stage == 0:
            e.salu("s_mul_i32", sT1, S(2), 21)
            e.valu("v_min_u32", vX0, 20, lane)
            e.valu("v_add_u32", vX0, sT1, vX0)
            e.salu("s_mov_b32", sT1, 43691)
            e.valu("v_mul_u32_u24", vX1, sT1, vX0)
            e.valu("v_lshrrev_b32", vX1, 19, vX1)
            e.valu("v_mul_u32_u24", vX2, 3584 - 12 * 128, vX1)
            e.valu("v_lshl_add_u32", vX2, vX0, 7, vX2)
            e.salu("s_mov_b32", sT1, 0)
            e.salu("s_cmp_lt_u32", sW4, 2)
            e.raw(f"s_cbranch_scc1 L_k12_pre{ty}")
            e.salu("s_mov_b32", sTS[2], 448 * 2688)
            e.salu("s_mov_b32", sTS[0], S(KQ)); e.salu("s_mov_b32", sTS[1], S(KQ + 1))
            e.salu("s_lshl_b32", sT1, S(2), 1)
            e.salu("s_add_u32", sT1, sT1, sT0)
            e.salu("s_mul_i32", sT1, sT1, 2688)
            e.salu("s_add_u32", sT1, sT1, 1280)
            e.valu("v_min_u32", vX0, 3, lane)
            e.valu("v_lshlrev_b32", vX2, 7, vX0)
            e.label(f"L_k12_pre{ty}")
        elif stage == 1:
            e.salu("s_lshl_b32", sT1, S(2), 1)
            e.salu("s_lshr_b32", sT0, sW4, 1)
            e.salu("s_add_u32", sT1, sT1, sT0)
            e.salu("s_mul_i32", sT1, sT1, 14)
            e.valu("v_min_u32", vX0, 13, lane)
            e.valu("v_add_u32", vX0, sT1, vX0)
            e.valu("v_lshrrev_b32", vX1, 4, vX0)
            e.valu("v_and_b32", vX0, 15, vX0)
            e.valu("v_mul_u32_u24", vX2, 3584, vX1)
            e.valu("v_lshl_add_u32", vX2, vX0, 7, vX2)
            e.salu("s_mov_b32", sT1, 12 * 128)
        else:
            e.salu("s_mov_b32", sTS[0], S(KD)); e.salu("s_mov_b32", sTS[1], S(KD + 1))
            e.salu("s_mul_i32", sT0, S(2), 49 * 128)
            e.salu("s_mul_i32", sT1, sW4, 13 * 128)
            e.salu("s_add_u32", sT1, sT0, sT1)
            e.valu("v_min_u32", vX0, 12, lane)
            e.valu("v_lshlrev_b32", vX2, 7, vX0)
        e.buf_load(V(243 + stage), vX2, sTS, sT1, offset=0)

    e.stamp(0); e.stamp(12, True)
    for st_, at in enumerate(PRES):
        if at < 0: pre(st_)
    e.barrier()
    e.stamp(1)
    for f in rd(0) + rd(1): f()
    epi, stq = [], []
    for n, (p, ks) in enumerate(steps):
        if n in (28, 56): e.stamp(1 + n // 28)
        if n > 0 and steps[n - 1][1] == 27:
            prev = steps[n - 1][0]
            if prev == 0: epi = [(6, lambda: None)] + epi_qk() + epi
            else: epi += [(6, lambda: None)] + (epi_v() if typeY else epi_h(1))
        for st_, at in enumerate(PRES):
            if at == n: stq.append(lambda st_=st_: pre(st_))
        nr = 1 if p == 0 else 2
        nm = 2 * nr
        plan = [[] for _ in range(nm)]
        tgt = n + 2
        if tgt < len(steps):
            r_ = rd(tgt)
            bt = bchunk(*steps[tgt])[0]
            if bt != bchunk(*steps[tgt - 1])[0]:
                def bar(tgt=tgt, bt=bt):
                    e.wait_lg_tag(("t", tgt - 1))
                    if bt == (N1 if ff else N1X):
                        assert not any(getattr(f, "qkv", False) for _, f in epi) and not any(getattr(f, "qkv", False) for f in stq)
                        e.wait_vm_tag("qkv")
                    if bt == N1B:
                        assert not epi and not stq, (len(epi), len(stq))
                        e.raw("s_waitcnt vmcnt(0)")
                        e.vm = []
                    e.barrier()
                newA = steps[tgt][0] == first_kind
                if newA and nm == 2:
                    plan[1] = [bar] + r_
                elif newA:
                    plan[1] = [bar, r_[0]]; plan[2] = r_[1:4]; plan[3] = r_[4:]
                elif nm == 4:
                    plan[0] = r_[0:2]; plan[2] = [bar] + r_[2:4]; plan[3] = r_[4:]
                else:
                    plan[0] = r_[0:2]; plan[1] = [bar] + r_[2:]
            else:
                for g in range(nm):
                    k = -(-len(r_) // (nm - g))
                    plan[g] = r_[:k]; r_ = r_[k:]
        e.wait_lg_tag(("t", n))
        gi = 0
        for i in range(nr):
            for t in range(2):
                swap = typeY and p == 1
                a_, b_ = (fA(n, t), fB(n, i)) if swap else (fB(n, i), fA(n, t))
                e.mfma(ACC(p, i, t), a_, b_, 0 if ks == 0 else None)
                slots = 6 - (1 if gi == nm - 1 else 0)
                for f in plan[gi]:
                    f(); slots -= 1
                slots = min(slots, EB1 if p == 1 else 4 if p == 2 else 6)
                safe = (ks % 4 == 1 or (ks % 4 == 0 and gi >= 2)) if p != 0 else (n < 28 or ks % 8 in (2, 3, 4, 5) or XORD == 2)
                if stq and (safe or (QANY and p == 2 and getattr(stq[0], "qkv", False))):
                    stq.pop(0)(); slots -= 2
                while epi and (slots >= epi[0][0] or epi[0][0] == 6):
                    cost, f = epi.pop(0)
                    if cost < 0:
                        if getattr(f, "qkv", False):
                            k_ = sum(1 for x in stq if getattr(x, "qkv", False))
                            stq.sort(key=lambda x: not getattr(x, "qkv", False))
                            stq.insert(k_, f)
                        else:
                            stq.append(f)
                        continue
                    f(); slots -= cost
                    if cost == 6: break
                gi += 1
    e.stamp(4)
    e.valu("v_mov_b32", V(228), sNL2E)
    e.valu("v_mov_b32", V(229), sNL2E)
    e.valu("v_mov_b32", V(230), 1.0)
    e.valu("v_mov_b32", V(231), 1.0)
    for _, f in epi_h(2, pk=True):
        f()
    e.stamp(5)


def gen_attn(e):
    lane = vLane
    Q = [[V(8, 4), V(12, 4)], [V(16, 4), V(20, 4)]]
    K = [V(24, 4), V(28, 4)]
    Vf = [[V(32, 4), V(36, 4)], [V(40, 4), V(44, 4)]]
    Sb = [V(128, 16), V(144, 16)]
    P = [V(48, 8), V(56, 8)]
    O = [V(160, 16), V(176, 16)]
    X = V(192, 16)
    vKV, vRed, vQl = V(1), V(2), V(3)
    vT0, vT1, vT2, vT3 = V(4), V(5), V(6), V(7)
    sQg, sKg, sHead, sQblk, sOo, sKV, sCnt = S(29), S(30), S(34), S(35), S(36), S(37), S(38)
    sSave = S(40, 2)
    e.salu("s_and_b32", sQg, sW4, 1)
    e.salu("s_lshr_b32", sKg, sW4, 1)
    e.salu("s_lshr_b32", sT0, sIdx, 4)
    e.salu("s_lshl_b32", sHead, sXcd, 1)
    e.salu("s_add_u32", sHead, sHead, sT0)
    e.salu("s_and_b32", sQblk, sIdx, 15)
    e.salu("s_lshl_b32", sKV, sHead, 18)
    e.salu("s_add_u32", sKV, sKV, KVF)
    e.salu("s_lshl_b32", sT1, sQblk, 2)
    e.salu("s_lshl_b32", sT0, sQg, 1)
    e.salu("s_add_u32", sT1, sT1, sT0)
    e.salu("s_add_u32", sT1, sT1, sKg)
    e.salu("s_lshl_b32", sOo, sT1, 4)
    e.salu("s_add_u32", sOo, sOo, sHead)
    e.salu("s_lshl_b32", sOo, sOo, 11)
    e.salu("s_add_u32", sOo, sOo, OF)
    e.salu("s_lshl_b32", sT2, sKg, 13)
    e.valu("v_add_u32", vKV, sT2, vLane16)
    e.salu("s_lshl_b32", sT2, sQg, 12)
    e.salu("s_add_u32", sT2, sT2, QL)
    e.valu("v_add_u32", vQl, sT2, vLane16)
    e.salu("s_lshl_b32", sT2, sQg, 13)
    e.salu("s_add_u32", sT2, sT2, ARED)
    e.valu("v_add_u32", vRed, sT2, vLane16)
    for r in range(16):
        e.valu("v_mov_b32", O[0][r], 0)
        e.valu("v_mov_b32", O[1][r], 0)
    for r in range(4):
        e.valu("v_mov_b32", P[1][r], 0)
        e.valu("v_mov_b32", P[1][4 + r], 0)
        e.valu("v_mov_b32", Vf[1][0][r], 0)
        e.valu("v_mov_b32", Vf[1][1][r], 0)
    e.salu("s_mov_b32", sCnt, 0)

    def toff(i): return ((i >> 1) % 4) * 16384 + (i & 1) * 4096

    e.barrier()
    e.stamp(6)
    for q in range(2):
        for s_ in range(2):
            e.ds_read("ds_read_b128", Q[q][s_], vQl, offset=q * 2048 + s_ * 1024)
    e.ds_read("ds_read_b128", K[0], vKV, offset=0)
    e.ds_read("ds_read_b128", K[1], vKV, offset=1024)
    e.ds_read("ds_read_b128", Vf[0][1], vKV, offset=3072)
    e.ds_read("ds_read_b128", Vf[0][0], vKV, offset=2048)
    e.mfma(Sb[0], K[0], Q[0][0], 0)
    e.mfma(Sb[0], K[1], Q[0][1])
    e.wait_lg_all()
    e.flush_hazards()

    def unit(i, q):
        Sc, Sn = Sb[q], Sb[1 - q]
        nq = 1 - q
        def ex(a, b):
            for r in range(a, b): e.valu("v_exp_f32", Sc[r], Sc[r])
        def cv(a, b):
            for j in range(a, b): e.valu("v_cvt_pk_bf16_f32", P[q][j], Sc[2 * j], Sc[2 * j + 1])
        pi = i if q == 1 else i - 1
        if q == 0:
            rd = [(K[0], toff(i + 1)), (K[1], toff(i + 1) + 1024)]
        else:
            rd = [(Vf[(i + 1) % 2][1], toff(i + 1) + 3072), (Vf[(i + 1) % 2][0], toff(i + 1) + 2048)]
        e.mfma(Sn, K[0], Q[nq][0], 0)
        ex(0, 3)
        e.mfma(Sn, K[1], Q[nq][1])
        e.ds_read("ds_read_b128", rd[0][0], vKV, offset=rd[0][1])
        ex(3, 5); cv(0, 1)
        e.mfma(O[nq], Vf[pi % 2][0], P[nq][0:4])
        e.ds_read("ds_read_b128", rd[1][0], vKV, offset=rd[1][1])
        ex(5, 7); cv(1, 2)
        e.mfma(O[nq], Vf[pi % 2][1], P[nq][4:8])
        ex(7, 16); cv(2, 8)

    mark = len(e.lines)
    for i in (6, 7):
        for q in range(2): unit(i, q)
    del e.lines[mark:]
    e.label("L_k12_aloop")
    for i in range(8):
        for q in range(2):
            unit(i, q)
        if i % 2 == 1:
            if i == 3:
                e.raw("s_waitcnt vmcnt(0)")
            if i == 7:
                e.salu("s_add_u32", sCnt, sCnt, 1)
                e.salu("s_cmp_lt_u32", sCnt, 4)
            e.barrier()
    e.raw("s_cbranch_scc1 L_k12_aloop")
    e.mfma(O[1], Vf[1][0], P[1][0:4])
    e.mfma(O[1], Vf[1][1], P[1][4:8])
    e.stamp(7)
    e.wait_lg_all()
    e.salu("s_cmp_eq_u32", sKg, 0)
    e.raw("s_cbranch_scc1 L_k12_kg0")
    for j in range(4):
        e.ds_write("ds_write_b128", vRed, O[0][4 * j:4 * j + 4], offset=j * 1024)
    for r in range(16):
        e.valu("v_mov_b32", O[0][r], O[1][r])
    for s_ in range(2):
        for r in range(4):
            e.valu("v_mov_b32", Q[0][s_][r], Q[1][s_][r])
    e.valu("v_add_u32", vRed, 4096, vRed)
    e.raw("s_branch L_k12_kgj")
    e.label("L_k12_kg0")
    e.lg = []
    e.last = {}
    e.nop(10)
    for j in range(4):
        e.ds_write("ds_write_b128", vRed, O[1][4 * j:4 * j + 4], offset=4096 + j * 1024)
    e.label("L_k12_kgj")
    e.raw("s_waitcnt lgkmcnt(0)")
    e.lg = []
    e.last = {}
    e.barrier()
    Of, Pf, Qf = O[0], P[0], Q[0]
    for j in range(4):
        e.ds_read("ds_read_b128", X[4 * j:4 * j + 4], vRed, offset=j * 1024)
    Z = V(208, 2)
    e.valu("v_mov_b32", Z[0], 0)
    e.valu("v_mov_b32", Z[1], 0)
    e.valu("v_mov_b32", V(210), 0)
    e.valu("v_mov_b32", V(211), 0)
    for r in range(0, 16, 2):
        e.valu("v_pk_add_f32", Of[r:r + 2], Of[r:r + 2], X[r:r + 2])
    e.valu("v_mov_b32", vT0, Of[12])
    e.valu("v_mov_b32", vT1, Of[12])
    for r in range(0, 16, 2):
        e.valu("v_pk_fma_f32", Z, Of[r:r + 2], V(210, 2), Z)
        if r == 2:
            e.valu("v_permlane32_swap_b32", vT0, vT1)
    e.valu("v_add_f32", vT2, Z[0], Z[1])
    e.salu("s_mov_b32", sT0, hex(f2u(L_LO)))
    e.salu("s_mov_b32", sT1, hex(f2u(L_HI)))
    e.valu("v_add_f32", vT2, vT2, vT1)
    e.valu("v_cmp_le_f32", "vcc", sT0, vT2)
    e.valu("v_cmp_ge_f32", sSave, sT1, vT2)
    e.nop(1)
    e.salu("s_and_b64", "vcc", "vcc", sSave)
    e.raw("s_cmp_eq_u64 vcc, -1")
    e.raw("s_cbranch_scc0 L_k12_slow")
    e.label("L_k12_store")
    e.last = {}
    e.nop(2)
    e.valu("v_rcp_f32", vT0, vT1)
    e.valu("v_cmp_gt_u32", "vcc", 32, lane)
    e.valu("v_mov_b32", vT2, 0)
    e.valu("v_mov_b32", vT1, vT0)
    e.valu("v_cndmask_b32", vT2, vT2, vT0)
    e.valu("v_mov_b32", vT3, vT2)
    for r in range(0, 16, 2):
        e.valu("v_pk_mul_f32", Of[r:r + 2], Of[r:r + 2], V(4, 2) if r < 12 else V(6, 2))
    for j in range(8):
        e.valu("v_cvt_pk_bf16_f32", Pf[j], Of[2 * j], Of[2 * j + 1])
    e.buf_store(Pf[0:4], vLane16, sWS, sOo, offset=0, flags=STF)
    e.buf_store(Pf[4:8], vLane16, sWS, sOo, offset=1024, flags=STF)
    e.stamp(8)
    if FUSE3:
        if R1B: e.barrier()
        gen_phase3_heavy(e)
    if Emitter.STAMPS:
        e.raw("s_waitcnt vmcnt(0)")
    e.stamp(9); e.stamp(13, True)
    e.dump_stamps(sWS, 0, sWave)
    e.raw("s_endpgm")
    e.label("L_k12_slow")
    e.lg, e.vm, e.last = [], [], {}
    vM = vT3
    Sc = Sb[0]
    e.valu("v_mov_b32", vM, "0xff800000")
    for r in range(16):
        e.valu("v_mov_b32", Of[r], 0)
    e.salu("s_mov_b32", sCnt, 0)
    e.salu("s_mov_b32", sT2, sKV)
    e.label("L_k12_slow_loop")
    e.buf_load(K[0], vLane16, sWS, sT2, offset=0, flags=LDF)
    e.buf_load(K[1], vLane16, sWS, sT2, offset=1024, flags=LDF)
    e.buf_load(Vf[0][0], vLane16, sWS, sT2, offset=2048, flags=LDF)
    e.buf_load(Vf[0][1], vLane16, sWS, sT2, offset=3072, flags=LDF)
    e.mfma(Sc, K[0], Qf[0], 0)
    e.mfma(Sc, K[1], Qf[1])
    e.valu("v_max_f32", vT0, Sc[0], Sc[1])
    for r in range(2, 16, 2):
        e.valu("v_max3_f32", vT0, vT0, Sc[r], Sc[r + 1])
    e.valu("v_mov_b32", vT1, vT0)
    e.valu("v_permlane32_swap_b32", vT0, vT1)
    e.valu("v_max3_f32", vT0, vT0, vT1, vM)
    e.valu("v_sub_f32", vT1, vM, vT0)
    e.valu("v_exp_f32", vT1, vT1)
    e.valu("v_mov_b32", vM, vT0)
    for r in range(16):
        e.valu("v_sub_f32", Sc[r], Sc[r], vM)
    for r in range(16):
        e.valu("v_exp_f32", Sc[r], Sc[r])
    for r in range(16):
        e.valu("v_mul_f32", Of[r], Of[r], vT1)
    for j in range(8):
        e.valu("v_cvt_pk_bf16_f32", Pf[j], Sc[2 * j], Sc[2 * j + 1])
    e.mfma(Of, Vf[0][0], Pf[0:4])
    e.mfma(Of, Vf[0][1], Pf[4:8])
    e.salu("s_add_u32", sT2, sT2, 4096)
    e.salu("s_add_u32", sCnt, sCnt, 1)
    e.flush_hazards()
    e.salu("s_cmp_lt_u32", sCnt, 64)
    e.raw("s_cbranch_scc1 L_k12_slow_loop")
    e.valu("v_mov_b32", vT0, Of[12])
    e.valu("v_mov_b32", vT1, Of[12])
    e.valu("v_permlane32_swap_b32", vT0, vT1)
    e.raw("s_branch L_k12_store")


def gen_phase3_heavy(e):
    lane = vLane
    sU, sTt, sMt64, sNt, sSt = S(29), S(30), S(34), S(35), S(36)
    vRr, vTr, vOr, vSt = V(1), V(2), V(3), V(4)
    vG = V(6, 2)
    Bx = [V(64 + 16 * w, 16) for w in range(4)]
    ACC = V(128, 16)
    NB = 4
    def OFr(k): return V(8 + (k % NB) * 4, 4)
    def WFr(k): return V(24 + (k % NB) * 4, 4)
    e.salu("s_cmp_ge_u32", sIdx, 28)
    e.raw("s_cbranch_scc0 L_k12_h3")
    e.raw("s_waitcnt vmcnt(0)")
    e.barrier()
    e.raw("s_branch L_k12_h3end")
    e.label("L_k12_h3")
    e.salu("s_lshl_b32", sT0, sW4, 12)
    e.salu("s_add_u32", sT0, sT0, WR)
    e.valu("v_add_u32", vRr, sT0, vLane16)
    def rdB():
        for w in range(4):
            for j in range(4):
                e.ds_read("ds_read_b128", Bx[w][4 * j:4 * j + 4], vRr, offset=w * 16384 + j * 1024)
    if not DEFER: rdB()
    e.salu("s_mul_i32", sT0, sIdx, 37)
    e.salu("s_lshr_b32", sT0, sT0, 8)
    e.salu("s_mul_i32", sT1, sT0, 7)
    e.salu("s_sub_u32", sNt, sIdx, sT1)
    e.salu("s_lshl_b32", sMt64, sXcd, 2)
    e.salu("s_add_u32", sMt64, sMt64, sT0)
    e.salu("s_and_b32", sU, sW4, 1)
    e.salu("s_lshr_b32", sTt, sW4, 1)
    srd(e, sOut, KOUT, 2048 * 896)
    e.salu("s_lshl_b32", sT0, sMt64, 1)
    e.salu("s_add_u32", sT0, sT0, sTt)
    e.salu("s_mul_i32", sSt, sT0, 32 * 896)
    e.salu("s_lshl_b32", sT2, sNt, 1)
    e.salu("s_add_u32", sT2, sT2, sU)
    e.salu("s_lshl_b32", sT2, sT2, 6)
    e.salu("s_add_u32", sSt, sSt, sT2)
    e.salu("s_lshl_b32", S(37), sT0, 8)
    e.salu("s_add_u32", S(37), S(37), GF)
    e.valu("v_and_b32", vX0, 31, lane)
    e.valu("v_lshlrev_b32", V(5), 3, vX0)
    e.valu("v_mul_u32_u24", vSt, 896, vX0)
    e.valu("v_lshrrev_b32", vX1, 5, lane)
    e.valu("v_lshl_add_u32", vSt, vX1, 4, vSt)
    e.valu("v_bfe_u32", vX0, lane, 2, 2)
    e.valu("v_lshl_add_u32", vX0, vX1, 2, vX0)
    e.valu("v_bfe_u32", vX2, lane, 4, 1)
    e.valu("v_lshlrev_b32", vX2, 5, vX2)
    e.valu("v_and_b32", vX1, 3, lane)
    e.valu("v_lshl_add_u32", vX2, vX1, 3, vX2)
    e.valu("v_lshl_add_u32", vX2, vX0, 7, vX2)
    e.valu("v_bfe_u32", vX1, lane, 3, 1)
    e.valu("v_xor_b32", vX1, sU, vX1)
    e.valu("v_lshl_add_u32", vTr, vX1, 6, vX2)
    e.salu("s_lshl_b32", sT0, sTt, 15)
    e.salu("s_add_u32", sT0, sT0, OREG)
    e.valu("v_add_u32", vOr, sT0, vLane16)
    def rd(k):
        e.ds_read("ds_read_b128", OFr(k), vOr, offset=k * 1024, tag=("k", k))

    def rdw(k):
        hd, s_ = k // 2, k % 2
        for j in range(2):
            e.ds_read("ds_read_b64_tr_b16", WA(k)[2 * j:2 * j + 2], vTr, offset=(28 * hd + 16 * s_ + 8 * j) * 128, tag=("w", k))

    def WA(k): return V(144 + 4 * k, 4) if k < 26 else V(40 + 4 * (k - 26), 4)
    def OFr(k): return V(8 + (k % 8) * 4, 4)
    if not DEFER: e.wait_lg_all()
    e.raw("s_waitcnt vmcnt(0)")
    e.vm = []
    e.barrier()
    e.buf_load(vG, V(5), sWS, S(37), offset=0, flags=LDF)
    for k in range(32):
        rdw(k)
    if DEFER:
        e.wait_lg_all()
        e.barrier()
        rdB()
    for r in range(0, 16, 2):
        e.valu("v_pk_add_f32", Bx[0][r:r + 2], Bx[0][r:r + 2], Bx[1][r:r + 2])
        e.valu("v_pk_add_f32", Bx[2][r:r + 2], Bx[2][r:r + 2], Bx[3][r:r + 2])
    for r in range(0, 16, 2):
        e.valu("v_pk_add_f32", Bx[0][r:r + 2], Bx[0][r:r + 2], Bx[2][r:r + 2])
    for j in range(8):
        e.valu("v_cvt_pk_bf16_f32", Bx[1][j], Bx[0][2 * j], Bx[0][2 * j + 1])
    for j in range(8):
        e.valu("v_lshlrev_b32", Bx[0][2 * j], 16, Bx[1][j])
        e.valu("v_and_b32", Bx[0][2 * j + 1], "0xffff0000", Bx[1][j])
    for r in range(16):
        e.valu("v_mul_f32", Bx[0][r], Bx[0][r], vG[1])
    e.wait_lg_all()
    for c in range(4):
        e.barrier()
        if c == 0: e.stamp(10)
        ks = list(range(8 * c, 8 * c + 8))
        for k in ks:
            rd(k)
        for k in ks:
            e.mfma(ACC, WA(k), OFr(k), 0 if k == 0 else None)
    e.stamp(11)
    for r in range(16):
        e.valu("v_fmac_f32", Bx[0][r], ACC[r], vG[0], dst_is_read=True)
    Bv = Bx[3]
    for j in range(8):
        e.valu("v_cvt_pk_bf16_f32", Bv[j], Bx[0][2 * j], Bx[0][2 * j + 1])
    for kk in range(2):
        e.valu("v_permlane32_swap_b32", Bv[4 * kk], Bv[4 * kk + 2])
        e.valu("v_permlane32_swap_b32", Bv[4 * kk + 1], Bv[4 * kk + 3])
        e.buf_store(Bv[4 * kk:4 * kk + 4], vSt, sOut, sSt, offset=kk * 32, flags=os.environ.get('OUTF', ''))
    e.label("L_k12_h3end")
    e.last = {}


def gen_helper2(e):
    lane = vLane
    sHead, sQblk, sKV, sLdsKV = S(29), S(30), S(34), S(35)
    sMt64, sNt, sLdsW, sWoff, sHoff, sHoff1 = S(36), S(37), S(38), S(39), S(40), S(41)
    vFl = V(14)
    e.salu("s_lshr_b32", sT0, sIdx, 4)
    e.salu("s_lshl_b32", sHead, sXcd, 1)
    e.salu("s_add_u32", sHead, sHead, sT0)
    e.salu("s_and_b32", sQblk, sIdx, 15)
    e.salu("s_lshl_b32", sLdsKV, sW4, 12)
    e.salu("s_lshl_b32", sKV, sHead, 18)
    e.salu("s_add_u32", sKV, sKV, KVF)
    e.salu("s_add_u32", sKV, sKV, sLdsKV)
    e.salu("s_mul_i32", sT0, sIdx, 37)
    e.salu("s_lshr_b32", sT0, sT0, 8)
    e.salu("s_mul_i32", sT1, sT0, 7)
    e.salu("s_sub_u32", sNt, sIdx, sT1)
    e.salu("s_lshl_b32", sMt64, sXcd, 2)
    e.salu("s_add_u32", sMt64, sMt64, sT0)
    e.salu("s_min_u32", sMt64, sMt64, 31)
    def dma_KV(s):
        e.salu("s_add_u32", "m0", sLdsKV, (s % 4) * 16384)
        e.salu("s_add_u32", sT0, sKV, s * 16384)
        for i in range(4):
            e.buf_load_lds(vLane16, sWS, sT0, offset=i * 1024, tag=("KV", s), flags=LDF)

    def first_loads():
        dma_KV(0)
        e.salu("s_lshl_b32", sT0, sHead, 6)
        e.salu("s_lshl_b32", sT1, sQblk, 2)
        e.salu("s_add_u32", sT0, sT0, sT1)
        e.salu("s_add_u32", sT0, sT0, sW4)
        e.salu("s_lshl_b32", sT0, sT0, 11)
        e.salu("s_lshl_b32", sT1, sW4, 11)
        e.salu("s_add_u32", "m0", sT1, QL)
        if QF: e.salu("s_add_u32", sT0, sT0, QF)
        else: e.nop(1)
        for i in range(2):
            e.buf_load_lds(vLane16, sWS, sT0, offset=i * 1024, tag=("KV", 0), flags=LDF)
        dma_KV(1); dma_KV(2)

    if EARLYP:
        e.salu("s_cmp_eq_u32", sW4, 1)
        e.salu("s_mov_b32", sT1, "0x40000000")
        e.salu("s_cselect_b32", sT0, F1, sT1)
        e.raw(f"buffer_load_dword v15, {vFl}, {sWS}, {sT0} offen sc1")
    gemm_setup(e, sMt64, sNt, sLdsW, sWoff, sHoff)
    e.raw(f"v_mov_b32 v8, {SIG1}")
    e.raw(f"v_not_b32 v9, {sNonce}")
    e.raw("ds_write_b32 v8, v9")
    e.raw(f"s_waitcnt vmcnt({1 if EARLYP else 0}) lgkmcnt(0)")
    e.barrier()
    if TPRIO < 3: e.raw(f"s_setprio {TPRIO}")
    e.stamp(0)
    e.salu("s_cmp_eq_u32", sW4, 1)
    e.raw("s_cbranch_scc1 L_k12_pl")
    e.salu("s_cmp_lg_u32", sW4, 0)
    e.raw("s_cbranch_scc1 L_k12_wl")
    flag_store(e, F1B)
    e.label("L_k12_wl")
    e.salu("s_mov_b32", sT2, 0)
    e.label("L_k12_wl2")
    e.raw("ds_read_b32 v9, v8")
    e.salu("s_add_u32", sT2, sT2, 1)
    e.raw("s_waitcnt lgkmcnt(0)")
    e.raw("v_readfirstlane_b32 s33, v9")
    e.salu("s_cmp_gt_u32", sT2, SPIN * 16)
    e.raw("s_cbranch_scc1 L_k12_p1ok")
    e.raw(f"s_cmp_eq_u32 s33, {sNonce}")
    e.raw("s_cbranch_scc1 L_k12_p1ok")
    e.raw(f"s_sleep {WSL}")
    e.raw("s_branch L_k12_wl2")
    e.label("L_k12_pl")
    if EARLYP:
        e.raw("s_waitcnt vmcnt(0)")
        e.raw(f"v_cmp_ne_u32 vcc, {sNonce}, v15")
        e.nop(1)
        e.raw("s_and_b32 s33, vcc_hi, 1")
        e.raw("s_or_b32 s33, s33, vcc_lo")
        e.raw("s_cbranch_scc0 L_k12_p1sig")
    e.salu("s_mov_b32", sT0, F1)
    poll(e, "L_k12_p1", vFl, sWS, sT0, 33, V(15), sNonce)
    e.label("L_k12_p1sig")
    e.raw(f"v_mov_b32 v9, {sNonce}")
    e.raw("ds_write_b32 v8, v9")
    e.label("L_k12_p1ok")
    e.vm, e.last = [], {}
    e.stamp(1)
    if S1ST: e.stamp(7, True)
    first_loads()
    st0 = list(e.vm)
    e.raw(f"s_setprio {HPRIO}")
    e.salu("s_cmp_ge_u32", sIdx, 28)
    e.raw("s_cbranch_scc1 L_k12_nogemm")
    helper_loop(e, True, dma_KV, sMt64, sNt, sLdsW, sWoff, sHoff, sHoff1)
    e.raw("s_endpgm")
    e.label("L_k12_nogemm")
    e.lg, e.vm, e.last = [], list(st0), {}
    helper_loop(e, False, dma_KV, sMt64, sNt, sLdsW, sWoff, sHoff, sHoff1)
    e.raw("s_endpgm")


def gemm_setup(e, sMt64, sNt, sLdsW, sWoff, sHoff):
    lane = vLane
    vW = [V(2), V(3), V(4), V(5)]
    vTr = [V(6), V(7)]
    vRw, vRr, vF2 = V(11), V(12), V(13)
    sWl, sHl = S(42), S(43)
    srd(e, sWd, KD, 1792 * 896)
    e.valu("v_lshrrev_b32", vX0, 3, lane)
    e.valu("v_bfe_u32", vX1, lane, 2, 1)
    e.valu("v_bfe_u32", vX2, lane, 4, 1)
    e.valu("v_xor_b32", vX1, vX1, vX2)
    e.valu("v_mul_u32_u24", vW[0], 896, vX0)
    e.valu("v_lshl_add_u32", vW[0], vX1, 6, vW[0])
    e.valu("v_and_b32", vX1, 3, lane)
    e.valu("v_lshl_add_u32", vW[0], vX1, 4, vW[0])
    for i in range(1, 4):
        e.valu("v_add_u32", vW[i], i * (8 * 896 - 1024), vW[0])
    e.salu("s_lshl_b32", sLdsW, sW4, 14)
    e.salu("s_add_u32", sLdsW, sLdsW, WR)
    e.salu("s_mul_i32", sWoff, sW4, 6 * 32 * 896)
    e.salu("s_lshl_b32", sT0, sNt, 7)
    e.salu("s_add_u32", sWoff, sWoff, sT0)
    e.salu("s_lshl_b32", sT0, sW4, 1)
    e.salu("s_add_u32", sT0, sT0, 18)
    e.salu("s_mul_i32", sWl, sT0, 32 * 896)
    e.salu("s_add_u32", sWl, sWl, sWoff)
    e.salu("s_lshl_b32", sHl, sT0, 11)
    e.salu("s_mul_i32", sHoff, sMt64, 2 * H_MT_STRIDE)
    e.salu("s_mul_i32", sT0, sW4, 6 * 2048)
    e.salu("s_add_u32", sHoff, sHoff, sT0)
    e.salu("s_add_u32", sHoff, sHoff, HF)
    e.salu("s_add_u32", sHl, sHl, sHoff)
    e.valu("v_lshrrev_b32", vX1, 5, lane)
    e.valu("v_bfe_u32", vX0, lane, 2, 2)
    e.valu("v_lshl_add_u32", vX0, vX1, 2, vX0)
    e.valu("v_bfe_u32", vX2, lane, 4, 1)
    e.valu("v_lshlrev_b32", vX2, 5, vX2)
    e.valu("v_and_b32", vX1, 3, lane)
    e.valu("v_lshl_add_u32", vX2, vX1, 3, vX2)
    e.valu("v_lshl_add_u32", vX2, vX0, 7, vX2)
    e.valu("v_bfe_u32", vX1, lane, 3, 1)
    e.valu("v_lshl_add_u32", vTr[0], vX1, 6, vX2)
    e.valu("v_xor_b32", vTr[1], 64, vTr[0])
    e.valu("v_add_u32", vTr[0], sLdsW, vTr[0])
    e.valu("v_add_u32", vTr[1], sLdsW, vTr[1])
    e.valu("v_add_u32", vRw, sLdsW, vLane16)
    e.salu("s_lshl_b32", sT0, sW4, 12)
    e.salu("s_add_u32", sT0, sT0, WR)
    e.valu("v_add_u32", vRr, sT0, vLane16)
    e.salu("s_lshr_b32", sT0, sMt64, 1)
    e.valu("v_and_b32", vX0, 15, lane)
    e.valu("v_lshl_add_u32", vF2, vX0, 4, sT0)
    e.valu("v_lshlrev_b32", vF2, 7, vF2)


def helper_loop(e, gemm, dma_KV, sMt64, sNt, sLdsW, sWoff, sHoff, sHoff1):
    lane = vLane
    g = int(gemm)
    ND = 4
    ACC = [[V(80, 16), V(96, 16)], [V(112, 16), V(128, 16)]]
    def HF_(s, st, t): return V(16 + ((s % ND) * 4 + st * 2 + t) * 4, 4)
    def WF(st, u): return V(144 + (st * 2 + u) * 4, 4)
    vW = [V(2), V(3), V(4), V(5)]
    vTr = [V(6), V(7)]
    vRw, vRr, vF2 = V(11), V(12), V(13)
    sWl, sHl = S(42), S(43)
    def dma_Wo(q):
        if q == 0:
            srd(e, sWo, KO, 448 * 896)
        e.salu("s_mul_i32", sT1, sW4, 32 * 896)
        e.salu("s_lshl_b32", sT0, sNt, 7)
        e.salu("s_add_u32", sT1, sT1, sT0)
        e.salu("s_lshl_b32", sT2, sW4, 12)
        e.salu("s_add_u32", "m0", sT2, q * 16384)
        e.salu("s_add_u32", sT0, sT1, q * 128 * 896)
        for i in range(4):
            e.buf_load_lds(vW[i], sWo, sT0, offset=i * 1024, tag="Wo")

    def W_ops(s):
        def w(i):
            if i == 0:
                e.salu("s_add_u32", "m0", sLdsW, (s % ND) * 4096)
                e.salu("s_add_u32", sT2, sWoff if s < 6 else sWl, s * 32 * 896)
            e.buf_load_lds(vW[i], sWd, sT2, offset=i * 1024, tag=("W", s))
        return [lambda i=i: w(i) for i in range(4)]

    def H_ops(s):
        def h(st, t):
            e.salu("s_add_u32", sT1, sHoff if s < 6 else sHl, s * 2048 + t * H_MT_STRIDE)
            e.buf_load(HF_(s, st, t), vLane16, sWS, sT1, offset=st * 1024, flags=LDF)
        return [lambda st=st, t=t: h(st, t) for st in range(2) for t in range(2)]

    def compute(s, side):
        e.wait_vm_tag(("W", s))
        for st in range(2):
            for u in range(2):
                for j in range(2):
                    e.ds_read("ds_read_b64_tr_b16", WF(st, u)[2 * j:2 * j + 2], vTr[u],
                              offset=(s % ND) * 4096 + st * 2048 + j * 1024)
        if side: side.pop(0)()
        for st in range(2):
            for u in range(2):
                for t in range(2):
                    e.mfma(ACC[u][t], WF(st, u), HF_(s, st, t), 0 if (s == 0 and st == 0) else None)
                    if side: side.pop(0)()

    P2 = POLL2
    comp = {C0 + s: [s] for s in range(6)}
    late = list(range(6, 14 - DEFER))
    i0 = max(P2 + 2, C0 + 6)
    LASTI = 15 if FUSE3 else 14
    for i in range(i0, LASTI):
        left = LASTI - i
        k = -(-len(late) // left) if len(late) > left and i >= 12 else 1
        comp.setdefault(i, [])
        comp[i] += late[:k]; late = late[k:]
    assert not late, late
    done_at = {s: i for i, l in comp.items() for s in l}
    todo = [(s, k) for s in range(14) for k in ("H", "W")]

    def check(name, base, nl):
        e.valu("v_cmp_ne_u32", "vcc", sNonce, V(8))
        e.nop(1)
        e.raw(f"s_and_b32 s33, vcc_lo, {hex((1 << nl) - 1)}")
        e.raw(f"s_cbranch_scc0 {name}ok")
        keep = list(e.vm)
        e.salu("s_mov_b32", sT0, base)
        poll(e, name, vF2, sWS, sT0, nl, V(8), sNonce)
        e.label(name + "ok")
        e.vm = keep
        e.last = {}

    e.wait_vm_tag(("KV", 1))
    e.stamp(2)
    e.barrier()
    for i in range(16):
        if i in (4, 8, 12): e.stamp(2 + i // 4)
        if i + 3 <= 15:
            dma_KV(i + 3)
        if i == 2:
            flag_store(e, F2)
        if i == 3 and gemm:
            e.valu("v_mov_b32", V(248), SIG + 64)
            e.valu("v_not_b32", V(247), sNonce)
            e.ds_write("ds_write_b32", V(248), V(247))
        if gemm:
            if i in (C0 - 2, P2 - 1):
                e.salu("s_mov_b32", sT0, F1B if i == C0 - 2 else F2)
                e.buf_load(V(8), vF2, sWS, sT0, offset=0, flags=" sc1")
            if i == C0 - 1:
                check("L_k12_p1b", F1B, 12)
            if i == P2:
                e.stamp(10)
                check("L_k12_p2", F2, 16)
                e.stamp(11)
            side = []
            budget = (3 if i < 13 else 4) if not DEFER else BUD
            for (s, k) in list(todo):
                if budget == 0: break
                ok = (s < ND or done_at[s - ND] < i) and not (k == "H" and (i < C0 - 1 or (s >= 6 and i < P2))) and not (k == "W" and s >= 2 and i < 1)
                if ok:
                    side += H_ops(s) if k == "H" else W_ops(s)
                    todo.remove((s, k)); budget -= 1
            for s in comp.get(i, []):
                compute(s, side)
            while side: side.pop(0)()
            if i == LASTI and not DEFER:
                assert not todo
                for u in range(2):
                    for t in range(2):
                        for j in range(4):
                            e.ds_write("ds_write_b128", vRw, ACC[u][t][4 * j:4 * j + 4],
                                       offset=(t * 2 + u) * 4096 + j * 1024)
                e.wait_lg_all()
                if not FUSE3: e.raw("s_setprio 2")
            if i == 15 and not FUSE3:
                X = [V(16 + 16 * w, 16) for w in range(4)]
                for w in range(4):
                    for j in range(4):
                        e.ds_read("ds_read_b128", X[w][4 * j:4 * j + 4], vRr, offset=w * 16384 + j * 1024)
                for r in range(16):
                    e.valu("v_add_f32", X[0][r], X[0][r], X[1][r])
                    e.valu("v_add_f32", X[2][r], X[2][r], X[3][r])
                for r in range(16):
                    e.valu("v_add_f32", X[0][r], X[0][r], X[2][r])
                for j in range(8):
                    e.valu("v_cvt_pk_bf16_f32", X[1][j], X[0][2 * j], X[0][2 * j + 1])
                e.salu("s_lshr_b32", sT0, sW4, 1)
                e.salu("s_lshl_b32", sT1, sMt64, 1)
                e.salu("s_add_u32", sT0, sT0, sT1)
                e.salu("s_mul_i32", sT0, sT0, 14)
                e.salu("s_and_b32", sT1, sW4, 1)
                e.salu("s_add_u32", sT0, sT0, sT1)
                e.salu("s_lshl_b32", sT1, sNt, 1)
                e.salu("s_add_u32", sT0, sT0, sT1)
                e.salu("s_lshl_b32", sT0, sT0, 11)
                e.salu("s_add_u32", sT0, sT0, BF)
                e.buf_store(X[1][0:4], vLane16, sWS, sT0, offset=0, flags=STF)
                e.buf_store(X[1][4:8], vLane16, sWS, sT0, offset=1024, flags=STF)
        if i + 2 <= 15:
            e.wait_vm_tag(("KV", i + 2))
        if i == 13 and not FUSE3:
            srd(e, sWo, KO, 448 * 896)
            e.salu("s_lshl_b32", sT0, sIdx, 2)
            e.salu("s_add_u32", sT0, sT0, sW4)
            e.salu("s_mul_i32", sT0, sT0, 25 * 128)
            e.valu("v_min_u32", vX0, 24, lane)
            e.valu("v_lshlrev_b32", vX0, 7, vX0)
            e.buf_load(V(10), vX0, sWo, sT0, offset=0)
        if FUSE3 and gemm and i >= 13:
            dma_Wo(i - 13)
        if i < 15 or FUSE3:
            e.barrier()
    if FUSE3:
        sHead, sQblk = S(29), S(30)
        e.barrier()
        if gemm:
            assert not todo
            dma_Wo(3)
        if R1B: e.barrier()
        if gemm:
            dl = list(range(14 - DEFER, 14))
            for s_ in dl[:DSPLIT]:
                compute(s_, [])
            e.wait_vm_all()
        e.raw("s_setprio 3")
        e.barrier()
        flag_store(e, F3, sQblk, sHead)
        if gemm and DEFER:
            for s_ in dl[DSPLIT:]:
                compute(s_, [])
            e.salu("s_lshr_b32", sT0, sMt64, 1)
            e.salu("s_lshl_b32", sT0, sT0, 11)
            e.salu("s_add_u32", sT0, sT0, F3)
            e.valu("v_and_b32", vF2, 15, lane)
            e.valu("v_lshlrev_b32", vF2, 7, vF2)
            e.salu("s_mov_b32", sT1, "0x40000000")
            e.salu("s_cmp_eq_u32", sW4, 1)
            e.salu("s_cselect_b32", sT0, sT0, sT1)
            for u in range(2):
                for t in range(2):
                    if (u, t) == PLOOK:
                        e.buf_load(V(15), vF2, sWS, sT0, offset=0, flags=" sc1")
                    for j in range(4):
                        e.ds_write("ds_write_b128", vRw, ACC[u][t][4 * j:4 * j + 4],
                                   offset=(t * 2 + u) * 4096 + j * 1024)
            e.wait_lg_all()
            e.barrier()
        if not gemm:
            e.salu("s_sub_u32", sT0, S(2), sW4)
            e.salu("s_cmp_lg_u32", sT0, 255)
            e.raw("s_cbranch_scc1 L_k12_nadv")
            e.valu("v_lshlrev_b32", vF2, 7, lane)
            for j in range(4):
                e.salu("s_mov_b32", sT0, F2 + j * 8192)
                poll(e, f"L_k12_pc{j}", vF2, sWS, sT0, 64, V(15), sNonce)
            e.salu("s_mov_b32", sT0, NONCE)
            e.raw("s_mov_b64 exec, 1")
            e.buf_store(V(9), V(249), sWS, sT0, offset=0, flags=" sc1")
            e.raw("s_mov_b64 exec, -1")
            e.label("L_k12_nadv")
        if gemm:
            if not S1ST: e.stamp(6, True)
            e.salu("s_lshr_b32", sT0, sMt64, 1)
            e.salu("s_lshl_b32", sT0, sT0, 11)
            e.salu("s_add_u32", sT0, sT0, F3)
            e.valu("v_lshlrev_b32", vF2, 7, lane)
            e.raw(f"v_mov_b32 v8, {SIG + 64}")
            e.salu("s_cmp_lg_u32", sW4, 1)
            e.raw("s_cbranch_scc1 L_k12_w3")
            if DEFER:
                e.raw("s_waitcnt vmcnt(0)")
                e.raw(f"v_cmp_ne_u32 vcc, {sNonce}, v15")
                e.nop(1)
                e.raw("s_and_b32 s33, vcc_lo, 0xffff")
                e.raw("s_cbranch_scc0 L_k12_p3sig")
            poll(e, "L_k12_p3", vF2, sWS, sT0, 16, V(15), sNonce)
            e.label("L_k12_p3sig")
            e.raw(f"v_mov_b32 v9, {sNonce}")
            e.raw("ds_write_b32 v8, v9")
            e.raw("s_branch L_k12_p3ok")
            e.label("L_k12_w3")
            e.salu("s_mov_b32", sT2, 0)
            e.label("L_k12_w3b")
            e.raw("ds_read_b32 v9, v8")
            e.salu("s_add_u32", sT2, sT2, 1)
            e.raw("s_waitcnt lgkmcnt(0)")
            e.raw("v_readfirstlane_b32 s33, v9")
            e.salu("s_cmp_gt_u32", sT2, SPIN * 16)
            e.raw("s_cbranch_scc1 L_k12_p3ok")
            e.raw(f"s_cmp_eq_u32 s33, {sNonce}")
            e.raw("s_cbranch_scc1 L_k12_p3ok")
            e.raw("s_sleep 1")
            e.raw("s_branch L_k12_w3b")
            e.label("L_k12_p3ok")
            e.vm, e.last = [], {}
            if not S1ST: e.stamp(7, True)
            e.salu("s_lshr_b32", sT0, sW4, 1)
            e.salu("s_lshl_b32", sT0, sT0, 15)
            e.salu("s_and_b32", sT1, sW4, 1)
            e.salu("s_lshl_b32", sT1, sT1, 12)
            e.salu("s_add_u32", sT2, sT0, sT1)
            e.salu("s_lshl_b32", sT1, sMt64, 16)
            e.salu("s_add_u32", sT1, sT1, sT2)
            e.salu("s_add_u32", sT1, sT1, OF)
            for c in range(4):
                e.salu("s_add_u32", "m0", sT2, OREG + c * 8192)
                e.salu("s_add_u32", sT0, sT1, c * 8192)
                for i in range(4):
                    e.buf_load_lds(vLane16, sWS, sT0, offset=i * 1024, tag=("O", c), flags=LDF)
                if c >= OLEAD:
                    e.wait_vm_tag(("O", c - OLEAD))
                    e.barrier()
            for c in range(4 - OLEAD, 4):
                e.wait_vm_tag(("O", c))
                e.barrier()
    e.stamp(9); e.stamp(13, True)
    e.dump_stamps(sWS, 0, sWave)


K12_DESC = dict(name=KNAME, vgpr=256, acc=256, sgpr=96, grid=256, block=512, lds=LDS)
```
